```python
import torch

def _softmax(x, axis=-1):
    return torch.softmax(x, dim=axis)
def _gelu(x):
    return torch.nn.functional.gelu(x, approximate="tanh")
def _silu(x):
    return torch.nn.functional.silu(x)
def _sigmoid(x):
    return torch.sigmoid(x)
def _layernorm(x, axis=-1, eps=1e-5):
    m = x.mean(dim=axis, keepdim=True)
    v = x.var(dim=axis, keepdim=True, unbiased=False)
    return (x - m) / torch.sqrt(v + eps)
def _scatter_add(tgt, idx, src, axis=0):
    return tgt.clone().index_add_(axis, idx, src)
def _segment_sum(src, seg, n):
    out = torch.zeros((n,) + src.shape[1:], dtype=src.dtype)
    return out.index_add_(0, seg, src)
def _pad(x, pw):
    flat = tuple(v for pair in reversed(pw) for v in pair)
    return torch.nn.functional.pad(x, flat)

kernel_name = 'standalone__mha_block_cached__near_ridge'

def setup_inputs():

    _w = (lambda a: (lambda t: t.to(torch.bfloat16) if t.is_floating_point() else t)(torch.as_tensor(a)))
    B, Sq, D = 8, 240, 640
    H, Sk, Dh = 32, 1024, 192
    return {
        "x": _w((lambda *s: torch.randn(*s, dtype=torch.bfloat16) * 0.8)(B, Sq, D)),
        "k_cache": _w((lambda *s: torch.randn(*s, dtype=torch.bfloat16) * 0.8)(B, H, Sk, Dh)),
        "v_cache": _w((lambda *s: torch.randn(*s, dtype=torch.bfloat16) * 0.05)(B, H, Sk, Dh)),
        "wq": _w((lambda *s: torch.randn(*s, dtype=torch.bfloat16) * 0.8)(D, H * Dh) * (D ** -0.5)),
        "wo": _w((lambda *s: torch.randn(*s, dtype=torch.bfloat16) * 0.05)(H * Dh, D) * ((H * Dh) ** -0.5)),
    }

def reference(x, k_cache, v_cache, wq, wo):
    B, Sq, D = x.shape
    H, Dh = 32, 192
    q = (lambda x, *d: x.permute(*d))((x @ wq).reshape(B, Sq, H, Dh), 0, 2, 1, 3)
    scores = torch.einsum("bhqd,bhkd->bhqk", q, k_cache) * (Dh ** -0.5)
    p = _softmax(scores, axis=-1)
    o = torch.einsum("bhqk,bhkd->bhqd", p, v_cache)
    return (lambda x, *d: x.permute(*d))(o, 0, 2, 1, 3).reshape(B, Sq, H * Dh) @ wo
```

```python
import re


def regs(cls, base, n=1):
    return [f"{cls}{base+i}" for i in range(n)]


def rng(cls, base, n):
    return f"{cls}{base}" if n == 1 else f"{cls}[{base}:{base+n-1}]"


class I:
    __slots__ = ("text", "kind", "rd", "wr", "meta")

    def __init__(self, text, kind, rd=(), wr=(), **meta):
        self.text = text
        self.kind = kind
        self.rd = set(rd)
        self.wr = set(wr)
        self.meta = meta

    def __repr__(self):
        return f"<{self.text}>"


_REG_RE = re.compile(r"(?<![\w.])([vas])(?:(\d+)|\[(\d+):(\d+)\])(?![\w])")


def _parse_regs(op):
    out = []
    for m in _REG_RE.finditer(op):
        c = m.group(1)
        if m.group(2) is not None:
            out.append(f"{c}{m.group(2)}")
        else:
            out += [f"{c}{k}" for k in range(int(m.group(3)), int(m.group(4)) + 1)]
    for sp in ("vcc", "m0", "exec"):
        if re.search(rf"(?<![\w]){sp}(?![\w])", op):
            out.append(sp)
    return out


TRANS = ("v_exp_f32", "v_log_f32", "v_rcp_f32", "v_rsq_f32", "v_sqrt_f32")


def V(text, **meta):
    op, rest = text.split(None, 1)
    ops = [o.strip() for o in rest.split(",")]
    wr = _parse_regs(ops[0])
    rd = []
    for o in ops[1:]:
        rd += _parse_regs(o)
    kind = "valu"
    if op.startswith(TRANS):
        kind = "trans"
    if op.startswith("v_permlane"):
        kind = "perm"
        rd += wr
        wr = wr + _parse_regs(ops[1])
    if op.startswith(("v_fmac", "v_writelane")):
        rd += wr
    return I(text, kind, rd, wr, **meta)


def S(text, **meta):
    parts = text.split(None, 1)
    op = parts[0]
    ops = [o.strip() for o in parts[1].split(",")] if len(parts) > 1 else []
    if op.startswith("s_cmp"):
        wr = []
        rd = sum((_parse_regs(o) for o in ops), [])
    else:
        wr = _parse_regs(ops[0]) if ops else []
        rd = sum((_parse_regs(o) for o in ops[1:]), [])
    return I(text, "salu", rd, wr, **meta)


def NOP(n):
    return I(f"s_nop {n}", "nop", n=n + 1)


def RAW(text):
    return I(text, "raw")


def LABEL(name):
    return I(f"{name}:", "label")


def MFMA(D, A, B, C):
    ct = "0" if C == 0 else rng(C[0], C[1], 4)
    t = f"v_mfma_f32_16x16x32_bf16 {rng(D[0], D[1], 4)}, {rng(A[0], A[1], 4)}, {rng(B[0], B[1], 4)}, {ct}"
    ab = regs(A[0], A[1], 4) + regs(B[0], B[1], 4)
    c = [] if C == 0 else regs(C[0], C[1], 4)
    return I(t, "mfma", ab + c, regs(D[0], D[1], 4), ab=set(ab), c=set(c), D=D, C=C)


def DSR128(dst, addr, off, tag=None):
    assert 0 <= off < 65536, off
    return I(f"ds_read_b128 {rng(dst[0], dst[1], 4)}, v{addr} offset:{off}", "lds", [f"v{addr}"],
             regs(dst[0], dst[1], 4), tag=tag)


def DSTR(dst, addr, off, tag=None):
    assert 0 <= off < 65536, off
    return I(f"ds_read_b64_tr_b16 {rng(dst[0], dst[1], 2)}, v{addr} offset:{off}", "lds", [f"v{addr}"],
             regs(dst[0], dst[1], 2), tag=tag)


def DMA(voff, srd, soff, imm, tag, flags="", after=(), region=None):
    so = soff if isinstance(soff, str) else str(soff)
    o = f" offset:{imm}" if imm else ""
    f = f" {flags}" if flags else ""
    rd = [f"v{voff}", "m0"] + regs("s", srd, 4) + ([so] if so.startswith("s") else [])
    return I(f"buffer_load_dwordx4 v{voff}, s[{srd}:{srd+3}], {so} offen{o}{f} lds", "dma", rd, [], tag=tag,
             after=tuple(after), region=region)


def VLOAD(dst, voff, srd, soff, imm, tag=None, flags="", n=4):
    so = soff if isinstance(soff, str) else str(soff)
    o = f" offset:{imm}" if imm else ""
    f = f" {flags}" if flags else ""
    sfx = {1: "dword", 2: "dwordx2", 4: "dwordx4"}[n]
    rd = [f"v{voff}"] + regs("s", srd, 4) + ([so] if so.startswith("s") else [])
    return I(f"buffer_load_{sfx} {rng(dst[0], dst[1], n)}, v{voff}, s[{srd}:{srd+3}], {so} offen{o}{f}", "vload", rd,
             regs(dst[0], dst[1], n), tag=tag)


def VSTORE(src, voff, srd, soff, imm, flags="", n=4, tag=None):
    so = soff if isinstance(soff, str) else str(soff)
    o = f" offset:{imm}" if imm else ""
    f = f" {flags}" if flags else ""
    sfx = {1: "dword", 2: "dwordx2", 4: "dwordx4"}[n]
    rd = [f"v{voff}"] + regs(src[0], src[1], n) + regs("s", srd, 4) + ([so] if so.startswith("s") else [])
    return I(f"buffer_store_{sfx} {rng(src[0], src[1], n)}, v{voff}, s[{srd}:{srd+3}], {so} offen{o}{f}", "vstore", rd,
             [], data=set(regs(src[0], src[1], n)), tag=tag, n=n)


def WAITV(*tags):
    return I("s_waitcnt", "wait", vtags=tuple(tags), vm=None, lg=None)


def WAIT(vm=None, lg=None):
    return I("s_waitcnt", "wait", vtags=(), vm=vm, lg=lg)


def BARRIER(frees=()):
    return I("s_barrier", "barrier", after=tuple(frees))


class Gap:
    def __init__(self, mf):
        self.mf = mf
        self.sca = []
        self.vec = []
        self.post = []

    def cost(self):
        c = 0
        for x in self.vec:
            c += {"trans": 2, "dma": 3, "vload": 3, "vstore": 3}.get(x.kind, 1)
        return c

    def isdma(self):
        return any(x.kind in ("dma", "vload", "vstore") for x in self.vec)

    def free(self):
        return 0 if self.isdma() else 2 - self.cost()

    def lin(self):
        v = [x for x in self.vec if x.kind in ("lds", "ldsw")] + [x for x in self.vec if x.kind not in ("lds", "ldsw")]
        return [self.mf] + self.sca + v + self.post


class Prog:
    def __init__(self):
        self.el = []
        self.flex = []

    def seq(self, *ins):
        for x in ins:
            if isinstance(x, (list, tuple)):
                self.seq(*x)
            else:
                self.el.append(x)

    def gaps(self, mfs):
        g = [Gap(m) for m in mfs]
        self.el += g
        return g

    def flex_scalar(self, ins, cands):
        self.flex.append((ins, list(cands)))

    def insert_waits(self):
        lds_issued = 0
        lds_done = 0
        pend = {}
        tag_last = {}
        vm_issued = 0
        vm_done = 0
        vpend = {}
        vtag_last = {}
        gap_hist = []
        out = []

        def add_wait(slotlist, kind, cnt):
            for x in slotlist:
                if x.kind == "wait":
                    if x.meta[kind] is None or x.meta[kind] > cnt:
                        x.meta[kind] = cnt
                    return
            w = WAIT()
            w.meta[kind] = cnt
            slotlist.insert(0, w)

        def need_of(x):
            k = -1
            for r in (x.rd | x.wr):
                if r in pend and pend[r] >= lds_done:
                    k = max(k, pend[r])
            for t in x.meta.get("after", ()):
                if t in tag_last and tag_last[t] >= lds_done:
                    k = max(k, tag_last[t])
            kv = -1
            for r in (x.rd | x.wr):
                if r in vpend and vpend[r] >= vm_done:
                    kv = max(kv, vpend[r])
            return k, kv

        def account(x):
            nonlocal lds_issued, vm_issued, lds_done, vm_done
            if x.kind in ("lds", "ldsw"):
                for r in x.wr:
                    pend[r] = lds_issued
                if x.meta.get("tag") is not None:
                    tag_last[x.meta["tag"]] = lds_issued
                lds_issued += 1
                assert lds_issued - lds_done <= 15 or True
            elif x.kind in ("dma", "vload", "vstore"):
                for r in x.wr:
                    vpend[r] = vm_issued
                if x.meta.get("tag") is not None:
                    vtag_last[x.meta["tag"]] = vm_issued
                vm_issued += 1
            elif x.kind == "wait":
                if x.meta["vtags"]:
                    k = max(vtag_last[t] for t in x.meta["vtags"])
                    c = vm_issued - k - 1
                    assert c <= 63, (c, x.meta)
                    if x.meta["vm"] is None or x.meta["vm"] > c:
                        x.meta["vm"] = c
                if x.meta["vm"] is not None:
                    vm_done = max(vm_done, vm_issued - x.meta["vm"])
                if x.meta["lg"] is not None:
                    lds_done = max(lds_done, lds_issued - x.meta["lg"])

        def place(cands, k, which):
            nonlocal lds_done, vm_done
            idx = 1 if which == "lg" else 2
            best = None
            for c in cands:
                if c[idx] <= k:
                    break
                ok = (not c[3]) and (len(c[0]) == 0 or any(y.kind == "wait" for y in c[0]))
                if ok:
                    best = c
                    break
            if best is None:
                for c in cands:
                    if c[idx] > k:
                        best = c
                        self.warn.append(f"wait costs a slot near lds#{k} {which}")
                        break
            if best is None:
                return False
            cnt = min(best[idx] - k - 1, 15 if which == "lg" else 63)
            add_wait(best[0], which, cnt)
            if which == "lg":
                lds_done = max(lds_done, best[idx] - cnt)
            else:
                vm_done = max(vm_done, best[idx] - cnt)
            return True

        self.warn = []
        for e in self.el:
            if isinstance(e, Gap):
                k, kv = need_of(e.mf)
                cands = [(g.sca, li, vi, g.isdma()) for (g, li, vi) in reversed(gap_hist[-3:])]
                for kk, which in ((k, "lg"), (kv, "vm")):
                    if kk >= 0 and not place(cands, kk, which):
                        w = WAIT()
                        w.meta[which] = min((lds_issued if which == "lg" else vm_issued) - kk - 1, 15 if which == "lg" else 63)
                        if gap_hist:
                            gap_hist[-1][0].post.insert(0, w)
                            self.warn.append(f"late wait before {e.mf.text}")
                        else:
                            out.append(w)
                        account(w)
                gap_hist.append((e, lds_issued, vm_issued))
                for x in list(e.sca):
                    k, kv = need_of(x)
                    if k >= 0:
                        cands = [(g.sca, li, vi, g.isdma()) for (g, li, vi) in reversed(gap_hist[-4:-1])]
                        if not place(cands, k, "lg"):
                            add_wait(e.sca, "lg", min(lds_issued - k - 1, 15))
                            lds_done = k + 1
                            self.warn.append(f"wait in same slot as {x.text}")
                    account(x)
                for x in e.lin()[1 + len(e.sca):]:
                    k, kv = need_of(x)
                    cands = [(g.sca, li, vi, g.isdma()) for (g, li, vi) in reversed(gap_hist[-4:])]
                    for kk, which in ((k, "lg"), (kv, "vm")):
                        if kk >= 0:
                            assert place(cands, kk, which), f"cannot place wait for {x.text}"
                    account(x)
                out.append(e)
            else:
                if e.kind not in ("label", "raw") or e.meta.get("brk"):
                    gap_hist = []
                k, kv = need_of(e)
                if k >= 0 or kv >= 0:
                    w = WAIT(vm=(min(vm_issued - kv - 1, 63) if kv >= 0 else None), lg=(min(lds_issued - k - 1, 15) if k >= 0 else None))
                    out.append(w)
                    account(w)
                account(e)
                out.append(e)
        self.el = out

    def place_flex(self):
        for ins, cands in self.flex:
            for g in cands:
                if not g.isdma() and len(g.sca) == 0:
                    g.sca.append(ins)
                    break
            else:
                for g in cands:
                    if not g.isdma() and len(g.sca) - 1 + g.cost() < 2:
                        g.sca.append(ins)
                        break
                else:
                    self.warn.append(f"flex scalar costs a slot: {ins.text}")
                    [g for g in cands if not g.isdma()][0].sca.append(ins)
        self.flex = []

    def linear(self):
        out = []
        for e in self.el:
            out += e.lin() if isinstance(e, Gap) else [e]
        return out

    def overfull(self):
        n = 0
        for e in self.el:
            if isinstance(e, Gap):
                ns = len(e.sca) + len([p for p in e.post if p.kind not in ("label", "raw")])
                c = e.cost()
                tot = (c + ns) if e.isdma() else (c + max(ns, 1))
                if tot > 3:
                    n += tot - 3
        return n


def text_of(x):
    if x.kind == "wait":
        p = []
        if x.meta["vm"] is not None:
            p.append(f"vmcnt({x.meta['vm']})")
        if x.meta["lg"] is not None:
            p.append(f"lgkmcnt({x.meta['lg']})")
        assert p
        return "s_waitcnt " + " ".join(p)
    return x.text


def check_hazards(lin):
    probs = []
    pos = 0
    last = {}
    mf_last = {}
    for x in lin:
        if x.kind in ("label", "raw"):
            continue

        def dist(key):
            return pos - last[key] - 1 if key in last else 10**9

        isv = x.kind in ("valu", "trans", "perm")
        ismem = x.kind in ("lds", "ldsw", "dma", "vload", "vstore")
        if x.kind == "mfma":
            for r in x.rd:
                if dist(("valu_w", r)) < 2:
                    probs.append(f"VALU->MFMA {r}: {x.text}")
            for r in x.meta["ab"]:
                if dist(("mf_w", r)) < 8:
                    probs.append(f"MFMA D->AB {r}: {x.text}")
            for r in x.meta["c"]:
                if r in mf_last and mf_last[r][1] != x.meta["C"] and dist(("mf_w", r)) < 6:
                    probs.append(f"MFMA D->C overlap {r}: {x.text}")
        if isv or ismem:
            for r in (x.rd | x.wr):
                if dist(("mf_w", r)) < 8:
                    probs.append(f"MFMA D->VALU/mem {r} d={dist(('mf_w', r))}: {x.text}")
        if isv:
            for r in x.wr:
                if dist(("mf_c", r)) < 3:
                    probs.append(f"MFMA C WAR {r}: {x.text}")
                if dist(("st_d", r)) < 2:
                    probs.append(f"store data WAR {r}: {x.text}")
            if x.kind != "trans":
                for r in x.rd:
                    if dist(("trans_w", r)) < 1:
                        probs.append(f"trans->use {r}: {x.text}")
            if x.kind == "perm":
                for r in x.rd:
                    if dist(("valu_w", r)) < 2:
                        probs.append(f"VALU->perm {r}: {x.text}")
            if x.text.startswith(("v_readfirstlane", "v_readlane")):
                for r in x.rd:
                    if dist(("valu_w", r)) < 1:
                        probs.append(f"VALU->readlane {r}: {x.text}")
            for r in x.rd:
                if (r.startswith("s") or r == "vcc") and dist(("valu_w", r)) < 2:
                    probs.append(f"VALU sgpr->VALU {r}: {x.text}")
        if x.kind in ("lds", "vload"):
            for r in x.wr:
                if dist(("st_d", r)) < 1:
                    probs.append(f"store data WAR {r}: {x.text}")
        if x.kind in ("dma", "vload", "vstore"):
            for r in x.rd:
                if r.startswith("s") and dist(("valu_w", r)) < 5:
                    probs.append(f"VALU sgpr->VMEM {r}: {x.text}")
            if x.kind == "dma" and dist(("salu_w", "m0")) < 1:
                probs.append(f"m0->DMA: {x.text}")
        if ismem:
            for r in x.rd:
                if dist(("trans_w", r)) < 1:
                    probs.append(f"trans->mem {r}: {x.text}")
        if x.kind == "mfma":
            for r in x.wr:
                last[("mf_w", r)] = pos
                mf_last[r] = (pos, x.meta["D"])
            for r in x.meta["c"]:
                last[("mf_c", r)] = pos
        elif isv:
            for r in x.wr:
                last[("valu_w", r)] = pos
                last.pop(("mf_w", r), None)
                if x.kind == "trans":
                    last[("trans_w", r)] = pos
        elif x.kind == "salu":
            for r in x.wr:
                last[("salu_w", r)] = pos
        elif x.kind == "vstore" and x.meta.get("n", 4) >= 3:
            for r in x.meta["data"]:
                last[("st_d", r)] = pos
        pos += x.meta["n"] if x.kind == "nop" else 1
    return probs


def check_lds_protocol(lin, private=lambda tag: False):
    probs = []
    vm_issued = 0
    vm_done = 0
    lds_issued = 0
    lds_done = 0
    dma_last = {}
    visible = set()
    landed_pos = {}
    read_last = {}
    freed = set()
    occupant = []
    for x in lin:
        if x.kind == "wait":
            if x.meta["vm"] is not None:
                vm_done = max(vm_done, vm_issued - x.meta["vm"])
            if x.meta["lg"] is not None:
                lds_done = max(lds_done, lds_issued - x.meta["lg"])
        elif x.kind == "barrier":
            for t, k in dma_last.items():
                if k < vm_done:
                    visible.add(t)
            for t, k in read_last.items():
                if k < lds_done:
                    freed.add(t)
        elif x.kind in ("lds", "ldsw"):
            t = x.meta.get("tag")
            if t is not None and x.kind == "lds":
                if t in dma_last:
                    if private(t):
                        if dma_last[t] >= vm_done:
                            probs.append(f"RAW private {t}: {x.text}")
                    elif t not in visible:
                        probs.append(f"RAW shared {t}: {x.text}")
                    if not any(o[2] == t for o in occupant):
                        probs.append(f"read of evicted tile {t}: {x.text}")
                else:
                    probs.append(f"read of never-loaded tile {t}: {x.text}")
                read_last[t] = lds_issued
                freed.discard(t)
            lds_issued += 1
        elif x.kind in ("dma", "vload", "vstore"):
            if x.kind == "dma":
                t = x.meta["tag"]
                for (lo, hi) in x.meta["region"]:
                    for o in list(occupant):
                        if o[2] != t and o[0] < hi and lo < o[1]:
                            pt = o[2]
                            if pt in read_last:
                                if private(pt) and private(t):
                                    if read_last[pt] >= lds_done:
                                        probs.append(f"WAR private {pt}->{t}")
                                elif pt not in freed:
                                    probs.append(f"WAR shared {pt}->{t}")
                            occupant.remove(o)
                    if (lo, hi, t) not in occupant:
                        occupant.append((lo, hi, t))
                dma_last[t] = vm_issued
                visible.discard(t)
            vm_issued += 1
    return probs
```

```python
import math, struct
from asmlib import *

SLOT = 12288
KREG = 0
VREG = 6 * SLOT
EREG = 12 * SLOT
LDS_BYTES = 163840

SX, SW, SK, SV, SO = 8, 12, 16, 20, 24
sW, sB, sH, sWOFF, sXB0, sXB1 = 34, 35, 36, 37, 38, 39
sOW, sOX, sOKV, sCNT, sTH = 40, 41, 42, 43, 44
sC = 46
sRET = 48
sPAD = 50
sT0 = 52
vAK, vAV, vAW, vAX = 8, 10, 14, 18
vOK, vOV, vOW, vOX = 22, 25, 28, 31
vFR = 40
vS, vP, vNM, vTS, vL, vE = 64, 96, 128, 144, 148, 152


def f32(x):
    return "0x%08x" % struct.unpack("<I", struct.pack("<f", x))[0]


def acc(dt, qt):
    return ("v", (160 if dt % 2 == 0 else 64) + ((dt >> 1) * 4 + qt) * 4)


def Qf(qt, s):
    return acc(2 * s, qt)


def Oa(dt, qt):
    return ("a", (dt * 4 + qt) * 4)


def Kf(a, s):
    return ("a", 192 + (a * 6 + s) * 4)


def Xf(beta, u, qt):
    return ("a", beta * 32 + (u * 4 + qt) * 4)


def St(a, qt):
    return ("v", vS + (a * 4 + qt) * 4)


def Pf(par, qt):
    return ("v", vP + par * 16 + qt * 4)


def NM(qt):
    return ("v", vNM + qt * 4)


def FR(i):
    return ("v", vFR + (i % 6) * 4)


def wslot(n):
    buf = (n // 2) % 4
    base = {2: KREG, 3: KREG + 2 * SLOT, 0: KREG + 4 * SLOT, 1: VREG + 4 * SLOT}[buf]
    return base + (n % 2) * SLOT


def kslot(n):
    return KREG + (n % 6) * SLOT


def vslot(n):
    return VREG + (n % 6) * SLOT


def xregion(beta):
    return [(VREG + 2 * beta * SLOT, VREG + 2 * beta * SLOT + 3 * 8192), (EREG + beta * 8192, EREG + beta * 8192 + 8192)]


def vtype_read(dst, slot, dt, t, tag):
    if slot >= VREG:
        a, off = vAV, slot - VREG
    else:
        a, off = vAW, slot
    return DSTR((dst[0], dst[1] + 2 * t), a + (dt & 3), off + 1536 * t + 128 * (dt >> 2), tag)


def k_read(n, a, s):
    return DSR128(Kf(a, s), vAK + (s & 1), kslot(n) + 1536 * a + 128 * (s >> 1), ("K", n))


class DmaGroup:
    def __init__(self, pre, dmas):
        self.pre = pre
        self.dmas = dmas


def grp_W(n, cfg):
    sl = wslot(n)
    return [DmaGroup([S(f"s_add_u32 m0, s{sWOFF}, {sl}"), S(f"s_mov_b32 s{sOW}, {n*393216}")],
                     [DMA(vOW + j, SW, f"s{sOW}", 1024 * j, ("W", n), cfg["wflags"], region=[(sl, sl + SLOT)]) for j in range(3)])]


def grp_X(c, cfg, after=()):
    beta = c & 1
    sb = sXB0 + beta
    g0 = DmaGroup([S(f"s_mov_b32 m0, s{sb}"), S(f"s_mov_b32 s{sOX}, {128*c}")],
                  [DMA(vOX + j, SX, f"s{sOX}", 1024 * j, ("X", c), cfg["xflags"], after=after, region=xregion(beta)) for j in range(4)])
    g1 = DmaGroup([S(f"s_add_u32 m0, s{sb}, 4096")],
                  [DMA(vOX + 4 + j, SX, f"s{sOX}", 1024 * j, ("X", c), cfg["xflags"], region=xregion(beta)) for j in range(4)])
    return [g0, g1]


def grp_K(n, cfg, loop=False):
    sl = kslot(n)
    so = S(f"s_add_u32 s{sOKV}, s{sOKV}, {SLOT}") if loop else S(f"s_mov_b32 s{sOKV}, {n*SLOT}")
    return [DmaGroup([S(f"s_add_u32 m0, s{sWOFF}, {sl}"), so],
                     [DMA(vOK + j, SK, f"s{sOKV}", 1024 * j, ("K", n), cfg["kvflags"], region=[(sl, sl + SLOT)]) for j in range(3)])]


def grp_V(n, cfg, loop=False):
    sl = vslot(n)
    pre = [S(f"s_add_u32 m0, s{sWOFF}, {sl}")]
    if not loop:
        pre.append(S(f"s_mov_b32 s{sOKV}, {(n+1)*SLOT}"))
    return [DmaGroup(pre,
                     [DMA(vOV + j, SV, f"s{sOKV}", 1024 * j, ("V", n), cfg["kvflags"], region=[(sl, sl + SLOT)]) for j in range(3)])]


def seq_groups(P, groups):
    for g in groups:
        P.seq(g.pre)
        if g.pre[-1].text.split()[1].startswith("m0"):
            P.seq(NOP(0))
        P.seq(g.dmas)


def place_groups(P, allg, first_idx, groups, slots):
    it = iter(slots)
    lo = first_idx
    for g in groups:
        idx = []
        while True:
            k = next(it)
            if not idx and k - lo < len(g.pre) + 1:
                continue
            idx.append(k)
            if len(idx) == len(g.dmas):
                break
        for s_ in g.pre:
            P.flex_scalar(s_, allg[lo:idx[0]])
        for k, d in zip(idx, g.dmas):
            assert not allg[k].vec, (k, allg[k].vec)
            allg[k].vec.append(d)
        lo = idx[-1] + 1


def stamp(P, cfg, k):
    if cfg.get("stamps"):
        P.seq(I(f"s_memtime s[{sT0+4*k}:{sT0+4*k+1}]", "raw", brk=False), I(f"s_memrealtime s[{sT0+4*k+2}:{sT0+4*k+3}]", "raw"),
              WAIT(lg=0))


def prologue(P, cfg):
    A = P.seq
    A(S("s_cmp_ge_u32 s2, 256"), I("s_cbranch_scc1 K1_done", "branch"))
    A(RAW("s_load_dwordx4 s[4:7], s[0:1], 0"), RAW("s_load_dwordx4 s[28:31], s[0:1], 16"), RAW("s_load_dwordx2 s[32:33], s[0:1], 56"))
    if cfg.get("stamps"):
        A(RAW(f"s_memtime s[{sT0}:{sT0+1}]"), RAW(f"s_memrealtime s[{sT0+2}:{sT0+3}]"))
    A(V("v_lshrrev_b32 v1, 6, v0"), V("v_and_b32 v0, 63, v0"))
    A(V(f"v_readfirstlane_b32 s{sW}, v1"))
    A(S("s_and_b32 s3, s2, 7"), S(f"s_lshr_b32 s{sCNT}, s2, 3"))
    m = cfg["map"]
    if m == "batch":
        A(S(f"s_mov_b32 s{sB}, s3"), S(f"s_mov_b32 s{sH}, s{sCNT}"))
    elif m == "hg4":
        A(S(f"s_lshr_b32 s{sB}, s{sCNT}, 2"), S(f"s_and_b32 s{sH}, s{sCNT}, 3"), S("s_lshl_b32 s3, s3, 2"), S(f"s_add_u32 s{sH}, s{sH}, s3"))
    elif m == "4x8":
        A(S(f"s_and_b32 s{sB}, s3, 1"), S(f"s_lshl_b32 s{sB}, s{sB}, 2"), S(f"s_and_b32 s{sH}, s{sCNT}, 3"), S(f"s_add_u32 s{sB}, s{sB}, s{sH}"),
          S("s_lshr_b32 s3, s3, 1"), S("s_lshl_b32 s3, s3, 3"), S(f"s_lshr_b32 s{sH}, s{sCNT}, 2"), S(f"s_add_u32 s{sH}, s{sH}, s3"))
    A(V("v_lshrrev_b32 v2, 3, v0"), V("v_lshl_add_u32 v2, v1, 6, v2"), V("v_mul_u32_u24 v2, 1280, v2"),
      V("v_lshrrev_b32 v3, 4, v0"), V("v_and_b32 v4, 7, v0"), V("v_xor_b32 v3, v3, v4"),
      V(f"v_lshl_add_u32 v{vOX}, v3, 4, v2"), V("v_xor_b32 v3, 4, v3"), V("v_lshl_add_u32 v4, v3, 4, v2"))
    for j in range(1, 8):
        src = f"v{vOX}" if j % 2 == 0 else "v4"
        A(V(f"v_add_u32 v{vOX+j}, {10240*j - 1024*(j&3)}, {src}"))
    A(S(f"s_mul_i32 s{sWOFF}, s{sW}, 3072"), S(f"s_lshl_b32 s{sXB0}, s{sW}, 13"),
      S(f"s_add_u32 s{sXB1}, s{sXB0}, {VREG+2*SLOT}"), S(f"s_add_u32 s{sXB0}, s{sXB0}, {VREG}"),
      S(f"s_cmp_eq_u32 s{sW}, 3"), S(f"s_cselect_b32 s{sXB0}, {EREG}, s{sXB0}"), S(f"s_cselect_b32 s{sXB1}, {EREG+8192}, s{sXB1}"),
      S(f"s_cselect_b32 s{sPAD}, {f32(-1000.0)}, 0"))
    A(V("v_and_b32 v5, 1, v1"), V("v_lshrrev_b32 v6, 1, v1"), V("v_lshl_or_b32 v6, v6, 2, v5"), V("v_lshlrev_b32 v5, 2, v5"))
    for j in range(3):
        A(V(f"v_add_u32 v2, {64*j}, v0"), V("v_mul_u32_u24 v3, 2731, v2"), V("v_lshrrev_b32 v3, 16, v3"),
          V("v_mul_u32_u24 v4, 24, v3"), V("v_sub_u32 v2, v2, v4"),
          V("v_and_b32 v4, 2, v3"),
          V("v_xor_b32 v2, v2, v4"),
          V("v_lshl_add_u32 v3, v1, 3, v3"),
          V("v_xor_b32 v4, v2, v5"),
          V("v_xor_b32 v2, v2, v6"),
          V("v_mul_u32_u24 v7, 12288, v3"), V(f"v_lshl_add_u32 v{vOW+j}, v4, 4, v7"),
          V("v_mul_u32_u24 v7, 384, v3"), V(f"v_lshl_add_u32 v{vOV+j}, v4, 4, v7"), V(f"v_lshl_add_u32 v{vOK+j}, v2, 4, v7"))
        if j:
            A(V(f"v_subrev_u32 v{vOW+j}, {1024*j}, v{vOW+j}"), V(f"v_subrev_u32 v{vOV+j}, {1024*j}, v{vOV+j}"),
              V(f"v_subrev_u32 v{vOK+j}, {1024*j}, v{vOK+j}"))
    A(RAW("s_waitcnt lgkmcnt(0)"))
    A(S(f"s_mul_i32 s3, s{sB}, 307200"), S(f"s_add_u32 s{SX}, s4, s3"), S(f"s_addc_u32 s{SX+1}, s5, 0"),
      S(f"s_mov_b32 s{SX+2}, 307200"), S(f"s_mov_b32 s{SX+3}, 0x20000"))
    A(S(f"s_mul_i32 s3, s{sH}, 384"), S(f"s_add_u32 s{SW}, s30, s3"), S(f"s_addc_u32 s{SW+1}, s31, 0"),
      S(f"s_sub_u32 s{SW+2}, 7864320, s3"), S(f"s_mov_b32 s{SW+3}, 0x20000"))
    seq_groups(P, grp_X(0, cfg) + grp_W(0, cfg) + grp_W(1, cfg) + grp_X(1, cfg))
    for n in range(2, 8):
        seq_groups(P, grp_W(n, cfg))
    A(S(f"s_lshl_b32 s{sCNT}, s{sB}, 5"), S(f"s_add_u32 s{sCNT}, s{sCNT}, s{sH}"), S(f"s_mul_i32 s3, s{sCNT}, 393216"),
      S(f"s_add_u32 s{SK}, s6, s3"), S(f"s_addc_u32 s{SK+1}, s7, 0"), S(f"s_mov_b32 s{SK+2}, 393216"), S(f"s_mov_b32 s{SK+3}, 0x20000"),
      S(f"s_add_u32 s{SV}, s28, s3"), S(f"s_addc_u32 s{SV+1}, s29, 0"), S(f"s_sub_u32 s{SV}, s{SV}, {SLOT}"), S(f"s_subb_u32 s{SV+1}, s{SV+1}, 0"),
      S(f"s_mov_b32 s{SV+2}, {393216+SLOT}"), S(f"s_mov_b32 s{SV+3}, 0x20000"),
      S(f"s_mul_i32 s3, s{sCNT}, 92160"), S(f"s_add_u32 s{SO}, s32, s3"), S(f"s_addc_u32 s{SO+1}, s33, 0"),
      S(f"s_mov_b32 s{SO+2}, 92160"), S(f"s_mov_b32 s{SO+3}, 0x20000"))
    c = math.log2(math.e) / math.sqrt(192.0)
    A(S(f"s_mov_b32 s{sC}, {f32(c)}"), S(f"s_mov_b32 s{sC+1}, {f32(c)}"), S(f"s_mov_b32 s{sTH}, {f32(cfg['thresh'])}"))
    A(V("v_and_b32 v1, 15, v0"), V("v_lshrrev_b32 v2, 4, v0"))
    A(V("v_lshrrev_b32 v3, 1, v1"), V("v_xor_b32 v3, v3, v2"), V("v_lshlrev_b32 v3, 4, v3"), V("v_lshl_add_u32 v3, v1, 7, v3"),
      V("v_xor_b32 v4, 64, v3"),
      V(f"v_add_u32 v{vAX}, s{sXB0}, v3"), V(f"v_add_u32 v{vAX+1}, s{sXB0}, v4"),
      V(f"v_add_u32 v{vAX+2}, s{sXB1}, v3"), V(f"v_add_u32 v{vAX+3}, s{sXB1}, v4"))
    A(V("v_lshrrev_b32 v3, 2, v1"), V("v_lshl_add_u32 v4, v2, 3, v3"), V("v_mul_u32_u24 v4, 384, v4"),
      V("v_and_b32 v5, 3, v1"), V("v_lshl_add_u32 v4, v5, 3, v4"),
      V("v_lshrrev_b32 v3, 3, v1"), V("v_and_b32 v5, 1, v2"), V("v_lshl_or_b32 v3, v5, 1, v3"))
    for e in range(4):
        A(V(f"v_xor_b32 v5, {e}, v3"), V(f"v_lshl_add_u32 v{vAW+e}, v5, 5, v4"), V(f"v_add_u32 v{vAV+e}, {VREG}, v{vAW+e}"))
    A(V("v_lshrrev_b32 v3, 2, v1"), V("v_and_b32 v4, 3, v1"), V("v_lshl_add_u32 v4, v3, 3, v4"), V("v_mul_u32_u24 v4, 384, v4"),
      V("v_and_b32 v3, 1, v3"), V("v_and_b32 v5, 2, v1"), V("v_or_b32 v3, v3, v5"), V("v_lshrrev_b32 v5, 3, v1"), V("v_lshl_or_b32 v3, v5, 2, v3"),
      V("v_lshrrev_b32 v5, 1, v2"), V("v_and_b32 v6, 1, v2"), V("v_lshl_or_b32 v5, v6, 1, v5"), V("v_xor_b32 v3, v3, v5"),
      V(f"v_lshl_add_u32 v{vAK}, v3, 4, v4"), V("v_xor_b32 v3, 4, v3"), V(f"v_lshl_add_u32 v{vAK+1}, v3, 4, v4"))


def x_read(c, u, qt):
    beta = c & 1
    return DSR128(Xf(beta, u, qt), vAX + 2 * beta + u, 2048 * qt, ("X", c))


def w_reads(stage, dt):
    gdt = stage * 12 + dt
    out = []
    for u in range(2):
        n = 2 * stage + u
        for t in range(2):
            out.append(vtype_read(FR(2 * (gdt % 3) + u), wslot(n), dt, t, ("W", n)))
    return out


def phase1(P, cfg):
    A = P.seq
    A(WAITV(("X", 0), ("W", 0), ("W", 1)), BARRIER())
    for u in range(2):
        for qt in range(4):
            A(x_read(0, u, qt))
    A(w_reads(0, 0), w_reads(0, 1))
    G = []
    for st in range(10):
        mfs = []
        for dt in range(12):
            gdt = st * 12 + dt
            for qt in range(4):
                for u in range(2):
                    C = 0 if (st == 0 and u == 0) else acc(dt, qt)
                    m = MFMA(acc(dt, qt), FR(2 * (gdt % 3) + u), Xf(st & 1, u, qt), C)
                    if qt == 0 and u == 0:
                        m.rd |= set(regs("v", FR(2 * (gdt % 3) + 1)[1], 4))
                        if dt == 0:
                            m.rd |= set(regs("a", Xf(st & 1, 0, 0)[1], 32))
                    mfs.append(m)
        G += P.gaps(mfs)
    for st in range(10):
        b = 96 * st
        for dt in range(2, 14):
            s2, d2 = (st, dt) if dt < 12 else (st + 1, dt - 12)
            if s2 == 10:
                continue
            g = b + 8 * (dt - 2) + (2 if dt == 12 else 0)
            r = w_reads(s2, d2)
            G[g].vec += r[:2]
            G[g + 1].vec += r[2:]
        if st < 9:
            G[b + 1].sca.append(WAITV(("X", st + 1)))
            rd = [x_read(st + 1, u, qt) for u in range(2) for qt in range(4)]
            for k, g in enumerate((2, 4, 6, 10)):
                G[b + g].vec += rd[2 * k:2 * k + 2]
        need = [("W", 2 * st + 2), ("W", 2 * st + 3)] if st < 9 else [("K", 0), ("K", 1)]
        G[b + 80].sca.append(WAITV(*need))
        G[b + 81].sca.append(BARRIER(frees=[("W", 2 * st), ("W", 2 * st + 1), ("X", st + 1)]))
    for s in range(6):
        G[96 * 9 + 82 + s // 2].vec.append(k_read(0, 0, s))
    def slots_from(lo, hi):
        return [k for k in range(lo, hi) if k % 8 in (3, 5) and k % 96 != 83]
    place_groups(P, G, 0, grp_X(2, cfg, after=[("X", 0)]) + grp_X(3, cfg, after=[("X", 1)]), slots_from(0, 80))
    for st in range(9):
        lo = 96 * st + 82
        if st + 4 < 10:
            gr = grp_W(2 * st + 8, cfg) + grp_W(2 * st + 9, cfg)
            place_groups(P, G, lo, gr, slots_from(lo, lo + 30))
            place_groups(P, G, lo + 30, grp_X(st + 4, cfg, after=[("X", st + 2)]), slots_from(lo + 30, lo + 94))
        else:
            gr = {6: grp_K(0, cfg) + grp_K(1, cfg),
                  7: grp_V(0, cfg) + grp_K(2, cfg) + grp_V(1, cfg) + grp_K(3, cfg),
                  8: grp_V(2, cfg) + grp_K(4, cfg) + grp_V(3, cfg) + grp_K(5, cfg)}[st]
            place_groups(P, G, lo, gr, slots_from(lo, lo + 94))
    lo = 96 * 9 + 82
    place_groups(P, G, lo, grp_V(4, cfg), [lo + 5, lo + 8, lo + 11])


def q_convert(P, cfg):
    A = P.seq
    A(NOP(7))
    for s in range(6):
        for qt in range(4):
            for dt in (2 * s, 2 * s + 1):
                r = acc(dt, qt)[1]
                A(V(f"v_pk_mul_f32 v[{r}:{r+1}], v[{r}:{r+1}], s[{sC}:{sC+1}]"), V(f"v_pk_mul_f32 v[{r+2}:{r+3}], v[{r+2}:{r+3}], s[{sC}:{sC+1}]"))
        for qt in range(4):
            a = acc(2 * s, qt)[1]
            b = acc(2 * s + 1, qt)[1]
            A(V(f"v_cvt_pk_bf16_f32 v{a}, v{a}, v{a+1}"), V(f"v_cvt_pk_bf16_f32 v{a+1}, v{a+2}, v{a+3}"),
              V(f"v_cvt_pk_bf16_f32 v{a+2}, v{b}, v{b+1}"), V(f"v_cvt_pk_bf16_f32 v{a+3}, v{b+2}, v{b+3}"))
        A(NOP(0))
        for qt in range(4):
            a = acc(2 * s, qt)[1]
            A(V(f"v_permlane16_swap_b32 v{a}, v{a+2}"), V(f"v_permlane16_swap_b32 v{a+1}, v{a+3}"))
    A(NOP(1))


def qk_mfmas(first):
    out = []
    for a in range(2):
        for qt in range(4):
            for s in range(6):
                C = (0 if first else NM(qt)) if s == 0 else St(a, qt)
                m = MFMA(St(a, qt), Kf(a, s), Qf(qt, s), C)
                if qt == 0 and s in (0, 3):
                    m.rd |= set(regs("a", Kf(a, s)[1], 12))
                out.append(m)
    return out


def pv_mfmas(j):
    out = []
    for dt in range(12):
        for qt in range(4):
            out.append(MFMA(Oa(dt, qt), FR(dt), Pf(j & 1, qt), 0 if j == 0 else Oa(dt, qt)))
    return out


def xmax(x, t, op):
    out = []
    for sw in ("v_permlane32_swap_b32", "v_permlane16_swap_b32"):
        for a, b in zip(x, t):
            out.append(V(f"v_mov_b32 v{b}, v{a}"))
        out.append(NOP(0))
        for a, b in zip(x, t):
            out.append(V(f"{sw} v{b}, v{a}"))
        for a, b in zip(x, t):
            out.append(V(f"{op} v{a}, v{a}, v{b}"))
    return out


def rowmax(dst):
    out = []
    for qt in range(4):
        s0, s1 = St(0, qt)[1], St(1, qt)[1]
        d = dst + qt
        out += [V(f"v_max3_f32 v{d}, v{s0}, v{s0+1}, v{s0+2}"), V(f"v_max3_f32 v{d}, v{d}, v{s0+3}, v{s1}"),
                V(f"v_max3_f32 v{d}, v{d}, v{s1+1}, v{s1+2}"), V(f"v_max_f32 v{d}, v{d}, v{s1+3}")]
    return out


def softmax_seq(par, delta):
    out = []
    for qt in range(4):
        for a in range(2):
            s = St(a, qt)[1]
            for r in range(4):
                out.append(V(f"v_sub_f32 v{vE+4*a+r}, v{s+r}, v{delta+qt}"))
        for k in range(8):
            out.append(V(f"v_exp_f32 v{vE+k}, v{vE+k}"))
        p = Pf(par, qt)[1]
        out.append(V(f"v_add_f32 v{vTS+qt}, v{vE}, v{vE+1}"))
        for k in range(2, 8):
            out.append(V(f"v_add_f32 v{vTS+qt}, v{vTS+qt}, v{vE+k}"))
        for k in range(4):
            out.append(V(f"v_cvt_pk_bf16_f32 v{p+k}, v{vE+2*k}, v{vE+2*k+1}"))
    return out


def first_tile(P, cfg):
    A = P.seq
    G = P.gaps(qk_mfmas(True))
    for s in range(6):
        G[s].vec.append(k_read(0, 1, s))
        G[26 + s].vec.append(k_read(1, 0, s))
    A(NOP(7))
    A(rowmax(1), xmax([1, 2, 3, 4], [vE, vE + 1, vE + 2, vE + 3], "v_max_f32"))
    A(V(f"v_subrev_f32 v4, s{sPAD}, v4"))
    for qt in range(4):
        for r in range(4):
            A(V(f"v_sub_f32 v{vNM+4*qt+r}, 0, v{1+qt}"))
        A(V(f"v_mov_b32 v{vL+qt}, 0"))
    A(softmax_seq(0, 1))
    A(WAITV(("V", 0), ("K", 2)), BARRIER(frees=[("K", 0)]))


def fallback(par):
    out = [LABEL(f"K1_fix{par}"), NOP(7)]
    out += rowmax(1)
    out += xmax([1, 2, 3, 4], [vE, vE + 1, vE + 2, vE + 3], "v_max_f32")
    for qt in range(4):
        out.append(V(f"v_max_f32 v{1+qt}, 0, v{1+qt}"))
    out += softmax_seq(par, 1)
    for qt in range(4):
        for r in range(4):
            out.append(V(f"v_sub_f32 v{vNM+4*qt+r}, v{vNM+4*qt+r}, v{1+qt}"))
    for qt in range(4):
        out.append(V(f"v_exp_f32 v{1+qt}, -v{1+qt}"))
    out.append(NOP(0))
    for qt in range(4):
        out.append(V(f"v_mul_f32 v{vL+qt}, v{vL+qt}, v{1+qt}"))
    for dt in range(12):
        for qt in range(4):
            a = Oa(dt, qt)[1]
            e = vE + 4 * (qt & 1)
            for r in range(4):
                out.append(V(f"v_accvgpr_read_b32 v{e+r}, a{a+r}"))
            for r in range(4):
                out.append(V(f"v_mul_f32 v{e+r}, v{e+r}, v{1+qt}"))
            for r in range(4):
                out.append(V(f"v_accvgpr_write_b32 a{a+r}, v{e+r}"))
    out += [NOP(1), I(f"s_setpc_b64 s[{sRET}:{sRET+1}]", "branch")]
    return out


def iteration(P, cfg, j, lab):
    G = P.gaps(qk_mfmas(False) + pv_mfmas(j))
    par = (j + 1) & 1
    exp_gaps = [11 + 5 * k + o for k in range(16) for o in (0, 2)]
    place_groups(P, G, 0, grp_K(j + 6, cfg, True), cfg["kdma"])
    place_groups(P, G, cfg["kdma"][-1] + 1, grp_V(j + 5, cfg, True), cfg["vdma"])
    valu = []
    for qt in range(4):
        valu.append((0, V(f"v_add_f32 v{vL+qt}, v{vL+qt}, v{vTS+qt}")))
    n = 0
    for T in range(8):
        a, qt = divmod(T, 4)
        s = St(a, qt)[1]
        p = Pf(par, qt)[1] + 2 * a
        for r in range(4):
            g = exp_gaps[n]
            e = vE + n % 8
            assert not G[g].vec
            G[g].vec.append(V(f"v_exp_f32 v{e}, v{s+r}"))
            if a == 0 and r == 0:
                pass
            elif a == 0 and r == 1:
                valu.append((g + 1, V(f"v_add_f32 v{vTS+qt}, v{e-1}, v{e}")))
            else:
                valu.append((g + 1, V(f"v_add_f32 v{vTS+qt}, v{vTS+qt}, v{e}")))
            if r & 1:
                valu.append((g + 1, V(f"v_cvt_pk_bf16_f32 v{p+(r>>1)}, v{e-1}, v{e}")))
            n += 1
        if T == 6:
            valu.append((g + 1, V(f"v_max3_f32 v1, v{vTS}, v{vTS+1}, v{vTS+2}")))
    valu.append((g + 1, V(f"v_max_f32 v1, v1, v{vTS+3}")))
    valu.append((g + 1, V(f"v_cmp_lt_f32 vcc, s{sTH}, v1")))
    lds = []
    for s in range(6):
        lds.append((s, 14, k_read(j + 1, 1, s)))
    t0 = 6
    for dt in range(6):
        for t in range(2):
            lds.append((t0 + 3 * (2 * dt + t), 48 + 4 * dt - 8, vtype_read(FR(dt), vslot(j), dt, t, ("V", j))))
    for s in range(6):
        lds.append(((27, 33, 38, 43, 47, 50)[s], 70, k_read(j + 2, 0, s)))
    for dt in range(6, 12):
        for t in range(2):
            lds.append((48 + 4 * (dt - 6) + 3, 48 + 4 * dt - 8, vtype_read(FR(dt), vslot(j), dt, t, ("V", j))))
    for gi, g in enumerate(G):
        while g.free() > 0:
            cand = []
            if valu and valu[0][0] <= gi:
                cand.append((min(valu[0][0] + cfg["vslack"], 93), 0, None))
            av = [x for x in lds if x[0] <= gi]
            if av:
                b = min(av, key=lambda x: x[1])
                nl = len([y for y in g.vec if y.kind == "lds"])
                cand.append((b[1] - (100 if nl == 0 and len([v for v in valu if v[0] <= gi]) < 3 else 0), 1, b))
            if not cand:
                break
            c = min(cand, key=lambda x: x[:2])
            if c[1] == 0:
                assert valu[0][0] + 16 >= gi
                g.vec.append(valu.pop(0)[1])
            else:
                assert c[2][1] >= gi, (gi, c[2])
                lds.remove(c[2])
                g.vec.append(c[2][2])
    assert not valu and not lds, (valu, lds)
    G[92].sca.append(WAITV(("V", j + 1), ("K", j + 3)))
    G[93].sca.append(BARRIER(frees=[("V", j), ("K", j + 1)]))
    G[95].sca.append(I(f"s_cbranch_vccnz K1_fx{lab}", "branch", rd=["vcc"]))
    assert not G[95].vec
    G[95].post.append(LABEL(f"K1_bk{lab}"))
    return G


def final(P, cfg):
    A = P.seq
    j = 31
    for dt in range(4):
        for t in range(2):
            A(vtype_read(FR(dt), vslot(j), dt, t, ("V", j)))
    for qt in range(4):
        A(V(f"v_add_f32 v{vL+qt}, v{vL+qt}, v{vTS+qt}"))
    A(xmax([vL + q for q in range(4)], [vE + q for q in range(4)], "v_add_f32"))
    for qt in range(4):
        A(V(f"v_rcp_f32 v{vE+2*qt}, v{vL+qt}"))
    A(V("v_lshlrev_b32 v1, 4, v0"), S(f"s_mul_i32 s3, s{sW}, {4*6144}"), S(f"s_mov_b32 s{sOW}, 4096"))
    for qt in range(4):
        A(S(f"s_add_u32 s{sOX}, s3, {qt*6144}"), V(f"v_add_u32 v{2+qt}, s{sOX}, v1"))
    G = P.gaps(pv_mfmas(j))
    for dt in range(4, 12):
        g = 0 + 2 * (dt - 4) if dt < 6 else 4 * (dt - 6) + 3
        G[g].vec += [vtype_read(FR(dt), vslot(j), dt, t, ("V", j)) for t in range(2)]
    stamp(P, cfg, 4)
    A(NOP(7))
    k = 0
    for s in range(6):
        for qt in range(4):
            t = vS + (k % 4) * 8
            o = vP + (k % 8) * 4
            k += 1
            for u in range(2):
                a = Oa(2 * s + u, qt)[1]
                for r in range(4):
                    A(V(f"v_accvgpr_read_b32 v{t+4*u+r}, a{a+r}"))
            for r in range(0, 8, 2):
                A(V(f"v_pk_mul_f32 v[{t+r}:{t+r+1}], v[{t+r}:{t+r+1}], v[{vE+2*qt}:{vE+2*qt+1}] op_sel_hi:[1,0]"))
            for r in range(4):
                A(V(f"v_cvt_pk_bf16_f32 v{o+r}, v{t+2*r}, v{t+2*r+1}"))
            A(VSTORE(("v", o), 2 + qt, SO, 0 if s < 4 else f"s{sOW}", 1024 * (s & 3), cfg["oflags"]))


def build(cfg):
    P = Prog()
    prologue(P, cfg)
    phase1(P, cfg)
    stamp(P, cfg, 1)
    q_convert(P, cfg)
    first_tile(P, cfg)
    stamp(P, cfg, 2)
    iteration(P, cfg, 0, "p")
    P.seq(I(f"s_mov_b32 s{sCNT}, 5", "raw"))
    marks = []
    for j in range(1, 31):
        if (j - 1) % 6 == 0:
            m = I("", "raw", mark=(j - 1) // 6)
            P.el.append(m)
        G = iteration(P, cfg, j, str((j - 1) % 6))
        if (j - 1) % 6 == 5:
            P.flex_scalar(S(f"s_sub_u32 s{sCNT}, s{sCNT}, 1"), G[80:90])
            G[94].sca.append(S(f"s_cmp_lg_u32 s{sCNT}, 0"))
            G[95].post.append(I("s_cbranch_scc1 K1_loop", "branch"))
    P.el.append(I("", "raw", mark=5))
    stamp(P, cfg, 3)
    final(P, cfg)
    P.insert_waits()
    P.place_flex()
    lin = P.linear()
    probs = check_hazards(lin) + check_lds_protocol(lin, private=lambda t: t[0] == "X")
    probs = [p for p in probs]
    trips = {}
    pre, post, cur = [], [], None
    for x in lin:
        if x.kind == "raw" and "mark" in x.meta:
            cur = x.meta["mark"]
            continue
        if cur is None:
            pre.append(x)
        elif cur == 5:
            post.append(x)
        else:
            trips.setdefault(cur, []).append(x)
    t0 = [text_of(x) for x in trips[0]]
    for k in range(1, 5):
        tk = [text_of(x) for x in trips[k]]
        assert tk == t0, [(a, b) for a, b in zip(t0, tk) if a != b][:5]
    out = [text_of(x) for x in pre] + ["K1_loop:"] + t0 + [text_of(x) for x in post]
    if cfg.get("stamps"):
        out += ["s_waitcnt vmcnt(0)", f"s_memtime s[{sT0+20}:{sT0+21}]", f"s_memrealtime s[{sT0+22}:{sT0+23}]", "s_waitcnt lgkmcnt(0)"]
        out += ["v_mov_b32 v1, 0"]
        for k in range(24):
            out.append(f"v_writelane_b32 v1, s{sT0+k}, {k}")
        out += [f"s_add_u32 s{SO}, s32, 0x10000000", f"s_addc_u32 s{SO+1}, s33, 0", f"s_mov_b32 s{SO+2}, 0x100000",
                "s_lshl_b32 s3, s2, 2", f"s_add_u32 s3, s3, s{sW}", "s_lshl_b32 s3, s3, 8", "v_lshlrev_b32 v2, 2, v0",
                f"buffer_store_dword v1, v2, s[{SO}:{SO+3}], s3 offen"]
    out += ["K1_done:", "s_endpgm"]
    for lab, par in [("p", 1)] + [(str(k), (k + 2) & 1) for k in range(6)]:
        out += [f"K1_fx{lab}:", f"s_call_b64 s[{sRET}:{sRET+1}], K1_fix{par}", f"s_branch K1_bk{lab}"]
    for par in range(2):
        fb = fallback(par)
        probs += check_hazards(fb)
        out += [text_of(x) for x in fb]
    return out, probs, P


DEFAULT = dict(map="hg4", wflags="", xflags="", kvflags="nt", oflags="", thresh=16384.0,
               kdma=[4, 7, 9], vdma=[34, 44, 54], vslack=8, stamps=False)

if __name__ == "__main__":
    out, probs, P = build(dict(DEFAULT))
    print("\n".join(out))
    import sys
    print(len(out), "lines; problems:", probs[:20], "warn:", P.warn[:20], "overfull:", P.overfull(), file=sys.stderr)
```

```python
from asmlib import *
from k1 import DmaGroup, seq_groups, place_groups

PART_OFF = 0x2000000
TS = 20480
NSL = 6
K2_LDS = TS * NSL
SO, SW, SP = 8, 12, 16
sW, sB, sG, sCc, sWOFF, sOW, sOB = 34, 35, 36, 37, 38, 40, 41
vA, vOW, vOB, vOP = 8, 12, 18, 22
vFR = 32
NB = 5
DEPTH = 4


def acc(nt, qt):
    return ("a", (nt * 4 + qt) * 4)


def Bf(t, u, qt):
    return ("v", 64 + (t % NB) * 32 + (u * 4 + qt) * 4)


def FR(i):
    return ("v", vFR + i * 4)


def a_reads(t, nt):
    g = t * 10 + nt
    sl = t % NSL
    out = []
    for u in range(2):
        for tt in range(2):
            d = FR(2 * (g % 3) + u)
            out.append(DSTR((d[0], d[1] + 2 * tt), vA + 2 * (sl // 3) + (nt & 1), (sl % 3) * TS + (32 * u + 16 * tt) * 320 + (nt >> 1) * 64, ("W", t)))
    return out


def grp_W(t, cfg):
    sl = (t % NSL) * TS
    reg = [(sl, sl + TS)]
    return [DmaGroup([S(f"s_add_u32 m0, s{sWOFF}, {sl}"), S(f"s_mov_b32 s{sOW}, {t*81920}")],
                     [DMA(vOW + j, SW, f"s{sOW}", 1024 * j, ("W", t), cfg["wflags"], region=reg) for j in range(4)]),
            DmaGroup([S(f"s_add_u32 m0, s{sWOFF}, {sl+4096}")], [DMA(vOW + 4, SW, f"s{sOW}", 0, ("W", t), cfg["wflags"], region=reg)])]


def grp_B(t, cfg):
    hl, s0 = t // 3, 2 * (t % 3)
    return [DmaGroup([S(f"s_mov_b32 s{sOB}, {hl*92160 + s0*1024}")],
                     [VLOAD(Bf(t, u, qt), vOB + qt, SO, f"s{sOB}", 1024 * u, ("B", t), cfg["bflags"]) for qt in range(4) for u in range(2)])]


def build_k2(cfg):
    P = Prog()
    A = P.seq
    A(S("s_cmp_ge_u32 s2, 256"), I("s_cbranch_scc1 K2_done", "branch"))
    A(RAW("s_load_dwordx2 s[4:5], s[0:1], 32"), RAW("s_load_dwordx2 s[6:7], s[0:1], 56"))
    A(V("v_lshrrev_b32 v1, 6, v0"), V("v_and_b32 v0, 63, v0"), V(f"v_readfirstlane_b32 s{sW}, v1"))
    A(S(f"s_and_b32 s{sG}, s2, 7"), S(f"s_lshr_b32 s{sB}, s2, 5"), S(f"s_bfe_u32 s{sCc}, s2, 0x20003"))
    A(V("v_mul_u32_u24 v2, 24576, v1"), V(f"v_lshl_add_u32 v{vOB}, v0, 4, v2"))
    A(S(f"s_cmp_eq_u32 s{sW}, 3"), S(f"s_cselect_b32 s3, 0x40000000, {3*6144}"))
    A(V(f"v_add_u32 v{vOB+1}, 6144, v{vOB}"), V(f"v_add_u32 v{vOB+2}, 12288, v{vOB}"), V(f"v_add_u32 v{vOB+3}, s3, v{vOB}"))
    A(S(f"s_cselect_b32 s3, 0x40000000, {3*327680}"), S(f"s_mul_i32 s{sOB}, s{sW}, {4*327680}"))
    A(V("v_lshlrev_b32 v2, 4, v0"), V(f"v_add_u32 v{vOP}, s{sOB}, v2"), V(f"v_add_u32 v{vOP+1}, 327680, v{vOP}"),
      V(f"v_add_u32 v{vOP+2}, {2*327680}, v{vOP}"), V(f"v_add_u32 v{vOP+3}, s3, v{vOP}"))
    A(S(f"s_mul_i32 s{sWOFF}, s{sW}, 5120"))
    for j in range(5):
        A(V(f"v_add_u32 v2, {64*j}, v0"), V("v_mul_u32_u24 v3, 3277, v2"), V("v_lshrrev_b32 v3, 16, v3"),
          V("v_mul_u32_u24 v4, 20, v3"), V("v_sub_u32 v2, v2, v4"),
          V("v_lshrrev_b32 v4, 1, v3"), V("v_and_b32 v4, 2, v4"), V("v_xor_b32 v2, v2, v4"),
          V("v_lshl_add_u32 v3, v1, 4, v3"), V("v_mul_u32_u24 v3, 1280, v3"), V(f"v_lshl_add_u32 v{vOW+j}, v2, 4, v3"))
        if j & 3:
            A(V(f"v_subrev_u32 v{vOW+j}, {1024*(j&3)}, v{vOW+j}"))
    A(RAW("s_waitcnt lgkmcnt(0)"))
    A(S(f"s_lshl_b32 s3, s{sB}, 3"), S(f"s_add_u32 s3, s3, s{sG}"), S(f"s_mul_i32 s3, s3, {4*92160}"),
      S(f"s_add_u32 s{SO}, s6, s3"), S(f"s_addc_u32 s{SO+1}, s7, 0"), S(f"s_mov_b32 s{SO+2}, {4*92160}"), S(f"s_mov_b32 s{SO+3}, 0x20000"))
    A(S(f"s_mul_i32 s3, s{sG}, {768*1280}"), S(f"s_mul_i32 s{sOW}, s{sCc}, 320"), S(f"s_add_u32 s3, s3, s{sOW}"),
      S(f"s_add_u32 s{SW}, s4, s3"), S(f"s_addc_u32 s{SW+1}, s5, 0"), S(f"s_sub_u32 s{SW+2}, 7864320, s3"), S(f"s_mov_b32 s{SW+3}, 0x20000"))
    for t in range(DEPTH):
        seq_groups(P, grp_W(t, cfg) + grp_B(t, cfg))
    A(S(f"s_mul_i32 s3, s{sB}, 600"), S(f"s_mul_i32 s{sP0}, s{sCc}, 10"), S(f"s_add_u32 s3, s3, s{sP0}"), S("s_lshl_b32 s3, s3, 3"),
      S(f"s_add_u32 s3, s3, s{sG}"), S("s_lshl_b32 s3, s3, 10"), S(f"s_add_u32 s3, s3, {PART_OFF}"),
      S(f"s_add_u32 s{SP}, s6, s3"), S(f"s_addc_u32 s{SP+1}, s7, 0"), S(f"s_mov_b32 s{SP+2}, {15*327680}"), S(f"s_mov_b32 s{SP+3}, 0x20000"))
    A(V("v_and_b32 v1, 15, v0"), V("v_lshrrev_b32 v2, 4, v0"), V("v_lshrrev_b32 v3, 2, v1"), V("v_lshl_add_u32 v3, v2, 2, v3"),
      V("v_mul_u32_u24 v3, 320, v3"), V("v_and_b32 v4, 3, v1"), V("v_lshl_add_u32 v3, v4, 3, v3"), V("v_and_b32 v4, 1, v2"),
      V(f"v_lshl_add_u32 v{vA}, v4, 5, v3"), V("v_xor_b32 v4, 1, v4"), V(f"v_lshl_add_u32 v{vA+1}, v4, 5, v3"),
      V(f"v_add_u32 v{vA+2}, {3*TS}, v{vA}"), V(f"v_add_u32 v{vA+3}, {3*TS}, v{vA+1}"))
    A(WAITV(("W", 0)), BARRIER())
    A(a_reads(0, 0), a_reads(0, 1))
    G = []
    for t in range(12):
        mfs = []
        for nt in range(10):
            g = t * 10 + nt
            for qt in range(4):
                for u in range(2):
                    C = 0 if (t == 0 and u == 0) else acc(nt, qt)
                    m = MFMA(acc(nt, qt), FR(2 * (g % 3) + u), Bf(t, u, qt), C)
                    if qt == 0 and u == 0:
                        m.rd |= set(regs("v", FR(2 * (g % 3) + 1)[1], 4))
                        if nt == 0:
                            m.rd |= set(regs("v", Bf(t, 0, 0)[1], 32))
                    mfs.append(m)
        G += P.gaps(mfs)
    for t in range(12):
        b = 80 * t
        for nt in range(2, 12):
            t2, n2 = (t, nt) if nt < 10 else (t + 1, nt - 10)
            if t2 == 12:
                continue
            g = b + 8 * (nt - 2) + (2 if nt == 10 else 0)
            r = a_reads(t2, n2)
            G[g].vec += r[:2]
            G[g + 1].vec += r[2:]
        if t < 11:
            G[b + 64].sca.append(WAITV(("W", t + 1)))
            G[b + 65].sca.append(BARRIER(frees=[("W", t - 1)]))
        if t + DEPTH < 12:
            sl = [k for k in range(b, b + 80) if k % 8 in (3, 5) and k % 80 != 67]
            place_groups(P, G, b, grp_W(t + DEPTH, cfg) + grp_B(t + DEPTH, cfg), sl)
    tail = []
    b = 880
    for nt in range(10):
        sc = S(f"s_mov_b32 s{sP0+(nt&1)}, {nt*8192}")
        st = [VSTORE(acc(nt, qt), vOP + qt, SP, f"s{sP0+(nt&1)}", 0, cfg["pflags"]) for qt in range(4)]
        g0 = b + 8 * nt + 16
        if g0 + 6 < 960:
            P.flex_scalar(sc, G[g0 - 8:g0 + 2])
            for k, x in zip((2, 3, 5, 6), st):
                G[g0 + k].vec.append(x)
        else:
            tail += [sc] + st
    A(NOP(7), tail)
    P.insert_waits()
    P.place_flex()
    lin = P.linear()
    probs = check_hazards(lin) + check_lds_protocol(lin)
    return [text_of(x) for x in lin] + ["K2_done:", "s_endpgm"], probs, P


sP0 = 42


def build_k3(cfg):
    P = Prog()
    A = P.seq
    A(S("s_cmp_ge_u32 s2, 600"), I("s_cbranch_scc1 K3_done", "branch"))
    A(RAW("s_load_dwordx2 s[4:5], s[0:1], 40"), RAW("s_load_dwordx2 s[6:7], s[0:1], 56"))
    A(V("v_lshrrev_b32 v1, 6, v0"), V("v_and_b32 v0, 63, v0"), V("v_readfirstlane_b32 s20, v1"))
    A(S("s_lshl_b32 s3, s2, 2"), V("v_lshlrev_b32 v1, 4, v0"), NOP(0), S("s_add_u32 s3, s3, s20"))
    A(S("s_lshl_b32 s21, s3, 14"))
    A(RAW("s_waitcnt lgkmcnt(0)"))
    A(S(f"s_add_u32 s8, s6, {PART_OFF}"), S("s_addc_u32 s9, s7, 0"), S(f"s_mov_b32 s10, {4800*8192}"), S("s_mov_b32 s11, 0x20000"))
    for k in range(16):
        if k and k % 4 == 0:
            A(S("s_add_u32 s21, s21, 4096"))
        A(VLOAD(("v", 8 + 4 * k), 1, 8, "s21", 1024 * (k & 3), None, cfg["rflags"]))
    A(S("s_mov_b32 s12, s4"), S("s_mov_b32 s13, s5"), S("s_mov_b32 s14, 2457600"), S("s_mov_b32 s15, 0x20000"))
    A(S("s_mul_i32 s22, s3, 3277"), S("s_lshr_b32 s22, s22, 16"), S("s_mul_i32 s23, s22, 20"), S("s_sub_u32 s23, s3, s23"),
      S("s_mul_i32 s22, s22, 20480"), S("s_lshl_b32 s23, s23, 6"), S("s_add_u32 s22, s22, s23"))
    A(V("v_and_b32 v2, 15, v0"), V("v_mul_u32_u24 v2, 1280, v2"), V("v_lshrrev_b32 v3, 5, v0"), V("v_bfe_u32 v4, v0, 4, 1"),
      V("v_lshl_or_b32 v3, v4, 1, v3"), V("v_lshl_add_u32 v2, v3, 4, v2"))
    for h in range(2):
        b = 8 + 32 * h
        for k in range(1, 8):
            A(V(f"v_pk_add_f32 v[{b}:{b+1}], v[{b}:{b+1}], v[{b+4*k}:{b+4*k+1}]"), V(f"v_pk_add_f32 v[{b+2}:{b+3}], v[{b+2}:{b+3}], v[{b+4*k+2}:{b+4*k+3}]"))
    A(V("v_cvt_pk_bf16_f32 v4, v8, v9"), V("v_cvt_pk_bf16_f32 v5, v10, v11"), V("v_cvt_pk_bf16_f32 v6, v40, v41"), V("v_cvt_pk_bf16_f32 v7, v42, v43"))
    A(NOP(1), V("v_permlane16_swap_b32 v4, v6"), V("v_permlane16_swap_b32 v5, v7"))
    A(VSTORE(("v", 4), 2, 12, "s22", 0))
    P.insert_waits()
    lin = P.linear()
    return [text_of(x) for x in lin] + ["K3_done:", "s_endpgm"], check_hazards(lin), P


DEFAULT = dict(wflags="", bflags="", pflags="", rflags="")
```

```python
import sys, json
import k1, k23

HDR = open("standalone__mha_block_cached__near_ridge.s.ref").read().split("; Override launch")[0]

def kd(name, nv, acc, ns=102):
    return f""".amdhsa_kernel {name}
  .amdhsa_next_free_vgpr {nv}
  .amdhsa_next_free_sgpr {ns}
  .amdhsa_accum_offset {acc}
  .amdhsa_group_segment_fixed_size 0
  .amdhsa_kernarg_size 64
  .amdhsa_user_sgpr_count 2
  .amdhsa_user_sgpr_kernarg_segment_ptr 1
  .amdhsa_system_sgpr_workgroup_id_x 1
.end_amdhsa_kernel"""

def generate(c1=None, c2=None, only=None):
    cfg1 = dict(k1.DEFAULT); cfg1.update(c1 or {})
    cfg2 = dict(k23.DEFAULT); cfg2.update(c2 or {})
    N1 = "standalone__mha_block_cached__near_ridge_kernel"
    ks = []
    o, p, P = k1.build(cfg1); assert not p, p[:10]
    if P.warn or P.overfull(): print("k1 warn", P.warn[:5], P.overfull(), file=sys.stderr)
    ks.append((N1, o, 256, 256, k1.LDS_BYTES, 512, 256))
    o, p, P = k23.build_k2(cfg2); assert not p, p[:10]
    if P.warn or P.overfull(): print("k2 warn", P.warn[:5], P.overfull(), file=sys.stderr)
    ks.append(("oproj_kernel", o, 256, 256, k23.K2_LDS, 512, 256))
    o, p, P = k23.build_k3(cfg2); assert not p, p[:10]
    ks.append(("reduce_kernel", o, 600, 256, 0, 72, 72))
    if only is not None: ks = [ks[i] for i in only]
    s = HDR
    for (n, o, g, b, lds, nv, ac) in ks:
        s += f"; @launch kernel={n} grid=({g},1,1) block=({b},1,1) lds={lds}\n"
    s += '.amdgcn_target "amdgcn-amd-amdhsa--gfx950"\n.text\n'
    for (n, o, g, b, lds, nv, ac) in ks:
        s += f".globl {n}\n.p2align 8\n.type {n},@function\n{n}:\n" + "\n".join(("" if l.endswith(":") else "    ") + l for l in o if l) + "\n"
    s += '.section .rodata,"a"\n'
    for (n, o, g, b, lds, nv, ac) in ks:
        s += ".p2align 6\n" + kd(n, nv, ac) + "\n"
    return s

if __name__ == "__main__":
    out = sys.argv[1]
    c1 = json.loads(sys.argv[2]) if len(sys.argv) > 2 else None
    c2 = json.loads(sys.argv[3]) if len(sys.argv) > 3 else None
    open(out, "w").write(generate(c1, c2))
```

```python
import math, struct
from asmlib import *

SLOT = 12288
KREG = 0
VREG = 6 * SLOT
EREG = 12 * SLOT
LDS_BYTES = 163840

SX, SW, SK, SV, SO = 8, 12, 16, 20, 24
sW, sB, sH, sWOFF, sXB0, sXB1 = 34, 35, 36, 37, 38, 39
sOW, sOX, sOKV, sCNT, sTH = 40, 41, 42, 43, 44
sC = 46
sRET = 48
sPAD = 50
sT0 = 52
vAK, vAV, vAW, vAX = 8, 10, 14, 18
vOK, vOV, vOW, vOX = 22, 25, 28, 31
vFR = 40
vS, vP, vNM, vTS, vL, vE = 64, 96, 128, 144, 148, 152


def f32(x):
    return "0x%08x" % struct.unpack("<I", struct.pack("<f", x))[0]


def acc(dt, qt):
    return ("v", (160 if dt % 2 == 0 else 64) + ((dt >> 1) * 4 + qt) * 4)


def Qf(qt, s):
    return acc(2 * s, qt)


def Oa(dt, qt):
    return ("a", (dt * 4 + qt) * 4)


def Kf(a, s):
    return ("a", 192 + (a * 6 + s) * 4)


def Xf(beta, u, qt):
    return ("a", beta * 32 + (u * 4 + qt) * 4)


def St(a, qt):
    return ("v", vS + (a * 4 + qt) * 4)


def Pf(par, qt):
    return ("v", vP + par * 16 + qt * 4)


def NM(qt):
    return ("v", vNM + qt * 4)


def FR(i):
    return ("v", vFR + (i % 6) * 4)


def wslot(n):
    buf = (n // 2) % 4
    base = {2: KREG, 3: KREG + 2 * SLOT, 0: KREG + 4 * SLOT, 1: VREG + 4 * SLOT}[buf]
    return base + (n % 2) * SLOT


def kslot(n):
    return KREG + (n % 6) * SLOT


def vslot(n):
    return VREG + (n % 6) * SLOT


def xregion(beta):
    return [(VREG + 2 * beta * SLOT, VREG + 2 * beta * SLOT + 3 * 8192), (EREG + beta * 8192, EREG + beta * 8192 + 8192)]


def vtype_read(dst, slot, dt, t, tag):
    if slot >= VREG:
        a, off = vAV, slot - VREG
    else:
        a, off = vAW, slot
    return DSTR((dst[0], dst[1] + 2 * t), a + (dt & 3), off + 1536 * t + 128 * (dt >> 2), tag)


def k_read(n, a, s):
    return DSR128(Kf(a, s), vAK + (s & 1), kslot(n) + 1536 * a + 128 * (s >> 1), ("K", n))


class DmaGroup:
    def __init__(self, pre, dmas):
        self.pre = pre
        self.dmas = dmas


def grp_W(n, cfg):
    sl = wslot(n)
    return [DmaGroup([S(f"s_add_u32 m0, s{sWOFF}, {sl}"), S(f"s_mov_b32 s{sOW}, {n*393216}")],
                     [DMA(vOW + j, SW, f"s{sOW}", 1024 * j, ("W", n), cfg["wflags"], region=[(sl, sl + SLOT)]) for j in range(3)])]


def grp_X(c, cfg, after=()):
    beta = c & 1
    sb = sXB0 + beta
    g0 = DmaGroup([S(f"s_mov_b32 m0, s{sb}"), S(f"s_mov_b32 s{sOX}, {128*c}")],
                  [DMA(vOX + j, SX, f"s{sOX}", 1024 * j, ("X", c), cfg["xflags"], after=after, region=xregion(beta)) for j in range(4)])
    g1 = DmaGroup([S(f"s_add_u32 m0, s{sb}, 4096")],
                  [DMA(vOX + 4 + j, SX, f"s{sOX}", 1024 * j, ("X", c), cfg["xflags"], region=xregion(beta)) for j in range(4)])
    return [g0, g1]


def grp_K(n, cfg, loop=False):
    sl = kslot(n)
    so = S(f"s_add_u32 s{sOKV}, s{sOKV}, {SLOT}") if loop else S(f"s_mov_b32 s{sOKV}, {n*SLOT}")
    return [DmaGroup([S(f"s_add_u32 m0, s{sWOFF}, {sl}"), so],
                     [DMA(vOK + j, SK, f"s{sOKV}", 1024 * j, ("K", n), cfg["kvflags"], region=[(sl, sl + SLOT)]) for j in range(3)])]


def grp_V(n, cfg, loop=False):
    sl = vslot(n)
    pre = [S(f"s_add_u32 m0, s{sWOFF}, {sl}")]
    if not loop:
        pre.append(S(f"s_mov_b32 s{sOKV}, {(n+1)*SLOT}"))
    return [DmaGroup(pre,
                     [DMA(vOV + j, SV, f"s{sOKV}", 1024 * j, ("V", n), cfg["kvflags"], region=[(sl, sl + SLOT)]) for j in range(3)])]


def seq_groups(P, groups):
    for g in groups:
        P.seq(g.pre)
        if g.pre[-1].text.split()[1].startswith("m0"):
            P.seq(NOP(0))
        P.seq(g.dmas)


def place_groups(P, allg, first_idx, groups, slots):
    it = iter(slots)
    lo = first_idx
    for g in groups:
        idx = []
        while True:
            k = next(it)
            if not idx and k - lo < len(g.pre) + 1:
                continue
            idx.append(k)
            if len(idx) == len(g.dmas):
                break
        for s_ in g.pre:
            P.flex_scalar(s_, allg[lo:idx[0]])
        for k, d in zip(idx, g.dmas):
            assert not allg[k].vec, (k, allg[k].vec)
            allg[k].vec.append(d)
        lo = idx[-1] + 1


def stamp(P, cfg, k):
    if cfg.get("stamps"):
        P.seq(I(f"s_memtime s[{sT0+4*k}:{sT0+4*k+1}]", "raw", brk=False), I(f"s_memrealtime s[{sT0+4*k+2}:{sT0+4*k+3}]", "raw"),
              WAIT(lg=0))


def prologue(P, cfg):
    A = P.seq
    A(S("s_cmp_ge_u32 s2, 256"), I("s_cbranch_scc1 K1_done", "branch"))
    A(RAW("s_load_dwordx4 s[4:7], s[0:1], 0"), RAW("s_load_dwordx4 s[28:31], s[0:1], 16"), RAW("s_load_dwordx2 s[32:33], s[0:1], 56"))
    if cfg.get("stamps"):
        A(RAW(f"s_memtime s[{sT0}:{sT0+1}]"), RAW(f"s_memrealtime s[{sT0+2}:{sT0+3}]"))
    A(V("v_lshrrev_b32 v1, 6, v0"), V("v_and_b32 v0, 63, v0"))
    A(V(f"v_readfirstlane_b32 s{sW}, v1"))
    A(S("s_and_b32 s3, s2, 7"), S(f"s_lshr_b32 s{sCNT}, s2, 3"))
    m = cfg["map"]
    if m == "batch":
        A(S(f"s_mov_b32 s{sB}, s3"), S(f"s_mov_b32 s{sH}, s{sCNT}"))
    elif m == "hg4":
        A(S(f"s_lshr_b32 s{sB}, s{sCNT}, 2"), S(f"s_and_b32 s{sH}, s{sCNT}, 3"), S("s_lshl_b32 s3, s3, 2"), S(f"s_add_u32 s{sH}, s{sH}, s3"))
    elif m == "4x8":
        A(S(f"s_and_b32 s{sB}, s3, 1"), S(f"s_lshl_b32 s{sB}, s{sB}, 2"), S(f"s_and_b32 s{sH}, s{sCNT}, 3"), S(f"s_add_u32 s{sB}, s{sB}, s{sH}"),
          S("s_lshr_b32 s3, s3, 1"), S("s_lshl_b32 s3, s3, 3"), S(f"s_lshr_b32 s{sH}, s{sCNT}, 2"), S(f"s_add_u32 s{sH}, s{sH}, s3"))
    A(V("v_lshrrev_b32 v2, 3, v0"), V("v_lshl_add_u32 v2, v1, 6, v2"), V("v_mul_u32_u24 v2, 1280, v2"),
      V("v_lshrrev_b32 v3, 4, v0"), V("v_and_b32 v4, 7, v0"), V("v_xor_b32 v3, v3, v4"),
      V(f"v_lshl_add_u32 v{vOX}, v3, 4, v2"), V("v_xor_b32 v3, 4, v3"), V("v_lshl_add_u32 v4, v3, 4, v2"))
    for j in range(1, 8):
        src = f"v{vOX}" if j % 2 == 0 else "v4"
        A(V(f"v_add_u32 v{vOX+j}, {10240*j - 1024*(j&3)}, {src}"))
    A(S(f"s_mul_i32 s{sWOFF}, s{sW}, 3072"), S(f"s_lshl_b32 s{sXB0}, s{sW}, 13"),
      S(f"s_add_u32 s{sXB1}, s{sXB0}, {VREG+2*SLOT}"), S(f"s_add_u32 s{sXB0}, s{sXB0}, {VREG}"),
      S(f"s_cmp_eq_u32 s{sW}, 3"), S(f"s_cselect_b32 s{sXB0}, {EREG}, s{sXB0}"), S(f"s_cselect_b32 s{sXB1}, {EREG+8192}, s{sXB1}"),
      S(f"s_cselect_b32 s{sPAD}, {f32(-1000.0)}, 0"))
    A(V("v_and_b32 v5, 1, v1"), V("v_lshrrev_b32 v6, 1, v1"), V("v_lshl_or_b32 v6, v6, 2, v5"), V("v_lshlrev_b32 v5, 2, v5"))
    for j in range(3):
        A(V(f"v_add_u32 v2, {64*j}, v0"), V("v_mul_u32_u24 v3, 2731, v2"), V("v_lshrrev_b32 v3, 16, v3"),
          V("v_mul_u32_u24 v4, 24, v3"), V("v_sub_u32 v2, v2, v4"),
          V("v_and_b32 v4, 2, v3"),
          V("v_xor_b32 v2, v2, v4"),
          V("v_lshl_add_u32 v3, v1, 3, v3"),
          V("v_xor_b32 v4, v2, v5"),
          V("v_xor_b32 v2, v2, v6"),
          V("v_mul_u32_u24 v7, 12288, v3"), V(f"v_lshl_add_u32 v{vOW+j}, v4, 4, v7"),
          V("v_mul_u32_u24 v7, 384, v3"), V(f"v_lshl_add_u32 v{vOV+j}, v4, 4, v7"), V(f"v_lshl_add_u32 v{vOK+j}, v2, 4, v7"))
        if j:
            A(V(f"v_subrev_u32 v{vOW+j}, {1024*j}, v{vOW+j}"), V(f"v_subrev_u32 v{vOV+j}, {1024*j}, v{vOV+j}"),
              V(f"v_subrev_u32 v{vOK+j}, {1024*j}, v{vOK+j}"))
    A(RAW("s_waitcnt lgkmcnt(0)"))
    A(S(f"s_mul_i32 s3, s{sB}, 307200"), S(f"s_add_u32 s{SX}, s4, s3"), S(f"s_addc_u32 s{SX+1}, s5, 0"),
      S(f"s_mov_b32 s{SX+2}, 307200"), S(f"s_mov_b32 s{SX+3}, 0x20000"))
    A(S(f"s_mul_i32 s3, s{sH}, 384"), S(f"s_add_u32 s{SW}, s30, s3"), S(f"s_addc_u32 s{SW+1}, s31, 0"),
      S(f"s_sub_u32 s{SW+2}, 7864320, s3"), S(f"s_mov_b32 s{SW+3}, 0x20000"))
    seq_groups(P, grp_X(0, cfg) + grp_W(0, cfg) + grp_W(1, cfg) + grp_X(1, cfg))
    for n in range(2, 8):
        seq_groups(P, grp_W(n, cfg))
    A(S(f"s_lshl_b32 s{sCNT}, s{sB}, 5"), S(f"s_add_u32 s{sCNT}, s{sCNT}, s{sH}"), S(f"s_mul_i32 s3, s{sCNT}, 393216"),
      S(f"s_add_u32 s{SK}, s6, s3"), S(f"s_addc_u32 s{SK+1}, s7, 0"), S(f"s_mov_b32 s{SK+2}, 393216"), S(f"s_mov_b32 s{SK+3}, 0x20000"),
      S(f"s_add_u32 s{SV}, s28, s3"), S(f"s_addc_u32 s{SV+1}, s29, 0"), S(f"s_sub_u32 s{SV}, s{SV}, {SLOT}"), S(f"s_subb_u32 s{SV+1}, s{SV+1}, 0"),
      S(f"s_mov_b32 s{SV+2}, {393216+SLOT}"), S(f"s_mov_b32 s{SV+3}, 0x20000"),
      S(f"s_mul_i32 s3, s{sCNT}, 92160"), S(f"s_add_u32 s{SO}, s32, s3"), S(f"s_addc_u32 s{SO+1}, s33, 0"),
      S(f"s_mov_b32 s{SO+2}, 92160"), S(f"s_mov_b32 s{SO+3}, 0x20000"))
    c = math.log2(math.e) / math.sqrt(192.0)
    A(S(f"s_mov_b32 s{sC}, {f32(c)}"), S(f"s_mov_b32 s{sC+1}, {f32(c)}"), S(f"s_mov_b32 s{sTH}, {f32(cfg['thresh'])}"))
    A(V("v_and_b32 v1, 15, v0"), V("v_lshrrev_b32 v2, 4, v0"))
    A(V("v_lshrrev_b32 v3, 1, v1"), V("v_xor_b32 v3, v3, v2"), V("v_lshlrev_b32 v3, 4, v3"), V("v_lshl_add_u32 v3, v1, 7, v3"),
      V("v_xor_b32 v4, 64, v3"),
      V(f"v_add_u32 v{vAX}, s{sXB0}, v3"), V(f"v_add_u32 v{vAX+1}, s{sXB0}, v4"),
      V(f"v_add_u32 v{vAX+2}, s{sXB1}, v3"), V(f"v_add_u32 v{vAX+3}, s{sXB1}, v4"))
    A(V("v_lshrrev_b32 v3, 2, v1"), V("v_lshl_add_u32 v4, v2, 3, v3"), V("v_mul_u32_u24 v4, 384, v4"),
      V("v_and_b32 v5, 3, v1"), V("v_lshl_add_u32 v4, v5, 3, v4"),
      V("v_lshrrev_b32 v3, 3, v1"), V("v_and_b32 v5, 1, v2"), V("v_lshl_or_b32 v3, v5, 1, v3"))
    for e in range(4):
        A(V(f"v_xor_b32 v5, {e}, v3"), V(f"v_lshl_add_u32 v{vAW+e}, v5, 5, v4"), V(f"v_add_u32 v{vAV+e}, {VREG}, v{vAW+e}"))
    A(V("v_lshrrev_b32 v3, 2, v1"), V("v_and_b32 v4, 3, v1"), V("v_lshl_add_u32 v4, v3, 3, v4"), V("v_mul_u32_u24 v4, 384, v4"),
      V("v_and_b32 v3, 1, v3"), V("v_and_b32 v5, 2, v1"), V("v_or_b32 v3, v3, v5"), V("v_lshrrev_b32 v5, 3, v1"), V("v_lshl_or_b32 v3, v5, 2, v3"),
      V("v_lshrrev_b32 v5, 1, v2"), V("v_and_b32 v6, 1, v2"), V("v_lshl_or_b32 v5, v6, 1, v5"), V("v_xor_b32 v3, v3, v5"),
      V(f"v_lshl_add_u32 v{vAK}, v3, 4, v4"), V("v_xor_b32 v3, 4, v3"), V(f"v_lshl_add_u32 v{vAK+1}, v3, 4, v4"))


def x_read(c, u, qt):
    beta = c & 1
    return DSR128(Xf(beta, u, qt), vAX + 2 * beta + u, 2048 * qt, ("X", c))


def w_reads(stage, dt):
    gdt = stage * 12 + dt
    out = []
    for u in range(2):
        n = 2 * stage + u
        for t in range(2):
            out.append(vtype_read(FR(2 * (gdt % 3) + u), wslot(n), dt, t, ("W", n)))
    return out


def phase1(P, cfg):
    A = P.seq
    A(WAITV(("X", 0), ("W", 0), ("W", 1)), BARRIER())
    for u in range(2):
        for qt in range(4):
            A(x_read(0, u, qt))
    A(w_reads(0, 0), w_reads(0, 1))
    G = []
    for st in range(10):
        mfs = []
        for dt in range(12):
            gdt = st * 12 + dt
            for qt in range(4):
                for u in range(2):
                    C = 0 if (st == 0 and u == 0) else acc(dt, qt)
                    m = MFMA(acc(dt, qt), FR(2 * (gdt % 3) + u), Xf(st & 1, u, qt), C)
                    if qt == 0 and u == 0:
                        m.rd |= set(regs("v", FR(2 * (gdt % 3) + 1)[1], 4))
                        if dt == 0:
                            m.rd |= set(regs("a", Xf(st & 1, 0, 0)[1], 32))
                    mfs.append(m)
        G += P.gaps(mfs)
    for st in range(10):
        b = 96 * st
        for dt in range(2, 14):
            s2, d2 = (st, dt) if dt < 12 else (st + 1, dt - 12)
            if s2 == 10:
                continue
            g = b + 8 * (dt - 2) + (2 if dt == 12 else 0)
            r = w_reads(s2, d2)
            G[g].vec += r[:2]
            G[g + 1].vec += r[2:]
        if st < 9:
            G[b + 1].sca.append(WAITV(("X", st + 1)))
            rd = [x_read(st + 1, u, qt) for u in range(2) for qt in range(4)]
            for k, g in enumerate((2, 4, 6, 10)):
                G[b + g].vec += rd[2 * k:2 * k + 2]
        need = [("W", 2 * st + 2), ("W", 2 * st + 3)] if st < 9 else [("K", 0), ("K", 1)]
        G[b + 80].sca.append(WAITV(*need))
        G[b + 81].sca.append(BARRIER(frees=[("W", 2 * st), ("W", 2 * st + 1), ("X", st + 1)]))
    for s in range(6):
        G[96 * 9 + 82 + s // 2].vec.append(k_read(0, 0, s))
    def slots_from(lo, hi):
        return [k for k in range(lo, hi) if k % 8 in (3, 5) and k % 96 != 83]
    place_groups(P, G, 0, grp_X(2, cfg, after=[("X", 0)]) + grp_X(3, cfg, after=[("X", 1)]), slots_from(0, 80))
    for st in range(9):
        lo = 96 * st + 82
        if st + 4 < 10:
            gr = grp_W(2 * st + 8, cfg) + grp_W(2 * st + 9, cfg)
            place_groups(P, G, lo, gr, slots_from(lo, lo + 30))
            place_groups(P, G, lo + 30, grp_X(st + 4, cfg, after=[("X", st + 2)]), slots_from(lo + 30, lo + 94))
        else:
            gr = {6: grp_K(0, cfg) + grp_K(1, cfg),
                  7: grp_V(0, cfg) + grp_K(2, cfg) + grp_V(1, cfg) + grp_K(3, cfg),
                  8: grp_V(2, cfg) + grp_K(4, cfg) + grp_V(3, cfg) + grp_K(5, cfg)}[st]
            place_groups(P, G, lo, gr, slots_from(lo, lo + 94))
    lo = 96 * 9 + 82
    place_groups(P, G, lo, grp_V(4, cfg), [lo + 5, lo + 8, lo + 11])


def q_convert(P, cfg):
    A = P.seq
    A(NOP(7))
    for s in range(6):
        for qt in range(4):
            for dt in (2 * s, 2 * s + 1):
                r = acc(dt, qt)[1]
                A(V(f"v_pk_mul_f32 v[{r}:{r+1}], v[{r}:{r+1}], s[{sC}:{sC+1}]"), V(f"v_pk_mul_f32 v[{r+2}:{r+3}], v[{r+2}:{r+3}], s[{sC}:{sC+1}]"))
        for qt in range(4):
            a = acc(2 * s, qt)[1]
            b = acc(2 * s + 1, qt)[1]
            A(V(f"v_cvt_pk_bf16_f32 v{a}, v{a}, v{a+1}"), V(f"v_cvt_pk_bf16_f32 v{a+1}, v{a+2}, v{a+3}"),
              V(f"v_cvt_pk_bf16_f32 v{a+2}, v{b}, v{b+1}"), V(f"v_cvt_pk_bf16_f32 v{a+3}, v{b+2}, v{b+3}"))
        A(NOP(0))
        for qt in range(4):
            a = acc(2 * s, qt)[1]
            A(V(f"v_permlane16_swap_b32 v{a}, v{a+2}"), V(f"v_permlane16_swap_b32 v{a+1}, v{a+3}"))
    A(NOP(1))


def qk_mfmas(first):
    out = []
    for a in range(2):
        for qt in range(4):
            for s in range(6):
                C = (0 if first else NM(qt)) if s == 0 else St(a, qt)
                m = MFMA(St(a, qt), Kf(a, s), Qf(qt, s), C)
                if qt == 0 and s in (0, 3):
                    m.rd |= set(regs("a", Kf(a, s)[1], 12))
                out.append(m)
    return out


def pv_mfmas(j):
    out = []
    for dt in range(12):
        for qt in range(4):
            out.append(MFMA(Oa(dt, qt), FR(dt), Pf(j & 1, qt), 0 if j == 0 else Oa(dt, qt)))
    return out


def xmax(x, t, op):
    out = []
    for sw in ("v_permlane32_swap_b32", "v_permlane16_swap_b32"):
        for a, b in zip(x, t):
            out.append(V(f"v_mov_b32 v{b}, v{a}"))
        out.append(NOP(0))
        for a, b in zip(x, t):
            out.append(V(f"{sw} v{b}, v{a}"))
        for a, b in zip(x, t):
            out.append(V(f"{op} v{a}, v{a}, v{b}"))
    return out


def rowmax(dst):
    out = []
    for qt in range(4):
        s0, s1 = St(0, qt)[1], St(1, qt)[1]
        d = dst + qt
        out += [V(f"v_max3_f32 v{d}, v{s0}, v{s0+1}, v{s0+2}"), V(f"v_max3_f32 v{d}, v{d}, v{s0+3}, v{s1}"),
                V(f"v_max3_f32 v{d}, v{d}, v{s1+1}, v{s1+2}"), V(f"v_max_f32 v{d}, v{d}, v{s1+3}")]
    return out


def softmax_seq(par, delta):
    out = []
    for qt in range(4):
        for a in range(2):
            s = St(a, qt)[1]
            for r in range(4):
                out.append(V(f"v_sub_f32 v{vE+4*a+r}, v{s+r}, v{delta+qt}"))
        for k in range(8):
            out.append(V(f"v_exp_f32 v{vE+k}, v{vE+k}"))
        p = Pf(par, qt)[1]
        out.append(V(f"v_add_f32 v{vTS+qt}, v{vE}, v{vE+1}"))
        for k in range(2, 8):
            out.append(V(f"v_add_f32 v{vTS+qt}, v{vTS+qt}, v{vE+k}"))
        for k in range(4):
            out.append(V(f"v_cvt_pk_bf16_f32 v{p+k}, v{vE+2*k}, v{vE+2*k+1}"))
    return out


def first_tile(P, cfg):
    A = P.seq
    G = P.gaps(qk_mfmas(True))
    for s in range(6):
        G[s].vec.append(k_read(0, 1, s))
        G[26 + s].vec.append(k_read(1, 0, s))
    A(NOP(7))
    A(rowmax(1), xmax([1, 2, 3, 4], [vE, vE + 1, vE + 2, vE + 3], "v_max_f32"))
    A(V(f"v_subrev_f32 v4, s{sPAD}, v4"))
    for qt in range(4):
        for r in range(4):
            A(V(f"v_sub_f32 v{vNM+4*qt+r}, 0, v{1+qt}"))
        A(V(f"v_mov_b32 v{vL+qt}, 0"))
    A(softmax_seq(0, 1))
    A(WAITV(("V", 0), ("K", 2)), BARRIER(frees=[("K", 0)]))


def fallback(par):
    out = [LABEL(f"K1_fix{par}"), NOP(7)]
    out += rowmax(1)
    out += xmax([1, 2, 3, 4], [vE, vE + 1, vE + 2, vE + 3], "v_max_f32")
    for qt in range(4):
        out.append(V(f"v_max_f32 v{1+qt}, 0, v{1+qt}"))
    out += softmax_seq(par, 1)
    for qt in range(4):
        for r in range(4):
            out.append(V(f"v_sub_f32 v{vNM+4*qt+r}, v{vNM+4*qt+r}, v{1+qt}"))
    for qt in range(4):
        out.append(V(f"v_exp_f32 v{1+qt}, -v{1+qt}"))
    out.append(NOP(0))
    for qt in range(4):
        out.append(V(f"v_mul_f32 v{vL+qt}, v{vL+qt}, v{1+qt}"))
    for dt in range(12):
        for qt in range(4):
            a = Oa(dt, qt)[1]
            e = vE + 4 * (qt & 1)
            for r in range(4):
                out.append(V(f"v_accvgpr_read_b32 v{e+r}, a{a+r}"))
            for r in range(4):
                out.append(V(f"v_mul_f32 v{e+r}, v{e+r}, v{1+qt}"))
            for r in range(4):
                out.append(V(f"v_accvgpr_write_b32 a{a+r}, v{e+r}"))
    out += [NOP(1), I(f"s_setpc_b64 s[{sRET}:{sRET+1}]", "branch")]
    return out


def iteration(P, cfg, j, lab):
    G = P.gaps(qk_mfmas(False) + pv_mfmas(j))
    par = (j + 1) & 1
    exp_gaps = [11 + 5 * k + o for k in range(16) for o in (0, 2)]
    place_groups(P, G, 0, grp_K(j + 6, cfg, True), cfg["kdma"])
    place_groups(P, G, cfg["kdma"][-1] + 1, grp_V(j + 5, cfg, True), cfg["vdma"])
    valu = []
    for qt in range(4):
        valu.append((0, V(f"v_add_f32 v{vL+qt}, v{vL+qt}, v{vTS+qt}")))
    n = 0
    for T in range(8):
        a, qt = divmod(T, 4)
        s = St(a, qt)[1]
        p = Pf(par, qt)[1] + 2 * a
        for r in range(4):
            g = exp_gaps[n]
            e = vE + n % 8
            assert not G[g].vec
            G[g].vec.append(V(f"v_exp_f32 v{e}, v{s+r}"))
            if a == 0 and r == 0:
                pass
            elif a == 0 and r == 1:
                valu.append((g + 1, V(f"v_add_f32 v{vTS+qt}, v{e-1}, v{e}")))
            else:
                valu.append((g + 1, V(f"v_add_f32 v{vTS+qt}, v{vTS+qt}, v{e}")))
            if r & 1:
                valu.append((g + 1, V(f"v_cvt_pk_bf16_f32 v{p+(r>>1)}, v{e-1}, v{e}")))
            n += 1
        if T == 6:
            valu.append((g + 1, V(f"v_max3_f32 v1, v{vTS}, v{vTS+1}, v{vTS+2}")))
    valu.append((g + 1, V(f"v_max_f32 v1, v1, v{vTS+3}")))
    valu.append((g + 1, V(f"v_cmp_lt_f32 vcc, s{sTH}, v1")))
    lds = []
    for s in range(6):
        lds.append((s, 14, k_read(j + 1, 1, s)))
    t0 = 6
    for dt in range(6):
        for t in range(2):
            lds.append((t0 + 3 * (2 * dt + t), 48 + 4 * dt - 8, vtype_read(FR(dt), vslot(j), dt, t, ("V", j))))
    for s in range(6):
        lds.append(((27, 33, 38, 43, 47, 50)[s], 70, k_read(j + 2, 0, s)))
    for dt in range(6, 12):
        for t in range(2):
            lds.append((48 + 4 * (dt - 6) + 3, 48 + 4 * dt - 8, vtype_read(FR(dt), vslot(j), dt, t, ("V", j))))
    for gi, g in enumerate(G):
        while g.free() > 0:
            cand = []
            if valu and valu[0][0] <= gi:
                cand.append((min(valu[0][0] + cfg["vslack"], 93), 0, None))
            av = [x for x in lds if x[0] <= gi]
            if av:
                b = min(av, key=lambda x: x[1])
                nl = len([y for y in g.vec if y.kind == "lds"])
                cand.append((b[1] - (100 if nl == 0 and len([v for v in valu if v[0] <= gi]) < 3 else 0), 1, b))
            if not cand:
                break
            c = min(cand, key=lambda x: x[:2])
            if c[1] == 0:
                assert valu[0][0] + 16 >= gi
                g.vec.append(valu.pop(0)[1])
            else:
                assert c[2][1] >= gi, (gi, c[2])
                lds.remove(c[2])
                g.vec.append(c[2][2])
    assert not valu and not lds, (valu, lds)
    if cfg.get("itstamps"):
        G[90].post.append(RAW("s_memrealtime s[80:81]"))
        G[94].post += [RAW("s_mov_b32 m0, s82"), RAW("s_addk_i32 s82, 1"), RAW("v_writelane_b32 v39, s80, m0")]
        if lab == "5":
            G[94].post.append(RAW(f"s_cmp_lg_u32 s{sCNT}, 0"))
    G[92].sca.append(WAITV(("V", j + 1), ("K", j + 3)))
    G[93].sca.append(BARRIER(frees=[("V", j), ("K", j + 1)]))
    G[95].sca.append(I(f"s_cbranch_vccnz K1_fx{lab}", "branch", rd=["vcc"]))
    assert not G[95].vec
    G[95].post.append(LABEL(f"K1_bk{lab}"))
    return G


def final(P, cfg):
    A = P.seq
    j = 31
    for dt in range(4):
        for t in range(2):
            A(vtype_read(FR(dt), vslot(j), dt, t, ("V", j)))
    for qt in range(4):
        A(V(f"v_add_f32 v{vL+qt}, v{vL+qt}, v{vTS+qt}"))
    A(xmax([vL + q for q in range(4)], [vE + q for q in range(4)], "v_add_f32"))
    for qt in range(4):
        A(V(f"v_rcp_f32 v{vE+2*qt}, v{vL+qt}"))
    A(V("v_lshlrev_b32 v1, 4, v0"), S(f"s_mul_i32 s3, s{sW}, {4*6144}"), S(f"s_mov_b32 s{sOW}, 4096"))
    for qt in range(4):
        A(S(f"s_add_u32 s{sOX}, s3, {qt*6144}"), V(f"v_add_u32 v{2+qt}, s{sOX}, v1"))
    G = P.gaps(pv_mfmas(j))
    for dt in range(4, 12):
        g = 0 + 2 * (dt - 4) if dt < 6 else 4 * (dt - 6) + 3
        G[g].vec += [vtype_read(FR(dt), vslot(j), dt, t, ("V", j)) for t in range(2)]
    stamp(P, cfg, 4)
    A(NOP(7))
    k = 0
    for s in range(6):
        for qt in range(4):
            t = vS + (k % 4) * 8
            o = vP + (k % 8) * 4
            k += 1
            for u in range(2):
                a = Oa(2 * s + u, qt)[1]
                for r in range(4):
                    A(V(f"v_accvgpr_read_b32 v{t+4*u+r}, a{a+r}"))
            for r in range(0, 8, 2):
                A(V(f"v_pk_mul_f32 v[{t+r}:{t+r+1}], v[{t+r}:{t+r+1}], v[{vE+2*qt}:{vE+2*qt+1}] op_sel_hi:[1,0]"))
            for r in range(4):
                A(V(f"v_cvt_pk_bf16_f32 v{o+r}, v{t+2*r}, v{t+2*r+1}"))
            A(VSTORE(("v", o), 2 + qt, SO, 0 if s < 4 else f"s{sOW}", 1024 * (s & 3), cfg["oflags"]))


def build(cfg):
    P = Prog()
    prologue(P, cfg)
    phase1(P, cfg)
    stamp(P, cfg, 1)
    q_convert(P, cfg)
    first_tile(P, cfg)
    stamp(P, cfg, 2)
    if cfg.get("itstamps"):
        P.seq(RAW("s_mov_b32 s82, 24"), RAW("v_mov_b32 v39, 0"))
    iteration(P, cfg, 0, "p")
    P.seq(I(f"s_mov_b32 s{sCNT}, 5", "raw"))
    marks = []
    for j in range(1, 31):
        if (j - 1) % 6 == 0:
            m = I("", "raw", mark=(j - 1) // 6)
            P.el.append(m)
        G = iteration(P, cfg, j, str((j - 1) % 6))
        if (j - 1) % 6 == 5:
            P.flex_scalar(S(f"s_sub_u32 s{sCNT}, s{sCNT}, 1"), G[80:90])
            G[94].sca.append(S(f"s_cmp_lg_u32 s{sCNT}, 0"))
            G[95].post.append(I("s_cbranch_scc1 K1_loop", "branch"))
    P.el.append(I("", "raw", mark=5))
    stamp(P, cfg, 3)
    final(P, cfg)
    P.insert_waits()
    P.place_flex()
    lin = P.linear()
    probs = check_hazards(lin) + check_lds_protocol(lin, private=lambda t: t[0] == "X")
    probs = [p for p in probs]
    trips = {}
    pre, post, cur = [], [], None
    for x in lin:
        if x.kind == "raw" and "mark" in x.meta:
            cur = x.meta["mark"]
            continue
        if cur is None:
            pre.append(x)
        elif cur == 5:
            post.append(x)
        else:
            trips.setdefault(cur, []).append(x)
    t0 = [text_of(x) for x in trips[0]]
    for k in range(1, 5):
        tk = [text_of(x) for x in trips[k]]
        assert tk == t0, [(a, b) for a, b in zip(t0, tk) if a != b][:5]
    out = [text_of(x) for x in pre] + ["K1_loop:"] + t0 + [text_of(x) for x in post]
    if cfg.get("stamps"):
        out += ["s_waitcnt vmcnt(0)", f"s_memtime s[{sT0+20}:{sT0+21}]", f"s_memrealtime s[{sT0+22}:{sT0+23}]", "s_waitcnt lgkmcnt(0)"]
        out += ["v_mov_b32 v1, v39" if cfg.get("itstamps") else "v_mov_b32 v1, 0"]
        for k in range(24):
            out.append(f"v_writelane_b32 v1, s{sT0+k}, {k}")
        out += [f"s_add_u32 s{SO}, s32, 0x10000000", f"s_addc_u32 s{SO+1}, s33, 0", f"s_mov_b32 s{SO+2}, 0x100000",
                "s_lshl_b32 s3, s2, 2", f"s_add_u32 s3, s3, s{sW}", "s_lshl_b32 s3, s3, 8", "v_lshlrev_b32 v2, 2, v0",
                f"buffer_store_dword v1, v2, s[{SO}:{SO+3}], s3 offen"]
    out += ["K1_done:", "s_endpgm"]
    for lab, par in [("p", 1)] + [(str(k), (k + 2) & 1) for k in range(6)]:
        out += [f"K1_fx{lab}:", f"s_call_b64 s[{sRET}:{sRET+1}], K1_fix{par}", f"s_branch K1_bk{lab}"]
    for par in range(2):
        fb = fallback(par)
        probs += check_hazards(fb)
        out += [text_of(x) for x in fb]
    return out, probs, P


DEFAULT = dict(map="hg4", wflags="", xflags="", kvflags="nt", oflags="", thresh=16384.0,
               kdma=[4, 7, 9], vdma=[34, 44, 54], vslack=8, stamps=False)

if __name__ == "__main__":
    out, probs, P = build(dict(DEFAULT))
    print("\n".join(out))
    import sys
    print(len(out), "lines; problems:", probs[:20], "warn:", P.warn[:20], "overfull:", P.overfull(), file=sys.stderr)
```

```python
from asmlib import *
from k1 import DmaGroup, seq_groups, place_groups

PART_OFF = 0x2000000
TS = 20480
NSL = 6
K2_LDS = TS * NSL
SO, SW, SP = 8, 12, 16
sW, sB, sG, sCc, sWOFF, sOW, sOB = 34, 35, 36, 37, 38, 40, 41
vA, vOW, vOB, vOP = 8, 12, 18, 22
vFR = 32
NB = 5
DEPTH = 4


def acc(nt, qt):
    return ("a", (nt * 4 + qt) * 4)


def Bf(t, u, qt):
    return ("v", 64 + (t % NB) * 32 + (u * 4 + qt) * 4)


def FR(i):
    return ("v", vFR + i * 4)


def a_reads(t, nt):
    g = t * 10 + nt
    sl = t % NSL
    out = []
    for u in range(2):
        for tt in range(2):
            d = FR(2 * (g % 3) + u)
            out.append(DSTR((d[0], d[1] + 2 * tt), vA + 2 * (sl // 3) + (nt & 1), (sl % 3) * TS + (32 * u + 16 * tt) * 320 + (nt >> 1) * 64, ("W", t)))
    return out


def grp_W(t, cfg):
    sl = (t % NSL) * TS
    reg = [(sl, sl + TS)]
    return [DmaGroup([S(f"s_add_u32 m0, s{sWOFF}, {sl}"), S(f"s_mov_b32 s{sOW}, {t*81920}")],
                     [DMA(vOW + j, SW, f"s{sOW}", 1024 * j, ("W", t), cfg["wflags"], region=reg) for j in range(4)]),
            DmaGroup([S(f"s_add_u32 m0, s{sWOFF}, {sl+4096}")], [DMA(vOW + 4, SW, f"s{sOW}", 0, ("W", t), cfg["wflags"], region=reg)])]


def grp_B(t, cfg):
    hl, s0 = t // 3, 2 * (t % 3)
    return [DmaGroup([S(f"s_mov_b32 s{sOB}, {hl*92160 + s0*1024}")],
                     [VLOAD(Bf(t, u, qt), vOB + qt, SO, f"s{sOB}", 1024 * u, ("B", t), cfg["bflags"]) for qt in range(4) for u in range(2)])]


def st_out(n, off, wreg):
    out = ["s_waitcnt vmcnt(0)", f"s_memtime s[{52+4*n}:{53+4*n}]", f"s_memrealtime s[{54+4*n}:{55+4*n}]", "s_waitcnt lgkmcnt(0)", "v_mov_b32 v1, 0"]
    for k in range(4*n+4):
        out.append(f"v_writelane_b32 v1, s{52+k}, {k}")
    out += [f"s_add_u32 s8, s6, {off}", "s_addc_u32 s9, s7, 0", "s_mov_b32 s10, 0x100000", "s_mov_b32 s11, 0x20000",
            "s_lshl_b32 s3, s2, 2", f"s_add_u32 s3, s3, s{wreg}", "s_lshl_b32 s3, s3, 8", "v_lshlrev_b32 v2, 2, v0",
            "buffer_store_dword v1, v2, s[8:11], s3 offen"]
    return out


def stamp(P, cfg, k):
    if cfg.get("stamps"):
        P.seq(RAW(f"s_memtime s[{52+4*k}:{53+4*k}]"), RAW(f"s_memrealtime s[{54+4*k}:{55+4*k}]"), WAIT(lg=0))


def build_k2(cfg):
    P = Prog()
    A = P.seq
    A(S("s_cmp_ge_u32 s2, 256"), I("s_cbranch_scc1 K2_done", "branch"))
    stamp(P, cfg, 0)
    A(RAW("s_load_dwordx2 s[4:5], s[0:1], 32"), RAW("s_load_dwordx2 s[6:7], s[0:1], 56"))
    A(V("v_lshrrev_b32 v1, 6, v0"), V("v_and_b32 v0, 63, v0"), V(f"v_readfirstlane_b32 s{sW}, v1"))
    A(S(f"s_and_b32 s{sG}, s2, 7"), S(f"s_lshr_b32 s{sB}, s2, 5"), S(f"s_bfe_u32 s{sCc}, s2, 0x20003"))
    A(V("v_mul_u32_u24 v2, 24576, v1"), V(f"v_lshl_add_u32 v{vOB}, v0, 4, v2"))
    A(S(f"s_cmp_eq_u32 s{sW}, 3"), S(f"s_cselect_b32 s3, 0x40000000, {3*6144}"))
    A(V(f"v_add_u32 v{vOB+1}, 6144, v{vOB}"), V(f"v_add_u32 v{vOB+2}, 12288, v{vOB}"), V(f"v_add_u32 v{vOB+3}, s3, v{vOB}"))
    A(S(f"s_cselect_b32 s3, 0x40000000, {3*327680}"), S(f"s_mul_i32 s{sOB}, s{sW}, {4*327680}"))
    A(V("v_lshlrev_b32 v2, 4, v0"), V(f"v_add_u32 v{vOP}, s{sOB}, v2"), V(f"v_add_u32 v{vOP+1}, 327680, v{vOP}"),
      V(f"v_add_u32 v{vOP+2}, {2*327680}, v{vOP}"), V(f"v_add_u32 v{vOP+3}, s3, v{vOP}"))
    A(S(f"s_mul_i32 s{sWOFF}, s{sW}, 5120"))
    for j in range(5):
        A(V(f"v_add_u32 v2, {64*j}, v0"), V("v_mul_u32_u24 v3, 3277, v2"), V("v_lshrrev_b32 v3, 16, v3"),
          V("v_mul_u32_u24 v4, 20, v3"), V("v_sub_u32 v2, v2, v4"),
          V("v_lshrrev_b32 v4, 1, v3"), V("v_and_b32 v4, 2, v4"), V("v_xor_b32 v2, v2, v4"),
          V("v_lshl_add_u32 v3, v1, 4, v3"), V("v_mul_u32_u24 v3, 1280, v3"), V(f"v_lshl_add_u32 v{vOW+j}, v2, 4, v3"))
        if j & 3:
            A(V(f"v_subrev_u32 v{vOW+j}, {1024*(j&3)}, v{vOW+j}"))
    A(RAW("s_waitcnt lgkmcnt(0)"))
    A(S(f"s_lshl_b32 s3, s{sB}, 3"), S(f"s_add_u32 s3, s3, s{sG}"), S(f"s_mul_i32 s3, s3, {4*92160}"),
      S(f"s_add_u32 s{SO}, s6, s3"), S(f"s_addc_u32 s{SO+1}, s7, 0"), S(f"s_mov_b32 s{SO+2}, {4*92160}"), S(f"s_mov_b32 s{SO+3}, 0x20000"))
    A(S(f"s_mul_i32 s3, s{sG}, {768*1280}"), S(f"s_mul_i32 s{sOW}, s{sCc}, 320"), S(f"s_add_u32 s3, s3, s{sOW}"),
      S(f"s_add_u32 s{SW}, s4, s3"), S(f"s_addc_u32 s{SW+1}, s5, 0"), S(f"s_sub_u32 s{SW+2}, 7864320, s3"), S(f"s_mov_b32 s{SW+3}, 0x20000"))
    for t in range(DEPTH):
        seq_groups(P, grp_W(t, cfg) + grp_B(t, cfg))
    A(S(f"s_mul_i32 s3, s{sB}, 600"), S(f"s_mul_i32 s{sP0}, s{sCc}, 10"), S(f"s_add_u32 s3, s3, s{sP0}"), S("s_lshl_b32 s3, s3, 3"),
      S(f"s_add_u32 s3, s3, s{sG}"), S("s_lshl_b32 s3, s3, 10"), S(f"s_add_u32 s3, s3, {PART_OFF}"),
      S(f"s_add_u32 s{SP}, s6, s3"), S(f"s_addc_u32 s{SP+1}, s7, 0"), S(f"s_mov_b32 s{SP+2}, {15*327680}"), S(f"s_mov_b32 s{SP+3}, 0x20000"))
    A(V("v_and_b32 v1, 15, v0"), V("v_lshrrev_b32 v2, 4, v0"), V("v_lshrrev_b32 v3, 2, v1"), V("v_lshl_add_u32 v3, v2, 2, v3"),
      V("v_mul_u32_u24 v3, 320, v3"), V("v_and_b32 v4, 3, v1"), V("v_lshl_add_u32 v3, v4, 3, v3"), V("v_and_b32 v4, 1, v2"),
      V(f"v_lshl_add_u32 v{vA}, v4, 5, v3"), V("v_xor_b32 v4, 1, v4"), V(f"v_lshl_add_u32 v{vA+1}, v4, 5, v3"),
      V(f"v_add_u32 v{vA+2}, {3*TS}, v{vA}"), V(f"v_add_u32 v{vA+3}, {3*TS}, v{vA+1}"))
    A(WAITV(("W", 0)), BARRIER())
    stamp(P, cfg, 1)
    A(a_reads(0, 0), a_reads(0, 1))
    G = []
    for t in range(12):
        mfs = []
        for nt in range(10):
            g = t * 10 + nt
            for qt in range(4):
                for u in range(2):
                    C = 0 if (t == 0 and u == 0) else acc(nt, qt)
                    m = MFMA(acc(nt, qt), FR(2 * (g % 3) + u), Bf(t, u, qt), C)
                    if qt == 0 and u == 0:
                        m.rd |= set(regs("v", FR(2 * (g % 3) + 1)[1], 4))
                        if nt == 0:
                            m.rd |= set(regs("v", Bf(t, 0, 0)[1], 32))
                    mfs.append(m)
        G += P.gaps(mfs)
    for t in range(12):
        b = 80 * t
        for nt in range(2, 12):
            t2, n2 = (t, nt) if nt < 10 else (t + 1, nt - 10)
            if t2 == 12:
                continue
            g = b + 8 * (nt - 2) + (2 if nt == 10 else 0)
            r = a_reads(t2, n2)
            G[g].vec += r[:2]
            G[g + 1].vec += r[2:]
        if t < 11:
            G[b + 64].sca.append(WAITV(("W", t + 1)))
            G[b + 65].sca.append(BARRIER(frees=[("W", t - 1)]))
        if t + DEPTH < 12:
            sl = [k for k in range(b, b + 80) if k % 8 in (3, 5) and k % 80 != 67]
            place_groups(P, G, b, grp_W(t + DEPTH, cfg) + grp_B(t + DEPTH, cfg), sl)
    tail = []
    b = 880
    for nt in range(10):
        sc = S(f"s_mov_b32 s{sP0+(nt&1)}, {nt*8192}")
        st = [VSTORE(acc(nt, qt), vOP + qt, SP, f"s{sP0+(nt&1)}", 0, cfg["pflags"]) for qt in range(4)]
        g0 = b + 8 * nt + 16
        if g0 + 6 < 960:
            P.flex_scalar(sc, G[g0 - 8:g0 + 2])
            for k, x in zip((2, 3, 5, 6), st):
                G[g0 + k].vec.append(x)
        else:
            tail += [sc] + st
    stamp(P, cfg, 2)
    A(NOP(7), tail)
    P.insert_waits()
    P.place_flex()
    lin = P.linear()
    probs = check_hazards(lin) + check_lds_protocol(lin)
    return [text_of(x) for x in lin] + (st_out(3, 0x10100000, sW) if cfg.get("stamps") else []) + ["K2_done:", "s_endpgm"], probs, P


sP0 = 42


def build_k3(cfg):
    P = Prog()
    A = P.seq
    A(S("s_cmp_ge_u32 s2, 600"), I("s_cbranch_scc1 K3_done", "branch"))
    stamp(P, cfg, 0)
    A(RAW("s_load_dwordx2 s[4:5], s[0:1], 40"), RAW("s_load_dwordx2 s[6:7], s[0:1], 56"))
    A(V("v_lshrrev_b32 v1, 6, v0"), V("v_and_b32 v0, 63, v0"), V("v_readfirstlane_b32 s20, v1"))
    A(S("s_lshl_b32 s3, s2, 2"), V("v_lshlrev_b32 v1, 4, v0"), NOP(0), S("s_add_u32 s3, s3, s20"))
    A(S("s_lshl_b32 s21, s3, 14"))
    A(RAW("s_waitcnt lgkmcnt(0)"))
    A(S(f"s_add_u32 s8, s6, {PART_OFF}"), S("s_addc_u32 s9, s7, 0"), S(f"s_mov_b32 s10, {4800*8192}"), S("s_mov_b32 s11, 0x20000"))
    for k in range(16):
        if k and k % 4 == 0:
            A(S("s_add_u32 s21, s21, 4096"))
        A(VLOAD(("v", 8 + 4 * k), 1, 8, "s21", 1024 * (k & 3), None, cfg["rflags"]))
    A(S("s_mov_b32 s12, s4"), S("s_mov_b32 s13, s5"), S("s_mov_b32 s14, 2457600"), S("s_mov_b32 s15, 0x20000"))
    A(S("s_mul_i32 s22, s3, 3277"), S("s_lshr_b32 s22, s22, 16"), S("s_mul_i32 s23, s22, 20"), S("s_sub_u32 s23, s3, s23"),
      S("s_mul_i32 s22, s22, 20480"), S("s_lshl_b32 s23, s23, 6"), S("s_add_u32 s22, s22, s23"))
    A(V("v_and_b32 v2, 15, v0"), V("v_mul_u32_u24 v2, 1280, v2"), V("v_lshrrev_b32 v3, 5, v0"), V("v_bfe_u32 v4, v0, 4, 1"),
      V("v_lshl_or_b32 v3, v4, 1, v3"), V("v_lshl_add_u32 v2, v3, 4, v2"))
    for h in range(2):
        b = 8 + 32 * h
        for k in range(1, 8):
            A(V(f"v_pk_add_f32 v[{b}:{b+1}], v[{b}:{b+1}], v[{b+4*k}:{b+4*k+1}]"), V(f"v_pk_add_f32 v[{b+2}:{b+3}], v[{b+2}:{b+3}], v[{b+4*k+2}:{b+4*k+3}]"))
    A(V("v_cvt_pk_bf16_f32 v4, v8, v9"), V("v_cvt_pk_bf16_f32 v5, v10, v11"), V("v_cvt_pk_bf16_f32 v6, v40, v41"), V("v_cvt_pk_bf16_f32 v7, v42, v43"))
    A(NOP(1), V("v_permlane16_swap_b32 v4, v6"), V("v_permlane16_swap_b32 v5, v7"))
    A(VSTORE(("v", 4), 2, 12, "s22", 0))
    P.insert_waits()
    lin = P.linear()
    return [text_of(x) for x in lin] + (st_out(1, 0x10200000, 20) if cfg.get("stamps") else []) + ["K3_done:", "s_endpgm"], check_hazards(lin), P


DEFAULT = dict(wflags="", bflags="", pflags="", rflags="")
```

```python
import sys, json
import k1, k23

HDR = open("standalone__mha_block_cached__near_ridge.s.ref").read().split("; Override launch")[0]

def kd(name, nv, acc, ns=102):
    return f""".amdhsa_kernel {name}
  .amdhsa_next_free_vgpr {nv}
  .amdhsa_next_free_sgpr {ns}
  .amdhsa_accum_offset {acc}
  .amdhsa_group_segment_fixed_size 0
  .amdhsa_kernarg_size 64
  .amdhsa_user_sgpr_count 2
  .amdhsa_user_sgpr_kernarg_segment_ptr 1
  .amdhsa_system_sgpr_workgroup_id_x 1
.end_amdhsa_kernel"""

def diag_kernel(a, b, mul):
    return ["s_cmp_ge_u32 s2, 1", "s_cbranch_scc1 K4_done", "s_load_dwordx2 s[4:5], s[0:1], 56", "s_waitcnt lgkmcnt(0)",
            f"s_add_u32 s6, s4, {a}", "s_addc_u32 s7, s5, 0", f"s_add_u32 s8, s4, {b}", "s_addc_u32 s9, s5, 0",
            "s_load_dword s10, s[6:7], 0", "s_load_dword s11, s[8:9], 0", "s_memrealtime s[12:13]", "s_waitcnt lgkmcnt(0)",
            "s_sub_u32 s10, s11, s10", "s_min_u32 s10, s10, 20000", f"s_mul_i32 s10, s10, {mul}",
            "K4_loop:", "s_memrealtime s[14:15]", "s_waitcnt lgkmcnt(0)", "s_sub_u32 s14, s14, s12", "s_cmp_lt_u32 s14, s10", "s_cbranch_scc1 K4_loop",
            "K4_done:", "s_endpgm"]

def generate(c1=None, c2=None, only=None, diag=None):
    cfg1 = dict(k1.DEFAULT); cfg1.update(c1 or {})
    cfg2 = dict(k23.DEFAULT); cfg2.update(c2 or {})
    N1 = "standalone__mha_block_cached__near_ridge_kernel"
    ks = []
    o, p, P = k1.build(cfg1); assert not p, p[:10]
    if P.warn or P.overfull(): print("k1 warn", P.warn[:5], P.overfull(), file=sys.stderr)
    ks.append((N1, o, 256, 256, k1.LDS_BYTES, 512, 256))
    o, p, P = k23.build_k2(cfg2); assert not p, p[:10]
    if P.warn or P.overfull(): print("k2 warn", P.warn[:5], P.overfull(), file=sys.stderr)
    ks.append(("oproj_kernel", o, 256, 256, k23.K2_LDS, 512, 256))
    o, p, P = k23.build_k3(cfg2); assert not p, p[:10]
    ks.append(("reduce_kernel", o, 600, 256, 0, 72, 72))
    if diag: ks.append(("diag_kernel", diag_kernel(*diag), 1, 64, 0, 8, 8))
    if only is not None: ks = [ks[i] for i in only]
    s = HDR
    for (n, o, g, b, lds, nv, ac) in ks:
        s += f"; @launch kernel={n} grid=({g},1,1) block=({b},1,1) lds={lds}\n"
    s += '.amdgcn_target "amdgcn-amd-amdhsa--gfx950"\n.text\n'
    for (n, o, g, b, lds, nv, ac) in ks:
        s += f".globl {n}\n.p2align 8\n.type {n},@function\n{n}:\n" + "\n".join(("" if l.endswith(":") else "    ") + l for l in o if l) + "\n"
    s += '.section .rodata,"a"\n'
    for (n, o, g, b, lds, nv, ac) in ks:
        s += ".p2align 6\n" + kd(n, nv, ac) + "\n"
    return s

if __name__ == "__main__":
    out = sys.argv[1]
    c1 = json.loads(sys.argv[2]) if len(sys.argv) > 2 else None
    c2 = json.loads(sys.argv[3]) if len(sys.argv) > 3 else None
    dg = eval(sys.argv[4]) if len(sys.argv) > 4 else None
    open(out, "w").write(generate(c1, c2, None, dg))
```

```python
import math, struct
from asmlib import *

SLOT = 12288
KREG = 0
VREG = 6 * SLOT
EREG = 12 * SLOT
LDS_BYTES = 163840

SX, SW, SK, SV, SO = 8, 12, 16, 20, 24
sW, sB, sH, sWOFF, sXB0, sXB1 = 34, 35, 36, 37, 38, 39
sOW, sOX, sOKV, sCNT, sTH = 40, 41, 42, 43, 44
sC = 46
sRET = 48
sPAD = 50
sT0 = 52
vAK, vAV, vAW, vAX = 8, 10, 14, 18
vOK, vOV, vOW, vOX = 22, 25, 28, 31
vFR = 40
vS, vP, vNM, vTS, vL, vE = 64, 96, 128, 144, 148, 152


def f32(x):
    return "0x%08x" % struct.unpack("<I", struct.pack("<f", x))[0]


def acc(dt, qt):
    return ("v", (160 if dt % 2 == 0 else 64) + ((dt >> 1) * 4 + qt) * 4)


def Qf(qt, s):
    return acc(2 * s, qt)


def Oa(dt, qt):
    return ("a", (dt * 4 + qt) * 4)


def Kf(a, s):
    return ("a", 192 + (a * 6 + s) * 4)


def Xf(beta, u, qt):
    return ("a", beta * 32 + (u * 4 + qt) * 4)


def St(a, qt):
    return ("v", vS + (a * 4 + qt) * 4)


def Pf(par, qt):
    return ("v", vP + par * 16 + qt * 4)


def NM(qt):
    return ("v", vNM + qt * 4)


def FR(i):
    return ("v", vFR + (i % 6) * 4)


def wslot(n):
    buf = (n // 2) % 4
    base = {2: KREG, 3: KREG + 2 * SLOT, 0: KREG + 4 * SLOT, 1: VREG + 4 * SLOT}[buf]
    return base + (n % 2) * SLOT


def kslot(n):
    return KREG + (n % 6) * SLOT


def vslot(n):
    return VREG + (n % 6) * SLOT


def xregion(beta):
    return [(VREG + 2 * beta * SLOT, VREG + 2 * beta * SLOT + 3 * 8192), (EREG + beta * 8192, EREG + beta * 8192 + 8192)]


def vtype_read(dst, slot, dt, t, tag):
    if slot >= VREG:
        a, off = vAV, slot - VREG
    else:
        a, off = vAW, slot
    return DSTR((dst[0], dst[1] + 2 * t), a + (dt & 3), off + 1536 * t + 128 * (dt >> 2), tag)


def k_read(n, a, s):
    return DSR128(Kf(a, s), vAK + (s & 1), kslot(n) + 1536 * a + 128 * (s >> 1), ("K", n))


class DmaGroup:
    def __init__(self, pre, dmas):
        self.pre = pre
        self.dmas = dmas


def grp_W(n, cfg):
    sl = wslot(n)
    return [DmaGroup([S(f"s_add_u32 m0, s{sWOFF}, {sl}"), S(f"s_mov_b32 s{sOW}, {n*393216}")],
                     [DMA(vOW + j, SW, f"s{sOW}", 1024 * j, ("W", n), cfg["wflags"], region=[(sl, sl + SLOT)]) for j in range(3)])]


def grp_X(c, cfg, after=()):
    beta = c & 1
    sb = sXB0 + beta
    g0 = DmaGroup([S(f"s_mov_b32 m0, s{sb}"), S(f"s_mov_b32 s{sOX}, {128*c}")],
                  [DMA(vOX + j, SX, f"s{sOX}", 1024 * j, ("X", c), cfg["xflags"], after=after, region=xregion(beta)) for j in range(4)])
    g1 = DmaGroup([S(f"s_add_u32 m0, s{sb}, 4096")],
                  [DMA(vOX + 4 + j, SX, f"s{sOX}", 1024 * j, ("X", c), cfg["xflags"], region=xregion(beta)) for j in range(4)])
    return [g0, g1]


def grp_K(n, cfg, loop=False):
    sl = kslot(n)
    so = S(f"s_add_u32 s{sOKV}, s{sOKV}, {SLOT}") if loop else S(f"s_mov_b32 s{sOKV}, {n*SLOT}")
    return [DmaGroup([S(f"s_add_u32 m0, s{sWOFF}, {sl}"), so],
                     [DMA(vOK + j, SK, f"s{sOKV}", 1024 * j, ("K", n), cfg["kvflags"], region=[(sl, sl + SLOT)]) for j in range(3)])]


def grp_V(n, cfg, loop=False):
    sl = vslot(n)
    pre = [S(f"s_add_u32 m0, s{sWOFF}, {sl}")]
    if not loop:
        pre.append(S(f"s_mov_b32 s{sOKV}, {(n+1)*SLOT}"))
    return [DmaGroup(pre,
                     [DMA(vOV + j, SV, f"s{sOKV}", 1024 * j, ("V", n), cfg["kvflags"], region=[(sl, sl + SLOT)]) for j in range(3)])]


def seq_groups(P, groups):
    for g in groups:
        P.seq(g.pre)
        if g.pre[-1].text.split()[1].startswith("m0"):
            P.seq(NOP(0))
        P.seq(g.dmas)


def place_groups(P, allg, first_idx, groups, slots):
    it = iter(slots)
    lo = first_idx
    for g in groups:
        idx = []
        while True:
            k = next(it)
            if not idx and k - lo < len(g.pre) + 1:
                continue
            idx.append(k)
            if len(idx) == len(g.dmas):
                break
        for s_ in g.pre:
            P.flex_scalar(s_, allg[lo:idx[0]])
        for k, d in zip(idx, g.dmas):
            assert not allg[k].vec, (k, allg[k].vec)
            allg[k].vec.append(d)
        lo = idx[-1] + 1


def stamp(P, cfg, k):
    if cfg.get("stamps"):
        P.seq(I(f"s_memtime s[{sT0+4*k}:{sT0+4*k+1}]", "raw", brk=False), I(f"s_memrealtime s[{sT0+4*k+2}:{sT0+4*k+3}]", "raw"),
              WAIT(lg=0))


def prologue(P, cfg):
    A = P.seq
    A(S("s_cmp_ge_u32 s2, 256"), I("s_cbranch_scc1 K1_done", "branch"))
    A(RAW("s_load_dwordx4 s[4:7], s[0:1], 0"), RAW("s_load_dwordx4 s[28:31], s[0:1], 16"), RAW("s_load_dwordx2 s[32:33], s[0:1], 56"))
    if cfg.get("stamps"):
        A(RAW(f"s_memtime s[{sT0}:{sT0+1}]"), RAW(f"s_memrealtime s[{sT0+2}:{sT0+3}]"))
    A(V("v_lshrrev_b32 v1, 6, v0"), V("v_and_b32 v0, 63, v0"))
    A(V(f"v_readfirstlane_b32 s{sW}, v1"))
    A(S("s_and_b32 s3, s2, 7"), S(f"s_lshr_b32 s{sCNT}, s2, 3"))
    m = cfg["map"]
    if m == "batch":
        A(S(f"s_mov_b32 s{sB}, s3"), S(f"s_mov_b32 s{sH}, s{sCNT}"))
    elif m == "hg4":
        A(S(f"s_lshr_b32 s{sB}, s{sCNT}, 2"), S(f"s_and_b32 s{sH}, s{sCNT}, 3"), S("s_lshl_b32 s3, s3, 2"), S(f"s_add_u32 s{sH}, s{sH}, s3"))
    elif m == "4x8":
        A(S(f"s_and_b32 s{sB}, s3, 1"), S(f"s_lshl_b32 s{sB}, s{sB}, 2"), S(f"s_and_b32 s{sH}, s{sCNT}, 3"), S(f"s_add_u32 s{sB}, s{sB}, s{sH}"),
          S("s_lshr_b32 s3, s3, 1"), S("s_lshl_b32 s3, s3, 3"), S(f"s_lshr_b32 s{sH}, s{sCNT}, 2"), S(f"s_add_u32 s{sH}, s{sH}, s3"))
    A(V("v_lshrrev_b32 v2, 3, v0"), V("v_lshl_add_u32 v2, v1, 6, v2"), V("v_mul_u32_u24 v2, 1280, v2"),
      V("v_lshrrev_b32 v3, 4, v0"), V("v_and_b32 v4, 7, v0"), V("v_xor_b32 v3, v3, v4"),
      V(f"v_lshl_add_u32 v{vOX}, v3, 4, v2"), V("v_xor_b32 v3, 4, v3"), V("v_lshl_add_u32 v4, v3, 4, v2"))
    for j in range(1, 8):
        src = f"v{vOX}" if j % 2 == 0 else "v4"
        A(V(f"v_add_u32 v{vOX+j}, {10240*j - 1024*(j&3)}, {src}"))
    A(S(f"s_mul_i32 s{sWOFF}, s{sW}, 3072"), S(f"s_lshl_b32 s{sXB0}, s{sW}, 13"),
      S(f"s_add_u32 s{sXB1}, s{sXB0}, {VREG+2*SLOT}"), S(f"s_add_u32 s{sXB0}, s{sXB0}, {VREG}"),
      S(f"s_cmp_eq_u32 s{sW}, 3"), S(f"s_cselect_b32 s{sXB0}, {EREG}, s{sXB0}"), S(f"s_cselect_b32 s{sXB1}, {EREG+8192}, s{sXB1}"),
      S(f"s_cselect_b32 s{sPAD}, {f32(-1000.0)}, 0"))
    A(V("v_and_b32 v5, 1, v1"), V("v_lshrrev_b32 v6, 1, v1"), V("v_lshl_or_b32 v6, v6, 2, v5"), V("v_lshlrev_b32 v5, 2, v5"))
    for j in range(3):
        A(V(f"v_add_u32 v2, {64*j}, v0"), V("v_mul_u32_u24 v3, 2731, v2"), V("v_lshrrev_b32 v3, 16, v3"),
          V("v_mul_u32_u24 v4, 24, v3"), V("v_sub_u32 v2, v2, v4"),
          V("v_and_b32 v4, 2, v3"),
          V("v_xor_b32 v2, v2, v4"),
          V("v_lshl_add_u32 v3, v1, 3, v3"),
          V("v_xor_b32 v4, v2, v5"),
          V("v_xor_b32 v2, v2, v6"),
          V("v_mul_u32_u24 v7, 12288, v3"), V(f"v_lshl_add_u32 v{vOW+j}, v4, 4, v7"),
          V("v_mul_u32_u24 v7, 384, v3"), V(f"v_lshl_add_u32 v{vOV+j}, v4, 4, v7"), V(f"v_lshl_add_u32 v{vOK+j}, v2, 4, v7"))
        if j:
            A(V(f"v_subrev_u32 v{vOW+j}, {1024*j}, v{vOW+j}"), V(f"v_subrev_u32 v{vOV+j}, {1024*j}, v{vOV+j}"),
              V(f"v_subrev_u32 v{vOK+j}, {1024*j}, v{vOK+j}"))
    A(RAW("s_waitcnt lgkmcnt(0)"))
    A(S(f"s_mul_i32 s3, s{sB}, 307200"), S(f"s_add_u32 s{SX}, s4, s3"), S(f"s_addc_u32 s{SX+1}, s5, 0"),
      S(f"s_mov_b32 s{SX+2}, 307200"), S(f"s_mov_b32 s{SX+3}, 0x20000"))
    A(S(f"s_mul_i32 s3, s{sH}, 384"), S(f"s_add_u32 s{SW}, s30, s3"), S(f"s_addc_u32 s{SW+1}, s31, 0"),
      S(f"s_sub_u32 s{SW+2}, 7864320, s3"), S(f"s_mov_b32 s{SW+3}, 0x20000"))
    seq_groups(P, grp_X(0, cfg) + grp_W(0, cfg) + grp_W(1, cfg) + grp_X(1, cfg))
    for n in range(2, 8):
        seq_groups(P, grp_W(n, cfg))
    A(S(f"s_lshl_b32 s{sCNT}, s{sB}, 5"), S(f"s_add_u32 s{sCNT}, s{sCNT}, s{sH}"), S(f"s_mul_i32 s3, s{sCNT}, 393216"),
      S(f"s_add_u32 s{SK}, s6, s3"), S(f"s_addc_u32 s{SK+1}, s7, 0"), S(f"s_mov_b32 s{SK+2}, 393216"), S(f"s_mov_b32 s{SK+3}, 0x20000"),
      S(f"s_add_u32 s{SV}, s28, s3"), S(f"s_addc_u32 s{SV+1}, s29, 0"), S(f"s_sub_u32 s{SV}, s{SV}, {SLOT}"), S(f"s_subb_u32 s{SV+1}, s{SV+1}, 0"),
      S(f"s_mov_b32 s{SV+2}, {393216+SLOT}"), S(f"s_mov_b32 s{SV+3}, 0x20000"),
      S(f"s_mul_i32 s3, s{sCNT}, 92160"), S(f"s_add_u32 s{SO}, s32, s3"), S(f"s_addc_u32 s{SO+1}, s33, 0"),
      S(f"s_mov_b32 s{SO+2}, 92160"), S(f"s_mov_b32 s{SO+3}, 0x20000"))
    c = math.log2(math.e) / math.sqrt(192.0)
    A(S(f"s_mov_b32 s{sC}, {f32(c)}"), S(f"s_mov_b32 s{sC+1}, {f32(c)}"), S(f"s_mov_b32 s{sTH}, {f32(cfg['thresh'])}"))
    A(V("v_and_b32 v1, 15, v0"), V("v_lshrrev_b32 v2, 4, v0"))
    A(V("v_lshrrev_b32 v3, 1, v1"), V("v_xor_b32 v3, v3, v2"), V("v_lshlrev_b32 v3, 4, v3"), V("v_lshl_add_u32 v3, v1, 7, v3"),
      V("v_xor_b32 v4, 64, v3"),
      V(f"v_add_u32 v{vAX}, s{sXB0}, v3"), V(f"v_add_u32 v{vAX+1}, s{sXB0}, v4"),
      V(f"v_add_u32 v{vAX+2}, s{sXB1}, v3"), V(f"v_add_u32 v{vAX+3}, s{sXB1}, v4"))
    A(V("v_lshrrev_b32 v3, 2, v1"), V("v_lshl_add_u32 v4, v2, 3, v3"), V("v_mul_u32_u24 v4, 384, v4"),
      V("v_and_b32 v5, 3, v1"), V("v_lshl_add_u32 v4, v5, 3, v4"),
      V("v_lshrrev_b32 v3, 3, v1"), V("v_and_b32 v5, 1, v2"), V("v_lshl_or_b32 v3, v5, 1, v3"))
    for e in range(4):
        A(V(f"v_xor_b32 v5, {e}, v3"), V(f"v_lshl_add_u32 v{vAW+e}, v5, 5, v4"), V(f"v_add_u32 v{vAV+e}, {VREG}, v{vAW+e}"))
    A(V("v_lshrrev_b32 v3, 2, v1"), V("v_and_b32 v4, 3, v1"), V("v_lshl_add_u32 v4, v3, 3, v4"), V("v_mul_u32_u24 v4, 384, v4"),
      V("v_and_b32 v3, 1, v3"), V("v_and_b32 v5, 2, v1"), V("v_or_b32 v3, v3, v5"), V("v_lshrrev_b32 v5, 3, v1"), V("v_lshl_or_b32 v3, v5, 2, v3"),
      V("v_lshrrev_b32 v5, 1, v2"), V("v_and_b32 v6, 1, v2"), V("v_lshl_or_b32 v5, v6, 1, v5"), V("v_xor_b32 v3, v3, v5"),
      V(f"v_lshl_add_u32 v{vAK}, v3, 4, v4"), V("v_xor_b32 v3, 4, v3"), V(f"v_lshl_add_u32 v{vAK+1}, v3, 4, v4"))


def x_read(c, u, qt):
    beta = c & 1
    return DSR128(Xf(beta, u, qt), vAX + 2 * beta + u, 2048 * qt, ("X", c))


def w_reads(stage, dt):
    gdt = stage * 12 + dt
    out = []
    for u in range(2):
        n = 2 * stage + u
        for t in range(2):
            out.append(vtype_read(FR(2 * (gdt % 3) + u), wslot(n), dt, t, ("W", n)))
    return out


def phase1(P, cfg):
    A = P.seq
    if cfg.get("p1stamps"):
        A(RAW("s_memtime s[80:81]"), RAW("s_waitcnt lgkmcnt(0)"), RAW("v_mov_b32 v39, 0"), RAW("v_writelane_b32 v39, s80, 24"))
    A(WAITV(("X", 0), ("W", 0), ("W", 1)), BARRIER())
    if cfg.get("p1stamps"):
        A(RAW("s_memtime s[80:81]"), RAW("s_waitcnt lgkmcnt(0)"), RAW("v_writelane_b32 v39, s80, 25"))
    for u in range(2):
        for qt in range(4):
            A(x_read(0, u, qt))
    A(w_reads(0, 0), w_reads(0, 1))
    G = []
    for st in range(10):
        mfs = []
        for dt in range(12):
            gdt = st * 12 + dt
            for qt in range(4):
                for u in range(2):
                    C = 0 if (st == 0 and u == 0) else acc(dt, qt)
                    m = MFMA(acc(dt, qt), FR(2 * (gdt % 3) + u), Xf(st & 1, u, qt), C)
                    if qt == 0 and u == 0:
                        m.rd |= set(regs("v", FR(2 * (gdt % 3) + 1)[1], 4))
                        if dt == 0:
                            m.rd |= set(regs("a", Xf(st & 1, 0, 0)[1], 32))
                    mfs.append(m)
        G += P.gaps(mfs)
    for st in range(10):
        b = 96 * st
        for dt in range(2, 14):
            s2, d2 = (st, dt) if dt < 12 else (st + 1, dt - 12)
            if s2 == 10:
                continue
            g = b + 8 * (dt - 2) + (2 if dt == 12 else 0)
            r = w_reads(s2, d2)
            G[g].vec += r[:2]
            G[g + 1].vec += r[2:]
        if st < 9:
            G[b + 1].sca.append(WAITV(("X", st + 1)))
            rd = [x_read(st + 1, u, qt) for u in range(2) for qt in range(4)]
            for k, g in enumerate((2, 4, 6, 10)):
                G[b + g].vec += rd[2 * k:2 * k + 2]
        need = [("W", 2 * st + 2), ("W", 2 * st + 3)] if st < 9 else [("K", 0), ("K", 1)]
        if cfg.get("p1stamps"):
            G[b + 79].post.append(RAW("s_memtime s[80:81]"))
            G[b + 81].post.append(RAW(f"v_writelane_b32 v39, s80, {26+st}"))
        G[b + 80].sca.append(WAITV(*need))
        G[b + 81].sca.append(BARRIER(frees=[("W", 2 * st), ("W", 2 * st + 1), ("X", st + 1)]))
    for s in range(6):
        G[96 * 9 + 82 + s // 2].vec.append(k_read(0, 0, s))
    def slots_from(lo, hi):
        return [k for k in range(lo, hi) if k % 8 in (3, 5) and k % 96 != 83]
    place_groups(P, G, 0, grp_X(2, cfg, after=[("X", 0)]) + grp_X(3, cfg, after=[("X", 1)]), slots_from(0, 80))
    for st in range(9):
        lo = 96 * st + 82
        if st + 4 < 10:
            gr = grp_W(2 * st + 8, cfg) + grp_W(2 * st + 9, cfg)
            place_groups(P, G, lo, gr, slots_from(lo, lo + 30))
            place_groups(P, G, lo + 30, grp_X(st + 4, cfg, after=[("X", st + 2)]), slots_from(lo + 30, lo + 94))
        else:
            gr = {6: grp_K(0, cfg) + grp_K(1, cfg),
                  7: grp_V(0, cfg) + grp_K(2, cfg) + grp_V(1, cfg) + grp_K(3, cfg),
                  8: grp_V(2, cfg) + grp_K(4, cfg) + grp_V(3, cfg) + grp_K(5, cfg)}[st]
            place_groups(P, G, lo, gr, slots_from(lo, lo + 94))
    lo = 96 * 9 + 82
    place_groups(P, G, lo, grp_V(4, cfg), [lo + 5, lo + 8, lo + 11])


def q_convert(P, cfg):
    A = P.seq
    A(NOP(7))
    for s in range(6):
        for qt in range(4):
            for dt in (2 * s, 2 * s + 1):
                r = acc(dt, qt)[1]
                A(V(f"v_pk_mul_f32 v[{r}:{r+1}], v[{r}:{r+1}], s[{sC}:{sC+1}]"), V(f"v_pk_mul_f32 v[{r+2}:{r+3}], v[{r+2}:{r+3}], s[{sC}:{sC+1}]"))
        for qt in range(4):
            a = acc(2 * s, qt)[1]
            b = acc(2 * s + 1, qt)[1]
            A(V(f"v_cvt_pk_bf16_f32 v{a}, v{a}, v{a+1}"), V(f"v_cvt_pk_bf16_f32 v{a+1}, v{a+2}, v{a+3}"),
              V(f"v_cvt_pk_bf16_f32 v{a+2}, v{b}, v{b+1}"), V(f"v_cvt_pk_bf16_f32 v{a+3}, v{b+2}, v{b+3}"))
        A(NOP(0))
        for qt in range(4):
            a = acc(2 * s, qt)[1]
            A(V(f"v_permlane16_swap_b32 v{a}, v{a+2}"), V(f"v_permlane16_swap_b32 v{a+1}, v{a+3}"))
    A(NOP(1))


def qk_mfmas(first):
    out = []
    for a in range(2):
        for qt in range(4):
            for s in range(6):
                C = (0 if first else NM(qt)) if s == 0 else St(a, qt)
                m = MFMA(St(a, qt), Kf(a, s), Qf(qt, s), C)
                if qt == 0 and s in (0, 3):
                    m.rd |= set(regs("a", Kf(a, s)[1], 12))
                out.append(m)
    return out


def pv_mfmas(j):
    out = []
    for dt in range(12):
        for qt in range(4):
            out.append(MFMA(Oa(dt, qt), FR(dt), Pf(j & 1, qt), 0 if j == 0 else Oa(dt, qt)))
    return out


def xmax(x, t, op):
    out = []
    for sw in ("v_permlane32_swap_b32", "v_permlane16_swap_b32"):
        for a, b in zip(x, t):
            out.append(V(f"v_mov_b32 v{b}, v{a}"))
        out.append(NOP(0))
        for a, b in zip(x, t):
            out.append(V(f"{sw} v{b}, v{a}"))
        for a, b in zip(x, t):
            out.append(V(f"{op} v{a}, v{a}, v{b}"))
    return out


def rowmax(dst):
    out = []
    for qt in range(4):
        s0, s1 = St(0, qt)[1], St(1, qt)[1]
        d = dst + qt
        out += [V(f"v_max3_f32 v{d}, v{s0}, v{s0+1}, v{s0+2}"), V(f"v_max3_f32 v{d}, v{d}, v{s0+3}, v{s1}"),
                V(f"v_max3_f32 v{d}, v{d}, v{s1+1}, v{s1+2}"), V(f"v_max_f32 v{d}, v{d}, v{s1+3}")]
    return out


def softmax_seq(par, delta):
    out = []
    for qt in range(4):
        for a in range(2):
            s = St(a, qt)[1]
            for r in range(4):
                out.append(V(f"v_sub_f32 v{vE+4*a+r}, v{s+r}, v{delta+qt}"))
        for k in range(8):
            out.append(V(f"v_exp_f32 v{vE+k}, v{vE+k}"))
        p = Pf(par, qt)[1]
        out.append(V(f"v_add_f32 v{vTS+qt}, v{vE}, v{vE+1}"))
        for k in range(2, 8):
            out.append(V(f"v_add_f32 v{vTS+qt}, v{vTS+qt}, v{vE+k}"))
        for k in range(4):
            out.append(V(f"v_cvt_pk_bf16_f32 v{p+k}, v{vE+2*k}, v{vE+2*k+1}"))
    return out


def first_tile(P, cfg):
    A = P.seq
    G = P.gaps(qk_mfmas(True))
    for s in range(6):
        G[s].vec.append(k_read(0, 1, s))
        G[26 + s].vec.append(k_read(1, 0, s))
    A(NOP(7))
    A(rowmax(1), xmax([1, 2, 3, 4], [vE, vE + 1, vE + 2, vE + 3], "v_max_f32"))
    A(V(f"v_subrev_f32 v4, s{sPAD}, v4"))
    for qt in range(4):
        for r in range(4):
            A(V(f"v_sub_f32 v{vNM+4*qt+r}, 0, v{1+qt}"))
        A(V(f"v_mov_b32 v{vL+qt}, 0"))
    A(softmax_seq(0, 1))
    A(WAITV(("V", 0), ("K", 2)), BARRIER(frees=[("K", 0)]))


def fallback(par):
    out = [LABEL(f"K1_fix{par}"), NOP(7)]
    out += rowmax(1)
    out += xmax([1, 2, 3, 4], [vE, vE + 1, vE + 2, vE + 3], "v_max_f32")
    for qt in range(4):
        out.append(V(f"v_max_f32 v{1+qt}, 0, v{1+qt}"))
    out += softmax_seq(par, 1)
    for qt in range(4):
        for r in range(4):
            out.append(V(f"v_sub_f32 v{vNM+4*qt+r}, v{vNM+4*qt+r}, v{1+qt}"))
    for qt in range(4):
        out.append(V(f"v_exp_f32 v{1+qt}, -v{1+qt}"))
    out.append(NOP(0))
    for qt in range(4):
        out.append(V(f"v_mul_f32 v{vL+qt}, v{vL+qt}, v{1+qt}"))
    for dt in range(12):
        for qt in range(4):
            a = Oa(dt, qt)[1]
            e = vE + 4 * (qt & 1)
            for r in range(4):
                out.append(V(f"v_accvgpr_read_b32 v{e+r}, a{a+r}"))
            for r in range(4):
                out.append(V(f"v_mul_f32 v{e+r}, v{e+r}, v{1+qt}"))
            for r in range(4):
                out.append(V(f"v_accvgpr_write_b32 a{a+r}, v{e+r}"))
    out += [NOP(1), I(f"s_setpc_b64 s[{sRET}:{sRET+1}]", "branch")]
    return out


def iteration(P, cfg, j, lab):
    G = P.gaps(qk_mfmas(False) + pv_mfmas(j))
    par = (j + 1) & 1
    exp_gaps = [11 + 5 * k + o for k in range(16) for o in (0, 2)]
    place_groups(P, G, 0, grp_K(j + 6, cfg, True), cfg["kdma"])
    place_groups(P, G, cfg["kdma"][-1] + 1, grp_V(j + 5, cfg, True), cfg["vdma"])
    valu = []
    for qt in range(4):
        valu.append((0, V(f"v_add_f32 v{vL+qt}, v{vL+qt}, v{vTS+qt}")))
    n = 0
    for T in range(8):
        a, qt = divmod(T, 4)
        s = St(a, qt)[1]
        p = Pf(par, qt)[1] + 2 * a
        for r in range(4):
            g = exp_gaps[n]
            e = vE + n % 8
            assert not G[g].vec
            G[g].vec.append(V(f"v_exp_f32 v{e}, v{s+r}"))
            if a == 0 and r == 0:
                pass
            elif a == 0 and r == 1:
                valu.append((g + 1, V(f"v_add_f32 v{vTS+qt}, v{e-1}, v{e}")))
            else:
                valu.append((g + 1, V(f"v_add_f32 v{vTS+qt}, v{vTS+qt}, v{e}")))
            if r & 1:
                valu.append((g + 1, V(f"v_cvt_pk_bf16_f32 v{p+(r>>1)}, v{e-1}, v{e}")))
            n += 1
        if T == 6:
            valu.append((g + 1, V(f"v_max3_f32 v1, v{vTS}, v{vTS+1}, v{vTS+2}")))
    valu.append((g + 1, V(f"v_max_f32 v1, v1, v{vTS+3}")))
    valu.append((g + 1, V(f"v_cmp_lt_f32 vcc, s{sTH}, v1")))
    lds = []
    for s in range(6):
        lds.append((s, 14, k_read(j + 1, 1, s)))
    t0 = 6
    for dt in range(6):
        for t in range(2):
            lds.append((t0 + 3 * (2 * dt + t), 48 + 4 * dt - 8, vtype_read(FR(dt), vslot(j), dt, t, ("V", j))))
    for s in range(6):
        lds.append(((27, 33, 38, 43, 47, 50)[s], 70, k_read(j + 2, 0, s)))
    for dt in range(6, 12):
        for t in range(2):
            lds.append((48 + 4 * (dt - 6) + 3, 48 + 4 * dt - 8, vtype_read(FR(dt), vslot(j), dt, t, ("V", j))))
    for gi, g in enumerate(G):
        while g.free() > 0:
            cand = []
            if valu and valu[0][0] <= gi:
                cand.append((min(valu[0][0] + cfg["vslack"], 93), 0, None))
            av = [x for x in lds if x[0] <= gi]
            if av:
                b = min(av, key=lambda x: x[1])
                nl = len([y for y in g.vec if y.kind == "lds"])
                cand.append((b[1] - (100 if nl == 0 and len([v for v in valu if v[0] <= gi]) < 3 else 0), 1, b))
            if not cand:
                break
            c = min(cand, key=lambda x: x[:2])
            if c[1] == 0:
                assert valu[0][0] + 16 >= gi
                g.vec.append(valu.pop(0)[1])
            else:
                assert c[2][1] >= gi, (gi, c[2])
                lds.remove(c[2])
                g.vec.append(c[2][2])
    assert not valu and not lds, (valu, lds)
    if cfg.get("itstamps"):
        G[90].post.append(RAW("s_memrealtime s[80:81]"))
        G[94].post += [RAW("s_mov_b32 m0, s82"), RAW("s_addk_i32 s82, 1"), RAW("v_writelane_b32 v39, s80, m0")]
        if lab == "5":
            G[94].post.append(RAW(f"s_cmp_lg_u32 s{sCNT}, 0"))
    G[92].sca.append(WAITV(("V", j + 1), ("K", j + 3)))
    G[93].sca.append(BARRIER(frees=[("V", j), ("K", j + 1)]))
    G[95].sca.append(I(f"s_cbranch_vccnz K1_fx{lab}", "branch", rd=["vcc"]))
    assert not G[95].vec
    G[95].post.append(LABEL(f"K1_bk{lab}"))
    return G


def final(P, cfg):
    A = P.seq
    j = 31
    for dt in range(4):
        for t in range(2):
            A(vtype_read(FR(dt), vslot(j), dt, t, ("V", j)))
    for qt in range(4):
        A(V(f"v_add_f32 v{vL+qt}, v{vL+qt}, v{vTS+qt}"))
    A(xmax([vL + q for q in range(4)], [vE + q for q in range(4)], "v_add_f32"))
    for qt in range(4):
        A(V(f"v_rcp_f32 v{vE+2*qt}, v{vL+qt}"))
    A(V("v_lshlrev_b32 v1, 4, v0"), S(f"s_mul_i32 s3, s{sW}, {4*6144}"), S(f"s_mov_b32 s{sOW}, 4096"))
    for qt in range(4):
        A(S(f"s_add_u32 s{sOX}, s3, {qt*6144}"), V(f"v_add_u32 v{2+qt}, s{sOX}, v1"))
    G = P.gaps(pv_mfmas(j))
    for dt in range(4, 12):
        g = 0 + 2 * (dt - 4) if dt < 6 else 4 * (dt - 6) + 3
        G[g].vec += [vtype_read(FR(dt), vslot(j), dt, t, ("V", j)) for t in range(2)]
    stamp(P, cfg, 4)
    A(NOP(7))
    k = 0
    for s in range(6):
        for qt in range(4):
            t = vS + (k % 4) * 8
            o = vP + (k % 8) * 4
            k += 1
            for u in range(2):
                a = Oa(2 * s + u, qt)[1]
                for r in range(4):
                    A(V(f"v_accvgpr_read_b32 v{t+4*u+r}, a{a+r}"))
            for r in range(0, 8, 2):
                A(V(f"v_pk_mul_f32 v[{t+r}:{t+r+1}], v[{t+r}:{t+r+1}], v[{vE+2*qt}:{vE+2*qt+1}] op_sel_hi:[1,0]"))
            for r in range(4):
                A(V(f"v_cvt_pk_bf16_f32 v{o+r}, v{t+2*r}, v{t+2*r+1}"))
            A(VSTORE(("v", o), 2 + qt, SO, 0 if s < 4 else f"s{sOW}", 1024 * (s & 3), cfg["oflags"]))


def build(cfg):
    P = Prog()
    prologue(P, cfg)
    phase1(P, cfg)
    stamp(P, cfg, 1)
    q_convert(P, cfg)
    first_tile(P, cfg)
    stamp(P, cfg, 2)
    if cfg.get("itstamps"):
        P.seq(RAW("s_mov_b32 s82, 24"), RAW("v_mov_b32 v39, 0"))
    iteration(P, cfg, 0, "p")
    P.seq(I(f"s_mov_b32 s{sCNT}, 5", "raw"))
    marks = []
    for j in range(1, 31):
        if (j - 1) % 6 == 0:
            m = I("", "raw", mark=(j - 1) // 6)
            P.el.append(m)
        G = iteration(P, cfg, j, str((j - 1) % 6))
        if (j - 1) % 6 == 5:
            P.flex_scalar(S(f"s_sub_u32 s{sCNT}, s{sCNT}, 1"), G[80:90])
            G[94].sca.append(S(f"s_cmp_lg_u32 s{sCNT}, 0"))
            G[95].post.append(I("s_cbranch_scc1 K1_loop", "branch"))
    P.el.append(I("", "raw", mark=5))
    stamp(P, cfg, 3)
    final(P, cfg)
    P.insert_waits()
    P.place_flex()
    lin = P.linear()
    probs = check_hazards(lin) + check_lds_protocol(lin, private=lambda t: t[0] == "X")
    probs = [p for p in probs]
    trips = {}
    pre, post, cur = [], [], None
    for x in lin:
        if x.kind == "raw" and "mark" in x.meta:
            cur = x.meta["mark"]
            continue
        if cur is None:
            pre.append(x)
        elif cur == 5:
            post.append(x)
        else:
            trips.setdefault(cur, []).append(x)
    t0 = [text_of(x) for x in trips[0]]
    for k in range(1, 5):
        tk = [text_of(x) for x in trips[k]]
        assert tk == t0, [(a, b) for a, b in zip(t0, tk) if a != b][:5]
    out = [text_of(x) for x in pre] + ["K1_loop:"] + t0 + [text_of(x) for x in post]
    if cfg.get("stamps"):
        out += ["s_waitcnt vmcnt(0)", f"s_memtime s[{sT0+20}:{sT0+21}]", f"s_memrealtime s[{sT0+22}:{sT0+23}]", "s_waitcnt lgkmcnt(0)"]
        out += ["v_mov_b32 v1, v39" if cfg.get("itstamps") or cfg.get("p1stamps") else "v_mov_b32 v1, 0"]
        for k in range(24):
            out.append(f"v_writelane_b32 v1, s{sT0+k}, {k}")
        out += [f"s_add_u32 s{SO}, s32, 0x10000000", f"s_addc_u32 s{SO+1}, s33, 0", f"s_mov_b32 s{SO+2}, 0x100000",
                "s_lshl_b32 s3, s2, 2", f"s_add_u32 s3, s3, s{sW}", "s_lshl_b32 s3, s3, 8", "v_lshlrev_b32 v2, 2, v0",
                f"buffer_store_dword v1, v2, s[{SO}:{SO+3}], s3 offen"]
    out += ["K1_done:", "s_endpgm"]
    for lab, par in [("p", 1)] + [(str(k), (k + 2) & 1) for k in range(6)]:
        out += [f"K1_fx{lab}:", f"s_call_b64 s[{sRET}:{sRET+1}], K1_fix{par}", f"s_branch K1_bk{lab}"]
    for par in range(2):
        fb = fallback(par)
        probs += check_hazards(fb)
        out += [text_of(x) for x in fb]
    return out, probs, P


DEFAULT = dict(map="hg4", wflags="", xflags="", kvflags="nt", oflags="", thresh=16384.0,
               kdma=[4, 7, 9], vdma=[34, 44, 54], vslack=8, stamps=False)

if __name__ == "__main__":
    out, probs, P = build(dict(DEFAULT))
    print("\n".join(out))
    import sys
    print(len(out), "lines; problems:", probs[:20], "warn:", P.warn[:20], "overfull:", P.overfull(), file=sys.stderr)
```

```python
import sys, json
import k1, k23

HDR = open("standalone__mha_block_cached__near_ridge.s.ref").read().split("; Override launch")[0]

def kd(name, nv, acc, ns=102):
    return f""".amdhsa_kernel {name}
  .amdhsa_next_free_vgpr {nv}
  .amdhsa_next_free_sgpr {ns}
  .amdhsa_accum_offset {acc}
  .amdhsa_group_segment_fixed_size 0
  .amdhsa_kernarg_size 64
  .amdhsa_user_sgpr_count 2
  .amdhsa_user_sgpr_kernarg_segment_ptr 1
  .amdhsa_system_sgpr_workgroup_id_x 1
.end_amdhsa_kernel"""

def diag_kernel(a, b, mul):
    return ["s_cmp_ge_u32 s2, 1", "s_cbranch_scc1 K4_done", "s_load_dwordx2 s[4:5], s[0:1], 56", "s_waitcnt lgkmcnt(0)",
            f"s_add_u32 s6, s4, {a}", "s_addc_u32 s7, s5, 0", f"s_add_u32 s8, s4, {b}", "s_addc_u32 s9, s5, 0",
            "s_load_dword s10, s[6:7], 0", "s_load_dword s11, s[8:9], 0", "s_memrealtime s[12:13]", "s_waitcnt lgkmcnt(0)",
            "s_sub_u32 s10, s11, s10", "s_min_u32 s10, s10, 20000", f"s_mul_i32 s10, s10, {mul}",
            "K4_loop:", "s_memrealtime s[14:15]", "s_waitcnt lgkmcnt(0)", "s_sub_u32 s14, s14, s12", "s_cmp_lt_u32 s14, s10", "s_cbranch_scc1 K4_loop",
            "K4_done:", "s_endpgm"]

def stream_kernel(argoff, per_wg, flags):
    n = per_wg // 4096
    return ["s_cmp_ge_u32 s2, 256", "s_cbranch_scc1 K0_done", f"s_load_dwordx2 s[4:5], s[0:1], {argoff}", "s_load_dwordx2 s[6:7], s[0:1], 56",
            "v_lshlrev_b32 v2, 4, v0", "s_waitcnt lgkmcnt(0)", f"s_mul_i32 s3, s2, {per_wg}",
            "s_add_u32 s16, s4, s3", "s_addc_u32 s17, s5, 0", f"s_mov_b32 s18, {per_wg}", "s_mov_b32 s19, 0x20000", "s_mov_b32 m0, 0", "s_mov_b32 s42, 0",
            "s_memrealtime s[52:53]", "s_waitcnt lgkmcnt(0)",
            "K0_loop:", f"buffer_load_dwordx4 v2, s[16:19], s42 offen {flags} lds", "s_add_u32 s42, s42, 4096", f"s_cmp_lt_u32 s42, {per_wg}", "s_cbranch_scc1 K0_loop",
            "s_waitcnt vmcnt(0)", "s_memrealtime s[54:55]", "s_waitcnt lgkmcnt(0)", "v_mov_b32 v4, s52", "v_mov_b32 v5, s54",
            "s_add_u32 s8, s6, 0x10300000", "s_addc_u32 s9, s7, 0", "s_mov_b32 s10, 0x100000", "s_mov_b32 s11, 0x20000",
            "s_lshl_b32 s3, s2, 3", "v_mov_b32 v2, 0", "buffer_store_dwordx2 v[4:5], v2, s[8:11], s3 offen", "K0_done:", "s_endpgm"]

def generate(c1=None, c2=None, only=None, diag=None, pre=None):
    cfg1 = dict(k1.DEFAULT); cfg1.update(c1 or {})
    cfg2 = dict(k23.DEFAULT); cfg2.update(c2 or {})
    N1 = "standalone__mha_block_cached__near_ridge_kernel"
    ks = []
    o, p, P = k1.build(cfg1); assert not p, p[:10]
    if P.warn or P.overfull(): print("k1 warn", P.warn[:5], P.overfull(), file=sys.stderr)
    ks.append((N1, o, 256, 256, k1.LDS_BYTES, 512, 256))
    o, p, P = k23.build_k2(cfg2); assert not p, p[:10]
    if P.warn or P.overfull(): print("k2 warn", P.warn[:5], P.overfull(), file=sys.stderr)
    ks.append(("oproj_kernel", o, 256, 256, k23.K2_LDS, 512, 256))
    o, p, P = k23.build_k3(cfg2); assert not p, p[:10]
    ks.append(("reduce_kernel", o, 600, 256, 0, 72, 72))
    if pre: ks.insert(0, ("stream_kernel", stream_kernel(*pre), 256, 256, 163840, 8, 8))
    if diag: ks.append(("diag_kernel", diag_kernel(*diag), 1, 64, 0, 8, 8))
    if only is not None: ks = [ks[i] for i in only]
    s = HDR
    for (n, o, g, b, lds, nv, ac) in ks:
        s += f"; @launch kernel={n} grid=({g},1,1) block=({b},1,1) lds={lds}\n"
    s += '.amdgcn_target "amdgcn-amd-amdhsa--gfx950"\n.text\n'
    for (n, o, g, b, lds, nv, ac) in ks:
        s += f".globl {n}\n.p2align 8\n.type {n},@function\n{n}:\n" + "\n".join(("" if l.endswith(":") else "    ") + l for l in o if l) + "\n"
    s += '.section .rodata,"a"\n'
    for (n, o, g, b, lds, nv, ac) in ks:
        s += ".p2align 6\n" + kd(n, nv, ac) + "\n"
    return s

if __name__ == "__main__":
    out = sys.argv[1]
    c1 = json.loads(sys.argv[2]) if len(sys.argv) > 2 else None
    c2 = json.loads(sys.argv[3]) if len(sys.argv) > 3 else None
    dg = eval(sys.argv[4]) if len(sys.argv) > 4 else None
    open(out, "w").write(generate(c1, c2, None, dg, eval(sys.argv[5]) if len(sys.argv) > 5 else None))
```

```python
import re


def regs(cls, base, n=1):
    return [f"{cls}{base+i}" for i in range(n)]


def rng(cls, base, n):
    return f"{cls}{base}" if n == 1 else f"{cls}[{base}:{base+n-1}]"


class I:
    __slots__ = ("text", "kind", "rd", "wr", "meta")

    def __init__(self, text, kind, rd=(), wr=(), **meta):
        self.text = text
        self.kind = kind
        self.rd = set(rd)
        self.wr = set(wr)
        self.meta = meta

    def __repr__(self):
        return f"<{self.text}>"


_REG_RE = re.compile(r"(?<![\w.])([vas])(?:(\d+)|\[(\d+):(\d+)\])(?![\w])")


def _parse_regs(op):
    out = []
    for m in _REG_RE.finditer(op):
        c = m.group(1)
        if m.group(2) is not None:
            out.append(f"{c}{m.group(2)}")
        else:
            out += [f"{c}{k}" for k in range(int(m.group(3)), int(m.group(4)) + 1)]
    for sp in ("vcc", "m0", "exec"):
        if re.search(rf"(?<![\w]){sp}(?![\w])", op):
            out.append(sp)
    return out


TRANS = ("v_exp_f32", "v_log_f32", "v_rcp_f32", "v_rsq_f32", "v_sqrt_f32")


def V(text, **meta):
    op, rest = text.split(None, 1)
    ops = [o.strip() for o in rest.split(",")]
    wr = _parse_regs(ops[0])
    rd = []
    for o in ops[1:]:
        rd += _parse_regs(o)
    kind = "valu"
    if op.startswith(TRANS):
        kind = "trans"
    if op.startswith("v_permlane"):
        kind = "perm"
        rd += wr
        wr = wr + _parse_regs(ops[1])
    if op.startswith(("v_fmac", "v_writelane")):
        rd += wr
    return I(text, kind, rd, wr, **meta)


def S(text, **meta):
    parts = text.split(None, 1)
    op = parts[0]
    ops = [o.strip() for o in parts[1].split(",")] if len(parts) > 1 else []
    if op.startswith("s_cmp"):
        wr = []
        rd = sum((_parse_regs(o) for o in ops), [])
    else:
        wr = _parse_regs(ops[0]) if ops else []
        rd = sum((_parse_regs(o) for o in ops[1:]), [])
    return I(text, "salu", rd, wr, **meta)


def NOP(n):
    return I(f"s_nop {n}", "nop", n=n + 1)


def RAW(text):
    return I(text, "raw")


def LABEL(name):
    return I(f"{name}:", "label")


def MFMA(D, A, B, C):
    ct = "0" if C == 0 else rng(C[0], C[1], 4)
    t = f"v_mfma_f32_16x16x32_bf16 {rng(D[0], D[1], 4)}, {rng(A[0], A[1], 4)}, {rng(B[0], B[1], 4)}, {ct}"
    ab = regs(A[0], A[1], 4) + regs(B[0], B[1], 4)
    c = [] if C == 0 else regs(C[0], C[1], 4)
    return I(t, "mfma", ab + c, regs(D[0], D[1], 4), ab=set(ab), c=set(c), D=D, C=C)


def DSR128(dst, addr, off, tag=None):
    assert 0 <= off < 65536, off
    return I(f"ds_read_b128 {rng(dst[0], dst[1], 4)}, v{addr} offset:{off}", "lds", [f"v{addr}"],
             regs(dst[0], dst[1], 4), tag=tag)


def DSTR(dst, addr, off, tag=None):
    assert 0 <= off < 65536, off
    return I(f"ds_read_b64_tr_b16 {rng(dst[0], dst[1], 2)}, v{addr} offset:{off}", "lds", [f"v{addr}"],
             regs(dst[0], dst[1], 2), tag=tag)


def DMA(voff, srd, soff, imm, tag, flags="", after=(), region=None):
    so = soff if isinstance(soff, str) else str(soff)
    o = f" offset:{imm}" if imm else ""
    f = f" {flags}" if flags else ""
    rd = [f"v{voff}", "m0"] + regs("s", srd, 4) + ([so] if so.startswith("s") else [])
    return I(f"buffer_load_dwordx4 v{voff}, s[{srd}:{srd+3}], {so} offen{o}{f} lds", "dma", rd, [], tag=tag,
             after=tuple(after), region=region)


def VLOAD(dst, voff, srd, soff, imm, tag=None, flags="", n=4):
    so = soff if isinstance(soff, str) else str(soff)
    o = f" offset:{imm}" if imm else ""
    f = f" {flags}" if flags else ""
    sfx = {1: "dword", 2: "dwordx2", 4: "dwordx4"}[n]
    rd = [f"v{voff}"] + regs("s", srd, 4) + ([so] if so.startswith("s") else [])
    return I(f"buffer_load_{sfx} {rng(dst[0], dst[1], n)}, v{voff}, s[{srd}:{srd+3}], {so} offen{o}{f}", "vload", rd,
             regs(dst[0], dst[1], n), tag=tag)


def VSTORE(src, voff, srd, soff, imm, flags="", n=4, tag=None):
    so = soff if isinstance(soff, str) else str(soff)
    o = f" offset:{imm}" if imm else ""
    f = f" {flags}" if flags else ""
    sfx = {1: "dword", 2: "dwordx2", 4: "dwordx4"}[n]
    rd = [f"v{voff}"] + regs(src[0], src[1], n) + regs("s", srd, 4) + ([so] if so.startswith("s") else [])
    return I(f"buffer_store_{sfx} {rng(src[0], src[1], n)}, v{voff}, s[{srd}:{srd+3}], {so} offen{o}{f}", "vstore", rd,
             [], data=set(regs(src[0], src[1], n)), tag=tag, n=n)


def WAITV(*tags):
    return I("s_waitcnt", "wait", vtags=tuple(tags), vm=None, lg=None)


def WAIT(vm=None, lg=None):
    return I("s_waitcnt", "wait", vtags=(), vm=vm, lg=lg)


def BARRIER(frees=()):
    return I("s_barrier", "barrier", after=tuple(frees))


class Gap:
    def __init__(self, mf):
        self.mf = mf
        self.sca = []
        self.vec = []
        self.post = []

    def cost(self):
        c = 0
        for x in self.vec:
            c += {"trans": 2, "dma": 3, "vload": 3, "vstore": 3}.get(x.kind, 1)
        return c

    def isdma(self):
        return any(x.kind in ("dma", "vload", "vstore") for x in self.vec)

    def free(self):
        return 0 if self.isdma() else 2 - self.cost()

    def lin(self):
        v = [x for x in self.vec if x.kind in ("lds", "ldsw")] + [x for x in self.vec if x.kind not in ("lds", "ldsw")]
        return [self.mf] + self.sca + v + self.post


class Prog:
    def __init__(self):
        self.el = []
        self.flex = []

    def seq(self, *ins):
        for x in ins:
            if isinstance(x, (list, tuple)):
                self.seq(*x)
            else:
                self.el.append(x)

    def gaps(self, mfs):
        g = [Gap(m) for m in mfs]
        self.el += g
        return g

    def flex_scalar(self, ins, cands):
        self.flex.append((ins, list(cands)))

    def insert_waits(self):
        lds_issued = 0
        lds_done = 0
        pend = {}
        tag_last = {}
        vm_issued = 0
        vm_done = 0
        vpend = {}
        vtag_last = {}
        gap_hist = []
        out = []

        def add_wait(slotlist, kind, cnt):
            for x in slotlist:
                if x.kind == "wait":
                    if x.meta[kind] is None or x.meta[kind] > cnt:
                        x.meta[kind] = cnt
                    return
            w = WAIT()
            w.meta[kind] = cnt
            slotlist.insert(0, w)

        def need_of(x):
            k = -1
            for r in (x.rd | x.wr):
                if r in pend and pend[r] >= lds_done:
                    k = max(k, pend[r])
            for t in x.meta.get("after", ()):
                if t in tag_last and tag_last[t] >= lds_done:
                    k = max(k, tag_last[t])
            kv = -1
            for r in (x.rd | x.wr):
                if r in vpend and vpend[r] >= vm_done:
                    kv = max(kv, vpend[r])
            return k, kv

        def account(x):
            nonlocal lds_issued, vm_issued, lds_done, vm_done
            if x.kind in ("lds", "ldsw"):
                for r in x.wr:
                    pend[r] = lds_issued
                if x.meta.get("tag") is not None:
                    tag_last[x.meta["tag"]] = lds_issued
                lds_issued += 1
                assert lds_issued - lds_done <= 15 or True
            elif x.kind in ("dma", "vload", "vstore"):
                for r in x.wr:
                    vpend[r] = vm_issued
                if x.meta.get("tag") is not None:
                    vtag_last[x.meta["tag"]] = vm_issued
                vm_issued += 1
            elif x.kind == "wait":
                if x.meta["vtags"]:
                    k = max(vtag_last[t] for t in x.meta["vtags"])
                    c = min(vm_issued - k - 1, 63)
                    if k >= vm_done and (x.meta["vm"] is None or x.meta["vm"] > c):
                        x.meta["vm"] = c
                if x.meta["vm"] is not None:
                    vm_done = max(vm_done, vm_issued - x.meta["vm"])
                if x.meta["lg"] is not None:
                    lds_done = max(lds_done, lds_issued - x.meta["lg"])

        def place(cands, k, which):
            nonlocal lds_done, vm_done
            idx = 1 if which == "lg" else 2
            best = None
            for c in cands:
                if c[idx] <= k:
                    break
                ok = (not c[3]) and (len(c[0]) == 0 or any(y.kind == "wait" for y in c[0]))
                if ok:
                    best = c
                    break
            if best is None:
                for c in cands:
                    if c[idx] > k:
                        best = c
                        self.warn.append(f"wait costs a slot near lds#{k} {which}")
                        break
            if best is None:
                return False
            cnt = min(best[idx] - k - 1, 15 if which == "lg" else 63)
            add_wait(best[0], which, cnt)
            if which == "lg":
                lds_done = max(lds_done, best[idx] - cnt)
            else:
                vm_done = max(vm_done, best[idx] - cnt)
            return True

        self.warn = []
        for e in self.el:
            if isinstance(e, Gap):
                k, kv = need_of(e.mf)
                cands = [(g.sca, li, vi, g.isdma()) for (g, li, vi) in reversed(gap_hist[-3:])]
                for kk, which in ((k, "lg"), (kv, "vm")):
                    if kk >= 0 and not place(cands, kk, which):
                        w = WAIT()
                        w.meta[which] = min((lds_issued if which == "lg" else vm_issued) - kk - 1, 15 if which == "lg" else 63)
                        if gap_hist:
                            gap_hist[-1][0].post.insert(0, w)
                            self.warn.append(f"late wait before {e.mf.text}")
                        else:
                            out.append(w)
                        account(w)
                gap_hist.append((e, lds_issued, vm_issued))
                for x in list(e.sca):
                    k, kv = need_of(x)
                    if k >= 0:
                        cands = [(g.sca, li, vi, g.isdma()) for (g, li, vi) in reversed(gap_hist[-4:-1])]
                        if not place(cands, k, "lg"):
                            add_wait(e.sca, "lg", min(lds_issued - k - 1, 15))
                            lds_done = k + 1
                            self.warn.append(f"wait in same slot as {x.text}")
                    account(x)
                for x in e.lin()[1 + len(e.sca):]:
                    k, kv = need_of(x)
                    cands = [(g.sca, li, vi, g.isdma()) for (g, li, vi) in reversed(gap_hist[-4:])]
                    for kk, which in ((k, "lg"), (kv, "vm")):
                        if kk >= 0:
                            assert place(cands, kk, which), f"cannot place wait for {x.text}"
                    account(x)
                out.append(e)
            else:
                if e.kind not in ("label", "raw") or e.meta.get("brk"):
                    gap_hist = []
                k, kv = need_of(e)
                if k >= 0 or kv >= 0:
                    w = WAIT(vm=(min(vm_issued - kv - 1, 63) if kv >= 0 else None), lg=(min(lds_issued - k - 1, 15) if k >= 0 else None))
                    out.append(w)
                    account(w)
                account(e)
                out.append(e)
        dead = lambda x: x.kind == "wait" and x.meta["vm"] is None and x.meta["lg"] is None
        for e in out:
            if isinstance(e, Gap):
                e.sca = [x for x in e.sca if not dead(x)]
        self.el = [e for e in out if isinstance(e, Gap) or not dead(e)]

    def place_flex(self):
        for ins, cands in self.flex:
            for g in cands:
                if not g.isdma() and len(g.sca) == 0:
                    g.sca.append(ins)
                    break
            else:
                for g in cands:
                    if not g.isdma() and len(g.sca) - 1 + g.cost() < 2:
                        g.sca.append(ins)
                        break
                else:
                    self.warn.append(f"flex scalar costs a slot: {ins.text}")
                    [g for g in cands if not g.isdma()][0].sca.append(ins)
        self.flex = []

    def linear(self):
        out = []
        for e in self.el:
            out += e.lin() if isinstance(e, Gap) else [e]
        return out

    def overfull(self):
        n = 0
        for e in self.el:
            if isinstance(e, Gap):
                ns = len(e.sca) + len([p for p in e.post if p.kind not in ("label", "raw")])
                c = e.cost()
                tot = (c + ns) if e.isdma() else (c + max(ns, 1))
                if tot > 3:
                    n += tot - 3
        return n


def text_of(x):
    if x.kind == "wait":
        p = []
        if x.meta["vm"] is not None:
            p.append(f"vmcnt({x.meta['vm']})")
        if x.meta["lg"] is not None:
            p.append(f"lgkmcnt({x.meta['lg']})")
        assert p
        return "s_waitcnt " + " ".join(p)
    return x.text


def check_hazards(lin):
    probs = []
    pos = 0
    last = {}
    mf_last = {}
    for x in lin:
        if x.kind in ("label", "raw"):
            continue

        def dist(key):
            return pos - last[key] - 1 if key in last else 10**9

        isv = x.kind in ("valu", "trans", "perm")
        ismem = x.kind in ("lds", "ldsw", "dma", "vload", "vstore")
        if x.kind == "mfma":
            for r in x.rd:
                if dist(("valu_w", r)) < 2:
                    probs.append(f"VALU->MFMA {r}: {x.text}")
            for r in x.meta["ab"]:
                if dist(("mf_w", r)) < 8:
                    probs.append(f"MFMA D->AB {r}: {x.text}")
            for r in x.meta["c"]:
                if r in mf_last and mf_last[r][1] != x.meta["C"] and dist(("mf_w", r)) < 6:
                    probs.append(f"MFMA D->C overlap {r}: {x.text}")
        if isv or ismem:
            for r in (x.rd | x.wr):
                if dist(("mf_w", r)) < 8:
                    probs.append(f"MFMA D->VALU/mem {r} d={dist(('mf_w', r))}: {x.text}")
        if isv:
            for r in x.wr:
                if dist(("mf_c", r)) < 3:
                    probs.append(f"MFMA C WAR {r}: {x.text}")
                if dist(("st_d", r)) < 2:
                    probs.append(f"store data WAR {r}: {x.text}")
            if x.kind != "trans":
                for r in x.rd:
                    if dist(("trans_w", r)) < 1:
                        probs.append(f"trans->use {r}: {x.text}")
            if x.kind == "perm":
                for r in x.rd:
                    if dist(("valu_w", r)) < 2:
                        probs.append(f"VALU->perm {r}: {x.text}")
            if x.text.startswith(("v_readfirstlane", "v_readlane")):
                for r in x.rd:
                    if dist(("valu_w", r)) < 1:
                        probs.append(f"VALU->readlane {r}: {x.text}")
            for r in x.rd:
                if (r.startswith("s") or r == "vcc") and dist(("valu_w", r)) < 2:
                    probs.append(f"VALU sgpr->VALU {r}: {x.text}")
        if x.kind in ("lds", "vload"):
            for r in x.wr:
                if dist(("st_d", r)) < 1:
                    probs.append(f"store data WAR {r}: {x.text}")
        if x.kind in ("dma", "vload", "vstore"):
            for r in x.rd:
                if r.startswith("s") and dist(("valu_w", r)) < 5:
                    probs.append(f"VALU sgpr->VMEM {r}: {x.text}")
            if x.kind == "dma" and dist(("salu_w", "m0")) < 1:
                probs.append(f"m0->DMA: {x.text}")
        if ismem:
            for r in x.rd:
                if dist(("trans_w", r)) < 1:
                    probs.append(f"trans->mem {r}: {x.text}")
        if x.kind == "mfma":
            for r in x.wr:
                last[("mf_w", r)] = pos
                mf_last[r] = (pos, x.meta["D"])
            for r in x.meta["c"]:
                last[("mf_c", r)] = pos
        elif isv:
            for r in x.wr:
                last[("valu_w", r)] = pos
                last.pop(("mf_w", r), None)
                if x.kind == "trans":
                    last[("trans_w", r)] = pos
        elif x.kind == "salu":
            for r in x.wr:
                last[("salu_w", r)] = pos
        elif x.kind == "vstore" and x.meta.get("n", 4) >= 3:
            for r in x.meta["data"]:
                last[("st_d", r)] = pos
        pos += x.meta["n"] if x.kind == "nop" else 1
    return probs


def check_lds_protocol(lin, private=lambda tag: False):
    probs = []
    vm_issued = 0
    vm_done = 0
    lds_issued = 0
    lds_done = 0
    dma_last = {}
    visible = set()
    landed_pos = {}
    read_last = {}
    freed = set()
    occupant = []
    for x in lin:
        if x.kind == "wait":
            if x.meta["vm"] is not None:
                vm_done = max(vm_done, vm_issued - x.meta["vm"])
            if x.meta["lg"] is not None:
                lds_done = max(lds_done, lds_issued - x.meta["lg"])
        elif x.kind == "barrier":
            for t, k in dma_last.items():
                if k < vm_done:
                    visible.add(t)
            for t, k in read_last.items():
                if k < lds_done:
                    freed.add(t)
        elif x.kind in ("lds", "ldsw"):
            t = x.meta.get("tag")
            if t is not None and x.kind == "lds":
                if t in dma_last:
                    if private(t):
                        if dma_last[t] >= vm_done:
                            probs.append(f"RAW private {t}: {x.text}")
                    elif t not in visible:
                        probs.append(f"RAW shared {t}: {x.text}")
                    if not any(o[2] == t for o in occupant):
                        probs.append(f"read of evicted tile {t}: {x.text}")
                else:
                    probs.append(f"read of never-loaded tile {t}: {x.text}")
                read_last[t] = lds_issued
                freed.discard(t)
            lds_issued += 1
        elif x.kind in ("dma", "vload", "vstore"):
            if x.kind == "dma":
                t = x.meta["tag"]
                if t in read_last:
                    probs.append(f"DMA after read of {t}")
                for (lo, hi) in x.meta["region"]:
                    for o in list(occupant):
                        if o[2] != t and o[0] < hi and lo < o[1]:
                            pt = o[2]
                            if pt in read_last:
                                if private(pt) and private(t):
                                    if read_last[pt] >= lds_done:
                                        probs.append(f"WAR private {pt}->{t}")
                                elif pt not in freed:
                                    probs.append(f"WAR shared {pt}->{t}")
                            occupant.remove(o)
                    if (lo, hi, t) not in occupant:
                        occupant.append((lo, hi, t))
                dma_last[t] = vm_issued
                visible.discard(t)
            vm_issued += 1
    return probs
```

```python
import math, struct, sys
from asmlib import *

SLOT = 12288
KREG = 0
VREG = 6 * SLOT
EREG = 12 * SLOT
LDS_BYTES = 163840
OOB = 0x40000000

O_OFF = 0
PART_OFF = 0x2000000
FLAG_OFF = 0x4000000
STAMP_OFF = 0x10000000

SX, SW, SK, SV, SO = 8, 12, 16, 20, 24
SF, SD = 56, 60
SWO, SP, SOUT = 64, 68, 72
sW, sB, sH, sWOFF, sXB0, sXB1 = 34, 35, 36, 37, 38, 39
sOW, sOX, sOKV, sCNT, sTH = 40, 41, 42, 43, 44
sG = 45
sC = 46
sRET = 48
sPAD, sHL = 50, 51
sHB, sOB = 76, 80
sJ = 84
sSPIN = 90
sTRIP, sAO = 54, 55
sTM = 92
vAK, vAV, vAW, vAX = 8, 10, 14, 18
vOK, vOV, vOW, vOX = 22, 25, 28, 31
vST = 39
vPF = 8
vFR = 40
vS, vP, vNM, vTS, vL, vE = 64, 96, 128, 144, 148, 152
vA3 = 14
vOB = 18
vOWO = 28
vOP = 31
vFL = 35
PARK = [vA3, vA3 + 1, vA3 + 2, vA3 + 3, vOB, vOB + 3, vOWO, vOWO + 1, vOWO + 2, vOP, vOP + 3, vFL, vFL + 1, vFL + 2, vFL + 3]
vFO, vFOP, vFP, vFPP = vFL, vFL + 1, vFL + 2, vFL + 3


def f32(x):
    return "0x%08x" % struct.unpack("<I", struct.pack("<f", x))[0]


def acc(dt, qt):
    return ("v", (160 if dt % 2 == 0 else 64) + ((dt >> 1) * 4 + qt) * 4)


def Qf(qt, s):
    return acc(2 * s, qt)


def Oa(dt, qt):
    return ("a", (dt * 4 + qt) * 4)


def Kf(a, s):
    return ("a", 192 + (a * 6 + s) * 4)


def Xf(beta, u, qt):
    return ("a", beta * 32 + (u * 4 + qt) * 4)


def St(a, qt):
    return ("v", vS + (a * 4 + qt) * 4)


def Pf(par, qt):
    return ("v", vP + par * 16 + qt * 4)


def NM(qt):
    return ("v", vNM + qt * 4)


def FR(i):
    return ("v", vFR + (i % 6) * 4)


def wslot(n):
    buf = (n // 2) % 4
    base = {2: KREG, 3: KREG + 2 * SLOT, 0: KREG + 4 * SLOT, 1: VREG + 4 * SLOT}[buf]
    return base + (n % 2) * SLOT


def kslot(n):
    return KREG + (n % 6) * SLOT


def vslot(n):
    return VREG + (n % 6) * SLOT


def woslot(t):
    t %= 12
    return (kslot if t % 2 == 0 else vslot)(26 + t // 2)


def xregion(beta):
    return [(VREG + 2 * beta * SLOT, VREG + 2 * beta * SLOT + 3 * 8192), (EREG + beta * 8192, EREG + beta * 8192 + 8192)]


def vtype_read(dst, slot, dt, t, tag):
    if slot >= VREG:
        a, off = vAV, slot - VREG
    else:
        a, off = vAW, slot
    return DSTR((dst[0], dst[1] + 2 * t), a + (dt & 3), off + 1536 * t + 128 * (dt >> 2), tag)


def k_read(n, a, s):
    return DSR128(Kf(a, s), vAK + (s & 1), kslot(n) + 1536 * a + 128 * (s >> 1), ("K", n))


class DmaGroup:
    def __init__(self, pre, dmas, earliest=0):
        self.pre = pre
        self.dmas = dmas
        self.earliest = earliest
        self.deadline = 10**9


def grp_W(n, cfg):
    sl = wslot(n)
    return [DmaGroup([S(f"s_add_u32 m0, s{sWOFF}, {sl}"), S(f"s_mov_b32 s{sOW}, {n*393216}")],
                     [DMA(vOW + j, SW, f"s{sOW}", 1024 * j, ("W", n), cfg["wflags"], region=[(sl, sl + SLOT)]) for j in range(3)])]


def grp_X(c, cfg, after=()):
    beta = c & 1
    sb = sXB0 + beta
    g0 = DmaGroup([S(f"s_mov_b32 m0, s{sb}"), S(f"s_mov_b32 s{sOX}, {128*c}")],
                  [DMA(vOX + j, SX, f"s{sOX}", 1024 * j, ("X", c), cfg["xflags"], after=after, region=xregion(beta)) for j in range(4)])
    g1 = DmaGroup([S(f"s_add_u32 m0, s{sb}, 4096")],
                  [DMA(vOX + 4 + j, SX, f"s{sOX}", 1024 * j, ("X", c), cfg["xflags"], region=xregion(beta)) for j in range(4)])
    return [g0, g1]


def grp_K(n, cfg, loop=False):
    sl = kslot(n)
    so = S(f"s_add_u32 s{sOKV}, s{sOKV}, {SLOT}") if loop else S(f"s_mov_b32 s{sOKV}, {n*SLOT}")
    return [DmaGroup([S(f"s_add_u32 m0, s{sWOFF}, {sl}"), so],
                     [DMA(vOK + j, SK, f"s{sOKV}", 1024 * j, ("K", n), cfg["kvflags"], region=[(sl, sl + SLOT)]) for j in range(3)])]


def grp_V(n, cfg, loop=False):
    sl = vslot(n)
    pre = [S(f"s_add_u32 m0, s{sWOFF}, {sl}")]
    if not loop:
        pre.append(S(f"s_mov_b32 s{sOKV}, {(n+1)*SLOT}"))
    return [DmaGroup(pre,
                     [DMA(vOV + j, SV, f"s{sOKV}", 1024 * j, ("V", n), cfg["kvflags"], region=[(sl, sl + SLOT)]) for j in range(3)])]


def grp_WO(t, cfg):
    sl = woslot(t)
    return [DmaGroup([S(f"s_add_u32 m0, s{sWOFF}, {sl}"), S(f"s_add_u32 s{sOW}, s{sHB + KORD[t][0]}, {40960*KORD[t][1]}")],
                     [DMA(vOWO + j, SWO, f"s{sOW}", 1024 * j, ("WO", t), cfg["woflags"], region=[(sl, sl + SLOT)]) for j in range(3)])]


def group_seq(g):
    out = list(g.pre)
    if g.pre and g.pre[-1].text.split()[1].startswith("m0"):
        out.append(NOP(0))
    return out + list(g.dmas)


def seq_groups(P, groups):
    for g in groups:
        P.seq(group_seq(g))


def place_stream(P, G, groups, lo, hi, pace, ok, edf=False):
    pos = lo
    tgt = float(lo)
    groups = list(groups)
    while groups:
        if edf:
            av = [x for x in groups if x.earliest <= tgt + 2]
            g = min(av, key=lambda x: x.deadline) if av else min(groups, key=lambda x: x.earliest)
            groups.remove(g)
            groups.insert(0, g)
        g = groups[0]
        idx = []
        t = max(tgt, g.earliest + len(g.pre))
        k = pos + len(g.pre) + (1 if g.pre else 0)
        fail = False
        for d in g.dmas:
            k = max(k, int(t))
            while k < hi and not (ok(k) and not G[k].vec and not G[k].sca and not G[k].post):
                k += 1
            if k >= hi:
                fail = True
                break
            idx.append(k)
            t = max(t + pace(k), k - 6)
            k += 1
        if fail:
            break
        assert idx[-1] <= g.deadline, (g.dmas[0].meta["tag"], idx, g.deadline)
        P.slack.append((g.dmas[0].meta["tag"], idx[0], idx[-1], g.deadline))
        for s_ in g.pre:
            P.flex_scalar(s_, list(reversed(G[pos:idx[0]])))
        for kk, d in zip(idx, g.dmas):
            G[kk].vec.append(d)
        pos = idx[-1] + 1
        tgt = t
        groups.pop(0)
    return groups


class Stamper:
    def __init__(self, cfg):
        self.on = cfg.get("stamps")
        self.n = 0
        self.names = []

    def seq(self, P, name):
        if self.on:
            k = self.n
            P.seq(RAW(f"s_memtime s[{sTM}:{sTM+1}]"), RAW(f"s_memrealtime s[{sTM+2}:{sTM+3}]"), WAIT(lg=0),
                  RAW(f"v_writelane_b32 v{vST}, s{sTM}, {2*k}"), RAW(f"v_writelane_b32 v{vST}, s{sTM+2}, {2*k+1}"))
            self.n += 1
            self.names.append(name)

    def gap(self, g0, g1, name):
        if self.on:
            k = self.n
            g0.post += [RAW(f"s_memtime s[{sTM}:{sTM+1}]"), RAW(f"s_memrealtime s[{sTM+2}:{sTM+3}]")]
            g1.post += [RAW("s_waitcnt lgkmcnt(0)"), RAW(f"v_writelane_b32 v{vST}, s{sTM}, {2*k}"), RAW(f"v_writelane_b32 v{vST}, s{sTM+2}, {2*k+1}")]
            self.n += 1
            self.names.append(name)


def srd(base, lo, hi, off, size):
    return [S(f"s_add_u32 s{base}, s{lo}, {off}"), S(f"s_addc_u32 s{base+1}, s{hi}, 0"),
            S(f"s_mov_b32 s{base+2}, {size}"), S(f"s_mov_b32 s{base+3}, 0x20000")]


def prologue(P, cfg, ST):
    A = P.seq
    A(S("s_cmp_ge_u32 s2, 256"), I("s_cbranch_scc1 KF_done", "branch"))
    A(RAW("s_load_dwordx4 s[4:7], s[0:1], 0"), RAW("s_load_dwordx4 s[28:31], s[0:1], 16"), RAW("s_load_dwordx4 s[96:99], s[0:1], 32"),
      RAW("s_load_dwordx2 s[100:101], s[0:1], 48"), RAW("s_load_dwordx2 s[32:33], s[0:1], 56"))
    if ST.on:
        A(RAW(f"s_memtime s[{sTM}:{sTM+1}]"), RAW(f"s_memrealtime s[{sTM+2}:{sTM+3}]"))
    A(V("v_lshrrev_b32 v1, 6, v0"), V("v_and_b32 v0, 63, v0"))
    A(V(f"v_readfirstlane_b32 s{sW}, v1"))
    if cfg["codepf"]:
        n = cfg["codepf"]
        A(RAW("s_getpc_b64 s[52:53]"), LABEL("KF_pc"), S("s_lshr_b32 s3, s2, 3"), S(f"s_lshl_b32 s3, s3, 2"), S(f"s_add_u32 s3, s3, s{sW}"),
          S(f"s_mul_i32 s3, s3, {n*128}"), V(f"v_min_u32 v2, {n-1}, v0"), V("v_lshl_add_u32 v2, v2, 7, s3"),
          RAW("v_min_u32 v2, KF_end-KF_pc-4, v2"), V("v_mov_b32 v3, s53"), V("v_add_co_u32 v2, vcc, s52, v2"), NOP(1),
          RAW("v_addc_co_u32 v3, vcc, 0, v3, vcc"), RAW("global_load_dword v42, v[2:3], off"))
    m = cfg["map"]
    if m == "hg4":
        A(S(f"s_and_b32 s{sG}, s2, 7"), S(f"s_lshr_b32 s{sB}, s2, 5"), S(f"s_bfe_u32 s{sHL}, s2, 0x20003"))
    elif m == "4x8":
        A(S(f"s_bfe_u32 s{sHL}, s2, 0x20003"), S(f"s_and_b32 s{sG}, s2, 6"), S("s_bfe_u32 s3, s2, 0x10005"), S(f"s_add_u32 s{sG}, s{sG}, s3"),
          S(f"s_and_b32 s{sB}, s2, 1"), S(f"s_lshl_b32 s{sB}, s{sB}, 2"), S("s_lshr_b32 s3, s2, 6"), S(f"s_add_u32 s{sB}, s{sB}, s3"))
    elif m == "batch":
        A(S(f"s_and_b32 s{sB}, s2, 7"), S(f"s_lshr_b32 s{sG}, s2, 5"), S(f"s_bfe_u32 s{sHL}, s2, 0x20003"))
    A(S(f"s_lshl_b32 s{sH}, s{sG}, 2"), S(f"s_add_u32 s{sH}, s{sH}, s{sHL}"))
    A(V("v_lshrrev_b32 v2, 3, v0"), V("v_lshl_add_u32 v2, v1, 6, v2"), V("v_mul_u32_u24 v2, 1280, v2"),
      V("v_lshrrev_b32 v3, 4, v0"), V("v_and_b32 v4, 7, v0"), V("v_xor_b32 v3, v3, v4"),
      V(f"v_lshl_add_u32 v{vOX}, v3, 4, v2"), V("v_xor_b32 v3, 4, v3"), V("v_lshl_add_u32 v4, v3, 4, v2"))
    for j in range(1, 8):
        src = f"v{vOX}" if j % 2 == 0 else "v4"
        A(V(f"v_add_u32 v{vOX+j}, {10240*j - 1024*(j&3)}, {src}"))
    A(S(f"s_mul_i32 s{sWOFF}, s{sW}, 3072"), S(f"s_lshl_b32 s{sXB0}, s{sW}, 13"),
      S(f"s_add_u32 s{sXB1}, s{sXB0}, {VREG+2*SLOT}"), S(f"s_add_u32 s{sXB0}, s{sXB0}, {VREG}"),
      S(f"s_cmp_eq_u32 s{sW}, 3"), S(f"s_cselect_b32 s{sXB0}, {EREG}, s{sXB0}"), S(f"s_cselect_b32 s{sXB1}, {EREG+8192}, s{sXB1}"),
      S(f"s_cselect_b32 s{sPAD}, {f32(-1000.0)}, 0"))
    A(V("v_and_b32 v5, 1, v1"), V("v_lshrrev_b32 v6, 1, v1"), V("v_lshl_or_b32 v6, v6, 2, v5"), V("v_lshlrev_b32 v5, 2, v5"))
    for j in range(3):
        A(V(f"v_add_u32 v2, {64*j}, v0"), V("v_mul_u32_u24 v3, 2731, v2"), V("v_lshrrev_b32 v3, 16, v3"),
          V("v_mul_u32_u24 v4, 24, v3"), V("v_sub_u32 v2, v2, v4"),
          V("v_and_b32 v4, 2, v3"), V("v_xor_b32 v2, v2, v4"),
          V("v_lshl_add_u32 v3, v1, 3, v3"),
          V("v_xor_b32 v4, v2, v5"), V("v_xor_b32 v2, v2, v6"),
          V("v_mul_u32_u24 v7, 12288, v3"), V(f"v_lshl_add_u32 v{vOW+j}, v4, 4, v7"),
          V("v_mul_u32_u24 v7, 384, v3"), V(f"v_lshl_add_u32 v{vOV+j}, v4, 4, v7"), V(f"v_lshl_add_u32 v{vOK+j}, v2, 4, v7"))
        if j:
            A(V(f"v_subrev_u32 v{vOW+j}, {1024*j}, v{vOW+j}"), V(f"v_subrev_u32 v{vOV+j}, {1024*j}, v{vOV+j}"),
              V(f"v_subrev_u32 v{vOK+j}, {1024*j}, v{vOK+j}"))
    A(S(f"s_lshl_b32 s84, s{sB}, 3"), S(f"s_add_u32 s84, s84, s{sG}"), S("s_lshl_b32 s84, s84, 2"), S(f"s_add_u32 s84, s84, s{sW}"),
      S("s_lshl_b32 s84, s84, 7"),
      S(f"s_lshl_b32 s85, s{sB}, 2"), S(f"s_add_u32 s85, s85, s{sHL}"), S("s_lshl_b32 s85, s85, 10"), S("s_add_u32 s85, s85, 0x8000"),
      S(f"s_lshl_b32 s86, s{sHL}, 2"), S("s_add_u32 s86, s86, s84"),
      S(f"s_lshl_b32 s87, s{sG}, 2"), S("s_add_u32 s87, s87, s85"))
    A(V("v_lshl_add_u32 v43, v0, 7, s87"), V("v_lshrrev_b32 v2, 3, v0"), V("v_or_b32 v2, v2, v1"), V("v_min_u32 v2, 1, v2"),
      V("v_lshl_or_b32 v43, v2, 30, v43"), V("v_mov_b32 v41, 0"), V("v_mov_b32 v40, v43"), V("v_writelane_b32 v40, s86, 8"))
    A(RAW("s_waitcnt lgkmcnt(0)"))
    if ST.on:
        A(RAW(f"v_mov_b32 v{vST}, 0"), RAW(f"v_writelane_b32 v{vST}, s{sTM}, 0"), RAW(f"v_writelane_b32 v{vST}, s{sTM+2}, 1"))
        ST.n = 1
        ST.names.append("start")
    A(S(f"s_mul_i32 s3, s{sB}, 307200"), srd(SX, 4, 5, "s3", 307200))
    A(S(f"s_mul_i32 s3, s{sH}, 384"), srd(SW, 30, 31, "s3", 0), S(f"s_sub_u32 s{SW+2}, 7864320, s3"))
    seq_groups(P, grp_X(0, cfg) + grp_W(0, cfg) + grp_W(1, cfg))
    A(srd(SF, 32, 33, FLAG_OFF, 0x10000))
    A(I(f"buffer_atomic_swap v41, v40, s[{SF}:{SF+3}], 0 offen sc0 sc1", "vload", ["v40", "v41"], ["v41"], tag="finit"))
    stream = []
    for s in range(1, 10):
        gw = grp_W(2 * s, cfg) + grp_W(2 * s + 1, cfg)
        for g in gw:
            g.earliest = 96 * (s - 4) + 82 if s >= 4 else 0
            g.deadline = 96 * (s - 1) + 79
        gx = grp_X(s, cfg, after=[("X", s - 2)] if s >= 2 else ())
        for g in gx:
            g.earliest = 96 * (s - 2) if s >= 2 else 0
            g.deadline = 96 * (s - 1) + 82
        stream += gw + gx
    A(S(f"s_lshl_b32 s91, s{sB}, 2"), S(f"s_add_u32 s91, s91, s{sHL}"), S("s_lshl_b32 s91, s91, 2"), S(f"s_add_u32 s91, s91, s{sW}"))
    pf = []
    if cfg["p1pf"] is not None:
        A(S(f"s_lshl_b32 s3, s91, 2"), S("s_add_u32 s3, s3, 128"), S(f"s_mul_i32 s88, s{sHL}, 384"),
          V("v_min_u32 v2, 47, v0"), V("v_mul_u32_u24 v3, 5462, v2"), V("v_lshrrev_b32 v3, 16, v3"), V("v_mul_u32_u24 v4, 12, v3"),
          V("v_sub_u32 v2, v2, v4"), V("v_add_u32 v3, s3, v3"), V("v_mul_u32_u24 v3, 12288, v3"), V("v_lshl_add_u32 v2, v2, 7, v3"),
          V(f"v_subrev_u32 v{vPF}, s88, v2"),
          S(f"s_lshl_b32 s3, s{sH}, 2"), S(f"s_add_u32 s3, s3, s{sW}"), S("s_mul_i32 s3, s3, 15"),
          V("v_min_u32 v2, 14, v0"), V("v_add_u32 v2, s3, v2"), V("v_lshrrev_b32 v3, 3, v2"), V("v_mul_u32_u24 v3, 1280, v3"),
          V("v_and_b32 v2, 7, v2"), V(f"v_lshl_add_u32 v{vPF+1}, v2, 7, v3"))
        pf = [DmaGroup([], [VLOAD(("a", 64), vPF + 1, SX, 0, 256, "pf", "", n=1), VLOAD(("a", 65), vPF, SW, 0, 0, "pf", "", n=1)])]
        stream = stream[:cfg["p1pf"]] + pf + stream[cfg["p1pf"]:]
    seq_groups(P, stream[:cfg["npro"]])
    stream = stream[cfg["npro"]:]
    A(S("s_mul_i32 s3, s91, 6"), S(f"s_mul_i32 s88, s{sHL}, 320"),
      V("v_min_u32 v2, 59, v0"), V("v_mul_u32_u24 v3, 6554, v2"), V("v_lshrrev_b32 v3, 16, v3"), V("v_mul_u32_u24 v4, 10, v3"),
      V("v_sub_u32 v2, v2, v4"), V("v_add_u32 v3, s3, v3"), V("v_mul_u32_u24 v3, 1280, v3"), V("v_lshl_add_u32 v2, v2, 7, v3"),
      V("v_subrev_u32 v2, s88, v2"), V("v_max_i32 v2, 0, v2"), V("v_accvgpr_write_b32 a255, v2"))
    A(S(f"s_lshl_b32 s{sCNT}, s{sB}, 5"), S(f"s_add_u32 s{sCNT}, s{sCNT}, s{sH}"), S(f"s_mul_i32 s3, s{sCNT}, 393216"),
      srd(SK, 6, 7, "s3", 393216), srd(SV, 28, 29, "s3", 393216 + SLOT),
      S(f"s_sub_u32 s{SV}, s{SV}, {SLOT}"), S(f"s_subb_u32 s{SV+1}, s{SV+1}, 0"))
    A(S(f"s_sub_u32 s3, s{sCNT}, s{sHL}"), S("s_mul_i32 s3, s3, 92160"), srd(SO, 32, 33, "s3", 4 * 92160))
    A(S(f"s_mul_i32 s3, s{sG}, {768*1280}"), S(f"s_mul_i32 s88, s{sHL}, 320"), S("s_add_u32 s3, s3, s88"),
      srd(SWO, 96, 97, "s3", 0), S(f"s_sub_u32 s{SWO+2}, 7864320, s3"))
    A(S(f"s_lshl_b32 s3, s{sB}, 2"), S(f"s_add_u32 s3, s3, s{sHL}"), S(f"s_mul_i32 s3, s3, {75*8192}"), S(f"s_add_u32 s3, s3, {PART_OFF}"),
      srd(SP, 32, 33, "s3", 75 * 8192))
    A(S(f"s_mul_i32 s3, s{sB}, 307200"), S("s_add_u32 s3, s3, s88"), srd(SOUT, 98, 99, "s3", 0), S(f"s_sub_u32 s{SOUT+2}, 2457600, s3"))
    A(S(f"s_lshl_b32 s3, s{sB}, 5"), srd(SD, 100, 101, "s3", 4), S(f"s_add_u32 s{sTRIP}, s{sHL}, 1"))
    for p in range(4):
        A(S(f"s_add_u32 s3, s{sHL}, {p}"), S("s_and_b32 s3, s3, 3"), S(f"s_mul_i32 s{sHB+p}, s3, 245760"), S(f"s_mul_i32 s{sOB+p}, s3, 92160"))
    c = math.log2(math.e) / math.sqrt(192.0)
    A(S(f"s_mov_b32 s{sC}, {f32(c)}"), S(f"s_mov_b32 s{sC+1}, {f32(c)}"), S(f"s_mov_b32 s{sTH}, {f32(cfg['thresh'])}"))

    park = {}

    def pk(reg, src):
        park[reg] = True
        A(V(f"v_accvgpr_write_b32 a{240+PARK.index(reg)}, {src}"))
    A(V("v_and_b32 v5, 1, v1"), V("v_lshrrev_b32 v6, 1, v1"), V("v_lshl_or_b32 v5, v5, 1, v6"))
    for j in range(3):
        A(V(f"v_add_u32 v2, {64*j}, v0"), V("v_mul_u32_u24 v3, 3277, v2"), V("v_lshrrev_b32 v3, 16, v3"),
          V("v_mul_u32_u24 v4, 20, v3"), V("v_sub_u32 v2, v2, v4"),
          V("v_lshrrev_b32 v4, 1, v3"), V("v_and_b32 v4, 2, v4"), V("v_xor_b32 v2, v2, v4"),
          V("v_lshl_add_u32 v3, v5, 3, v3"), V("v_mul_u32_u24 v3, 1280, v3"), V("v_lshl_add_u32 v2, v2, 4, v3"))
        if j:
            A(V(f"v_subrev_u32 v2, {1024*j}, v2"))
        if j == 2:
            A(V("v_lshrrev_b32 v3, 5, v0"), V("v_lshl_or_b32 v2, v3, 30, v2"))
        pk(vOWO + j, "v2")
    A(S(f"s_cmp_eq_u32 s{sW}, 3"), S(f"s_cselect_b32 s3, {OOB}, {3*6144}"), S(f"s_cselect_b32 s88, {OOB}, {3*8192}"))
    A(V("v_mul_u32_u24 v2, 24576, v1"), V("v_lshl_add_u32 v2, v0, 4, v2"), V("v_add_u32 v3, s3, v2"))
    pk(vOB, "v2")
    pk(vOB + 3, "v3")
    A(S(f"s_lshl_b32 s3, s{sG}, 10"), V("v_lshlrev_b32 v2, 15, v1"), V("v_lshl_add_u32 v2, v0, 4, v2"), V("v_add_u32 v2, s3, v2"), V("v_add_u32 v3, s88, v2"))
    pk(vOP, "v2")
    pk(vOP + 3, "v3")
    A(S(f"s_lshl_b32 s3, s{sG}, 7"), S("s_add_u32 s3, s3, s85"))
    A(V("v_mov_b32 v2, s86"), V("v_and_b32 v4, 3, v0"), V("v_lshl_add_u32 v4, v4, 2, s84"),
      V("v_and_b32 v5, 7, v0"), V("v_lshl_add_u32 v5, v5, 2, s3"))
    pk(vFO, "v2")
    pk(vFP, "v43")
    pk(vFOP, "v4")
    pk(vFPP, "v5")
    A(S(f"s_lshl_b32 s3, s{sW}, 3"), S(f"s_add_u32 s3, s3, s{sG}"))
    for r in range(3):
        A(S(f"s_add_u32 s{sSPIN}, s3, {30*r}"), S(f"s_lshl_b32 s{sJ+r}, s{sSPIN}, 13"),
          S(f"s_mul_i32 s91, s{sSPIN}, 4370"), S("s_lshr_b32 s91, s91, 16"),
          S(f"s_mul_i32 s{sJ+3+r}, s91, {64 - 15*20480}"), S(f"s_mul_i32 s{sSPIN}, s{sSPIN}, 20480"),
          S(f"s_add_u32 s{sJ+3+r}, s{sJ+3+r}, s{sSPIN}"),
          S(f"s_cmp_lt_u32 s3, {(30, 30, 15)[r]}"), S(f"s_cselect_b32 s{sJ+r}, s{sJ+r}, {OOB}"), S(f"s_cselect_b32 s{sJ+3+r}, s{sJ+3+r}, {OOB}"))
    A(V("v_and_b32 v1, 15, v0"), V("v_lshrrev_b32 v2, 4, v0"))
    A(V("v_lshrrev_b32 v3, 1, v2"), V("v_mul_u32_u24 v3, 6144, v3"), V("v_and_b32 v4, 1, v2"), V("v_lshrrev_b32 v5, 2, v1"),
      V("v_lshl_add_u32 v5, v4, 2, v5"), V("v_mul_u32_u24 v5, 320, v5"), V("v_add_u32 v3, v3, v5"), V("v_and_b32 v5, 3, v1"),
      V("v_lshl_add_u32 v3, v5, 3, v3"), V("v_lshl_add_u32 v5, v4, 5, v3"), V("v_xor_b32 v4, 1, v4"), V("v_lshl_add_u32 v4, v4, 5, v3"),
      V(f"v_add_u32 v6, {VREG}, v5"), V(f"v_add_u32 v7, {VREG}, v4"))
    pk(vA3, "v5")
    pk(vA3 + 1, "v4")
    pk(vA3 + 2, "v6")
    pk(vA3 + 3, "v7")
    assert len(park) == len(PARK)
    A(V("v_lshrrev_b32 v3, 1, v1"), V("v_xor_b32 v3, v3, v2"), V("v_lshlrev_b32 v3, 4, v3"), V("v_lshl_add_u32 v3, v1, 7, v3"),
      V("v_xor_b32 v4, 64, v3"),
      V(f"v_add_u32 v{vAX}, s{sXB0}, v3"), V(f"v_add_u32 v{vAX+1}, s{sXB0}, v4"),
      V(f"v_add_u32 v{vAX+2}, s{sXB1}, v3"), V(f"v_add_u32 v{vAX+3}, s{sXB1}, v4"))
    A(V("v_lshrrev_b32 v3, 2, v1"), V("v_lshl_add_u32 v4, v2, 3, v3"), V("v_mul_u32_u24 v4, 384, v4"),
      V("v_and_b32 v5, 3, v1"), V("v_lshl_add_u32 v4, v5, 3, v4"),
      V("v_lshrrev_b32 v3, 3, v1"), V("v_and_b32 v5, 1, v2"), V("v_lshl_or_b32 v3, v5, 1, v3"))
    for e in range(4):
        A(V(f"v_xor_b32 v5, {e}, v3"), V(f"v_lshl_add_u32 v{vAW+e}, v5, 5, v4"), V(f"v_add_u32 v{vAV+e}, {VREG}, v{vAW+e}"))
    A(V("v_lshrrev_b32 v3, 2, v1"), V("v_and_b32 v4, 3, v1"), V("v_lshl_add_u32 v4, v3, 3, v4"), V("v_mul_u32_u24 v4, 384, v4"),
      V("v_and_b32 v3, 1, v3"), V("v_and_b32 v5, 2, v1"), V("v_or_b32 v3, v3, v5"), V("v_lshrrev_b32 v5, 3, v1"), V("v_lshl_or_b32 v3, v5, 2, v3"),
      V("v_lshrrev_b32 v5, 1, v2"), V("v_and_b32 v6, 1, v2"), V("v_lshl_or_b32 v5, v6, 1, v5"), V("v_xor_b32 v3, v3, v5"),
      V("v_lshl_add_u32 v5, v3, 4, v4"), V("v_xor_b32 v3, 4, v3"), V("v_lshl_add_u32 v4, v3, 4, v4"))
    A(V(f"v_or_b32 v6, s{sW}, v0"), V("v_lshlrev_b32 v6, 8, v6"), V("v_mov_b32 v7, 1"))
    return stream


def x_read(c, u, qt):
    beta = c & 1
    return DSR128(Xf(beta, u, qt), vAX + 2 * beta + u, 2048 * qt, ("X", c))


def w_reads(stage, dt):
    gdt = stage * 12 + dt
    out = []
    for u in range(2):
        n = 2 * stage + u
        for t in range(2):
            out.append(vtype_read(FR(2 * (gdt % 3) + u), wslot(n), dt, t, ("W", n)))
    return out


def kv_prefill(cfg):
    LA = cfg["LA"]
    out = []
    seq = [("K", 0)]
    for n in range(1, LA):
        seq += [("K", n), ("V", n - 1)]
    free = {("K", 0): 6, ("K", 1): 6, ("K", 2): 7, ("K", 3): 7, ("K", 4): 8, ("K", 5): 8,
            ("V", 0): 8, ("V", 1): 8, ("V", 2): 9, ("V", 3): 9, ("V", 4): 9}
    seq.sort(key=lambda t: free[t])
    for t in seq:
        g = (grp_K if t[0] == "K" else grp_V)(t[1], cfg)[0]
        g.earliest = 96 * free[t] + 82
        if t in (("K", 0), ("K", 1)):
            g.deadline = 96 * 9 + 79
        out.append(g)
    return out


def phase1(P, cfg, ST, stream):
    A = P.seq
    ST.seq(P, "issued")
    A(WAITV(("X", 0), ("W", 0), ("W", 1), "finit"), BARRIER())
    ST.seq(P, "landed")
    for u in range(2):
        for qt in range(4):
            A(x_read(0, u, qt))
    A(w_reads(0, 0), w_reads(0, 1))
    G = []
    for st in range(10):
        mfs = []
        for dt in range(12):
            gdt = st * 12 + dt
            for qt in range(4):
                for u in range(2):
                    C = 0 if (st == 0 and u == 0) else acc(dt, qt)
                    m = MFMA(acc(dt, qt), FR(2 * (gdt % 3) + u), Xf(st & 1, u, qt), C)
                    if qt == 0 and u == 0:
                        m.rd |= set(regs("v", FR(2 * (gdt % 3) + 1)[1], 4))
                        if dt == 0:
                            m.rd |= set(regs("a", Xf(st & 1, 0, 0)[1], 32))
                    mfs.append(m)
        G += P.gaps(mfs)
    for st in range(10):
        b = 96 * st
        for dt in range(2, 14):
            s2, d2 = (st, dt) if dt < 12 else (st + 1, dt - 12)
            if s2 == 10:
                continue
            g = b + 8 * (dt - 2) + (2 if dt == 12 else 0)
            r = w_reads(s2, d2)
            G[g].vec += r[:2]
            G[g + 1].vec += r[2:]
        if st < 9:
            G[b + 83].sca.append(WAITV(("X", st + 1)))
            rd = [x_read(st + 1, u, qt) for u in range(2) for qt in range(4)]
            for k in range(4):
                G[b + 84 + k].vec += rd[2 * k:2 * k + 2]
        need = [("W", 2 * st + 2), ("W", 2 * st + 3)] if st < 9 else [("K", 0), ("K", 1)]
        if cfg.get("p1stamps"):
            ST.gap(G[b + 79], G[b + 81], f"st{st}")
        G[b + 80].sca.append(WAITV(*need))
        G[b + 81].sca.append(BARRIER(frees=[("W", 2 * st), ("W", 2 * st + 1), ("X", st)]))
    G[96 * 8 + 7].vec += [V(f"v_mov_b32 v{vAK}, v5"), V(f"v_mov_b32 v{vAK+1}, v4")]
    for s in range(6):
        G[96 * 9 + 82 + s // 2].vec.append(k_read(0, 0, s))
    ok = lambda k: k % 8 != 7
    pc = cfg["pace"]
    nst = len(stream)
    allg = stream + kv_prefill(cfg)
    kvstart = [None]

    def pace(k):
        for lim, p in pc:
            if k < lim:
                return p
        return pc[-1][1]
    left = place_stream(P, G, stream, 0, 960, pace, ok)
    assert not left
    last = max(k for k, g in enumerate(G) if g.isdma())
    left = place_stream(P, G, kv_prefill(cfg), last + 1, 960, lambda k: cfg["kvpace"], ok)
    assert all(g.dmas[0].meta["tag"] not in (("K", 0), ("K", 1)) for g in left)
    return left


def q_convert(P, cfg, left):
    A = P.seq
    A(NOP(7))
    left = list(left)
    pend = []
    for s in range(6):
        blk = []
        for qt in range(4):
            for dt in (2 * s, 2 * s + 1):
                r = acc(dt, qt)[1]
                blk += [V(f"v_pk_mul_f32 v[{r}:{r+1}], v[{r}:{r+1}], s[{sC}:{sC+1}]"), V(f"v_pk_mul_f32 v[{r+2}:{r+3}], v[{r+2}:{r+3}], s[{sC}:{sC+1}]")]
        for qt in range(4):
            a = acc(2 * s, qt)[1]
            b = acc(2 * s + 1, qt)[1]
            blk += [V(f"v_cvt_pk_bf16_f32 v{a}, v{a}, v{a+1}"), V(f"v_cvt_pk_bf16_f32 v{a+1}, v{a+2}, v{a+3}"),
                    V(f"v_cvt_pk_bf16_f32 v{a+2}, v{b}, v{b+1}"), V(f"v_cvt_pk_bf16_f32 v{a+3}, v{b+2}, v{b+3}")]
        for qt in range(4):
            a = acc(2 * s, qt)[1]
            blk += [V(f"v_permlane16_swap_b32 v{a}, v{a+2}"), V(f"v_permlane16_swap_b32 v{a+1}, v{a+3}")]
        if not pend and left and s % 3 == 0:
            g = left.pop(0)
            A(g.pre)
            pend = list(g.dmas)
        A(blk[:16])
        if pend:
            A(pend.pop(0))
        A(blk[16:])
    A(NOP(1))
    return left


def qk_mfmas(first):
    out = []
    for a in range(2):
        for qt in range(4):
            for s in range(6):
                C = (0 if first else NM(qt)) if s == 0 else St(a, qt)
                m = MFMA(St(a, qt), Kf(a, s), Qf(qt, s), C)
                if qt == 0 and s in (0, 3):
                    m.rd |= set(regs("a", Kf(a, s)[1], 12))
                out.append(m)
    return out


def pv_mfmas(j):
    out = []
    for dt in range(12):
        for qt in range(4):
            out.append(MFMA(Oa(dt, qt), FR(dt), Pf(j & 1, qt), 0 if j == 0 else Oa(dt, qt)))
    return out


def xred(x, t, op):
    out = []
    for sw in ("v_permlane32_swap_b32", "v_permlane16_swap_b32"):
        for a, b in zip(x, t):
            out.append(V(f"v_mov_b32 v{b}, v{a}"))
        out.append(NOP(0))
        for a, b in zip(x, t):
            out.append(V(f"{sw} v{b}, v{a}"))
        for a, b in zip(x, t):
            out.append(V(f"{op} v{a}, v{a}, v{b}"))
    return out


def rowmax(dst):
    out = []
    for qt in range(4):
        s0, s1 = St(0, qt)[1], St(1, qt)[1]
        d = dst + qt
        out += [V(f"v_max3_f32 v{d}, v{s0}, v{s0+1}, v{s0+2}"), V(f"v_max3_f32 v{d}, v{d}, v{s0+3}, v{s1}"),
                V(f"v_max3_f32 v{d}, v{d}, v{s1+1}, v{s1+2}"), V(f"v_max_f32 v{d}, v{d}, v{s1+3}")]
    return out


def softmax_seq(par, delta, qts=range(4)):
    out = []
    for qt in qts:
        for a in range(2):
            s = St(a, qt)[1]
            for r in range(4):
                out.append(V(f"v_sub_f32 v{vE+4*a+r}, v{s+r}, v{delta+qt}"))
        for k in range(8):
            out.append(V(f"v_exp_f32 v{vE+k}, v{vE+k}"))
        p = Pf(par, qt)[1]
        out.append(V(f"v_add_f32 v{vTS+qt}, v{vE}, v{vE+1}"))
        for k in range(2, 8):
            out.append(V(f"v_add_f32 v{vTS+qt}, v{vTS+qt}, v{vE+k}"))
        for k in range(4):
            out.append(V(f"v_cvt_pk_bf16_f32 v{p+k}, v{vE+2*k}, v{vE+2*k+1}"))
    return out


def first_tile(P, cfg, left):
    A = P.seq
    G = P.gaps(qk_mfmas(True))
    for s in range(6):
        G[s].vec.append(k_read(0, 1, s))
        G[26 + s].vec.append(k_read(1, 0, s))
    un = [V(f"v_accvgpr_read_b32 v{r}, a{240+k}") for k, r in enumerate(PARK)]
    un += [V(f"v_add_u32 v{vOB+1}, 6144, v{vOB}"), V(f"v_add_u32 v{vOB+2}, 12288, v{vOB}"),
           V(f"v_add_u32 v{vOP+1}, 8192, v{vOP}"), V(f"v_add_u32 v{vOP+2}, 16384, v{vOP}")]
    for k in range(0, len(un), 2):
        G[32 + k // 2].vec += un[k:k + 2]
    for g in left:
        g.earliest = 0
    left = place_stream(P, G, left[:1], 6, 26, lambda k: 6, lambda k: True) + left[1:]
    A(NOP(7))
    A(rowmax(1), xred([1, 2, 3, 4], [vE, vE + 1, vE + 2, vE + 3], "v_max_f32"))
    A(V(f"v_subrev_f32 v4, s{sPAD}, v4"))
    for qt in range(4):
        for r in range(4):
            A(V(f"v_sub_f32 v{vNM+4*qt+r}, 0, v{1+qt}"))
        A(V(f"v_mov_b32 v{vL+qt}, 0") if qt < 3 else V(f"v_sub_f32 v{vL+qt}, 0, s{sPAD}"))
    rest = sum((group_seq(g) for g in left), [])
    per = (len(rest) + 3) // 4
    for qt in range(4):
        A(rest[qt * per:(qt + 1) * per])
        A(softmax_seq(0, 1, [qt]))
    A(WAITV(("V", 0), ("K", 2)), BARRIER(frees=[("K", 0)]))


def fallback(par):
    out = [LABEL(f"KF_fix{par}"), NOP(7)]
    out += rowmax(1)
    out += xred([1, 2, 3, 4], [vE, vE + 1, vE + 2, vE + 3], "v_max_f32")
    for qt in range(4):
        out.append(V(f"v_max_f32 v{1+qt}, 0, v{1+qt}"))
    out += softmax_seq(par, 1)
    for qt in range(4):
        for r in range(4):
            out.append(V(f"v_sub_f32 v{vNM+4*qt+r}, v{vNM+4*qt+r}, v{1+qt}"))
    for qt in range(4):
        out.append(V(f"v_exp_f32 v{1+qt}, -v{1+qt}"))
    out.append(NOP(0))
    for qt in range(4):
        out.append(V(f"v_mul_f32 v{vL+qt}, v{vL+qt}, v{1+qt}"))
    for dt in range(12):
        for qt in range(4):
            a = Oa(dt, qt)[1]
            e = vE + 4 * (qt & 1)
            for r in range(4):
                out.append(V(f"v_accvgpr_read_b32 v{e+r}, a{a+r}"))
            for r in range(4):
                out.append(V(f"v_mul_f32 v{e+r}, v{e+r}, v{1+qt}"))
            for r in range(4):
                out.append(V(f"v_accvgpr_write_b32 a{a+r}, v{e+r}"))
    out += [NOP(1), I(f"s_setpc_b64 s[{sRET}:{sRET+1}]", "branch")]
    return out


def iteration(P, cfg, j, lab, groups, extra_vm=None):
    G = P.gaps(qk_mfmas(False) + pv_mfmas(j))
    par = (j + 1) & 1
    exp_gaps = [11 + 5 * k + o for k in range(16) for o in (0, 2)]
    slots = cfg["dmagaps"][len(groups)]
    lo = 0
    for g, idx in zip(groups, slots):
        for s_ in g.pre:
            P.flex_scalar(s_, G[lo:idx[0]])
        for k, d in zip(idx, g.dmas):
            assert k not in exp_gaps
            G[k].vec.append(d)
        lo = idx[-1] + 1
    if extra_vm is not None:
        G[94].vec.append(extra_vm)
    valu = []
    for qt in range(4):
        valu.append((0, V(f"v_add_f32 v{vL+qt}, v{vL+qt}, v{vTS+qt}")))
    n = 0
    for T in range(8):
        a, qt = divmod(T, 4)
        s = St(a, qt)[1]
        p = Pf(par, qt)[1] + 2 * a
        for r in range(4):
            g = exp_gaps[n]
            e = vE + n % 8
            assert not G[g].vec
            G[g].vec.append(V(f"v_exp_f32 v{e}, v{s+r}"))
            if a == 0 and r == 0:
                pass
            elif a == 0 and r == 1:
                valu.append((g + 1, V(f"v_add_f32 v{vTS+qt}, v{e-1}, v{e}")))
            else:
                valu.append((g + 1, V(f"v_add_f32 v{vTS+qt}, v{vTS+qt}, v{e}")))
            if r & 1:
                valu.append((g + 1, V(f"v_cvt_pk_bf16_f32 v{p+(r>>1)}, v{e-1}, v{e}")))
            n += 1
        if T == 6:
            valu.append((g + 1, V(f"v_max3_f32 v1, v{vTS}, v{vTS+1}, v{vTS+2}")))
    valu.append((g + 1, V(f"v_max_f32 v1, v1, v{vTS+3}")))
    valu.append((g + 1, V(f"v_cmp_lt_f32 vcc, s{sTH}, v1")))
    lds = []
    for s in range(6):
        lds.append((s, 14, k_read(j + 1, 1, s)))
    t0 = 6
    for dt in range(6):
        for t in range(2):
            lds.append((t0 + 3 * (2 * dt + t), 48 + 4 * dt - 8, vtype_read(FR(dt), vslot(j), dt, t, ("V", j))))
    if j + 2 < 32:
        for s in range(6):
            lds.append(((27, 33, 38, 43, 47, 50)[s], 70, k_read(j + 2, 0, s)))
    for dt in range(6, 12):
        for t in range(2):
            lds.append((48 + 4 * (dt - 6) + 3, 48 + 4 * dt - 8, vtype_read(FR(dt), vslot(j), dt, t, ("V", j))))
    for gi, g in enumerate(G):
        while g.free() > 0:
            cand = []
            if valu and valu[0][0] <= gi:
                cand.append((min(valu[0][0] + cfg["vslack"], 93), 0, None))
            av = [x for x in lds if x[0] <= gi]
            if av:
                b = min(av, key=lambda x: x[1])
                nl = len([y for y in g.vec if y.kind == "lds"])
                cand.append((b[1] - (100 if nl == 0 and len([v for v in valu if v[0] <= gi]) < 3 else 0), 1, b))
            if not cand:
                break
            c = min(cand, key=lambda x: x[:2])
            if c[1] == 0:
                assert valu[0][0] + 16 >= gi
                g.vec.append(valu.pop(0)[1])
            else:
                assert c[2][1] >= gi, (gi, c[2])
                lds.remove(c[2])
                g.vec.append(c[2][2])
    assert not valu and not lds, (valu, lds)
    need = [("V", j + 1)] + ([("K", j + 3)] if j + 3 < 32 else [])
    G[92].sca.append(WAITV(*need))
    G[93].sca.append(BARRIER(frees=[("V", j), ("K", j + 1)]))
    G[95].sca.append(I(f"s_cbranch_vccnz KF_fx{lab}", "branch", rd=["vcc"]))
    assert not G[95].vec
    G[95].post.append(LABEL(f"KF_bk{lab}"))
    return G


KORD = [(0, s) for s in range(6)] + [(p, 2 * c + u) for c in range(3) for p in (1, 2, 3) for u in range(2)]


def acc3(nt, qt):
    if nt < 4:
        return ("a", 192 + (nt * 4 + qt) * 4)
    return ("v", 64 + ((nt - 4) * 4 + qt) * 4)


def Bf(ks, qt):
    if ks < 6 or ks >= 18:
        return ("v", 160 + ((ks % 6) * 4 + qt) * 4)
    return ("a", ((ks - 6) * 4 + qt) * 4)


def wo_read(dst, ks, nt, tt):
    sl = woslot(ks)
    a, off = (vA3 + 2, sl - VREG) if sl >= VREG else (vA3, sl)
    return DSTR((dst[0], dst[1] + 2 * tt), a + (nt & 1), off + 3072 * tt + 64 * (nt >> 1), ("WO", ks))


def grp_B(ks0, cfg):
    p, s = KORD[ks0]
    return [DmaGroup([S(f"s_add_u32 s{sOKV}, s{sOB+p}, {1024*s}")],
                     [VLOAD(Bf(ks0 + u, qt), vOB + qt, SO, f"s{sOKV}", 1024 * u, ("B", ks0), cfg["bflags"]) for qt in range(4) for u in range(2)])]


def poll_load(kind):
    off, srd_ = {"c": (6, SD), "o": (vFOP, SF), "p": (vFPP, SF)}[kind]
    return VLOAD(("v", 5), off, srd_, 0, 0, None, "sc1", n=1)


def poll_cmp(need):
    return V(f"v_cmp_gt_u32 vcc, {need}, v5")


def slow_path(name, kind, need):
    return [f"KF_sl{name}:", f"s_mov_b32 s{sSPIN}, 0", f"KF_sp{name}:", poll_load(kind).text, "s_waitcnt vmcnt(0)", poll_cmp(need).text,
            f"s_add_u32 s{sSPIN}, s{sSPIN}, 1", f"s_cmp_gt_u32 s{sSPIN}, 0x8000", f"s_cbranch_scc1 KF_rt{name}",
            f"s_cbranch_vccnz KF_sp{name}", f"s_branch KF_rt{name}"]


def check_seq(P, name, kind, need):
    P.slow += slow_path(name, kind, need)
    return [poll_cmp(need), NOP(0), I(f"s_cbranch_vccnz KF_sl{name}", "branch", rd=["vcc"]), LABEL(f"KF_rt{name}")]


def free_gap(G, k, ok=lambda k: True):
    while G[k].vec or G[k].sca or G[k].post or not ok(k):
        k += 1
    return k


def check_gaps(P, G, name, kind, need, g_load, g_chk, ok):
    k = free_gap(G, g_load, ok)
    G[k].vec.append(poll_load(kind))
    k = free_gap(G, max(g_chk, k + 1), ok)
    G[k].vec.append(poll_cmp(need))
    k = free_gap(G, k + 1, ok)
    G[k].sca.append(I(f"s_cbranch_vccnz KF_sl{name}", "branch", rd=["vcc"]))
    G[k].post.append(LABEL(f"KF_rt{name}"))
    P.slow += slow_path(name, kind, need)
    return k + 1


def flag_gaps(G, tags, val, off, g, ok):
    k = free_gap(G, g, ok)
    G[k].sca.append(WAITV(*tags))
    G[k].vec.append(V(f"v_mov_b32 v7, {val}"))
    k = free_gap(G, k + 1, ok)
    G[k].vec.append(VSTORE(("v", 7), off, SF, 0, 0, "sc1", n=1))
    return k


def final_pv(P, cfg, ST, wo_left):
    A = P.seq
    j = 31
    for dt in range(4):
        for t in range(2):
            A(vtype_read(FR(dt), vslot(j), dt, t, ("V", j)))
    A(check_seq(P, "c", "c", 32))
    for qt in range(4):
        A(V(f"v_add_f32 v{vL+qt}, v{vL+qt}, v{vTS+qt}"))
    A(xred([vL + q for q in range(4)], [vE + q for q in range(4)], "v_add_f32"))
    for qt in range(4):
        A(V(f"v_rcp_f32 v{vE+2*qt}, v{vL+qt}"))
    G = P.gaps(pv_mfmas(j))
    for dt in range(4, 12):
        g = 0 + 2 * (dt - 4) if dt < 6 else 4 * (dt - 6) + 3
        G[g].vec += [vtype_read(FR(dt), vslot(j), dt, t, ("V", j)) for t in range(2)]
    now = [g for g in wo_left if g.dmas[0].meta["tag"][1] <= 10]
    left = place_stream(P, G, now, 1, 44, lambda k: cfg["fpace"], lambda k: k % 4 != 3)
    left += [g for g in wo_left if g.dmas[0].meta["tag"][1] > 10]
    G[45].sca.append(WAITV(("WO", 0), ("WO", 1)))
    G[46].sca.append(BARRIER(frees=[("V", 31)]))
    return left


def phase3(P, cfg, ST, wo_left):
    A = P.seq
    ST.seq(P, "pvend")
    stages = cfg["stages"]
    A(S(f"s_add_u32 s{sOX}, s{sOB}, 4096"), NOP(6))
    k = 0
    ost = []
    sched = cfg["convst"]
    done = 0
    for s in range(6):
        for qt in range(4):
            t = vS + (k % 4) * 8
            o = Bf(s, qt)[1]
            k += 1
            for u in range(2):
                a = Oa(2 * s + u, qt)[1]
                for r in range(4):
                    A(V(f"v_accvgpr_read_b32 v{t+4*u+r}, a{a+r}"))
            for r in range(0, 8, 2):
                A(V(f"v_pk_mul_f32 v[{t+r}:{t+r+1}], v[{t+r}:{t+r+1}], v[{vE+2*qt}:{vE+2*qt+1}] op_sel_hi:[1,0]"))
            for r in range(4):
                A(V(f"v_cvt_pk_bf16_f32 v{o+r}, v{t+2*r}, v{t+2*r+1}"))
            ost.append(VSTORE(("v", o), vOB + qt, SO, f"s{sOB}" if s < 4 else f"s{sOX}", 1024 * (s & 3), cfg["oflags"], tag=("O", s // 2)))
            if done < sched(k):
                A(ost.pop(0))
                done += 1

    def abuf(si, nt):
        L = len(stages[si])
        if L == 2:
            g = 10 * si + nt
            return [FR(2 * (g % 3) + u) for u in range(2)]
        return [("a", (nt % 2) * 24 + u * 4) for u in range(L)]

    def areads(si, nt):
        return [wo_read(d, ks, nt, tt) for d, ks in zip(abuf(si, nt), stages[si]) for tt in range(2)]

    A(areads(0, 0), areads(0, 1))
    ST.seq(P, "conv")
    secs = []
    for si, kss in enumerate(stages):
        mfs = []
        for nt in range(10):
            ab = abuf(si, nt)
            for qt in range(4):
                for u, ks in enumerate(kss):
                    C = 0 if ks == 0 else acc3(nt, qt)
                    m = MFMA(acc3(nt, qt), ab[u], Bf(ks, qt), C)
                    if qt == 0 and u % 2 == 0:
                        m.rd |= set(regs(ab[u + 1][0], ab[u + 1][1], 4))
                    if nt == 0 and u == 0 and qt % 2 == 0:
                        for k2 in kss:
                            for q2 in (qt, qt + 1):
                                m.rd |= set(regs(*Bf(k2, q2), 4))
                    mfs.append(m)
        secs.append(P.gaps(mfs))
    G = sum(secs, [])
    base = [sum(len(x) for x in secs[:i]) for i in range(len(secs) + 1)]
    bar = {}
    for si, kss in enumerate(stages):
        L = len(kss)
        per = 4 * L
        b = base[si]
        nxtL = len(stages[si + 1]) if si + 1 < len(stages) else 0
        ahead = 2 if L == 2 else 1
        for nt in range(ahead, 10):
            r = areads(si, nt)
            g = b + per * (nt - ahead)
            for k in range(0, len(r), 2):
                G[g + (k // 2 if L == 2 else k)].vec += r[k:k + 2]
        if nxtL:
            gb = b + per * 8
            if cfg.get("p3stamps"):
                ST.gap(G[gb - 1], G[gb + 1], f"s{si}")
            G[gb].sca.append(WAITV(*[("WO", ks) for ks in stages[si + 1]]))
            G[gb + 1].sca.append(BARRIER(frees=[("WO", ks) for ks in kss]))
            bar[si] = gb + 1
            r = areads(si + 1, 0)
            for k in range(0, len(r), 2):
                G[gb + 2 + k // 2].vec += r[k:k + 2]
            if nxtL == 2:
                r = areads(si + 1, 1)
                for k in range(0, len(r), 2):
                    G[b + per * 9 + k // 2].vec += r[k:k + 2]
    stage_of = {ks: si for si, kss in enumerate(stages) for ks in kss}
    ok = lambda k: k % 8 != 7
    if ost:
        assert not place_stream(P, G, [DmaGroup([], ost)], cfg["ostart"], 720, lambda k: cfg["opace"], ok)
    lastst = max([k for k, g in enumerate(G) if any(x.kind == "vstore" for x in g.vec)] + [0])
    ee = []
    for c in range(3):
        lc = max([k for k, g in enumerate(G) if any(x.kind == "vstore" and x.meta["tag"] == ("O", c) for x in g.vec)] + [cfg["gF0"] - cfg["olag"]])
        k = flag_gaps(G, [("O", c)], c + 1, vFO, lc + cfg["olag"], ok)
        k = max(k + cfg["plag0"], (ee[-1] if ee else 0))
        ee.append(check_gaps(P, G, f"o{c}", "o", c + 1, k, k + cfg["clag"], ok))
    P.slack.append(("checks", ee))
    e0 = ee[0]
    for g in wo_left:
        t = g.dmas[0].meta["tag"][1]
        g.earliest = bar[stage_of[t - 12]] + 1 if t >= 12 else 0
        g.deadline = bar[stage_of[t] - 1] - 2
    wo_left = place_stream(P, G, wo_left, 0, e0 - 4, lambda k: cfg["wpace"], ok)
    bs = [grp_B(ks, cfg)[0] for ks in range(6, 24, 2)]
    for g in bs:
        ks = g.dmas[0].meta["tag"][1]
        g.deadline = base[stage_of[ks]] - 2
        g.earliest = ee[ks // 6 - 1]
        if ks >= 18:
            g.earliest = max(g.earliest, base[stage_of[ks - 18] + 1], lastst + 3)
    items = sorted(wo_left + bs, key=lambda g: g.deadline)
    left = place_stream(P, G, items, e0, len(G), lambda k: cfg["p3pace"], ok, True)
    assert not left
    si = len(stages) - 1
    per = 4 * len(stages[si])
    b = base[si]
    tmpbase = 160 if per == 8 else vFR
    work = []
    tmp = 0
    for np_ in range(5):
        e = b + per * (2 * np_ + 1)
        work.append((e, S(f"s_mov_b32 s{sOW}, {np_*15*8192}")))
        for qt in range(4):
            e = b + per * (2 * np_ + 1) + (per // 4) * (qt + 1) + 4
            x, y = acc3(2 * np_, qt), acc3(2 * np_ + 1, qt)
            if x[0] == "a":
                t = tmpbase + (tmp % 2) * 8
                tmp += 1
                for u, z in enumerate((x, y)):
                    for r in range(4):
                        work.append((e - (per // 2 if u == 0 else 0), V(f"v_accvgpr_read_b32 v{t+4*u+r}, a{z[1]+r}")))
                src = [t + r for r in range(8)]
                o = t
            else:
                src = [x[1] + r for r in range(4)] + [y[1] + r for r in range(4)]
                o = x[1]
            for r in range(4):
                work.append((e, V(f"v_cvt_pk_bf16_f32 v{o+r}, v{src[2*r]}, v{src[2*r+1]}")))
            work.append((e, VSTORE(("v", o), vOP + qt, SP, f"s{sOW}", 0, cfg["pflags"], tag=("P", np_))))
    gi = b
    stpos = {}
    while work and gi < len(G):
        g = G[gi]
        while work and work[0][0] <= gi:
            x = work[0][1]
            if x.kind == "salu":
                P.flex_scalar(x, [g, G[min(gi + 1, len(G) - 1)]])
                work.pop(0)
            elif x.kind == "vstore":
                if not g.vec and not g.sca and ok(gi):
                    g.vec.append(x)
                    stpos[x.meta["tag"][1]] = gi
                    work.pop(0)
                break
            elif g.free() > 0:
                g.vec.append(x)
                work.pop(0)
            else:
                break
        gi += 1
    rest = [x for _, x in work]
    pending = {n for x in rest if x.kind == "vstore" for n in [x.meta["tag"][1]]}
    ST.seq(P, "mfend")
    A(NOP(7), rest)
    A(V("v_and_b32 v2, 15, v0"), V("v_mul_u32_u24 v2, 1280, v2"), V("v_lshrrev_b32 v3, 5, v0"), V("v_bfe_u32 v4, v0, 4, 1"),
      V("v_lshl_or_b32 v3, v4, 1, v3"), V("v_lshl_add_u32 v2, v3, 4, v2"), V("v_lshlrev_b32 v1, 4, v0"), V("v_add_u32 v3, 4096, v1"))

    def loads(r):
        return [VLOAD(("a", r * 32 + g * 4) if False else ("v", 160 + r * 32 + g * 4), 1 if g < 4 else 3, SP, f"s{sJ+r}", 1024 * (g & 3), None, cfg["rflags"])
                for g in range(8)]

    def reduce(r):
        out = []
        o = 64 + r * 16
        for g in range(8):
            src = 160 + r * 32 + g * 4
            t = o if g == 0 else 112 + (g & 1) * 8
            for q in range(4):
                out += [V(f"v_lshlrev_b32 v{t+2*q}, 16, v{src+q}"), V(f"v_and_b32 v{t+2*q+1}, 0xffff0000, v{src+q}")]
            if g:
                for q in range(4):
                    out.append(V(f"v_pk_add_f32 v[{o+2*q}:{o+2*q+1}], v[{o+2*q}:{o+2*q+1}], v[{t+2*q}:{t+2*q+1}]"))
        for q in range(4):
            out.append(V(f"v_cvt_pk_bf16_f32 v{o+8+q}, v{o+2*q}, v{o+2*q+1}"))
        out += [NOP(0), V(f"v_permlane16_swap_b32 v{o+8}, v{o+10}"), V(f"v_permlane16_swap_b32 v{o+9}, v{o+11}"),
                VSTORE(("v", o + 8), 2, SOUT, f"s{sJ+3+r}", 0, cfg["outflags"])]
        return out

    def flag(val, tags):
        return [V(f"v_mov_b32 v7, {val}"), WAITV(*tags), BARRIER(), VSTORE(("v", 7), vFP, SF, 0, 0, "sc1", n=1)]

    A(flag(3, [("P", 4)]))
    ST.seq(P, "pdrain")
    A(poll_load("p"), check_seq(P, "p2", "p", 3))
    ST.seq(P, "ppoll")
    A(loads(0), loads(1), loads(2), reduce(0), reduce(1), reduce(2))


def build(cfg):
    P = Prog()
    P.slack = []
    P.slow = []
    ST = Stamper(cfg)
    LA = cfg["LA"]
    stream = prologue(P, cfg, ST)
    left = phase1(P, cfg, ST, stream)
    ST.seq(P, "p1end")
    left = q_convert(P, cfg, left)
    first_tile(P, cfg, left)
    ST.seq(P, "attn0")
    labs = []
    wo = [grp_WO(t, cfg)[0] for t in range(24)]
    NT = cfg["trips"]
    for j in range(0, 31):
        inloop = 1 <= j <= 6 * NT
        if j == 1:
            P.seq(I(f"s_mov_b32 s{sCNT}, {NT}", "raw"))
        if inloop and (j - 1) % 6 == 0:
            P.el.append(I("", "raw", mark=(j - 1) // 6))
        if j == 6 * NT + 1:
            P.el.append(I("", "raw", mark=NT))
        groups = []
        if j + LA < 32:
            groups += grp_K(j + LA, cfg, True)
        if j + LA - 1 < 32:
            groups += grp_V(j + LA - 1, cfg, j + LA < 32)
        while len(groups) < cfg["tailgroups"] and j + LA >= 32 and wo and 26 + (wo[0].dmas[0].meta["tag"][1] + 1) // 2 <= j:
            groups.append(wo.pop(0))
        lab = str((j - 1) % 6) if inloop else f"p{j}"
        if not inloop or j <= 6:
            labs.append((lab, (j + 1) & 1))
        xv = None
        if j == 29:
            xv = VLOAD(("v", 5), 6, SD, 0, 0, None, "sc1", n=1)
        if inloop and (j - 1) % 6 == 1:
            xv = I(f"buffer_atomic_add v7, v6, s[{SD}:{SD+3}], s{sAO} offen sc1", "vstore", ["v6", "v7"], [], data=set(), n=1, tag=None)
        if j == cfg["wopf"]:
            xv = VLOAD(("a", 255), 2, SWO, 0, 0, None, "", n=1)
        G = iteration(P, cfg, j, lab, groups, xv)
        if j == cfg["wopf"]:
            G[92].vec.append(V("v_accvgpr_read_b32 v2, a255"))
        if inloop and (j - 1) % 6 == 1:
            G[88].sca.append(S(f"s_cmp_eq_u32 s{sCNT}, s{sTRIP}"))
            G[89].sca.append(S(f"s_cselect_b32 s{sAO}, 0, {OOB}"))
        if j == 28:
            G[94].vec.append(V("v_mov_b32 v6, 0"))
        if inloop and (j - 1) % 6 == 5:
            P.flex_scalar(S(f"s_sub_u32 s{sCNT}, s{sCNT}, 1"), G[80:90])
            G[94].sca.append(S(f"s_cmp_lg_u32 s{sCNT}, 0"))
            G[95].post.append(I("s_cbranch_scc1 KF_loop", "branch"))
    ST.seq(P, "attnend")
    wo = final_pv(P, cfg, ST, wo)
    phase3(P, cfg, ST, wo)
    if ST.on:
        P.seq(WAIT(vm=0))
        ST.seq(P, "end")
        P.seq(RAW("s_getreg_b32 s3, hwreg(HW_REG_XCC_ID, 0, 4)"), RAW(f"v_writelane_b32 v{vST}, s3, 63"))
        P.seq(srd(8, 32, 33, STAMP_OFF, 0x100000), S("s_lshl_b32 s3, s2, 2"), S(f"s_add_u32 s3, s3, s{sW}"), S("s_lshl_b32 s3, s3, 8"),
              V("v_lshlrev_b32 v2, 2, v0"), RAW(f"buffer_store_dword v{vST}, v2, s[8:11], s3 offen"))
    P.insert_waits()
    P.place_flex()
    lin = P.linear()
    probs = check_hazards(lin) + check_lds_protocol(lin, private=lambda t: t[0] == "X")
    trips = {}
    pre, post, cur = [], [], None
    for x in lin:
        if x.kind == "raw" and "mark" in x.meta:
            cur = x.meta["mark"]
            continue
        if cur is None:
            pre.append(x)
        elif cur == NT:
            post.append(x)
        else:
            trips.setdefault(cur, []).append(x)
    t0 = [text_of(x) for x in trips[0]]
    for k in range(1, NT):
        tk = [text_of(x) for x in trips[k]]
        assert tk == t0, [(a, b) for a, b in zip(t0, tk) if a != b][:5]
    out = [text_of(x) for x in pre] + ["KF_loop:"] + t0 + [text_of(x) for x in post]
    out += ["KF_done:", "s_endpgm"]
    out += P.slow
    for lab, par in labs:
        out += [f"KF_fx{lab}:", f"s_call_b64 s[{sRET}:{sRET+1}], KF_fix{par}", f"s_branch KF_bk{lab}"]
    for par in range(2):
        fb = fallback(par)
        probs += check_hazards(fb)
        out += [text_of(x) for x in fb]
    out += ["KF_end:"]
    return out, probs, P, ST


DEFAULT = dict(map="hg4", wflags="", xflags="", kvflags="nt", woflags="", oflags="sc1", bflags="sc1", pflags="sc1", rflags="sc1",
               outflags="", thresh=16384.0, LA=5, trips=4, npro=2, pace=[(200, 4.5), (960, 6)], kvpace=14, tailgroups=3,
               dmagaps={0: [], 1: [[4, 7, 9]], 2: [[4, 7, 9], [34, 44, 54]], 3: [[4, 7, 9], [34, 44, 54], [64, 79, 84]]},
               vslack=8, stages=[[2 * k, 2 * k + 1] for k in range(9)] + [list(range(18, 24))], p3pace=5, wpace=10, fpace=10, codepf=5,
               convst=lambda k: min(k, 8), ostart=70, opace=20, gF0=60, olag=50, plag0=45, clag=45, p1pf=None, wopf=26, stamps=False)

HDR = open("standalone__mha_block_cached__near_ridge.s.ref").read().split("; Override launch")[0]
NAME = "standalone__mha_block_cached__near_ridge_kernel"


def generate(over=None):
    cfg = dict(DEFAULT)
    cfg.update(over or {})
    o, p, P, ST = build(cfg)
    assert not p, p[:10]
    if cfg.get("verbose"):
        print(P.slack, file=sys.stderr)
    if P.warn or P.overfull():
        print("warn", len(P.warn), P.warn[:6], "overfull", P.overfull(), file=sys.stderr)
    dg = cfg.get("diag")
    if dg:
        s = HDR + f"; @launch kernel={NAME} grid=(256,1,1) block=(256,1,1) lds={LDS_BYTES}\n; @launch kernel=diag_kernel grid=(1,1,1) block=(64,1,1) lds=0\n"
    else:
        s = HDR + f"; @launch grid=(256,1,1) block=(256,1,1) lds={LDS_BYTES}\n"
    if ST.on:
        s += "; STAMPS " + " ".join(ST.names) + "\n"
    s += '.amdgcn_target "amdgcn-amd-amdhsa--gfx950"\n.text\n'
    s += f".globl {NAME}\n.p2align 8\n.type {NAME},@function\n{NAME}:\n" + "\n".join(("" if l.endswith(":") else "    ") + l for l in o if l) + "\n"
    if dg:
        import gen
        def addr(x):
            wg, nm = x
            return STAMP_OFF + wg * 1024 + (252 if nm == "xcc" else 8 * ST.names.index(nm) + 4)
        s += ".globl diag_kernel\n.p2align 8\n.type diag_kernel,@function\ndiag_kernel:\n" + "\n".join(gen.diag_kernel(addr(dg[0]), addr(dg[1]), dg[2])) + "\n"
    s += f""".section .rodata,"a"
.p2align 6
.amdhsa_kernel {NAME}
  .amdhsa_next_free_vgpr 512
  .amdhsa_next_free_sgpr 102
  .amdhsa_accum_offset 256
  .amdhsa_group_segment_fixed_size 0
  .amdhsa_kernarg_size 64
  .amdhsa_user_sgpr_count 2
  .amdhsa_user_sgpr_kernarg_segment_ptr 1
  .amdhsa_system_sgpr_workgroup_id_x 1
.end_amdhsa_kernel
"""
    if dg:
        s += ".p2align 6\n" + gen.kd("diag_kernel", 8, 8) + "\n"
    return s


if __name__ == "__main__":
    over = eval(sys.argv[2]) if len(sys.argv) > 2 else None
    open(sys.argv[1], "w").write(generate(over))
```

```python
import re


def regs(cls, base, n=1):
    return [f"{cls}{base+i}" for i in range(n)]


def rng(cls, base, n):
    return f"{cls}{base}" if n == 1 else f"{cls}[{base}:{base+n-1}]"


class I:
    __slots__ = ("text", "kind", "rd", "wr", "meta")

    def __init__(self, text, kind, rd=(), wr=(), **meta):
        self.text = text
        self.kind = kind
        self.rd = set(rd)
        self.wr = set(wr)
        self.meta = meta

    def __repr__(self):
        return f"<{self.text}>"


_REG_RE = re.compile(r"(?<![\w.])([vas])(?:(\d+)|\[(\d+):(\d+)\])(?![\w])")


def _parse_regs(op):
    out = []
    for m in _REG_RE.finditer(op):
        c = m.group(1)
        if m.group(2) is not None:
            out.append(f"{c}{m.group(2)}")
        else:
            out += [f"{c}{k}" for k in range(int(m.group(3)), int(m.group(4)) + 1)]
    for sp in ("vcc", "m0", "exec"):
        if re.search(rf"(?<![\w]){sp}(?![\w])", op):
            out.append(sp)
    return out


TRANS = ("v_exp_f32", "v_log_f32", "v_rcp_f32", "v_rsq_f32", "v_sqrt_f32")


def V(text, **meta):
    op, rest = text.split(None, 1)
    ops = [o.strip() for o in rest.split(",")]
    wr = _parse_regs(ops[0])
    rd = []
    for o in ops[1:]:
        rd += _parse_regs(o)
    kind = "valu"
    if op.startswith(TRANS):
        kind = "trans"
    if op.startswith("v_permlane"):
        kind = "perm"
        rd += wr
        wr = wr + _parse_regs(ops[1])
    if op.startswith(("v_fmac", "v_writelane")):
        rd += wr
    return I(text, kind, rd, wr, **meta)


def S(text, **meta):
    parts = text.split(None, 1)
    op = parts[0]
    ops = [o.strip() for o in parts[1].split(",")] if len(parts) > 1 else []
    if op.startswith("s_cmp"):
        wr = []
        rd = sum((_parse_regs(o) for o in ops), [])
    else:
        wr = _parse_regs(ops[0]) if ops else []
        rd = sum((_parse_regs(o) for o in ops[1:]), [])
    return I(text, "salu", rd, wr, **meta)


def NOP(n):
    return I(f"s_nop {n}", "nop", n=n + 1)


def RAW(text):
    return I(text, "raw")


def LABEL(name):
    return I(f"{name}:", "label")


def MFMA(D, A, B, C):
    ct = "0" if C == 0 else rng(C[0], C[1], 4)
    t = f"v_mfma_f32_16x16x32_bf16 {rng(D[0], D[1], 4)}, {rng(A[0], A[1], 4)}, {rng(B[0], B[1], 4)}, {ct}"
    ab = regs(A[0], A[1], 4) + regs(B[0], B[1], 4)
    c = [] if C == 0 else regs(C[0], C[1], 4)
    return I(t, "mfma", ab + c, regs(D[0], D[1], 4), ab=set(ab), c=set(c), D=D, C=C)


def DSR128(dst, addr, off, tag=None):
    assert 0 <= off < 65536, off
    return I(f"ds_read_b128 {rng(dst[0], dst[1], 4)}, v{addr} offset:{off}", "lds", [f"v{addr}"],
             regs(dst[0], dst[1], 4), tag=tag)


def DSTR(dst, addr, off, tag=None):
    assert 0 <= off < 65536, off
    return I(f"ds_read_b64_tr_b16 {rng(dst[0], dst[1], 2)}, v{addr} offset:{off}", "lds", [f"v{addr}"],
             regs(dst[0], dst[1], 2), tag=tag)


def DMA(voff, srd, soff, imm, tag, flags="", after=(), region=None):
    so = soff if isinstance(soff, str) else str(soff)
    o = f" offset:{imm}" if imm else ""
    f = f" {flags}" if flags else ""
    rd = [f"v{voff}", "m0"] + regs("s", srd, 4) + ([so] if so.startswith("s") else [])
    return I(f"buffer_load_dwordx4 v{voff}, s[{srd}:{srd+3}], {so} offen{o}{f} lds", "dma", rd, [], tag=tag,
             after=tuple(after), region=region)


def VLOAD(dst, voff, srd, soff, imm, tag=None, flags="", n=4):
    so = soff if isinstance(soff, str) else str(soff)
    o = f" offset:{imm}" if imm else ""
    f = f" {flags}" if flags else ""
    sfx = {1: "dword", 2: "dwordx2", 4: "dwordx4"}[n]
    rd = [f"v{voff}"] + regs("s", srd, 4) + ([so] if so.startswith("s") else [])
    return I(f"buffer_load_{sfx} {rng(dst[0], dst[1], n)}, v{voff}, s[{srd}:{srd+3}], {so} offen{o}{f}", "vload", rd,
             regs(dst[0], dst[1], n), tag=tag)


def VSTORE(src, voff, srd, soff, imm, flags="", n=4, tag=None):
    so = soff if isinstance(soff, str) else str(soff)
    o = f" offset:{imm}" if imm else ""
    f = f" {flags}" if flags else ""
    sfx = {1: "dword", 2: "dwordx2", 4: "dwordx4"}[n]
    rd = [f"v{voff}"] + regs(src[0], src[1], n) + regs("s", srd, 4) + ([so] if so.startswith("s") else [])
    return I(f"buffer_store_{sfx} {rng(src[0], src[1], n)}, v{voff}, s[{srd}:{srd+3}], {so} offen{o}{f}", "vstore", rd,
             [], data=set(regs(src[0], src[1], n)), tag=tag, n=n)


def WAITV(*tags):
    return I("s_waitcnt", "wait", vtags=tuple(tags), vm=None, lg=None)


def WAIT(vm=None, lg=None):
    return I("s_waitcnt", "wait", vtags=(), vm=vm, lg=lg)


def BARRIER(frees=()):
    return I("s_barrier", "barrier", after=tuple(frees))


class Gap:
    def __init__(self, mf):
        self.mf = mf
        self.sca = []
        self.vec = []
        self.post = []

    def cost(self):
        c = 0
        for x in self.vec:
            c += {"trans": 2, "dma": 3, "vload": 3, "vstore": 3}.get(x.kind, 1)
        return c

    def isdma(self):
        return any(x.kind in ("dma", "vload", "vstore") for x in self.vec)

    def free(self):
        return 0 if self.isdma() else 2 - self.cost()

    def lin(self):
        v = [x for x in self.vec if x.kind in ("lds", "ldsw")] + [x for x in self.vec if x.kind not in ("lds", "ldsw")]
        return [self.mf] + self.sca + v + self.post


class Prog:
    def __init__(self):
        self.el = []
        self.flex = []

    def seq(self, *ins):
        for x in ins:
            if isinstance(x, (list, tuple)):
                self.seq(*x)
            else:
                self.el.append(x)

    def gaps(self, mfs):
        g = [Gap(m) for m in mfs]
        self.el += g
        return g

    def flex_scalar(self, ins, cands):
        self.flex.append((ins, list(cands)))

    def insert_waits(self):
        lds_issued = 0
        lds_done = 0
        pend = {}
        tag_last = {}
        vm_issued = 0
        vm_done = 0
        vpend = {}
        vtag_last = {}
        gap_hist = []
        out = []

        def add_wait(slotlist, kind, cnt):
            for x in slotlist:
                if x.kind == "wait":
                    if x.meta[kind] is None or x.meta[kind] > cnt:
                        x.meta[kind] = cnt
                    return
            w = WAIT()
            w.meta[kind] = cnt
            slotlist.insert(0, w)

        def need_of(x):
            k = -1
            for r in (x.rd | x.wr):
                if r in pend and pend[r] >= lds_done:
                    k = max(k, pend[r])
            for t in x.meta.get("after", ()):
                if t in tag_last and tag_last[t] >= lds_done:
                    k = max(k, tag_last[t])
            kv = -1
            for r in (x.rd | x.wr):
                if r in vpend and vpend[r] >= vm_done:
                    kv = max(kv, vpend[r])
            return k, kv

        def account(x):
            nonlocal lds_issued, vm_issued, lds_done, vm_done
            if x.kind in ("lds", "ldsw"):
                for r in x.wr:
                    pend[r] = lds_issued
                if x.meta.get("tag") is not None:
                    tag_last[x.meta["tag"]] = lds_issued
                lds_issued += 1
                assert lds_issued - lds_done <= 15 or True
            elif x.kind in ("dma", "vload", "vstore"):
                for r in x.wr:
                    vpend[r] = vm_issued
                if x.meta.get("tag") is not None:
                    vtag_last[x.meta["tag"]] = vm_issued
                vm_issued += 1
            elif x.kind == "wait":
                if x.meta["vtags"]:
                    k = max(vtag_last[t] for t in x.meta["vtags"])
                    c = min(vm_issued - k - 1, 63)
                    if k >= vm_done and (x.meta["vm"] is None or x.meta["vm"] > c):
                        x.meta["vm"] = c
                if x.meta["vm"] is not None:
                    vm_done = max(vm_done, vm_issued - x.meta["vm"])
                if x.meta["lg"] is not None:
                    lds_done = max(lds_done, lds_issued - x.meta["lg"])

        def place(cands, k, which):
            nonlocal lds_done, vm_done
            idx = 1 if which == "lg" else 2
            best = None
            for c in cands:
                if c[idx] <= k:
                    break
                ok = (not c[3]) and (len(c[0]) == 0 or any(y.kind == "wait" for y in c[0]))
                if ok:
                    best = c
                    break
            if best is None:
                for c in cands:
                    if c[idx] > k:
                        best = c
                        self.warn.append(f"wait costs a slot near lds#{k} {which}")
                        break
            if best is None:
                return False
            cnt = min(best[idx] - k - 1, 15 if which == "lg" else 63)
            add_wait(best[0], which, cnt)
            if which == "lg":
                lds_done = max(lds_done, best[idx] - cnt)
            else:
                vm_done = max(vm_done, best[idx] - cnt)
            return True

        self.warn = []
        for e in self.el:
            if isinstance(e, Gap):
                k, kv = need_of(e.mf)
                cands = [(g.sca, li, vi, g.isdma()) for (g, li, vi) in reversed(gap_hist[-3:])]
                for kk, which in ((k, "lg"), (kv, "vm")):
                    if kk >= 0 and not place(cands, kk, which):
                        w = WAIT()
                        w.meta[which] = min((lds_issued if which == "lg" else vm_issued) - kk - 1, 15 if which == "lg" else 63)
                        if gap_hist:
                            gap_hist[-1][0].post.insert(0, w)
                            self.warn.append(f"late wait before {e.mf.text}")
                        else:
                            out.append(w)
                        account(w)
                gap_hist.append((e, lds_issued, vm_issued))
                for x in list(e.sca):
                    k, kv = need_of(x)
                    if k >= 0:
                        cands = [(g.sca, li, vi, g.isdma()) for (g, li, vi) in reversed(gap_hist[-4:-1])]
                        if not place(cands, k, "lg"):
                            add_wait(e.sca, "lg", min(lds_issued - k - 1, 15))
                            lds_done = k + 1
                            self.warn.append(f"wait in same slot as {x.text}")
                    account(x)
                for x in e.lin()[1 + len(e.sca):]:
                    k, kv = need_of(x)
                    cands = [(g.sca, li, vi, g.isdma()) for (g, li, vi) in reversed(gap_hist[-4:])]
                    for kk, which in ((k, "lg"), (kv, "vm")):
                        if kk >= 0:
                            assert place(cands, kk, which), f"cannot place wait for {x.text}"
                    account(x)
                out.append(e)
            else:
                if e.kind not in ("label", "raw") or e.meta.get("brk"):
                    gap_hist = []
                k, kv = need_of(e)
                if k >= 0 or kv >= 0:
                    w = WAIT(vm=(min(vm_issued - kv - 1, 63) if kv >= 0 else None), lg=(min(lds_issued - k - 1, 15) if k >= 0 else None))
                    out.append(w)
                    account(w)
                account(e)
                out.append(e)
        dead = lambda x: x.kind == "wait" and x.meta["vm"] is None and x.meta["lg"] is None
        for e in out:
            if isinstance(e, Gap):
                e.sca = [x for x in e.sca if not dead(x)]
        self.el = [e for e in out if isinstance(e, Gap) or not dead(e)]

    def place_flex(self):
        for ins, cands in self.flex:
            for g in cands:
                if not g.isdma() and len(g.sca) == 0:
                    g.sca.append(ins)
                    break
            else:
                for g in cands:
                    if not g.isdma() and len(g.sca) - 1 + g.cost() < 2:
                        g.sca.append(ins)
                        break
                else:
                    self.warn.append(f"flex scalar costs a slot: {ins.text}")
                    [g for g in cands if not g.isdma()][0].sca.append(ins)
        self.flex = []

    def linear(self):
        out = []
        for e in self.el:
            out += e.lin() if isinstance(e, Gap) else [e]
        return out

    def overfull(self):
        n = 0
        for e in self.el:
            if isinstance(e, Gap):
                ns = len([p for p in e.sca + e.post if p.kind not in ("label", "raw")])
                c = e.cost()
                tot = (c + ns) if e.isdma() else (c + max(ns, 1))
                if tot > 3:
                    n += tot - 3
        return n


def text_of(x):
    if x.kind == "wait":
        p = []
        if x.meta["vm"] is not None:
            p.append(f"vmcnt({x.meta['vm']})")
        if x.meta["lg"] is not None:
            p.append(f"lgkmcnt({x.meta['lg']})")
        assert p
        return "s_waitcnt " + " ".join(p)
    return x.text


def fix_hazards(lin, fix=True):
    notes = []
    out = []
    pos = 0
    last = {}
    mf_last = {}
    for x in lin:
        if x.kind == "label" or (x.kind == "raw" and not x.text):
            out.append(x)
            continue
        if x.kind == "raw":
            out.append(x)
            continue
        need = [0, ""]

        def req(key, n, why):
            if key in last:
                short = n - (pos - last[key] - 1)
                if short > need[0]:
                    need[0] = short
                    need[1] = f"{why} {key[1]}"

        isv = x.kind in ("valu", "trans", "perm")
        ismem = x.kind in ("lds", "ldsw", "dma", "vload", "vstore")
        if x.kind == "mfma":
            for r in x.meta["ab"] | x.meta["c"]:
                req(("valu_w", r), 2, "VALU->MFMA")
            for r in x.meta["ab"]:
                req(("mf_w", r), 8, "MFMA D->AB")
            for r in x.meta["c"]:
                if r in mf_last and mf_last[r] != x.meta["C"]:
                    req(("mf_w", r), 6, "MFMA D->C overlap")
        if isv or ismem:
            for r in (x.rd | x.wr):
                req(("mf_w", r), 8, "MFMA D->VALU/mem")
        if isv:
            for r in x.wr:
                req(("mf_c", r), 3, "MFMA C WAR")
                req(("st_d", r), 2, "store data WAR")
            if x.kind != "trans":
                for r in x.rd:
                    req(("trans_w", r), 1, "trans->use")
            if x.kind == "perm":
                for r in x.rd:
                    req(("valu_w", r), 2, "VALU->perm")
            if x.text.startswith(("v_readfirstlane", "v_readlane")):
                for r in x.rd:
                    req(("valu_w", r), 1, "VALU->readlane")
            for r in x.rd:
                if r.startswith("s") or r == "vcc":
                    req(("valu_w", r), 2, "VALU sgpr->VALU")
        if x.kind in ("lds", "vload"):
            for r in x.wr:
                req(("st_d", r), 1, "store data WAR")
        if x.kind in ("dma", "vload", "vstore"):
            for r in x.rd:
                if r.startswith("s"):
                    req(("valu_w", r), 5, "VALU sgpr->VMEM")
            if x.kind == "dma":
                req(("salu_w", "m0"), 1, "m0->DMA")
        if ismem:
            for r in x.rd:
                req(("trans_w", r), 1, "trans->mem")
        if need[0] > 0:
            notes.append(f"{need[1]} short {need[0]}: {x.text}")
            if fix:
                out.append(NOP(need[0] - 1))
                pos += need[0]
        out.append(x)
        if x.kind == "mfma":
            for r in x.wr:
                last[("mf_w", r)] = pos
                mf_last[r] = x.meta["D"]
            for r in x.meta["c"]:
                last[("mf_c", r)] = pos
        elif isv:
            for r in x.wr:
                last[("valu_w", r)] = pos
                last.pop(("mf_w", r), None)
                if x.kind == "trans":
                    last[("trans_w", r)] = pos
                else:
                    last.pop(("trans_w", r), None)
        elif x.kind == "salu":
            for r in x.wr:
                last[("salu_w", r)] = pos
        elif x.kind == "vstore" and x.meta.get("n", 4) >= 3:
            for r in x.meta["data"]:
                last[("st_d", r)] = pos
        pos += x.meta["n"] if x.kind == "nop" else 1
    return out, notes


def check_hazards(lin):
    return fix_hazards(lin, False)[1]


def fill_ops(G, ops, lo=0):
    ops = list(ops)
    dl = [o[1] for o in ops]
    for k in range(len(ops) - 2, -1, -1):
        dl[k] = min(dl[k], dl[k + 1])
    k = 0
    for gi in range(lo, len(G)):
        g = G[gi]
        while k < len(ops) and ops[k][0] <= gi:
            x = ops[k][2]
            c = {"trans": 2, "vstore": 3, "dma": 3, "vload": 3}.get(x.kind, 1)
            if c == 3:
                fits = not g.vec and not g.sca and not g.post and not getattr(g, "nomem", False)
            else:
                fits = g.free() >= c
            if fits or dl[k] <= gi:
                g.vec.append(x)
                k += 1
            else:
                break
        assert k >= len(ops) or dl[k] > gi, (gi, ops[k])
    return ops[k:]


def check_lds_protocol(lin, private=lambda tag: False):
    probs = []
    vm_issued = 0
    vm_done = 0
    lds_issued = 0
    lds_done = 0
    dma_last = {}
    visible = set()
    landed_pos = {}
    read_last = {}
    freed = set()
    occupant = []
    for x in lin:
        if x.kind == "wait":
            if x.meta["vm"] is not None:
                vm_done = max(vm_done, vm_issued - x.meta["vm"])
            if x.meta["lg"] is not None:
                lds_done = max(lds_done, lds_issued - x.meta["lg"])
        elif x.kind == "barrier":
            for t, k in dma_last.items():
                if k < vm_done:
                    visible.add(t)
            for t, k in read_last.items():
                if k < lds_done:
                    freed.add(t)
        elif x.kind in ("lds", "ldsw"):
            t = x.meta.get("tag")
            if t is not None and x.kind == "lds":
                if t in dma_last:
                    if private(t):
                        if dma_last[t] >= vm_done:
                            probs.append(f"RAW private {t}: {x.text}")
                    elif t not in visible:
                        probs.append(f"RAW shared {t}: {x.text}")
                    if not any(o[2] == t for o in occupant):
                        probs.append(f"read of evicted tile {t}: {x.text}")
                else:
                    probs.append(f"read of never-loaded tile {t}: {x.text}")
                read_last[t] = lds_issued
                freed.discard(t)
            lds_issued += 1
        elif x.kind in ("dma", "vload", "vstore"):
            if x.kind == "dma":
                t = x.meta["tag"]
                if t in read_last:
                    probs.append(f"DMA after read of {t}")
                for (lo, hi) in x.meta["region"]:
                    for o in list(occupant):
                        if o[2] != t and o[0] < hi and lo < o[1]:
                            pt = o[2]
                            if pt in read_last:
                                if private(pt) and private(t):
                                    if read_last[pt] >= lds_done:
                                        probs.append(f"WAR private {pt}->{t}")
                                elif pt not in freed:
                                    probs.append(f"WAR shared {pt}->{t}")
                            occupant.remove(o)
                    if (lo, hi, t) not in occupant:
                        occupant.append((lo, hi, t))
                dma_last[t] = vm_issued
                visible.discard(t)
            vm_issued += 1
    return probs
```

```python
import math, struct, sys
from asmlib import *

SLOT = 12288
KREG = 0
VREG = 6 * SLOT
EREG = 12 * SLOT
LDS_BYTES = 163840
OOB = 0x40000000

O_OFF = 0
PART_OFF = 0x2000000
FLAG_OFF = 0x4000000
STAMP_OFF = 0x10000000

SX, SW, SK, SV, SO = 8, 12, 16, 20, 24
SF, SD = 56, 60
SWO, SP, SOUT = 64, 68, 72
sW, sB, sH, sWOFF, sXB0, sXB1 = 34, 35, 36, 37, 38, 39
sOW, sOX, sOKV, sCNT, sTH = 40, 41, 42, 43, 44
sG = 45
sC = 46
sRET = 48
sPAD, sHL = 50, 51
sHB, sOB = 76, 80
sJ = 84
sSPIN = 90
sTRIP, sAO = 54, 55
sTM = 92
vAK, vAV, vAW, vAX = 8, 10, 14, 18
vOK, vOV, vOW, vOX = 22, 25, 28, 31
vST = 39
vPF = 8
vFR = 40
vS, vP, vNM, vTS, vL, vE = 64, 96, 128, 144, 148, 152
vA3 = 14
vOB = 18
vOWO = 28
vOP = 31
vFL = 35
PARK = [vA3, vA3 + 1, vA3 + 2, vA3 + 3, vOB, vOB + 3, vOWO, vOWO + 1, vOWO + 2, vOP, vOP + 3, vFL, vFL + 1, vFL + 2, vFL + 3]
vFO, vFOP, vFP, vFPP = vFL, vFL + 1, vFL + 2, vFL + 3


def f32(x):
    return "0x%08x" % struct.unpack("<I", struct.pack("<f", x))[0]


def acc(dt, qt):
    return ("v", (160 if dt % 2 == 0 else 64) + ((dt >> 1) * 4 + qt) * 4)


def Qf(qt, s):
    return acc(2 * s, qt)


def Oa(dt, qt):
    return ("a", (dt * 4 + qt) * 4)


def Kf(a, s):
    return ("a", 192 + (a * 6 + s) * 4)


def Xf(beta, u, qt):
    return ("a", beta * 32 + (u * 4 + qt) * 4)


def St(a, qt):
    return ("v", vS + (a * 4 + qt) * 4)


def Pf(par, qt):
    return ("v", vP + par * 16 + qt * 4)


def NM(qt):
    return ("v", vNM + qt * 4)


def FR(i):
    return ("v", vFR + (i % 6) * 4)


def wslot(n):
    buf = (n // 2) % 4
    base = {2: KREG, 3: KREG + 2 * SLOT, 0: KREG + 4 * SLOT, 1: VREG + 4 * SLOT}[buf]
    return base + (n % 2) * SLOT


def kslot(n):
    return KREG + (n % 6) * SLOT


def vslot(n):
    return VREG + (n % 6) * SLOT


def woslot(t):
    t %= 12
    return (kslot if t % 2 == 0 else vslot)(26 + t // 2)


def xregion(beta):
    return [(VREG + 2 * beta * SLOT, VREG + 2 * beta * SLOT + 3 * 8192), (EREG + beta * 8192, EREG + beta * 8192 + 8192)]


def vtype_read(dst, slot, dt, t, tag):
    if slot >= VREG:
        a, off = vAV, slot - VREG
    else:
        a, off = vAW, slot
    return DSTR((dst[0], dst[1] + 2 * t), a + (dt & 3), off + 1536 * t + 128 * (dt >> 2), tag)


def k_read(n, a, s):
    return DSR128(Kf(a, s), vAK + (s & 1), kslot(n) + 1536 * a + 128 * (s >> 1), ("K", n))


class DmaGroup:
    def __init__(self, pre, dmas, earliest=0):
        self.pre = pre
        self.dmas = dmas
        self.earliest = earliest
        self.deadline = 10**9


def grp_W(n, cfg):
    sl = wslot(n)
    return [DmaGroup([S(f"s_add_u32 m0, s{sWOFF}, {sl}"), S(f"s_mov_b32 s{sOW}, {n*393216}")],
                     [DMA(vOW + j, SW, f"s{sOW}", 1024 * j, ("W", n), cfg["wflags"], region=[(sl, sl + SLOT)]) for j in range(3)])]


def grp_X(c, cfg, after=()):
    beta = c & 1
    sb = sXB0 + beta
    g0 = DmaGroup([S(f"s_mov_b32 m0, s{sb}"), S(f"s_mov_b32 s{sOX}, {128*c}")],
                  [DMA(vOX + j, SX, f"s{sOX}", 1024 * j, ("X", c), cfg["xflags"], after=after, region=xregion(beta)) for j in range(4)])
    g1 = DmaGroup([S(f"s_add_u32 m0, s{sb}, 4096")],
                  [DMA(vOX + 4 + j, SX, f"s{sOX}", 1024 * j, ("X", c), cfg["xflags"], region=xregion(beta)) for j in range(4)])
    return [g0, g1]


def grp_K(n, cfg, loop=False):
    sl = kslot(n)
    so = S(f"s_add_u32 s{sOKV}, s{sOKV}, {SLOT}") if loop else S(f"s_mov_b32 s{sOKV}, {n*SLOT}")
    return [DmaGroup([S(f"s_add_u32 m0, s{sWOFF}, {sl}"), so],
                     [DMA(vOK + j, SK, f"s{sOKV}", 1024 * j, ("K", n), cfg["kvflags"], region=[(sl, sl + SLOT)]) for j in range(3)])]


def grp_V(n, cfg, loop=False):
    sl = vslot(n)
    pre = [S(f"s_add_u32 m0, s{sWOFF}, {sl}")]
    if not loop:
        pre.append(S(f"s_mov_b32 s{sOKV}, {(n+1)*SLOT}"))
    return [DmaGroup(pre,
                     [DMA(vOV + j, SV, f"s{sOKV}", 1024 * j, ("V", n), cfg["kvflags"], region=[(sl, sl + SLOT)]) for j in range(3)])]


def grp_WO(t, cfg):
    sl = woslot(t)
    return [DmaGroup([S(f"s_add_u32 m0, s{sWOFF}, {sl}"), S(f"s_add_u32 s{sOW}, s{sHB + KORD[t][0]}, {40960*KORD[t][1]}")],
                     [DMA(vOWO + j, SWO, f"s{sOW}", 1024 * j, ("WO", t), cfg["woflags"], region=[(sl, sl + SLOT)]) for j in range(3)])]


def group_seq(g):
    out = list(g.pre)
    if g.pre and g.pre[-1].text.split()[1].startswith("m0"):
        out.append(NOP(0))
    return out + list(g.dmas)


def seq_groups(P, groups):
    for g in groups:
        P.seq(group_seq(g))


def place_stream(P, G, groups, lo, hi, pace, ok, edf=False):
    pos = lo
    tgt = float(lo)
    groups = list(groups)
    while groups:
        if edf:
            av = [x for x in groups if x.earliest <= tgt + 2]
            g = min(av, key=lambda x: x.deadline) if av else min(groups, key=lambda x: x.earliest)
            groups.remove(g)
            groups.insert(0, g)
        g = groups[0]
        idx = []
        t = max(tgt, g.earliest + len(g.pre))
        k = pos + len(g.pre) + (1 if g.pre else 0)
        fail = False
        for d in g.dmas:
            k = max(k, int(t))
            while k < hi and not (ok(k) and not G[k].vec and not G[k].sca and not G[k].post):
                k += 1
            if k >= hi:
                fail = True
                break
            idx.append(k)
            t = max(t + pace(k), k - 6)
            k += 1
        if fail:
            break
        assert idx[-1] <= g.deadline, (g.dmas[0].meta["tag"], idx, g.deadline)
        P.slack.append((g.dmas[0].meta["tag"], idx[0], idx[-1], g.deadline))
        for s_ in g.pre:
            P.flex_scalar(s_, list(reversed(G[pos:idx[0]])))
        for kk, d in zip(idx, g.dmas):
            G[kk].vec.append(d)
        pos = idx[-1] + 1
        tgt = t
        groups.pop(0)
    return groups


class Stamper:
    def __init__(self, cfg):
        self.on = cfg.get("stamps")
        self.it = cfg.get("itstamps")
        self.n = 0
        self.names = []

    def seq(self, P, name):
        if self.on and not self.it:
            k = self.n
            P.seq(RAW(f"s_memtime s[{sTM}:{sTM+1}]"), RAW(f"s_memrealtime s[{sTM+2}:{sTM+3}]"), WAIT(lg=0),
                  RAW(f"v_writelane_b32 v{vST}, s{sTM}, {2*k}"), RAW(f"v_writelane_b32 v{vST}, s{sTM+2}, {2*k+1}"))
            self.n += 1
            self.names.append(name)

    def gap(self, g0, g1, name):
        if self.on:
            k = self.n
            g0.post += [RAW(f"s_memtime s[{sTM}:{sTM+1}]"), RAW(f"s_memrealtime s[{sTM+2}:{sTM+3}]")]
            g1.post += [RAW("s_waitcnt lgkmcnt(0)"), RAW(f"v_writelane_b32 v{vST}, s{sTM}, {2*k}"), RAW(f"v_writelane_b32 v{vST}, s{sTM+2}, {2*k+1}")]
            self.n += 1
            self.names.append(name)


def srd(base, lo, hi, off, size):
    return [S(f"s_add_u32 s{base}, s{lo}, {off}"), S(f"s_addc_u32 s{base+1}, s{hi}, 0"),
            S(f"s_mov_b32 s{base+2}, {size}"), S(f"s_mov_b32 s{base+3}, 0x20000")]


def prologue(P, cfg, ST):
    A = P.seq
    A(S("s_cmp_ge_u32 s2, 256"), I("s_cbranch_scc1 KF_done", "branch"))
    A(RAW("s_load_dwordx4 s[4:7], s[0:1], 0"), RAW("s_load_dwordx4 s[28:31], s[0:1], 16"), RAW("s_load_dwordx4 s[96:99], s[0:1], 32"),
      RAW("s_load_dwordx2 s[100:101], s[0:1], 48"), RAW("s_load_dwordx2 s[32:33], s[0:1], 56"))
    if ST.on:
        A(RAW(f"s_memtime s[{sTM}:{sTM+1}]"), RAW(f"s_memrealtime s[{sTM+2}:{sTM+3}]"))
    A(V("v_lshrrev_b32 v1, 6, v0"), V("v_and_b32 v0, 63, v0"))
    A(V(f"v_readfirstlane_b32 s{sW}, v1"))
    if cfg["codepf"]:
        n = cfg["codepf"]
        A(RAW("s_getpc_b64 s[52:53]"), LABEL("KF_pc"), S("s_lshr_b32 s3, s2, 3"), S(f"s_lshl_b32 s3, s3, 2"), S(f"s_add_u32 s3, s3, s{sW}"),
          S(f"s_mul_i32 s3, s3, {n*128}"), V(f"v_min_u32 v2, {n-1}, v0"), V("v_lshl_add_u32 v2, v2, 7, s3"),
          RAW("v_min_u32 v2, KF_end-KF_pc-4, v2"), V("v_mov_b32 v3, s53"), V("v_add_co_u32 v2, vcc, s52, v2"), NOP(1),
          RAW("v_addc_co_u32 v3, vcc, 0, v3, vcc"), RAW("global_load_dword v42, v[2:3], off"))
    m = cfg["map"]
    if m == "hg4":
        A(S(f"s_and_b32 s{sG}, s2, 7"), S(f"s_lshr_b32 s{sB}, s2, 5"), S(f"s_bfe_u32 s{sHL}, s2, 0x20003"))
    elif m == "4x8":
        A(S(f"s_bfe_u32 s{sHL}, s2, 0x20003"), S(f"s_and_b32 s{sG}, s2, 6"), S("s_bfe_u32 s3, s2, 0x10005"), S(f"s_add_u32 s{sG}, s{sG}, s3"),
          S(f"s_and_b32 s{sB}, s2, 1"), S(f"s_lshl_b32 s{sB}, s{sB}, 2"), S("s_lshr_b32 s3, s2, 6"), S(f"s_add_u32 s{sB}, s{sB}, s3"))
    elif m == "batch":
        A(S(f"s_and_b32 s{sB}, s2, 7"), S(f"s_lshr_b32 s{sG}, s2, 5"), S(f"s_bfe_u32 s{sHL}, s2, 0x20003"))
    A(S(f"s_lshl_b32 s{sH}, s{sG}, 2"), S(f"s_add_u32 s{sH}, s{sH}, s{sHL}"))
    A(V("v_lshrrev_b32 v2, 3, v0"), V("v_lshl_add_u32 v2, v1, 6, v2"), V("v_mul_u32_u24 v2, 1280, v2"),
      V("v_lshrrev_b32 v3, 4, v0"), V("v_and_b32 v4, 7, v0"), V("v_xor_b32 v3, v3, v4"),
      V(f"v_lshl_add_u32 v{vOX}, v3, 4, v2"), V("v_xor_b32 v3, 4, v3"), V("v_lshl_add_u32 v4, v3, 4, v2"))
    for j in range(1, 8):
        src = f"v{vOX}" if j % 2 == 0 else "v4"
        A(V(f"v_add_u32 v{vOX+j}, {10240*j - 1024*(j&3)}, {src}"))
    A(S(f"s_mul_i32 s{sWOFF}, s{sW}, 3072"), S(f"s_lshl_b32 s{sXB0}, s{sW}, 13"),
      S(f"s_add_u32 s{sXB1}, s{sXB0}, {VREG+2*SLOT}"), S(f"s_add_u32 s{sXB0}, s{sXB0}, {VREG}"),
      S(f"s_cmp_eq_u32 s{sW}, 3"), S(f"s_cselect_b32 s{sXB0}, {EREG}, s{sXB0}"), S(f"s_cselect_b32 s{sXB1}, {EREG+8192}, s{sXB1}"),
      S(f"s_cselect_b32 s{sPAD}, {f32(-1000.0)}, 0"))
    A(V("v_and_b32 v5, 1, v1"), V("v_lshrrev_b32 v6, 1, v1"), V("v_lshl_or_b32 v6, v6, 2, v5"), V("v_lshlrev_b32 v5, 2, v5"))
    for j in range(3):
        A(V(f"v_add_u32 v2, {64*j}, v0"), V("v_mul_u32_u24 v3, 2731, v2"), V("v_lshrrev_b32 v3, 16, v3"),
          V("v_mul_u32_u24 v4, 24, v3"), V("v_sub_u32 v2, v2, v4"),
          V("v_and_b32 v4, 2, v3"), V("v_xor_b32 v2, v2, v4"),
          V("v_lshl_add_u32 v3, v1, 3, v3"),
          V("v_xor_b32 v4, v2, v5"), V("v_xor_b32 v2, v2, v6"),
          V("v_mul_u32_u24 v7, 12288, v3"), V(f"v_lshl_add_u32 v{vOW+j}, v4, 4, v7"),
          V("v_mul_u32_u24 v7, 384, v3"), V(f"v_lshl_add_u32 v{vOV+j}, v4, 4, v7"), V(f"v_lshl_add_u32 v{vOK+j}, v2, 4, v7"))
        if j:
            A(V(f"v_subrev_u32 v{vOW+j}, {1024*j}, v{vOW+j}"), V(f"v_subrev_u32 v{vOV+j}, {1024*j}, v{vOV+j}"),
              V(f"v_subrev_u32 v{vOK+j}, {1024*j}, v{vOK+j}"))
    A(S(f"s_lshl_b32 s84, s{sB}, 3"), S(f"s_add_u32 s84, s84, s{sG}"), S("s_lshl_b32 s84, s84, 2"), S(f"s_add_u32 s84, s84, s{sW}"),
      S("s_lshl_b32 s84, s84, 7"),
      S(f"s_lshl_b32 s85, s{sB}, 2"), S(f"s_add_u32 s85, s85, s{sHL}"), S("s_lshl_b32 s85, s85, 10"), S("s_add_u32 s85, s85, 0x8000"),
      S(f"s_lshl_b32 s86, s{sHL}, 2"), S("s_add_u32 s86, s86, s84"),
      S(f"s_lshl_b32 s87, s{sG}, 2"), S("s_add_u32 s87, s87, s85"))
    A(V("v_lshl_add_u32 v43, v0, 7, s87"), V("v_lshrrev_b32 v2, 3, v0"), V("v_or_b32 v2, v2, v1"), V("v_min_u32 v2, 1, v2"),
      V("v_lshl_or_b32 v43, v2, 30, v43"), V("v_mov_b32 v41, 0"), V("v_mov_b32 v40, v43"), V("v_writelane_b32 v40, s86, 8"))
    A(RAW("s_waitcnt lgkmcnt(0)"))
    if ST.on:
        A(RAW(f"v_mov_b32 v{vST}, 0"), RAW(f"v_writelane_b32 v{vST}, s{sTM}, 0"), RAW(f"v_writelane_b32 v{vST}, s{sTM+2}, 1"))
        ST.n = 1
        ST.names.append("start")
    A(S(f"s_mul_i32 s3, s{sB}, 307200"), srd(SX, 4, 5, "s3", 307200))
    A(S(f"s_mul_i32 s3, s{sH}, 384"), srd(SW, 30, 31, "s3", 0), S(f"s_sub_u32 s{SW+2}, 7864320, s3"))
    seq_groups(P, grp_X(0, cfg) + grp_W(0, cfg) + grp_W(1, cfg))
    A(srd(SF, 32, 33, FLAG_OFF, 0x10000))
    A(I(f"buffer_atomic_swap v41, v40, s[{SF}:{SF+3}], 0 offen sc0 sc1", "vload", ["v40", "v41"], ["v41"], tag="finit"))
    stream = []
    for s in range(1, 10):
        gw = grp_W(2 * s, cfg) + grp_W(2 * s + 1, cfg)
        for g in gw:
            g.earliest = 96 * (s - 4) + 82 if s >= 4 else 0
            g.deadline = 96 * (min(s, 8) - 1) + 79
        gx = grp_X(s, cfg, after=[("X", s - 2)] if s >= 2 else ())
        for g in gx:
            g.earliest = xread_gap(s - 2, cfg) + 12 if s >= 3 else 0
            g.deadline = xread_gap(s, cfg) - 2
        stream += gw + gx
    A(S(f"s_lshl_b32 s91, s{sB}, 2"), S(f"s_add_u32 s91, s91, s{sHL}"), S("s_lshl_b32 s91, s91, 2"), S(f"s_add_u32 s91, s91, s{sW}"))
    pf = []
    if cfg["p1pf"] is not None:
        A(S(f"s_lshl_b32 s3, s91, 2"), S("s_add_u32 s3, s3, 128"), S(f"s_mul_i32 s88, s{sHL}, 384"),
          V("v_min_u32 v2, 47, v0"), V("v_mul_u32_u24 v3, 5462, v2"), V("v_lshrrev_b32 v3, 16, v3"), V("v_mul_u32_u24 v4, 12, v3"),
          V("v_sub_u32 v2, v2, v4"), V("v_add_u32 v3, s3, v3"), V("v_mul_u32_u24 v3, 12288, v3"), V("v_lshl_add_u32 v2, v2, 7, v3"),
          V(f"v_subrev_u32 v{vPF}, s88, v2"),
          S(f"s_lshl_b32 s3, s{sH}, 2"), S(f"s_add_u32 s3, s3, s{sW}"), S("s_mul_i32 s3, s3, 15"),
          V("v_min_u32 v2, 14, v0"), V("v_add_u32 v2, s3, v2"), V("v_lshrrev_b32 v3, 3, v2"), V("v_mul_u32_u24 v3, 1280, v3"),
          V("v_and_b32 v2, 7, v2"), V(f"v_lshl_add_u32 v{vPF+1}, v2, 7, v3"))
        pf = [DmaGroup([], [VLOAD(("a", 190), vPF + 1, SX, 0, 256, "pf", "", n=1), VLOAD(("a", 191), vPF, SW, 0, 0, "pf", "", n=1)])]
        stream = stream[:cfg["p1pf"]] + pf + stream[cfg["p1pf"]:]
    seq_groups(P, stream[:cfg["npro"]])
    stream = stream[cfg["npro"]:]
    A(S("s_mul_i32 s3, s91, 6"), S(f"s_mul_i32 s88, s{sHL}, 320"),
      V("v_min_u32 v2, 59, v0"), V("v_mul_u32_u24 v3, 6554, v2"), V("v_lshrrev_b32 v3, 16, v3"), V("v_mul_u32_u24 v4, 10, v3"),
      V("v_sub_u32 v2, v2, v4"), V("v_add_u32 v3, s3, v3"), V("v_mul_u32_u24 v3, 1280, v3"), V("v_lshl_add_u32 v2, v2, 7, v3"),
      V("v_subrev_u32 v2, s88, v2"), V("v_max_i32 v2, 0, v2"), V("v_accvgpr_write_b32 a255, v2"))
    A(S(f"s_lshl_b32 s{sCNT}, s{sB}, 5"), S(f"s_add_u32 s{sCNT}, s{sCNT}, s{sH}"), S(f"s_mul_i32 s3, s{sCNT}, 393216"),
      srd(SK, 6, 7, "s3", 393216), srd(SV, 28, 29, "s3", 393216 + SLOT),
      S(f"s_sub_u32 s{SV}, s{SV}, {SLOT}"), S(f"s_subb_u32 s{SV+1}, s{SV+1}, 0"))
    A(S(f"s_sub_u32 s3, s{sCNT}, s{sHL}"), S("s_mul_i32 s3, s3, 92160"), srd(SO, 32, 33, "s3", 4 * 92160))
    A(S(f"s_mul_i32 s3, s{sG}, {768*1280}"), S(f"s_mul_i32 s88, s{sHL}, 320"), S("s_add_u32 s3, s3, s88"),
      srd(SWO, 96, 97, "s3", 0), S(f"s_sub_u32 s{SWO+2}, 7864320, s3"))
    A(S(f"s_lshl_b32 s3, s{sB}, 2"), S(f"s_add_u32 s3, s3, s{sHL}"), S(f"s_mul_i32 s3, s3, {75*8192}"), S(f"s_add_u32 s3, s3, {PART_OFF}"),
      srd(SP, 32, 33, "s3", 75 * 8192))
    A(S(f"s_mul_i32 s3, s{sB}, 307200"), S("s_add_u32 s3, s3, s88"), srd(SOUT, 98, 99, "s3", 0), S(f"s_sub_u32 s{SOUT+2}, 2457600, s3"))
    A(S(f"s_lshl_b32 s3, s{sB}, 5"), srd(SD, 100, 101, "s3", 4), S(f"s_add_u32 s{sTRIP}, s{sHL}, 1"))
    for p in range(4):
        A(S(f"s_add_u32 s3, s{sHL}, {p}"), S("s_and_b32 s3, s3, 3"), S(f"s_mul_i32 s{sHB+p}, s3, 245760"), S(f"s_mul_i32 s{sOB+p}, s3, 92160"))
    c = math.log2(math.e) / math.sqrt(192.0)
    A(S(f"s_mov_b32 s{sC}, {f32(c)}"), S(f"s_mov_b32 s{sC+1}, {f32(c)}"), S(f"s_mov_b32 s{sTH}, {f32(cfg['thresh'])}"))

    park = {}

    def pk(reg, src):
        park[reg] = True
        A(V(f"v_accvgpr_write_b32 a{240+PARK.index(reg)}, {src}"))
    A(V("v_and_b32 v5, 1, v1"), V("v_lshrrev_b32 v6, 1, v1"), V("v_lshl_or_b32 v5, v5, 1, v6"))
    for j in range(3):
        A(V(f"v_add_u32 v2, {64*j}, v0"), V("v_mul_u32_u24 v3, 3277, v2"), V("v_lshrrev_b32 v3, 16, v3"),
          V("v_mul_u32_u24 v4, 20, v3"), V("v_sub_u32 v2, v2, v4"),
          V("v_lshrrev_b32 v4, 1, v3"), V("v_and_b32 v4, 2, v4"), V("v_xor_b32 v2, v2, v4"),
          V("v_lshl_add_u32 v3, v5, 3, v3"), V("v_mul_u32_u24 v3, 1280, v3"), V("v_lshl_add_u32 v2, v2, 4, v3"))
        if j:
            A(V(f"v_subrev_u32 v2, {1024*j}, v2"))
        if j == 2:
            A(V("v_lshrrev_b32 v3, 5, v0"), V("v_lshl_or_b32 v2, v3, 30, v2"))
        pk(vOWO + j, "v2")
    A(S(f"s_cmp_eq_u32 s{sW}, 3"), S(f"s_cselect_b32 s3, {OOB}, {3*6144}"), S(f"s_cselect_b32 s88, {OOB}, {3*8192}"))
    A(V("v_mul_u32_u24 v2, 24576, v1"), V("v_lshl_add_u32 v2, v0, 4, v2"), V("v_add_u32 v3, s3, v2"))
    pk(vOB, "v2")
    pk(vOB + 3, "v3")
    A(S(f"s_lshl_b32 s3, s{sG}, 10"), V("v_lshlrev_b32 v2, 15, v1"), V("v_lshl_add_u32 v2, v0, 4, v2"), V("v_add_u32 v2, s3, v2"), V("v_add_u32 v3, s88, v2"))
    pk(vOP, "v2")
    pk(vOP + 3, "v3")
    A(S(f"s_lshl_b32 s3, s{sG}, 7"), S("s_add_u32 s3, s3, s85"))
    A(V("v_mov_b32 v2, s86"), V("v_and_b32 v4, 3, v0"), V("v_lshl_add_u32 v4, v4, 2, s84"),
      V("v_and_b32 v5, 7, v0"), V("v_lshl_add_u32 v5, v5, 2, s3"))
    pk(vFO, "v2")
    pk(vFP, "v43")
    pk(vFOP, "v4")
    pk(vFPP, "v5")
    A(S(f"s_lshl_b32 s3, s{sW}, 3"), S(f"s_add_u32 s3, s3, s{sG}"))
    for r in range(3):
        A(S(f"s_add_u32 s{sSPIN}, s3, {30*r}"), S(f"s_lshl_b32 s{sJ+r}, s{sSPIN}, 13"),
          S(f"s_mul_i32 s91, s{sSPIN}, 4370"), S("s_lshr_b32 s91, s91, 16"),
          S(f"s_mul_i32 s{sJ+3+r}, s91, {64 - 15*20480}"), S(f"s_mul_i32 s{sSPIN}, s{sSPIN}, 20480"),
          S(f"s_add_u32 s{sJ+3+r}, s{sJ+3+r}, s{sSPIN}"),
          S(f"s_cmp_lt_u32 s3, {(30, 30, 15)[r]}"), S(f"s_cselect_b32 s{sJ+r}, s{sJ+r}, {OOB}"), S(f"s_cselect_b32 s{sJ+3+r}, s{sJ+3+r}, {OOB}"))
    A(V("v_and_b32 v1, 15, v0"), V("v_lshrrev_b32 v2, 4, v0"))
    A(V("v_lshrrev_b32 v3, 1, v2"), V("v_mul_u32_u24 v3, 6144, v3"), V("v_and_b32 v4, 1, v2"), V("v_lshrrev_b32 v5, 2, v1"),
      V("v_lshl_add_u32 v5, v4, 2, v5"), V("v_mul_u32_u24 v5, 320, v5"), V("v_add_u32 v3, v3, v5"), V("v_and_b32 v5, 3, v1"),
      V("v_lshl_add_u32 v3, v5, 3, v3"), V("v_lshl_add_u32 v5, v4, 5, v3"), V("v_xor_b32 v4, 1, v4"), V("v_lshl_add_u32 v4, v4, 5, v3"),
      V(f"v_add_u32 v6, {VREG}, v5"), V(f"v_add_u32 v7, {VREG}, v4"))
    pk(vA3, "v5")
    pk(vA3 + 1, "v4")
    pk(vA3 + 2, "v6")
    pk(vA3 + 3, "v7")
    assert len(park) == len(PARK)
    A(V("v_lshrrev_b32 v3, 1, v1"), V("v_xor_b32 v3, v3, v2"), V("v_lshlrev_b32 v3, 4, v3"), V("v_lshl_add_u32 v3, v1, 7, v3"),
      V("v_xor_b32 v4, 64, v3"),
      V(f"v_add_u32 v{vAX}, s{sXB0}, v3"), V(f"v_add_u32 v{vAX+1}, s{sXB0}, v4"),
      V(f"v_add_u32 v{vAX+2}, s{sXB1}, v3"), V(f"v_add_u32 v{vAX+3}, s{sXB1}, v4"))
    A(V("v_lshrrev_b32 v3, 2, v1"), V("v_lshl_add_u32 v4, v2, 3, v3"), V("v_mul_u32_u24 v4, 384, v4"),
      V("v_and_b32 v5, 3, v1"), V("v_lshl_add_u32 v4, v5, 3, v4"),
      V("v_lshrrev_b32 v3, 3, v1"), V("v_and_b32 v5, 1, v2"), V("v_lshl_or_b32 v3, v5, 1, v3"))
    for e in range(4):
        A(V(f"v_xor_b32 v5, {e}, v3"), V(f"v_lshl_add_u32 v{vAW+e}, v5, 5, v4"), V(f"v_add_u32 v{vAV+e}, {VREG}, v{vAW+e}"))
    A(V("v_lshrrev_b32 v3, 2, v1"), V("v_and_b32 v4, 3, v1"), V("v_lshl_add_u32 v4, v3, 3, v4"), V("v_mul_u32_u24 v4, 384, v4"),
      V("v_and_b32 v3, 1, v3"), V("v_and_b32 v5, 2, v1"), V("v_or_b32 v3, v3, v5"), V("v_lshrrev_b32 v5, 3, v1"), V("v_lshl_or_b32 v3, v5, 2, v3"),
      V("v_lshrrev_b32 v5, 1, v2"), V("v_and_b32 v6, 1, v2"), V("v_lshl_or_b32 v5, v6, 1, v5"), V("v_xor_b32 v3, v3, v5"),
      V("v_lshl_add_u32 v5, v3, 4, v4"), V("v_xor_b32 v3, 4, v3"), V("v_lshl_add_u32 v4, v3, 4, v4"))
    A(V(f"v_or_b32 v6, s{sW}, v0"), V("v_lshlrev_b32 v6, 8, v6"), V("v_mov_b32 v7, 1"))
    return stream


def xread_gap(c, cfg):
    if c == 9:
        return 96 * 7 + 86
    return 96 * (c - 1) + (84 if c < cfg["xearly"] else 42)


def Xr(c, u, qt):
    return Xf(2 if c == 9 else c & 1, u, qt)


def x_read(c, u, qt):
    return DSR128(Xr(c, u, qt), vAX + 2 * (c & 1) + u, 2048 * qt, ("X", c))


def AL(dt, u):
    return ("a", (128 if dt == 11 else 96 + (dt & 1) * 16) + 4 * u)


def K0f(a, s):
    return ("a", 144 + (a * 6 + s) * 4)


def w_reads(stage, dt):
    gdt = stage * 12 + dt
    out = []
    for u in range(4 if stage == 8 else 2):
        n = 2 * stage + u
        for t in range(2):
            out.append(vtype_read(AL(dt, u) if stage == 8 else FR(2 * (gdt % 3) + u), wslot(n), dt, t, ("W", n)))
    return out


BL1, BL2 = 768 + 13, 768 + 161


def kv_prefill(cfg):
    LA = cfg["LA"]
    out = []
    seq = [("K", 0)]
    for n in range(1, LA):
        seq += [("K", n), ("V", n - 1)]
    free = {("K", 0): 658, ("K", 1): 658, ("K", 2): 754, ("K", 3): 754, ("K", 4): BL2 + 1, ("K", 5): BL2 + 1,
            ("V", 0): BL1 + 1, ("V", 1): BL1 + 1, ("V", 2): BL1 + 1, ("V", 3): BL1 + 1, ("V", 4): BL2 + 1}
    if LA >= 3:
        seq[2], seq[3] = seq[3], seq[2]
    for t in seq:
        g = (grp_K if t[0] == "K" else grp_V)(t[1], cfg)[0]
        g.earliest = free[t]
        if t in (("K", 0), ("K", 1)):
            g.deadline = BL2 - 2
        out.append(g)
    return out


def put_reads(G, g, r, step=1):
    for k in range(0, len(r), 2):
        assert G[g].free() >= 2, g
        G[g].vec += r[k:k + 2]
        g += step


def phase1(P, cfg, ST, stream):
    A = P.seq
    ST.seq(P, "issued")
    if cfg["tour"]:
        A(RAW("s_mov_b64 exec, 0"))
        for w in range(1, 4):
            A(RAW(f"s_cmp_eq_u32 s{sW}, {w}"), RAW(f"s_cbranch_scc1 KF_pg{w}"))
        A(RAW("s_branch KF_pg4"), LABEL("KF_tret"), RAW("s_mov_b64 exec, -1"))
    A(RAW("s_branch KF_go"), RAW(".p2align 12"), LABEL("KF_go"))
    ST.seq(P, "toured")
    A(WAITV(("X", 0), ("W", 0), ("W", 1), "finit"), BARRIER())
    ST.seq(P, "landed")
    for u in range(2):
        for qt in range(4):
            A(x_read(0, u, qt))
    A(w_reads(0, 0), w_reads(0, 1))
    mfs = []
    for st in range(8):
        for dt in range(12):
            gdt = st * 12 + dt
            for qt in range(4):
                for u in range(2):
                    C = 0 if (st == 0 and u == 0) else acc(dt, qt)
                    m = MFMA(acc(dt, qt), FR(2 * (gdt % 3) + u), Xr(st, u, qt), C)
                    if qt == 0 and u == 0:
                        m.rd |= set(regs("v", FR(2 * (gdt % 3) + 1)[1], 4))
                        if dt == 0:
                            m.rd |= set(regs("a", Xr(st, 0, 0)[1], 32))
                    mfs.append(m)
    done = {}
    order = [(dt, qt) for dt in range(10) for qt in range(4)] + [(dt, qt) for qt in range(4) for dt in (10, 11)]
    for dt, qt in order:
        for u in range(4):
            m = MFMA(acc(dt, qt), AL(dt, u), Xr(8 + u // 2, u & 1, qt), acc(dt, qt))
            if qt == 0 and u == 0:
                m.rd |= set(regs("a", AL(dt, 0)[1], 16))
                if dt == 0:
                    m.rd |= set(regs("a", Xr(9, 0, 0)[1], 32))
            mfs.append(m)
        done[(dt, qt)] = len(mfs) - 1
    assert len(mfs) == 960
    for qt in range(4):
        for a in range(2):
            for s in range(6):
                m = MFMA(St(a, qt), K0f(a, s), Qf(qt, s), 0 if s == 0 else St(a, qt))
                if qt == 0 and s == 0:
                    m.rd |= set(regs("a", K0f(a, 0)[1], 24))
                mfs.append(m)
    G = P.gaps(mfs)
    for st in range(8):
        b = 96 * st
        for dt in range(2, 12):
            put_reads(G, b + 8 * (dt - 2), w_reads(st, dt))
        put_reads(G, b + 82, w_reads(st + 1, 0))
        if st < 7:
            put_reads(G, b + 88, w_reads(st + 1, 1))
        need = [("W", 2 * st + 2), ("W", 2 * st + 3)] if st < 7 else [("W", n) for n in range(16, 20)]
        if cfg.get("p1stamps"):
            ST.gap(G[b + 79], G[b + 81], f"st{st}")
        G[b + 80].sca.append(WAITV(*need))
        G[b + 81].sca.append(BARRIER(frees=[("W", 2 * st), ("W", 2 * st + 1)]))
    for c in range(1, 10):
        g = xread_gap(c, cfg)
        G[g - 1].sca.append(WAITV(("X", c)))
        put_reads(G, g, [x_read(c, u, qt) for u in range(2) for qt in range(4)])
    for dt in range(1, 11):
        put_reads(G, 768 + 16 * (dt - 1), w_reads(8, dt))
    put_reads(G, 768 + 16 * 9 + 4, w_reads(8, 11))
    G[BL1].sca.append(BARRIER(frees=[("X", 8), ("X", 9)]))
    G[BL2 - 1].sca.append(WAITV(("K", 0), ("K", 1)))
    G[BL2].sca.append(BARRIER(frees=[("W", n) for n in range(16, 20)]))
    G[96 * 7 + 7].vec += [V(f"v_mov_b32 v{vAK}, v5"), V(f"v_mov_b32 v{vAK+1}, v4")]
    r = [DSR128(K0f(a, s), vAK + (s & 1), kslot(0) + 1536 * a + 128 * (s >> 1), ("K", 0)) for a in range(2) for s in range(6)]
    put_reads(G, BL2 + 1, r, 3)
    put_reads(G, 962, [k_read(1, 0, s) for s in range(6)], 3)
    ok = lambda k: k % 8 != 7
    pc = cfg["pace"]

    def pace(k):
        for lim, p in pc:
            if k < lim:
                return p
        return pc[-1][1]
    left = place_stream(P, G, stream, 0, 960, pace, ok)
    assert not left
    last = max(k for k, g in enumerate(G) if g.isdma())
    left = place_stream(P, G, kv_prefill(cfg), last + 1, len(G), lambda k: cfg["kvpace"], ok)
    ops = []
    swaps = []
    LAG = 5

    def muls(dt, qt, dl):
        r = acc(dt, qt)[1]
        return [(done[(dt, qt)] + LAG, dl, V(f"v_mul_f32 v{r+k}, s{sC}, v{r+k}")) for k in range(4)]
    for s in range(6):
        if s < 5:
            for qt in range(4):
                ops += muls(2 * s, qt, 958)
        for qt in range(4):
            dl = 960 + 12 * qt + s - 2
            if s == 5:
                ops += muls(10, qt, dl)
            ops += muls(2 * s + 1, qt, dl)
            ops += swaps
            a_, b_ = acc(2 * s, qt)[1], acc(2 * s + 1, qt)[1]
            e = done[(2 * s + 1, qt)] + LAG
            ops += [(e, dl, V(f"v_cvt_pk_bf16_f32 v{a_}, v{a_}, v{a_+1}")), (e, dl, V(f"v_cvt_pk_bf16_f32 v{a_+1}, v{a_+2}, v{a_+3}")),
                    (e, dl, V(f"v_cvt_pk_bf16_f32 v{a_+2}, v{b_}, v{b_+1}")), (e, dl, V(f"v_cvt_pk_bf16_f32 v{a_+3}, v{b_+2}, v{b_+3}"))]
            swaps = [(e, dl, V(f"v_permlane16_swap_b32 v{a_}, v{a_+2}")), (e, dl, V(f"v_permlane16_swap_b32 v{a_+1}, v{a_+3}"))]
            if s == 5:
                ops += swaps
                swaps = []
    INF = 10**9
    rm = rowmax(1)
    for pr in range(2):
        q0, q1 = 2 * pr, 2 * pr + 1
        ops += [(960 + 12 * q0 + 11 + LAG, INF, x) for x in rm[4 * q0:4 * q0 + 4]]
        e = 960 + 12 * q1 + 11 + LAG
        blk = rm[4 * q1:4 * q1 + 4] + xred([1 + q0, 1 + q1], [vE, vE + 1], "v_max_f32")
        if pr == 1:
            blk.append(V(f"v_subrev_f32 v4, s{sPAD}, v4"))
        for qt in (q0, q1):
            blk += [V(f"v_sub_f32 v{vNM+4*qt+r}, 0, v{1+qt}") for r in range(4)]
            blk.append(V(f"v_mov_b32 v{vL+qt}, 0") if qt < 3 else V(f"v_sub_f32 v{vL+qt}, 0, s{sPAD}"))
        blk += softmax_seq(0, 1, [q0, q1])
        ops += [(e, INF, x) for x in blk if x.kind != "nop"]
    rest = [x for _, _, x in fill_ops(G, ops, 768)]
    ST.seq(P, "qk0end")
    dm = sum((group_seq(g) for g in left), [])
    step = max(1, len(rest) // (len(dm) + 1))
    for k, x in enumerate(rest):
        if dm and k % step == step - 1:
            A(dm.pop(0))
        A(x)
    A(dm)
    A(WAITV(("V", 0), ("K", 2)), BARRIER(frees=[("K", 0)]))


def qk_mfmas(first):
    out = []
    for a in range(2):
        for qt in range(4):
            for s in range(6):
                C = (0 if first else NM(qt)) if s == 0 else St(a, qt)
                m = MFMA(St(a, qt), Kf(a, s), Qf(qt, s), C)
                if qt == 0 and s in (0, 3):
                    m.rd |= set(regs("a", Kf(a, s)[1], 12))
                out.append(m)
    return out


def pv_mfmas(j):
    out = []
    for dt in range(12):
        for qt in range(4):
            out.append(MFMA(Oa(dt, qt), FR(dt), Pf(j & 1, qt), 0 if j == 0 else Oa(dt, qt)))
    return out


def xred(x, t, op):
    out = []
    for sw in ("v_permlane32_swap_b32", "v_permlane16_swap_b32"):
        for a, b in zip(x, t):
            out.append(V(f"v_mov_b32 v{b}, v{a}"))
        out.append(NOP(0))
        for a, b in zip(x, t):
            out.append(V(f"{sw} v{b}, v{a}"))
        for a, b in zip(x, t):
            out.append(V(f"{op} v{a}, v{a}, v{b}"))
    return out


def rowmax(dst):
    out = []
    for qt in range(4):
        s0, s1 = St(0, qt)[1], St(1, qt)[1]
        d = dst + qt
        out += [V(f"v_max3_f32 v{d}, v{s0}, v{s0+1}, v{s0+2}"), V(f"v_max3_f32 v{d}, v{d}, v{s0+3}, v{s1}"),
                V(f"v_max3_f32 v{d}, v{d}, v{s1+1}, v{s1+2}"), V(f"v_max_f32 v{d}, v{d}, v{s1+3}")]
    return out


def softmax_seq(par, delta, qts=range(4)):
    out = []
    for qt in qts:
        for a in range(2):
            s = St(a, qt)[1]
            for r in range(4):
                out.append(V(f"v_sub_f32 v{vE+4*a+r}, v{s+r}, v{delta+qt}"))
        for k in range(8):
            out.append(V(f"v_exp_f32 v{vE+k}, v{vE+k}"))
        p = Pf(par, qt)[1]
        out.append(V(f"v_add_f32 v{vTS+qt}, v{vE}, v{vE+1}"))
        for k in range(2, 8):
            out.append(V(f"v_add_f32 v{vTS+qt}, v{vTS+qt}, v{vE+k}"))
        for k in range(4):
            out.append(V(f"v_cvt_pk_bf16_f32 v{p+k}, v{vE+2*k}, v{vE+2*k+1}"))
    return out


def unpark():
    un = [V(f"v_accvgpr_read_b32 v{r}, a{240+k}") for k, r in enumerate(PARK)]
    un += [V(f"v_add_u32 v{vOB+1}, 6144, v{vOB}"), V(f"v_add_u32 v{vOB+2}, 12288, v{vOB}"),
           V(f"v_add_u32 v{vOP+1}, 8192, v{vOP}"), V(f"v_add_u32 v{vOP+2}, 16384, v{vOP}")]
    return un


def fallback(par):
    out = [LABEL(f"KF_fix{par}"), NOP(7)]
    out += rowmax(1)
    out += xred([1, 2, 3, 4], [vE, vE + 1, vE + 2, vE + 3], "v_max_f32")
    for qt in range(4):
        out.append(V(f"v_max_f32 v{1+qt}, 0, v{1+qt}"))
    out += softmax_seq(par, 1)
    for qt in range(4):
        for r in range(4):
            out.append(V(f"v_sub_f32 v{vNM+4*qt+r}, v{vNM+4*qt+r}, v{1+qt}"))
    for qt in range(4):
        out.append(V(f"v_exp_f32 v{1+qt}, -v{1+qt}"))
    out.append(NOP(0))
    for qt in range(4):
        out.append(V(f"v_mul_f32 v{vL+qt}, v{vL+qt}, v{1+qt}"))
    for dt in range(12):
        for qt in range(4):
            a = Oa(dt, qt)[1]
            e = vE + 4 * (qt & 1)
            for r in range(4):
                out.append(V(f"v_accvgpr_read_b32 v{e+r}, a{a+r}"))
            for r in range(4):
                out.append(V(f"v_mul_f32 v{e+r}, v{e+r}, v{1+qt}"))
            for r in range(4):
                out.append(V(f"v_accvgpr_write_b32 a{a+r}, v{e+r}"))
    out += [NOP(1), I(f"s_setpc_b64 s[{sRET}:{sRET+1}]", "branch")]
    return out


def iteration(P, cfg, j, lab, groups, extra_vm=None):
    G = P.gaps(qk_mfmas(False) + pv_mfmas(j))
    par = (j + 1) & 1
    exp_gaps = [11 + 5 * k + o for k in range(16) for o in (0, 2)]
    slots = cfg["dmagaps"][len(groups)]
    lo = 0
    for g, idx in zip(groups, slots):
        for s_ in g.pre:
            P.flex_scalar(s_, G[lo:idx[0]])
        for k, d in zip(idx, g.dmas):
            assert k not in exp_gaps
            G[k].vec.append(d)
        lo = idx[-1] + 1
    if extra_vm is not None:
        G[94].vec.append(extra_vm)
    valu = []
    for qt in range(4):
        valu.append((0, V(f"v_add_f32 v{vL+qt}, v{vL+qt}, v{vTS+qt}")))
    n = 0
    for T in range(8):
        a, qt = divmod(T, 4)
        s = St(a, qt)[1]
        p = Pf(par, qt)[1] + 2 * a
        for r in range(4):
            g = exp_gaps[n]
            e = vE + n % 8
            assert not G[g].vec
            G[g].vec.append(V(f"v_exp_f32 v{e}, v{s+r}"))
            if a == 0 and r == 0:
                pass
            elif a == 0 and r == 1:
                valu.append((g + 1, V(f"v_add_f32 v{vTS+qt}, v{e-1}, v{e}")))
            else:
                valu.append((g + 1, V(f"v_add_f32 v{vTS+qt}, v{vTS+qt}, v{e}")))
            if r & 1:
                valu.append((g + 1, V(f"v_cvt_pk_bf16_f32 v{p+(r>>1)}, v{e-1}, v{e}")))
            n += 1
        if T == 6:
            valu.append((g + 1, V(f"v_max3_f32 v1, v{vTS}, v{vTS+1}, v{vTS+2}")))
    valu.append((g + 1, V(f"v_max_f32 v1, v1, v{vTS+3}")))
    valu.append((g + 1, V(f"v_cmp_lt_f32 vcc, s{sTH}, v1")))
    lds = []
    for s in range(6):
        lds.append((s, 14, k_read(j + 1, 1, s)))
    t0 = 6
    for dt in range(6):
        for t in range(2):
            lds.append((t0 + 3 * (2 * dt + t), 48 + 4 * dt - 8, vtype_read(FR(dt), vslot(j), dt, t, ("V", j))))
    if j + 2 < 32:
        for s in range(6):
            lds.append(((27, 33, 38, 43, 47, 50)[s], 70, k_read(j + 2, 0, s)))
    for dt in range(6, 12):
        for t in range(2):
            lds.append((48 + 4 * (dt - 6) + 3, 48 + 4 * dt - 8, vtype_read(FR(dt), vslot(j), dt, t, ("V", j))))
    for gi, g in enumerate(G):
        while g.free() > 0:
            cand = []
            if valu and valu[0][0] <= gi:
                cand.append((min(valu[0][0] + cfg["vslack"], 93), 0, None))
            av = [x for x in lds if x[0] <= gi]
            if av:
                b = min(av, key=lambda x: x[1])
                nl = len([y for y in g.vec if y.kind == "lds"])
                cand.append((b[1] - (100 if nl == 0 and len([v for v in valu if v[0] <= gi]) < 3 else 0), 1, b))
            if not cand:
                break
            c = min(cand, key=lambda x: x[:2])
            if c[1] == 0:
                assert valu[0][0] + 16 >= gi
                g.vec.append(valu.pop(0)[1])
            else:
                assert c[2][1] >= gi, (gi, c[2])
                lds.remove(c[2])
                g.vec.append(c[2][2])
    assert not valu and not lds, (valu, lds)
    if cfg.get("dbgnop"):
        for k in range(cfg["dbgnop"]):
            G[exp_gaps[(k * 32) // cfg["dbgnop"]]].post.append(NOP(3))
    need = [("V", j + 1)] + ([("K", j + 3)] if j + 3 < 32 else [])
    G[92].sca.append(WAITV(*need))
    G[93].sca.append(BARRIER(frees=[("V", j), ("K", j + 1)]))
    G[95].sca.append(I(f"s_cbranch_vccnz KF_fx{lab}", "branch", rd=["vcc"]))
    assert not G[95].vec
    G[95].post.append(LABEL(f"KF_bk{lab}"))
    return G


KORD = [(0, s) for s in range(6)] + [(p, 2 * c + u) for c in range(3) for p in (1, 2, 3) for u in range(2)]


def acc3(nt, qt):
    if nt < 4:
        return ("a", 192 + (nt * 4 + qt) * 4)
    return ("v", 64 + ((nt - 4) * 4 + qt) * 4)


def Bf(ks, qt):
    if ks < 6 or ks >= 18:
        return ("v", 160 + ((ks % 6) * 4 + qt) * 4)
    return ("a", ((ks - 6) * 4 + qt) * 4)


def wo_read(dst, ks, nt, tt):
    sl = woslot(ks)
    a, off = (vA3 + 2, sl - VREG) if sl >= VREG else (vA3, sl)
    return DSTR((dst[0], dst[1] + 2 * tt), a + (nt & 1), off + 3072 * tt + 64 * (nt >> 1), ("WO", ks))


def grp_B(ks0, cfg):
    p, s = KORD[ks0]
    return [DmaGroup([S(f"s_add_u32 s{sOKV}, s{sOB+p}, {1024*s}")],
                     [VLOAD(Bf(ks0 + u, qt), vOB + qt, SO, f"s{sOKV}", 1024 * u, ("B", ks0), cfg["bflags"]) for qt in range(4) for u in range(2)])]


def poll_load(kind):
    off, srd_ = {"c": (6, SD), "o": (vFOP, SF), "p": (vFPP, SF)}[kind]
    return VLOAD(("v", 5), off, srd_, 0, 0, None, "sc1", n=1)


def poll_cmp(need):
    return V(f"v_cmp_gt_u32 vcc, {need}, v5")


def slow_path(name, kind, need):
    return [f"KF_sl{name}:", f"s_mov_b32 s{sSPIN}, 0", f"KF_sp{name}:", poll_load(kind).text, "s_waitcnt vmcnt(0)", poll_cmp(need).text,
            f"s_add_u32 s{sSPIN}, s{sSPIN}, 1", f"s_cmp_gt_u32 s{sSPIN}, 0x8000", f"s_cbranch_scc1 KF_rt{name}",
            f"s_cbranch_vccnz KF_sp{name}", f"s_branch KF_rt{name}"]


def check_seq(P, name, kind, need):
    P.slow += slow_path(name, kind, need)
    return [poll_cmp(need), NOP(0), I(f"s_cbranch_vccnz KF_sl{name}", "branch", rd=["vcc"]), LABEL(f"KF_rt{name}")]


def free_gap(G, k, ok=lambda k: True):
    while G[k].vec or G[k].sca or G[k].post or not ok(k):
        k += 1
    return k


def check_gaps(P, G, name, kind, need, g_load, g_chk, ok):
    k = free_gap(G, g_load, ok)
    G[k].vec.append(poll_load(kind))
    k = free_gap(G, max(g_chk, k + 1), ok)
    G[k].vec.append(poll_cmp(need))
    k = free_gap(G, k + 1, ok)
    G[k].sca.append(I(f"s_cbranch_vccnz KF_sl{name}", "branch", rd=["vcc"]))
    G[k].post.append(LABEL(f"KF_rt{name}"))
    P.slow += slow_path(name, kind, need)
    return k + 1


def flag_gaps(G, tags, val, off, g, ok):
    k = free_gap(G, g, ok)
    G[k].sca.append(WAITV(*tags))
    G[k].vec.append(V(f"v_mov_b32 v7, {val}"))
    k = free_gap(G, k + 1, ok)
    G[k].vec.append(VSTORE(("v", 7), off, SF, 0, 0, "sc1", n=1))
    return k


def final_pv(P, cfg, ST, wo_left):
    A = P.seq
    j = 31
    for dt in range(4):
        for t in range(2):
            A(vtype_read(FR(dt), vslot(j), dt, t, ("V", j)))
    A(check_seq(P, "c", "c", 32))
    for qt in range(4):
        A(V(f"v_add_f32 v{vL+qt}, v{vL+qt}, v{vTS+qt}"))
    A(xred([vL + q for q in range(4)], [vE + q for q in range(4)], "v_add_f32"))
    for qt in range(4):
        A(V(f"v_rcp_f32 v{vE+2*qt}, v{vL+qt}"))
    G = P.gaps(pv_mfmas(j))
    for dt in range(4, 12):
        g = 0 + 2 * (dt - 4) if dt < 6 else 4 * (dt - 6) + 3
        G[g].vec += [vtype_read(FR(dt), vslot(j), dt, t, ("V", j)) for t in range(2)]
    now = [g for g in wo_left if g.dmas[0].meta["tag"][1] <= 10]
    left = place_stream(P, G, now, 1, 44, lambda k: cfg["fpace"], lambda k: k % 4 != 3)
    left += [g for g in wo_left if g.dmas[0].meta["tag"][1] > 10]
    G[45].sca.append(WAITV(("WO", 0), ("WO", 1)))
    G[46].sca.append(BARRIER(frees=[("V", 31)]))
    return left


def phase3(P, cfg, ST, wo_left):
    A = P.seq
    ST.seq(P, "pvend")
    stages = cfg["stages"]
    A(S(f"s_add_u32 s{sOX}, s{sOB}, 4096"), NOP(6))
    k = 0
    ost = []
    sched = cfg["convst"]
    done = 0
    for s in range(6):
        for qt in range(4):
            t = vS + (k % 4) * 8
            o = Bf(s, qt)[1]
            k += 1
            for u in range(2):
                a = Oa(2 * s + u, qt)[1]
                for r in range(4):
                    A(V(f"v_accvgpr_read_b32 v{t+4*u+r}, a{a+r}"))
            for r in range(0, 8, 2):
                A(V(f"v_pk_mul_f32 v[{t+r}:{t+r+1}], v[{t+r}:{t+r+1}], v[{vE+2*qt}:{vE+2*qt+1}] op_sel_hi:[1,0]"))
            for r in range(4):
                A(V(f"v_cvt_pk_bf16_f32 v{o+r}, v{t+2*r}, v{t+2*r+1}"))
            ost.append(VSTORE(("v", o), vOB + qt, SO, f"s{sOB}" if s < 4 else f"s{sOX}", 1024 * (s & 3), cfg["oflags"], tag=("O", s // 2)))
            if done < sched(k):
                A(ost.pop(0))
                done += 1

    def abuf(si, nt):
        L = len(stages[si])
        if L == 2:
            g = 10 * si + nt
            return [FR(2 * (g % 3) + u) for u in range(2)]
        return [("a", (nt % 2) * 24 + u * 4) for u in range(L)]

    def areads(si, nt):
        return [wo_read(d, ks, nt, tt) for d, ks in zip(abuf(si, nt), stages[si]) for tt in range(2)]

    A(areads(0, 0), areads(0, 1))
    ST.seq(P, "conv")
    secs = []
    for si, kss in enumerate(stages):
        mfs = []
        for nt in range(10):
            ab = abuf(si, nt)
            for qt in range(4):
                for u, ks in enumerate(kss):
                    C = 0 if ks == 0 else acc3(nt, qt)
                    m = MFMA(acc3(nt, qt), ab[u], Bf(ks, qt), C)
                    if qt == 0 and u % 2 == 0:
                        m.rd |= set(regs(ab[u + 1][0], ab[u + 1][1], 4))
                    if nt == 0 and u == 0 and qt % 2 == 0:
                        for k2 in kss:
                            for q2 in (qt, qt + 1):
                                m.rd |= set(regs(*Bf(k2, q2), 4))
                    mfs.append(m)
        secs.append(P.gaps(mfs))
    G = sum(secs, [])
    base = [sum(len(x) for x in secs[:i]) for i in range(len(secs) + 1)]
    bar = {}
    for si, kss in enumerate(stages):
        L = len(kss)
        per = 4 * L
        b = base[si]
        nxtL = len(stages[si + 1]) if si + 1 < len(stages) else 0
        ahead = 2 if L == 2 else 1
        for nt in range(ahead, 10):
            r = areads(si, nt)
            g = b + per * (nt - ahead)
            for k in range(0, len(r), 2):
                G[g + (k // 2 if L == 2 else k)].vec += r[k:k + 2]
        if nxtL:
            gb = b + per * 8
            if cfg.get("p3stamps"):
                ST.gap(G[gb - 1], G[gb + 1], f"s{si}")
            G[gb].sca.append(WAITV(*[("WO", ks) for ks in stages[si + 1]]))
            G[gb + 1].sca.append(BARRIER(frees=[("WO", ks) for ks in kss]))
            bar[si] = gb + 1
            r = areads(si + 1, 0)
            for k in range(0, len(r), 2):
                G[gb + 2 + k // 2].vec += r[k:k + 2]
            if nxtL == 2:
                r = areads(si + 1, 1)
                for k in range(0, len(r), 2):
                    G[b + per * 9 + k // 2].vec += r[k:k + 2]
    stage_of = {ks: si for si, kss in enumerate(stages) for ks in kss}
    ok = lambda k: k % 8 != 7
    if ost:
        assert not place_stream(P, G, [DmaGroup([], ost)], cfg["ostart"], 720, lambda k: cfg["opace"], ok)
    lastst = max([k for k, g in enumerate(G) if any(x.kind == "vstore" for x in g.vec)] + [0])
    ee = []
    for c in range(3):
        lc = max([k for k, g in enumerate(G) if any(x.kind == "vstore" and x.meta["tag"] == ("O", c) for x in g.vec)] + [cfg["gF0"] - cfg["olag"]])
        k = flag_gaps(G, [("O", c)], c + 1, vFO, lc + cfg["olag"], ok)
        k = max(k + cfg["plag0"], (ee[-1] if ee else 0))
        ee.append(check_gaps(P, G, f"o{c}", "o", c + 1, k, k + cfg["clag"], ok))
    P.slack.append(("checks", ee))
    e0 = ee[0]
    for g in wo_left:
        t = g.dmas[0].meta["tag"][1]
        g.earliest = bar[stage_of[t - 12]] + 1 if t >= 12 else 0
        g.deadline = bar[stage_of[t] - 1] - 2
    wo_left = place_stream(P, G, wo_left, 0, e0 - 4, lambda k: cfg["wpace"], ok)
    bs = [grp_B(ks, cfg)[0] for ks in range(6, 24, 2)]
    for g in bs:
        ks = g.dmas[0].meta["tag"][1]
        g.deadline = base[stage_of[ks]] - 2
        g.earliest = ee[ks // 6 - 1]
        if ks >= 18:
            g.earliest = max(g.earliest, base[stage_of[ks - 18] + 1], lastst + 3)
    items = sorted(wo_left + bs, key=lambda g: g.deadline)
    left = place_stream(P, G, items, e0, len(G), lambda k: cfg["p3pace"], ok, True)
    assert not left
    si = len(stages) - 1
    per = 4 * len(stages[si])
    b = base[si]
    tmpbase = 160 if per == 8 else vFR
    work = []
    tmp = 0
    for np_ in range(5):
        e = b + per * (2 * np_ + 1)
        work.append((e, S(f"s_mov_b32 s{sOW}, {np_*15*8192}")))
        for qt in range(4):
            e = b + per * (2 * np_ + 1) + (per // 4) * (qt + 1) + 4
            x, y = acc3(2 * np_, qt), acc3(2 * np_ + 1, qt)
            if x[0] == "a":
                t = tmpbase + (tmp % 2) * 8
                tmp += 1
                for u, z in enumerate((x, y)):
                    for r in range(4):
                        work.append((e - (per // 2 if u == 0 else 0), V(f"v_accvgpr_read_b32 v{t+4*u+r}, a{z[1]+r}")))
                src = [t + r for r in range(8)]
                o = t
            else:
                src = [x[1] + r for r in range(4)] + [y[1] + r for r in range(4)]
                o = x[1]
            for r in range(4):
                work.append((e, V(f"v_cvt_pk_bf16_f32 v{o+r}, v{src[2*r]}, v{src[2*r+1]}")))
            work.append((e, VSTORE(("v", o), vOP + qt, SP, f"s{sOW}", 0, cfg["pflags"], tag=("P", np_))))
    gi = b
    stpos = {}
    while work and gi < len(G):
        g = G[gi]
        while work and work[0][0] <= gi:
            x = work[0][1]
            if x.kind == "salu":
                P.flex_scalar(x, [g, G[min(gi + 1, len(G) - 1)]])
                work.pop(0)
            elif x.kind == "vstore":
                if not g.vec and not g.sca and ok(gi):
                    g.vec.append(x)
                    stpos[x.meta["tag"][1]] = gi
                    work.pop(0)
                break
            elif g.free() > 0:
                g.vec.append(x)
                work.pop(0)
            else:
                break
        gi += 1
    rest = [x for _, x in work]
    pending = {n for x in rest if x.kind == "vstore" for n in [x.meta["tag"][1]]}
    ST.seq(P, "mfend")
    A(NOP(7), rest)
    A(V("v_and_b32 v2, 15, v0"), V("v_mul_u32_u24 v2, 1280, v2"), V("v_lshrrev_b32 v3, 5, v0"), V("v_bfe_u32 v4, v0, 4, 1"),
      V("v_lshl_or_b32 v3, v4, 1, v3"), V("v_lshl_add_u32 v2, v3, 4, v2"), V("v_lshlrev_b32 v1, 4, v0"), V("v_add_u32 v3, 4096, v1"))

    def loads(r):
        return [VLOAD(("a", r * 32 + g * 4) if False else ("v", 160 + r * 32 + g * 4), 1 if g < 4 else 3, SP, f"s{sJ+r}", 1024 * (g & 3), None, cfg["rflags"])
                for g in range(8)]

    def reduce(r):
        out = []
        o = 64 + r * 16
        for g in range(8):
            src = 160 + r * 32 + g * 4
            t = o if g == 0 else 112 + (g & 1) * 8
            for q in range(4):
                out += [V(f"v_lshlrev_b32 v{t+2*q}, 16, v{src+q}"), V(f"v_and_b32 v{t+2*q+1}, 0xffff0000, v{src+q}")]
            if g:
                for q in range(4):
                    out.append(V(f"v_pk_add_f32 v[{o+2*q}:{o+2*q+1}], v[{o+2*q}:{o+2*q+1}], v[{t+2*q}:{t+2*q+1}]"))
        for q in range(4):
            out.append(V(f"v_cvt_pk_bf16_f32 v{o+8+q}, v{o+2*q}, v{o+2*q+1}"))
        out += [NOP(0), V(f"v_permlane16_swap_b32 v{o+8}, v{o+10}"), V(f"v_permlane16_swap_b32 v{o+9}, v{o+11}"),
                VSTORE(("v", o + 8), 2, SOUT, f"s{sJ+3+r}", 0, cfg["outflags"])]
        return out

    def flag(val, tags):
        return [V(f"v_mov_b32 v7, {val}"), WAITV(*tags), BARRIER(), VSTORE(("v", 7), vFP, SF, 0, 0, "sc1", n=1)]

    A(flag(3, [("P", 4)]))
    ST.seq(P, "pdrain")
    A(poll_load("p"), check_seq(P, "p2", "p", 3))
    ST.seq(P, "ppoll")
    A(loads(0), loads(1), loads(2), reduce(0), reduce(1), reduce(2))


def build(cfg):
    P = Prog()
    P.slack = []
    P.slow = []
    ST = Stamper(cfg)
    LA = cfg["LA"]
    stream = prologue(P, cfg, ST)
    phase1(P, cfg, ST, stream)
    ST.seq(P, "attn0")
    if ST.it:
        P.seq(RAW("s_mov_b32 s53, 2"))
    labs = []
    wo = [grp_WO(t, cfg)[0] for t in range(24)]
    NT = cfg["trips"]
    for j in range(0, 31):
        inloop = 1 <= j <= 6 * NT
        if j == 1:
            P.seq(I(f"s_mov_b32 s{sCNT}, {NT}", "raw"))
        if inloop and (j - 1) % 6 == 0:
            P.el.append(I("", "raw", mark=(j - 1) // 6))
        if j == 6 * NT + 1:
            P.el.append(I("", "raw", mark=NT))
        groups = []
        if j + LA < 32:
            groups += grp_K(j + LA, cfg, True)
        if j + LA - 1 < 32:
            groups += grp_V(j + LA - 1, cfg, j + LA < 32)
        while len(groups) < cfg["tailgroups"] and j + LA >= 32 and wo and 26 + (wo[0].dmas[0].meta["tag"][1] + 1) // 2 <= j:
            groups.append(wo.pop(0))
        lab = str((j - 1) % 6) if inloop else f"p{j}"
        if not inloop or j <= 6:
            labs.append((lab, (j + 1) & 1))
        xv = None
        if j == 29:
            xv = VLOAD(("v", 5), 6, SD, 0, 0, None, "sc1", n=1)
        if inloop and (j - 1) % 6 == 1:
            xv = I(f"buffer_atomic_add v7, v6, s[{SD}:{SD+3}], s{sAO} offen sc1", "vstore", ["v6", "v7"], [], data=set(), n=1, tag=None)
        if j == cfg["wopf"]:
            xv = VLOAD(("a", 255), 2, SWO, 0, 0, None, "", n=1)
        G = iteration(P, cfg, j, lab, groups, xv)
        if j == cfg["wopf"]:
            G[92].vec.append(V("v_accvgpr_read_b32 v2, a255"))
        if inloop and (j - 1) % 6 == 1:
            G[88].sca.append(S(f"s_cmp_eq_u32 s{sCNT}, s{sTRIP}"))
            G[89].sca.append(S(f"s_cselect_b32 s{sAO}, 0, {OOB}"))
        if j == 28:
            G[94].vec.append(V("v_mov_b32 v6, 0"))
        if j == 25:
            assert not fill_ops(G[:95], [(0, 94, x) for x in unpark()])
        if ST.it:
            G[90].post += [RAW(f"s_memtime s[{sTM}:{sTM+1}]"), RAW(f"s_memrealtime s[{sTM+2}:{sTM+3}]")]
            G[93].post += [RAW("s_mov_b32 m0, s53"), RAW("s_addk_i32 s53, 1"), RAW(f"v_writelane_b32 v{vST}, s{sTM}, m0"), RAW("s_mov_b32 m0, s53"),
                           RAW("s_addk_i32 s53, 1"), RAW(f"v_writelane_b32 v{vST}, s{sTM+2}, m0")]
            ST.names.append(f"i{j}")
        if inloop and (j - 1) % 6 == 5:
            P.flex_scalar(S(f"s_sub_u32 s{sCNT}, s{sCNT}, 1"), G[80:90])
            G[94].sca.append(S(f"s_cmp_lg_u32 s{sCNT}, 0"))
            G[95].post.append(I("s_cbranch_scc1 KF_loop", "branch"))
    ST.seq(P, "attnend")
    wo = final_pv(P, cfg, ST, wo)
    phase3(P, cfg, ST, wo)
    if ST.on:
        P.seq(WAIT(vm=0))
        ST.seq(P, "end")
        if cfg.get("diag"):
            P.seq(RAW("s_getreg_b32 s3, hwreg(HW_REG_XCC_ID, 0, 4)"), RAW(f"v_writelane_b32 v{vST}, s3, 63"))
        P.seq(srd(8, 32, 33, STAMP_OFF, 0x100000), S("s_lshl_b32 s3, s2, 2"), S(f"s_add_u32 s3, s3, s{sW}"), S("s_lshl_b32 s3, s3, 8"),
              V("v_lshlrev_b32 v2, 2, v0"), RAW(f"buffer_store_dword v{vST}, v2, s[8:11], s3 offen"))
    P.insert_waits()
    P.place_flex()
    lin = P.linear()
    lin, notes = fix_hazards(lin)
    P.notes = notes
    probs = check_hazards(lin) + check_lds_protocol(lin, private=lambda t: t[0] == "X")
    trips = {}
    pre, post, cur = [], [], None
    for x in lin:
        if x.kind == "raw" and "mark" in x.meta:
            cur = x.meta["mark"]
            continue
        if cur is None:
            pre.append(x)
        elif cur == NT:
            post.append(x)
        else:
            trips.setdefault(cur, []).append(x)
    t0 = [text_of(x) for x in trips[0]]
    for k in range(1, NT):
        tk = [text_of(x) for x in trips[k]]
        assert tk == t0, [(a, b) for a, b in zip(t0, tk) if a != b][:5]
    out = [text_of(x) for x in pre] + ["KF_loop:"] + t0 + [text_of(x) for x in post]
    out += ["KF_done:", "s_endpgm"]
    out += P.slow
    for lab, par in labs:
        out += [f"KF_fx{lab}:", f"s_call_b64 s[{sRET}:{sRET+1}], KF_fix{par}", f"s_branch KF_bk{lab}"]
    for par in range(2):
        fb = fallback(par)
        probs += check_hazards(fb)
        out += [text_of(x) for x in fb]
    out += ["KF_end:"]
    return out, probs, P, ST


DEFAULT = dict(map="hg4", wflags="", xflags="", kvflags="nt", woflags="", oflags="sc1", bflags="sc1", pflags="sc1", rflags="sc1",
               outflags="", thresh=16384.0, LA=5, trips=4, npro=2, pace=[(200, 4.5), (960, 5.6)], xearly=4, kvpace=14, tailgroups=3,
               dmagaps={0: [], 1: [[4, 7, 9]], 2: [[4, 7, 9], [34, 44, 54]], 3: [[4, 7, 9], [34, 44, 54], [64, 79, 84]]},
               vslack=8, stages=[[2 * k, 2 * k + 1] for k in range(9)] + [list(range(18, 24))], p3pace=5, wpace=10, fpace=10, codepf=5,
               convst=lambda k: min(k, 8), ostart=70, opace=20, gF0=60, olag=50, plag0=45, clag=45, p1pf=None, wopf=26, tour=1, stamps=False)

def insert_stubs(lines):
    import subprocess, tempfile, os, re
    go = lines.index("KF_go:")
    end = lines.index("KF_done:")
    body = lines[go + 1:end]
    ins = [l for l in body if l and not l.endswith(":")]
    d = tempfile.mkdtemp()
    src = '.amdgcn_target "amdgcn-amd-amdhsa--gfx950"\n.text\nL0:\n' + "\n".join(re.sub(r"KF_\w+", "L0", l) for l in ins) + "\n"
    open(d + "/a.s", "w").write(src)
    subprocess.run(["clang", "-x", "assembler", "-target", "amdgcn-amd-amdhsa", "-mcpu=gfx950", "-c", d + "/a.s", "-o", d + "/a.o"], check=True)
    dis = subprocess.run(["llvm-objdump", "-d", "--mcpu=gfx950", d + "/a.o"], capture_output=True, text=True).stdout
    sizes = [4 * len(re.findall(r"\b[0-9A-F]{8}\b", l.split("//")[1].split(":", 1)[1].split("<")[0])) for l in dis.splitlines() if "//" in l]
    assert len(sizes) == len(ins), (len(sizes), len(ins))
    it = iter(sizes)
    sz = [0 if (not l or l.endswith(":")) else next(it) for l in body]
    out = []
    off = 0
    page = 1
    k = 0
    while k < len(body):
        if off >= page * 4096:
            best = k
            o, j = off, k
            while j < len(body) and o <= page * 4096 + 56:
                prev = body[j - 1]
                if prev.startswith("v_mfma") and body[j].startswith(("v_", "ds_")):
                    best = j
                    break
                o += sz[j]
                j += 1
            while k < best:
                out.append(body[k])
                off += sz[k]
                k += 1
            out += [f"KF_pg{page}:", f"s_cbranch_execz KF_pg{page+4}"]
            off += 4
            page += 1
        out.append(body[k])
        off += sz[k]
        k += 1
    out = [re.sub(r"execz KF_pg(\d+)", lambda m: m.group(0) if int(m.group(1)) < page else "execz KF_tret", l) for l in out]
    return lines[:go + 1] + out + lines[end:]


HDR = open("standalone__mha_block_cached__near_ridge.s.ref").read().split("; Override launch")[0]
NAME = "standalone__mha_block_cached__near_ridge_kernel"


def generate(over=None):
    cfg = dict(DEFAULT)
    cfg.update(over or {})
    o, p, P, ST = build(cfg)
    assert not p, p[:10]
    if cfg["tour"]:
        o = insert_stubs(o)
    if cfg.get("verbose"):
        print(P.slack, file=sys.stderr)
        print(len(P.notes), "nops inserted:", P.notes, file=sys.stderr)
    if P.warn or P.overfull():
        print("warn", len(P.warn), P.warn[:6], "overfull", P.overfull(), file=sys.stderr)
    dg = cfg.get("diag")
    if dg:
        s = HDR + f"; @launch kernel={NAME} grid=(256,1,1) block=(256,1,1) lds={LDS_BYTES}\n; @launch kernel=diag_kernel grid=(1,1,1) block=(64,1,1) lds=0\n"
    else:
        s = HDR + f"; @launch grid=(256,1,1) block=(256,1,1) lds={LDS_BYTES}\n"
    if ST.on:
        s += "; STAMPS " + " ".join(ST.names) + "\n"
    s += '.amdgcn_target "amdgcn-amd-amdhsa--gfx950"\n.text\n'
    s += f".globl {NAME}\n.p2align 8\n.type {NAME},@function\n{NAME}:\n" + "\n".join(("" if l.endswith(":") else "    ") + l for l in o if l) + "\n"
    if dg:
        import gen
        def addr(x):
            wg, nm = x
            return STAMP_OFF + wg * 1024 + (252 if nm == "xcc" else 8 * ST.names.index(nm) + 4)
        s += ".globl diag_kernel\n.p2align 8\n.type diag_kernel,@function\ndiag_kernel:\n" + "\n".join(gen.diag_kernel(addr(dg[0]), addr(dg[1]), dg[2])) + "\n"
    s += f""".section .rodata,"a"
.p2align 6
.amdhsa_kernel {NAME}
  .amdhsa_next_free_vgpr 512
  .amdhsa_next_free_sgpr 102
  .amdhsa_accum_offset 256
  .amdhsa_group_segment_fixed_size 0
  .amdhsa_kernarg_size 64
  .amdhsa_user_sgpr_count 2
  .amdhsa_user_sgpr_kernarg_segment_ptr 1
  .amdhsa_system_sgpr_workgroup_id_x 1
.end_amdhsa_kernel
"""
    if dg:
        s += ".p2align 6\n" + gen.kd("diag_kernel", 8, 8) + "\n"
    return s


if __name__ == "__main__":
    over = eval(sys.argv[2]) if len(sys.argv) > 2 else None
    open(sys.argv[1], "w").write(generate(over))
```

```python
import math, struct, sys
from asmlib import *

SLOT = 12288
KREG = 0
VREG = 6 * SLOT
EREG = 12 * SLOT
LDS_BYTES = 163840
OOB = 0x40000000

O_OFF = 0
PART_OFF = 0x2000000
FLAG_OFF = 0x4000000
STAMP_OFF = 0x10000000

SX, SW, SK, SV, SO = 8, 12, 16, 20, 24
SF, SD = 56, 60
SWO, SP, SOUT = 64, 68, 72
sW, sB, sH, sWOFF, sXB0, sXB1 = 34, 35, 36, 37, 38, 39
sOW, sOX, sOKV, sCNT, sTH = 40, 41, 42, 43, 44
sG = 45
sC = 46
sRET = 48
sPAD, sHL = 50, 51
sHB, sOB = 76, 80
sJ = 84
sSPIN = 90
sTRIP, sAO = 54, 55
sTM = 92
vAK, vAV, vAW, vAX = 8, 10, 14, 18
vOK, vOV, vOW, vOX = 22, 25, 28, 31
vST = 39
vPF = 8
vFR = 40
vS, vP, vNM, vTS, vL, vE = 64, 96, 128, 144, 148, 152
vA3 = 14
vOB = 18
vOWO = 28
vOP = 31
vFL = 35
PARK = [vA3, vA3 + 1, vA3 + 2, vA3 + 3, vOB, vOB + 3, vOWO, vOWO + 1, vOWO + 2, vOP, vOP + 3, vFL, vFL + 1, vFL + 2, vFL + 3]
vFO, vFOP, vFP, vFPP = vFL, vFL + 1, vFL + 2, vFL + 3


def f32(x):
    return "0x%08x" % struct.unpack("<I", struct.pack("<f", x))[0]


def acc(dt, qt):
    return ("v", (160 if dt % 2 == 0 else 64) + ((dt >> 1) * 4 + qt) * 4)


def Qf(qt, s):
    return acc(2 * s, qt)


def Oa(dt, qt):
    return ("a", (dt * 4 + qt) * 4)


def Kf(a, s):
    return ("a", 192 + (a * 6 + s) * 4)


def Xf(beta, u, qt):
    return ("a", beta * 32 + (u * 4 + qt) * 4)


def St(a, qt):
    return ("v", vS + (a * 4 + qt) * 4)


def Pf(par, qt):
    return ("v", vP + par * 16 + qt * 4)


def NM(qt):
    return ("v", vNM + qt * 4)


def FR(i):
    return ("v", vFR + (i % 6) * 4)


def wslot(n):
    buf = (n // 2) % 4
    base = {2: KREG, 3: KREG + 2 * SLOT, 0: KREG + 4 * SLOT, 1: VREG + 4 * SLOT}[buf]
    return base + (n % 2) * SLOT


def kslot(n):
    return KREG + (n % 6) * SLOT


def vslot(n):
    return VREG + (n % 6) * SLOT


def woslot(t):
    t %= 12
    return (kslot if t % 2 == 0 else vslot)(26 + t // 2)


def xregion(beta):
    return [(VREG + 2 * beta * SLOT, VREG + 2 * beta * SLOT + 3 * 8192), (EREG + beta * 8192, EREG + beta * 8192 + 8192)]


def vtype_read(dst, slot, dt, t, tag):
    if slot >= VREG:
        a, off = vAV, slot - VREG
    else:
        a, off = vAW, slot
    return DSTR((dst[0], dst[1] + 2 * t), a + (dt & 3), off + 1536 * t + 128 * (dt >> 2), tag)


def k_read(n, a, s):
    return DSR128(Kf(a, s), vAK + (s & 1), kslot(n) + 1536 * a + 128 * (s >> 1), ("K", n))


class DmaGroup:
    def __init__(self, pre, dmas, earliest=0):
        self.pre = pre
        self.dmas = dmas
        self.earliest = earliest
        self.deadline = 10**9


def grp_W(n, cfg):
    sl = wslot(n)
    return [DmaGroup([S(f"s_add_u32 m0, s{sWOFF}, {sl}"), S(f"s_mov_b32 s{sOW}, {n*393216}")],
                     [DMA(vOW + j, SW, f"s{sOW}", 1024 * j, ("W", n), cfg["wflags"], region=[(sl, sl + SLOT)]) for j in range(3)])]


def grp_X(c, cfg, after=()):
    beta = c & 1
    sb = sXB0 + beta
    g0 = DmaGroup([S(f"s_mov_b32 m0, s{sb}"), S(f"s_mov_b32 s{sOX}, {128*c}")],
                  [DMA(vOX + j, SX, f"s{sOX}", 1024 * j, ("X", c), cfg["xflags"], after=after, region=xregion(beta)) for j in range(4)])
    g1 = DmaGroup([S(f"s_add_u32 m0, s{sb}, 4096")],
                  [DMA(vOX + 4 + j, SX, f"s{sOX}", 1024 * j, ("X", c), cfg["xflags"], region=xregion(beta)) for j in range(4)])
    return [g0, g1]


def grp_K(n, cfg, loop=False):
    sl = kslot(n)
    so = S(f"s_add_u32 s{sOKV}, s{sOKV}, {SLOT}") if loop else S(f"s_mov_b32 s{sOKV}, {n*SLOT}")
    return [DmaGroup([S(f"s_add_u32 m0, s{sWOFF}, {sl}"), so],
                     [DMA(vOK + j, SK, f"s{sOKV}", 1024 * j, ("K", n), cfg["kvflags"], region=[(sl, sl + SLOT)]) for j in range(3)])]


def grp_V(n, cfg, loop=False):
    sl = vslot(n)
    pre = [S(f"s_add_u32 m0, s{sWOFF}, {sl}")]
    if not loop:
        pre.append(S(f"s_mov_b32 s{sOKV}, {(n+1)*SLOT}"))
    return [DmaGroup(pre,
                     [DMA(vOV + j, SV, f"s{sOKV}", 1024 * j, ("V", n), cfg["kvflags"], region=[(sl, sl + SLOT)]) for j in range(3)])]


def grp_WO(t, cfg):
    sl = woslot(t)
    return [DmaGroup([S(f"s_add_u32 m0, s{sWOFF}, {sl}"), S(f"s_add_u32 s{sOW}, s{sHB + KORD[t][0]}, {40960*KORD[t][1]}")],
                     [DMA(vOWO + j, SWO, f"s{sOW}", 1024 * j, ("WO", t), cfg["woflags"], region=[(sl, sl + SLOT)]) for j in range(3)])]


def group_seq(g):
    out = list(g.pre)
    if g.pre and g.pre[-1].text.split()[1].startswith("m0"):
        out.append(NOP(0))
    return out + list(g.dmas)


def seq_groups(P, groups):
    for g in groups:
        P.seq(group_seq(g))


def place_stream(P, G, groups, lo, hi, pace, ok, edf=False):
    pos = lo
    tgt = float(lo)
    groups = list(groups)
    while groups:
        if edf:
            av = [x for x in groups if x.earliest <= tgt + 2]
            g = min(av, key=lambda x: x.deadline) if av else min(groups, key=lambda x: x.earliest)
            groups.remove(g)
            groups.insert(0, g)
        g = groups[0]
        idx = []
        t = max(tgt, g.earliest + len(g.pre))
        k = pos + len(g.pre) + (1 if g.pre else 0)
        fail = False
        for d in g.dmas:
            k = max(k, int(t))
            while k < hi and not (ok(k) and not G[k].vec and not G[k].sca and not G[k].post):
                k += 1
            if k >= hi:
                fail = True
                break
            idx.append(k)
            t0 = t
            t = max(t + pace(k), k - 6)
            if edf:
                t += pace(k) * len([1 for q in range(int(t0) + 1, min(int(t) + 1, hi)) if G[q].isdma() and q != k and q not in idx])
            k += 1
        if fail:
            break
        assert idx[-1] <= g.deadline, (g.dmas[0].meta["tag"], idx, g.deadline)
        P.slack.append((g.dmas[0].meta["tag"], idx[0], idx[-1], g.deadline))
        for s_ in g.pre:
            P.flex_scalar(s_, list(reversed(G[pos:idx[0]])))
        for kk, d in zip(idx, g.dmas):
            G[kk].vec.append(d)
        pos = idx[-1] + 1
        tgt = t
        groups.pop(0)
    return groups


class Stamper:
    def __init__(self, cfg):
        self.on = cfg.get("stamps")
        self.it = cfg.get("itstamps")
        self.n = 0
        self.names = []
        self.pool = [4, 6, 8, 10, 12, 14, 16, 18, 20, 22, 28, 30, 96, 98, 100]
        self.pending = []

    def seq(self, P, name):
        if self.on and not self.it:
            k = self.n
            P.seq(RAW(f"s_memtime s[{sTM}:{sTM+1}]"), RAW(f"s_memrealtime s[{sTM+2}:{sTM+3}]"), WAIT(lg=0),
                  RAW(f"v_writelane_b32 v{vST}, s{sTM}, {2*k}"), RAW(f"v_writelane_b32 v{vST}, s{sTM+2}, {2*k+1}"))
            self.n += 1
            self.names.append(name)

    def light(self, g0, name):
        if self.on:
            r = self.pool.pop(0)
            g0.post.append(RAW(f"s_memtime s[{r}:{r+1}]"))
            self.pending.append((r, self.n))
            self.n += 1
            self.names.append(name)

    def flush(self, P):
        for r, k in self.pending:
            P.seq(RAW(f"v_writelane_b32 v{vST}, s{r}, {2*k}"), RAW(f"v_writelane_b32 v{vST}, s{sTM+2}, {2*k+1}"))
        self.pending = []

    def gap(self, g0, g1, name):
        if self.on:
            k = self.n
            g0.post += [RAW(f"s_memtime s[{sTM}:{sTM+1}]"), RAW(f"s_memrealtime s[{sTM+2}:{sTM+3}]")]
            g1.post += [RAW("s_waitcnt lgkmcnt(0)"), RAW(f"v_writelane_b32 v{vST}, s{sTM}, {2*k}"), RAW(f"v_writelane_b32 v{vST}, s{sTM+2}, {2*k+1}")]
            self.n += 1
            self.names.append(name)


def srd(base, lo, hi, off, size):
    return [S(f"s_add_u32 s{base}, s{lo}, {off}"), S(f"s_addc_u32 s{base+1}, s{hi}, 0"),
            S(f"s_mov_b32 s{base+2}, {size}"), S(f"s_mov_b32 s{base+3}, 0x20000")]


def prologue(P, cfg, ST):
    A = P.seq
    A(S("s_cmp_ge_u32 s2, 256"), I("s_cbranch_scc1 KF_done", "branch"))
    A(RAW("s_load_dwordx4 s[4:7], s[0:1], 0"), RAW("s_load_dwordx4 s[28:31], s[0:1], 16"), RAW("s_load_dwordx4 s[96:99], s[0:1], 32"),
      RAW("s_load_dwordx2 s[100:101], s[0:1], 48"), RAW("s_load_dwordx2 s[32:33], s[0:1], 56"))
    if ST.on:
        A(RAW(f"s_memtime s[{sTM}:{sTM+1}]"), RAW(f"s_memrealtime s[{sTM+2}:{sTM+3}]"))
    A(V("v_lshrrev_b32 v1, 6, v0"), V("v_and_b32 v0, 63, v0"))
    A(V(f"v_readfirstlane_b32 s{sW}, v1"))
    if cfg["codepf"]:
        n = cfg["codepf"]
        A(RAW("s_getpc_b64 s[52:53]"), LABEL("KF_pc"), S("s_lshr_b32 s3, s2, 3"), S(f"s_lshl_b32 s3, s3, 2"), S(f"s_add_u32 s3, s3, s{sW}"),
          S(f"s_mul_i32 s3, s3, {n*128}"), V(f"v_min_u32 v2, {n-1}, v0"), V("v_lshl_add_u32 v2, v2, 7, s3"),
          RAW("v_min_u32 v2, KF_end-KF_pc-4, v2"), V("v_mov_b32 v3, s53"), V("v_add_co_u32 v2, vcc, s52, v2"), NOP(1),
          RAW("v_addc_co_u32 v3, vcc, 0, v3, vcc"), RAW("global_load_dword v42, v[2:3], off"))
    m = cfg["map"]
    if m == "hg4":
        A(S(f"s_and_b32 s{sG}, s2, 7"), S(f"s_lshr_b32 s{sB}, s2, 5"), S(f"s_bfe_u32 s{sHL}, s2, 0x20003"))
    elif m == "4x8":
        A(S(f"s_bfe_u32 s{sHL}, s2, 0x20003"), S(f"s_and_b32 s{sG}, s2, 6"), S("s_bfe_u32 s3, s2, 0x10005"), S(f"s_add_u32 s{sG}, s{sG}, s3"),
          S(f"s_and_b32 s{sB}, s2, 1"), S(f"s_lshl_b32 s{sB}, s{sB}, 2"), S("s_lshr_b32 s3, s2, 6"), S(f"s_add_u32 s{sB}, s{sB}, s3"))
    elif m == "batch":
        A(S(f"s_and_b32 s{sB}, s2, 7"), S(f"s_lshr_b32 s{sG}, s2, 5"), S(f"s_bfe_u32 s{sHL}, s2, 0x20003"))
    A(S(f"s_lshl_b32 s{sH}, s{sG}, 2"), S(f"s_add_u32 s{sH}, s{sH}, s{sHL}"))
    A(V("v_lshrrev_b32 v2, 3, v0"), V("v_lshl_add_u32 v2, v1, 6, v2"), V("v_mul_u32_u24 v2, 1280, v2"),
      V("v_lshrrev_b32 v3, 4, v0"), V("v_and_b32 v4, 7, v0"), V("v_xor_b32 v3, v3, v4"),
      V(f"v_lshl_add_u32 v{vOX}, v3, 4, v2"), V("v_xor_b32 v3, 4, v3"), V("v_lshl_add_u32 v4, v3, 4, v2"))
    for j in range(1, 8):
        src = f"v{vOX}" if j % 2 == 0 else "v4"
        A(V(f"v_add_u32 v{vOX+j}, {10240*j - 1024*(j&3)}, {src}"))
    A(S(f"s_mul_i32 s{sWOFF}, s{sW}, 3072"), S(f"s_lshl_b32 s{sXB0}, s{sW}, 13"),
      S(f"s_add_u32 s{sXB1}, s{sXB0}, {VREG+2*SLOT}"), S(f"s_add_u32 s{sXB0}, s{sXB0}, {VREG}"),
      S(f"s_cmp_eq_u32 s{sW}, 3"), S(f"s_cselect_b32 s{sXB0}, {EREG}, s{sXB0}"), S(f"s_cselect_b32 s{sXB1}, {EREG+8192}, s{sXB1}"),
      S(f"s_cselect_b32 s{sPAD}, {f32(-1000.0)}, 0"))
    A(V("v_and_b32 v5, 1, v1"), V("v_lshrrev_b32 v6, 1, v1"), V("v_lshl_or_b32 v6, v6, 2, v5"), V("v_lshlrev_b32 v5, 2, v5"))
    for j in range(3):
        A(V(f"v_add_u32 v2, {64*j}, v0"), V("v_mul_u32_u24 v3, 2731, v2"), V("v_lshrrev_b32 v3, 16, v3"),
          V("v_mul_u32_u24 v4, 24, v3"), V("v_sub_u32 v2, v2, v4"),
          V("v_and_b32 v4, 2, v3"), V("v_xor_b32 v2, v2, v4"),
          V("v_lshl_add_u32 v3, v1, 3, v3"),
          V("v_xor_b32 v4, v2, v5"), V("v_xor_b32 v2, v2, v6"),
          V("v_mul_u32_u24 v7, 12288, v3"), V(f"v_lshl_add_u32 v{vOW+j}, v4, 4, v7"),
          V("v_mul_u32_u24 v7, 384, v3"), V(f"v_lshl_add_u32 v{vOV+j}, v4, 4, v7"), V(f"v_lshl_add_u32 v{vOK+j}, v2, 4, v7"))
        if j:
            A(V(f"v_subrev_u32 v{vOW+j}, {1024*j}, v{vOW+j}"), V(f"v_subrev_u32 v{vOV+j}, {1024*j}, v{vOV+j}"),
              V(f"v_subrev_u32 v{vOK+j}, {1024*j}, v{vOK+j}"))
    if ST.on and not ST.it:
        A(RAW("s_memtime s[56:57]"), RAW("s_memrealtime s[58:59]"))
    A(RAW("s_waitcnt lgkmcnt(0)"))
    if ST.on:
        A(RAW(f"v_mov_b32 v{vST}, 0"), RAW(f"v_writelane_b32 v{vST}, s{sTM}, 0"), RAW(f"v_writelane_b32 v{vST}, s{sTM+2}, 1"))
        ST.n = 1
        ST.names.append("start")
        if not ST.it:
            A(RAW(f"v_writelane_b32 v{vST}, s56, 2"), RAW(f"v_writelane_b32 v{vST}, s58, 3"))
            ST.n = 2
            ST.names.append("prewait")
            ST.seq(P, "karg")
    A(S(f"s_mul_i32 s3, s{sB}, 307200"), srd(SX, 4, 5, "s3", 307200))
    A(S(f"s_mul_i32 s3, s{sH}, 384"), srd(SW, 30, 31, "s3", 0), S(f"s_sub_u32 s{SW+2}, 7864320, s3"))
    seq_groups(P, grp_X(0, cfg) + grp_W(0, cfg))
    A(S(f"s_lshl_b32 s84, s{sB}, 3"), S(f"s_add_u32 s84, s84, s{sG}"), S("s_lshl_b32 s84, s84, 2"), S(f"s_add_u32 s84, s84, s{sW}"),
      S("s_lshl_b32 s84, s84, 9"),
      S(f"s_lshl_b32 s85, s{sB}, 2"), S(f"s_add_u32 s85, s85, s{sHL}"), S("s_lshl_b32 s85, s85, 13"), S("s_add_u32 s85, s85, 0x20000"),
      S(f"s_lshl_b32 s86, s{sHL}, 7"), S("s_add_u32 s86, s86, s84"),
      S(f"s_lshl_b32 s87, s{sG}, 7"), S("s_add_u32 s87, s87, s85"))
    A(V("v_lshrrev_b32 v2, 3, v0"), V("v_lshl_add_u32 v43, v2, 10, s87"),
      V("v_and_b32 v2, 7, v0"), V("v_lshl_add_u32 v43, v2, 4, v43"), V("v_min_u32 v2, 1, v1"), V("v_lshl_or_b32 v43, v2, 30, v43"))
    stream = []
    for s in range(1, 10):
        gw = grp_W(2 * s, cfg) + grp_W(2 * s + 1, cfg)
        for g in gw:
            g.earliest = 96 * (s - 4) + 82 if s >= 4 else 0
            g.deadline = 96 * (min(s, 8) - 1) + 79
        gx = grp_X(s, cfg, after=[("X", s - 2)] if s >= 2 else ())
        for g in gx:
            g.earliest = xread_gap(s - 2, cfg) + 12 if s >= 3 else 0
            g.deadline = xread_gap(s, cfg) - 2
        stream += gw + gx
    A(S(f"s_lshl_b32 s91, s{sB}, 2"), S(f"s_add_u32 s91, s91, s{sHL}"), S("s_lshl_b32 s91, s91, 2"), S(f"s_add_u32 s91, s91, s{sW}"))
    if cfg["p1pf"] is not None:
        A(S("s_mul_i32 s3, s91, 12288"), S(f"s_mul_i32 s88, s{sHL}, 384"), S("s_sub_u32 s3, s3, s88"), S(f"s_add_u32 s3, s3, {128*12288}"),
          V("v_min_u32 v2, 11, v0"), V(f"v_lshl_add_u32 v{vPF}, v2, 7, s3"),
          S(f"s_lshl_b32 s3, s{sH}, 2"), S(f"s_add_u32 s3, s3, s{sW}"), S("s_mul_i32 s3, s3, 2560"),
          V("v_bfe_u32 v2, v0, 1, 1"), V("v_mul_u32_u24 v2, 1280, v2"), V("v_and_b32 v3, 1, v0"), V("v_lshl_add_u32 v2, v3, 7, v2"),
          V(f"v_add_u32 v{vPF+1}, s3, v2"))
        for i, pos in reversed(list(enumerate(cfg["p1pf"]))):
            if pos is None:
                continue
            g = DmaGroup([S(f"s_mov_b32 s{sAO}, {i*128*12288}")],
                         [VLOAD(("a", 190), vPF + 1, SX, 0, 256 * (i + 1), "pf", "", n=1), VLOAD(("a", 191), vPF, SW, f"s{sAO}", 0, "pf", "", n=1)])
            stream.insert(pos, g)
    A(S("s_mul_i32 s3, s91, 6"), S(f"s_mul_i32 s88, s{sHL}, 320"),
      V("v_min_u32 v2, 59, v0"), V("v_mul_u32_u24 v3, 6554, v2"), V("v_lshrrev_b32 v3, 16, v3"), V("v_mul_u32_u24 v4, 10, v3"),
      V("v_sub_u32 v2, v2, v4"), V("v_add_u32 v3, s3, v3"), V("v_mul_u32_u24 v3, 1280, v3"), V("v_lshl_add_u32 v2, v2, 7, v3"),
      V("v_subrev_u32 v2, s88, v2"), V("v_max_i32 v2, 0, v2"), V("v_accvgpr_write_b32 a255, v2"))
    for p in range(4):
        A(S(f"s_add_u32 s3, s{sHL}, {p}"), S("s_and_b32 s3, s3, 3"), S(f"s_mul_i32 s{sHB+p}, s3, 245760"), S(f"s_mul_i32 s{sOB+p}, s3, 92160"))
    c = math.log2(math.e) / math.sqrt(192.0)
    A(S(f"s_mov_b32 s{sC}, {f32(c)}"), S(f"s_mov_b32 s{sC+1}, {f32(c)}"), S(f"s_mov_b32 s{sTH}, {f32(cfg['thresh'])}"))

    park = {}

    def pk(reg, src):
        park[reg] = True
        A(V(f"v_accvgpr_write_b32 a{240+PARK.index(reg)}, {src}"))
    A(V("v_and_b32 v5, 1, v1"), V("v_lshrrev_b32 v6, 1, v1"), V("v_lshl_or_b32 v5, v5, 1, v6"))
    for j in range(3):
        A(V(f"v_add_u32 v2, {64*j}, v0"), V("v_mul_u32_u24 v3, 3277, v2"), V("v_lshrrev_b32 v3, 16, v3"),
          V("v_mul_u32_u24 v4, 20, v3"), V("v_sub_u32 v2, v2, v4"),
          V("v_lshrrev_b32 v4, 1, v3"), V("v_and_b32 v4, 2, v4"), V("v_xor_b32 v2, v2, v4"),
          V("v_lshl_add_u32 v3, v5, 3, v3"), V("v_mul_u32_u24 v3, 1280, v3"), V("v_lshl_add_u32 v2, v2, 4, v3"))
        if j:
            A(V(f"v_subrev_u32 v2, {1024*j}, v2"))
        if j == 2:
            A(V("v_lshrrev_b32 v3, 5, v0"), V("v_lshl_or_b32 v2, v3, 30, v2"))
        pk(vOWO + j, "v2")
    A(S(f"s_cmp_eq_u32 s{sW}, 3"), S(f"s_cselect_b32 s3, {OOB}, {3*6144}"), S(f"s_cselect_b32 s88, {OOB}, {3*8192}"))
    A(V("v_mul_u32_u24 v2, 24576, v1"), V("v_lshl_add_u32 v2, v0, 4, v2"), V("v_add_u32 v3, s3, v2"))
    pk(vOB, "v2")
    pk(vOB + 3, "v3")
    A(S(f"s_lshl_b32 s3, s{sG}, 10"), V("v_lshlrev_b32 v2, 15, v1"), V("v_lshl_add_u32 v2, v0, 4, v2"), V("v_add_u32 v2, s3, v2"), V("v_add_u32 v3, s88, v2"))
    pk(vOP, "v2")
    pk(vOP + 3, "v3")
    A(S(f"s_lshl_b32 s3, s{sG}, 10"), S("s_add_u32 s3, s3, s85"))
    A(V("v_and_b32 v2, 31, v0"), V("v_lshl_add_u32 v2, v2, 2, s86"), V("v_bfe_u32 v4, v0, 4, 2"), V("v_lshl_add_u32 v4, v4, 7, s84"),
      V("v_lshrrev_b32 v5, 3, v0"), V("v_lshl_add_u32 v5, v5, 7, s3"))
    pk(vFO, "v2")
    pk(vFP, "v43")
    pk(vFOP, "v4")
    pk(vFPP, "v5")
    A(S(f"s_lshl_b32 s3, s{sW}, 3"), S(f"s_add_u32 s3, s3, s{sG}"))
    for r in range(3):
        A(S(f"s_add_u32 s{sSPIN}, s3, {30*r}"), S(f"s_lshl_b32 s{sJ+r}, s{sSPIN}, 13"),
          S(f"s_mul_i32 s91, s{sSPIN}, 4370"), S("s_lshr_b32 s91, s91, 16"),
          S(f"s_mul_i32 s{sJ+3+r}, s91, {64 - 15*20480}"), S(f"s_mul_i32 s{sSPIN}, s{sSPIN}, 20480"),
          S(f"s_add_u32 s{sJ+3+r}, s{sJ+3+r}, s{sSPIN}"),
          S(f"s_cmp_lt_u32 s3, {(30, 30, 15)[r]}"), S(f"s_cselect_b32 s{sJ+r}, s{sJ+r}, {OOB}"), S(f"s_cselect_b32 s{sJ+3+r}, s{sJ+3+r}, {OOB}"))
    A(V("v_and_b32 v1, 15, v0"), V("v_lshrrev_b32 v2, 4, v0"))
    A(V("v_lshrrev_b32 v3, 1, v2"), V("v_mul_u32_u24 v3, 6144, v3"), V("v_and_b32 v4, 1, v2"), V("v_lshrrev_b32 v5, 2, v1"),
      V("v_lshl_add_u32 v5, v4, 2, v5"), V("v_mul_u32_u24 v5, 320, v5"), V("v_add_u32 v3, v3, v5"), V("v_and_b32 v5, 3, v1"),
      V("v_lshl_add_u32 v3, v5, 3, v3"), V("v_lshl_add_u32 v5, v4, 5, v3"), V("v_xor_b32 v4, 1, v4"), V("v_lshl_add_u32 v4, v4, 5, v3"),
      V(f"v_add_u32 v6, {VREG}, v5"), V(f"v_add_u32 v7, {VREG}, v4"))
    pk(vA3, "v5")
    pk(vA3 + 1, "v4")
    pk(vA3 + 2, "v6")
    pk(vA3 + 3, "v7")
    assert len(park) == len(PARK)
    A(V("v_lshrrev_b32 v3, 1, v1"), V("v_xor_b32 v3, v3, v2"), V("v_lshlrev_b32 v3, 4, v3"), V("v_lshl_add_u32 v3, v1, 7, v3"),
      V("v_xor_b32 v4, 64, v3"),
      V(f"v_add_u32 v{vAX}, s{sXB0}, v3"), V(f"v_add_u32 v{vAX+1}, s{sXB0}, v4"),
      V(f"v_add_u32 v{vAX+2}, s{sXB1}, v3"), V(f"v_add_u32 v{vAX+3}, s{sXB1}, v4"))
    A(V("v_lshrrev_b32 v3, 2, v1"), V("v_lshl_add_u32 v4, v2, 3, v3"), V("v_mul_u32_u24 v4, 384, v4"),
      V("v_and_b32 v5, 3, v1"), V("v_lshl_add_u32 v4, v5, 3, v4"),
      V("v_lshrrev_b32 v3, 3, v1"), V("v_and_b32 v5, 1, v2"), V("v_lshl_or_b32 v3, v5, 1, v3"))
    for e in range(4):
        A(V(f"v_xor_b32 v5, {e}, v3"), V(f"v_lshl_add_u32 v{vAW+e}, v5, 5, v4"), V(f"v_add_u32 v{vAV+e}, {VREG}, v{vAW+e}"))
    A(V("v_lshrrev_b32 v3, 2, v1"), V("v_and_b32 v4, 3, v1"), V("v_lshl_add_u32 v4, v3, 3, v4"), V("v_mul_u32_u24 v4, 384, v4"),
      V("v_and_b32 v3, 1, v3"), V("v_and_b32 v5, 2, v1"), V("v_or_b32 v3, v3, v5"), V("v_lshrrev_b32 v5, 3, v1"), V("v_lshl_or_b32 v3, v5, 2, v3"),
      V("v_lshrrev_b32 v5, 1, v2"), V("v_and_b32 v6, 1, v2"), V("v_lshl_or_b32 v5, v6, 1, v5"), V("v_xor_b32 v3, v3, v5"),
      V("v_lshl_add_u32 v5, v3, 4, v4"), V("v_xor_b32 v3, 4, v3"), V("v_lshl_add_u32 v4, v3, 4, v4"))
    A(V(f"v_or_b32 v6, s{sW}, v0"), V("v_lshlrev_b32 v6, 8, v6"), V("v_mov_b32 v7, 1"))
    A(V(f"v_accvgpr_read_b32 v2, a{240+PARK.index(vFO)}"), V("v_mov_b32 v3, v43"), [V(f"v_accvgpr_write_b32 a{184+k}, 0") for k in range(4)])
    stream.append(DmaGroup([], [VSTORE(("a", 184), 2, SF, 0, 0, "sc1", n=1, tag="finit"), VSTORE(("a", 184), 3, SF, 0, 0, "sc1", n=4, tag="finit")]))
    seq_groups(P, grp_W(1, cfg))
    seq_groups(P, stream[:cfg["npro"]])
    del stream[:cfg["npro"]]
    A(srd(SF, 32, 33, FLAG_OFF, 0x60000))
    A(S(f"s_lshl_b32 s{sCNT}, s{sB}, 5"), S(f"s_add_u32 s{sCNT}, s{sCNT}, s{sH}"), S(f"s_mul_i32 s3, s{sCNT}, 393216"),
      srd(SK, 6, 7, "s3", 393216), srd(SV, 28, 29, "s3", 393216 + SLOT),
      S(f"s_sub_u32 s{SV}, s{SV}, {SLOT}"), S(f"s_subb_u32 s{SV+1}, s{SV+1}, 0"))
    A(S(f"s_sub_u32 s3, s{sCNT}, s{sHL}"), S("s_mul_i32 s3, s3, 92160"), srd(SO, 32, 33, "s3", 4 * 92160))
    A(S(f"s_mul_i32 s3, s{sG}, {768*1280}"), S(f"s_mul_i32 s52, s{sHL}, 320"), S("s_add_u32 s3, s3, s52"),
      srd(SWO, 96, 97, "s3", 0), S(f"s_sub_u32 s{SWO+2}, 7864320, s3"))
    A(S(f"s_lshl_b32 s3, s{sB}, 2"), S(f"s_add_u32 s3, s3, s{sHL}"), S(f"s_mul_i32 s3, s3, {75*8192}"), S(f"s_add_u32 s3, s3, {PART_OFF}"),
      srd(SP, 32, 33, "s3", 75 * 8192))
    A(S(f"s_mul_i32 s3, s{sB}, 307200"), S("s_add_u32 s3, s3, s52"), srd(SOUT, 98, 99, "s3", 0), S(f"s_sub_u32 s{SOUT+2}, 2457600, s3"))
    A(S(f"s_lshl_b32 s3, s{sB}, 5"), srd(SD, 100, 101, "s3", 4), S(f"s_add_u32 s{sTRIP}, s{sHL}, 1"))
    return stream


def xread_gap(c, cfg):
    if c == 9:
        return 96 * 7 + 86
    return 96 * (c - 1) + (84 if c < cfg["xearly"] else 42)


def Xr(c, u, qt):
    return Xf(2 if c == 9 else c & 1, u, qt)


def x_read(c, u, qt):
    return DSR128(Xr(c, u, qt), vAX + 2 * (c & 1) + u, 2048 * qt, ("X", c))


def AL(dt, u):
    return ("a", (128 if dt == 11 else 96 + (dt & 1) * 16) + 4 * u)


def K0f(a, s):
    return ("a", 144 + (a * 6 + s) * 4)


def w_reads(stage, dt):
    gdt = stage * 12 + dt
    out = []
    for u in range(4 if stage == 8 else 2):
        n = 2 * stage + u
        for t in range(2):
            out.append(vtype_read(AL(dt, u) if stage == 8 else FR(2 * (gdt % 3) + u), wslot(n), dt, t, ("W", n)))
    return out


BL1, BL2 = 768 + 13, 768 + 161


def kv_prefill(cfg):
    LA = cfg["LA"]
    out = []
    seq = [("K", 0)]
    for n in range(1, LA):
        seq += [("K", n), ("V", n - 1)]
    free = {("K", 0): 658, ("K", 1): 658, ("K", 2): 754, ("K", 3): 754, ("K", 4): BL2 + 1, ("K", 5): BL2 + 1,
            ("V", 0): BL1 + 1, ("V", 1): BL1 + 1, ("V", 2): BL1 + 1, ("V", 3): BL1 + 1, ("V", 4): BL2 + 1}
    if LA >= 3:
        seq[2], seq[3] = seq[3], seq[2]
    for t in seq:
        g = (grp_K if t[0] == "K" else grp_V)(t[1], cfg)[0]
        g.earliest = free[t]
        if t in (("K", 0), ("K", 1)):
            g.deadline = BL2 - 2
        out.append(g)
    return out


def put_reads(G, g, r, step=1):
    for k in range(0, len(r), 2):
        assert G[g].free() >= 2, g
        G[g].vec += r[k:k + 2]
        g += step


def phase1(P, cfg, ST, stream):
    A = P.seq
    ST.seq(P, "issued")
    if cfg["tour"]:
        A(RAW("s_mov_b64 exec, 0"))
        for w in range(1, 4):
            A(RAW(f"s_cmp_eq_u32 s{sW}, {w}"), RAW(f"s_cbranch_scc1 KF_pg{w}"))
        A(RAW("s_branch KF_pg4"), LABEL("KF_tret"), RAW("s_mov_b64 exec, -1"))
    A(RAW("s_branch KF_go"), RAW(".p2align 12"), LABEL("KF_go"))
    ST.seq(P, "toured")
    seq_groups(P, stream[:cfg["npro2"]])
    stream = stream[cfg["npro2"]:]
    A(WAITV(("X", 0), ("W", 0), ("W", 1)), BARRIER())
    ST.seq(P, "landed")
    for u in range(2):
        for qt in range(4):
            A(x_read(0, u, qt))
    A(w_reads(0, 0), w_reads(0, 1))
    mfs = []
    for st in range(8):
        for dt in range(12):
            gdt = st * 12 + dt
            for qt in range(4):
                for u in range(2):
                    C = 0 if (st == 0 and u == 0) else acc(dt, qt)
                    m = MFMA(acc(dt, qt), FR(2 * (gdt % 3) + u), Xr(st, u, qt), C)
                    if qt == 0 and u == 0:
                        m.rd |= set(regs("v", FR(2 * (gdt % 3) + 1)[1], 4))
                        if dt == 0:
                            m.rd |= set(regs("a", Xr(st, 0, 0)[1], 32))
                    mfs.append(m)
    done = {}
    order = [(dt, qt) for dt in range(10) for qt in range(4)] + [(dt, qt) for qt in range(4) for dt in (10, 11)]
    for dt, qt in order:
        for u in range(4):
            m = MFMA(acc(dt, qt), AL(dt, u), Xr(8 + u // 2, u & 1, qt), acc(dt, qt))
            if qt == 0 and u == 0:
                m.rd |= set(regs("a", AL(dt, 0)[1], 16))
                if dt == 0:
                    m.rd |= set(regs("a", Xr(9, 0, 0)[1], 32))
            mfs.append(m)
        done[(dt, qt)] = len(mfs) - 1
    assert len(mfs) == 960
    for qt in range(4):
        for a in range(2):
            for s in range(6):
                m = MFMA(St(a, qt), K0f(a, s), Qf(qt, s), 0 if s == 0 else St(a, qt))
                if qt == 0 and s == 0:
                    m.rd |= set(regs("a", K0f(a, 0)[1], 24))
                mfs.append(m)
    G = P.gaps(mfs)
    for st in range(8):
        b = 96 * st
        for dt in range(2, 12):
            put_reads(G, b + 8 * (dt - 2), w_reads(st, dt))
        put_reads(G, b + 82, w_reads(st + 1, 0))
        if st < 7:
            put_reads(G, b + 88, w_reads(st + 1, 1))
        need = [("W", 2 * st + 2), ("W", 2 * st + 3)] if st < 7 else [("W", n) for n in range(16, 20)]
        if cfg.get("p1stamps"):
            ST.gap(G[b + 79], G[b + 81], f"st{st}")
        G[b + 80].sca.append(WAITV(*need))
        G[b + 81].sca.append(BARRIER(frees=[("W", 2 * st), ("W", 2 * st + 1)]))
    for c in range(1, 10):
        g = xread_gap(c, cfg)
        G[g - 1].sca.append(WAITV(("X", c)))
        put_reads(G, g, [x_read(c, u, qt) for u in range(2) for qt in range(4)])
    for dt in range(1, 11):
        put_reads(G, 768 + 16 * (dt - 1), w_reads(8, dt))
    put_reads(G, 768 + 16 * 9 + 4, w_reads(8, 11))
    G[BL1].sca.append(BARRIER(frees=[("X", 8), ("X", 9)]))
    G[BL2 - 1].sca.append(WAITV(("K", 0), ("K", 1), "finit"))
    G[BL2].sca.append(BARRIER(frees=[("W", n) for n in range(16, 20)]))
    G[96 * 7 + 7].vec += [V(f"v_mov_b32 v{vAK}, v5"), V(f"v_mov_b32 v{vAK+1}, v4")]
    r = [DSR128(K0f(a, s), vAK + (s & 1), kslot(0) + 1536 * a + 128 * (s >> 1), ("K", 0)) for a in range(2) for s in range(6)]
    put_reads(G, BL2 + 1, r, 3)
    put_reads(G, 962, [k_read(1, 0, s) for s in range(6)], 3)
    ok = lambda k: k % 8 != 7
    pc = cfg["pace"]

    def pace(k):
        for lim, p in pc:
            if k < lim:
                return p
        return pc[-1][1]
    left = place_stream(P, G, stream, 0, 960, pace, ok)
    assert not left
    last = max(k for k, g in enumerate(G) if g.isdma())
    left = place_stream(P, G, kv_prefill(cfg), last + 1, len(G), lambda k: cfg["kvpace"], ok)
    ops = []
    swaps = []
    LAG = 5

    def muls(dt, qt, dl):
        r = acc(dt, qt)[1]
        return [(done[(dt, qt)] + LAG, dl, V(f"v_mul_f32 v{r+k}, s{sC}, v{r+k}")) for k in range(4)]
    for s in range(6):
        if s < 5:
            for qt in range(4):
                ops += muls(2 * s, qt, 958)
        for qt in range(4):
            dl = 960 + 12 * qt + s - 2
            if s == 5:
                ops += muls(10, qt, dl)
            ops += muls(2 * s + 1, qt, dl)
            ops += swaps
            a_, b_ = acc(2 * s, qt)[1], acc(2 * s + 1, qt)[1]
            e = done[(2 * s + 1, qt)] + LAG
            ops += [(e, dl, V(f"v_cvt_pk_bf16_f32 v{a_}, v{a_}, v{a_+1}")), (e, dl, V(f"v_cvt_pk_bf16_f32 v{a_+1}, v{a_+2}, v{a_+3}")),
                    (e, dl, V(f"v_cvt_pk_bf16_f32 v{a_+2}, v{b_}, v{b_+1}")), (e, dl, V(f"v_cvt_pk_bf16_f32 v{a_+3}, v{b_+2}, v{b_+3}"))]
            swaps = [(e, dl, V(f"v_permlane16_swap_b32 v{a_}, v{a_+2}")), (e, dl, V(f"v_permlane16_swap_b32 v{a_+1}, v{a_+3}"))]
            if s == 5:
                ops += swaps
                swaps = []
    INF = 10**9
    rm = rowmax(1)
    for pr in range(2):
        q0, q1 = 2 * pr, 2 * pr + 1
        ops += [(960 + 12 * q0 + 11 + LAG, INF, x) for x in rm[4 * q0:4 * q0 + 4]]
        e = 960 + 12 * q1 + 11 + LAG
        blk = rm[4 * q1:4 * q1 + 4] + xred([1 + q0, 1 + q1], [vE, vE + 1], "v_max_f32")
        if pr == 1:
            blk.append(V(f"v_subrev_f32 v4, s{sPAD}, v4"))
        for qt in (q0, q1):
            blk += [V(f"v_sub_f32 v{vNM+4*qt+r}, 0, v{1+qt}") for r in range(4)]
            blk.append(V(f"v_mov_b32 v{vL+qt}, 0") if qt < 3 else V(f"v_sub_f32 v{vL+qt}, 0, s{sPAD}"))
        blk += softmax_seq(0, 1, [q0, q1])
        ops += [(e, INF, x) for x in blk if x.kind != "nop"]
    rest = [x for _, _, x in fill_ops(G, ops, 768)]
    ST.seq(P, "qk0end")
    dm = sum((group_seq(g) for g in left), [])
    step = max(1, len(rest) // (len(dm) + 1))
    for k, x in enumerate(rest):
        if dm and k % step == step - 1:
            A(dm.pop(0))
        A(x)
    A(dm)
    A(WAITV(("V", 0), ("K", 2)), BARRIER(frees=[("K", 0)]))


def qk_mfmas(first):
    out = []
    for a in range(2):
        for qt in range(4):
            for s in range(6):
                C = (0 if first else NM(qt)) if s == 0 else St(a, qt)
                m = MFMA(St(a, qt), Kf(a, s), Qf(qt, s), C)
                if qt == 0 and s in (0, 3):
                    m.rd |= set(regs("a", Kf(a, s)[1], 12))
                out.append(m)
    return out


def pv_mfmas(j):
    out = []
    for dt in range(12):
        for qt in range(4):
            out.append(MFMA(Oa(dt, qt), FR(dt), Pf(j & 1, qt), 0 if j == 0 else Oa(dt, qt)))
    return out


def xred(x, t, op):
    out = []
    for sw in ("v_permlane32_swap_b32", "v_permlane16_swap_b32"):
        for a, b in zip(x, t):
            out.append(V(f"v_mov_b32 v{b}, v{a}"))
        out.append(NOP(0))
        for a, b in zip(x, t):
            out.append(V(f"{sw} v{b}, v{a}"))
        for a, b in zip(x, t):
            out.append(V(f"{op} v{a}, v{a}, v{b}"))
    return out


def rowmax(dst):
    out = []
    for qt in range(4):
        s0, s1 = St(0, qt)[1], St(1, qt)[1]
        d = dst + qt
        out += [V(f"v_max3_f32 v{d}, v{s0}, v{s0+1}, v{s0+2}"), V(f"v_max3_f32 v{d}, v{d}, v{s0+3}, v{s1}"),
                V(f"v_max3_f32 v{d}, v{d}, v{s1+1}, v{s1+2}"), V(f"v_max_f32 v{d}, v{d}, v{s1+3}")]
    return out


def softmax_seq(par, delta, qts=range(4)):
    out = []
    for qt in qts:
        for a in range(2):
            s = St(a, qt)[1]
            for r in range(4):
                out.append(V(f"v_sub_f32 v{vE+4*a+r}, v{s+r}, v{delta+qt}"))
        for k in range(8):
            out.append(V(f"v_exp_f32 v{vE+k}, v{vE+k}"))
        p = Pf(par, qt)[1]
        out.append(V(f"v_add_f32 v{vTS+qt}, v{vE}, v{vE+1}"))
        for k in range(2, 8):
            out.append(V(f"v_add_f32 v{vTS+qt}, v{vTS+qt}, v{vE+k}"))
        for k in range(4):
            out.append(V(f"v_cvt_pk_bf16_f32 v{p+k}, v{vE+2*k}, v{vE+2*k+1}"))
    return out


def unpark():
    un = [V(f"v_accvgpr_read_b32 v{r}, a{240+k}") for k, r in enumerate(PARK)]
    un += [V(f"v_add_u32 v{vOB+1}, 6144, v{vOB}"), V(f"v_add_u32 v{vOB+2}, 12288, v{vOB}"),
           V(f"v_add_u32 v{vOP+1}, 8192, v{vOP}"), V(f"v_add_u32 v{vOP+2}, 16384, v{vOP}")]
    return un


def fallback(par):
    out = [LABEL(f"KF_fix{par}"), NOP(7)]
    out += rowmax(1)
    out += xred([1, 2, 3, 4], [vE, vE + 1, vE + 2, vE + 3], "v_max_f32")
    for qt in range(4):
        out.append(V(f"v_max_f32 v{1+qt}, 0, v{1+qt}"))
    out += softmax_seq(par, 1)
    for qt in range(4):
        for r in range(4):
            out.append(V(f"v_sub_f32 v{vNM+4*qt+r}, v{vNM+4*qt+r}, v{1+qt}"))
    for qt in range(4):
        out.append(V(f"v_exp_f32 v{1+qt}, -v{1+qt}"))
    out.append(NOP(0))
    for qt in range(4):
        out.append(V(f"v_mul_f32 v{vL+qt}, v{vL+qt}, v{1+qt}"))
    for dt in range(12):
        for qt in range(4):
            a = Oa(dt, qt)[1]
            e = vE + 4 * (qt & 1)
            for r in range(4):
                out.append(V(f"v_accvgpr_read_b32 v{e+r}, a{a+r}"))
            for r in range(4):
                out.append(V(f"v_mul_f32 v{e+r}, v{e+r}, v{1+qt}"))
            for r in range(4):
                out.append(V(f"v_accvgpr_write_b32 a{a+r}, v{e+r}"))
    out += [NOP(1), I(f"s_setpc_b64 s[{sRET}:{sRET+1}]", "branch")]
    return out


def iteration(P, cfg, j, lab, groups, extra_vm=None):
    G = P.gaps(qk_mfmas(False) + pv_mfmas(j))
    par = (j + 1) & 1
    exp_gaps = [11 + 5 * k + o for k in range(16) for o in (0, 2)]
    slots = cfg["dmagaps"][len(groups)]
    lo = 0
    for g, idx in zip(groups, slots):
        for s_ in g.pre:
            P.flex_scalar(s_, G[lo:idx[0]])
        for k, d in zip(idx, g.dmas):
            assert k not in exp_gaps
            G[k].vec.append(d)
        lo = idx[-1] + 1
    if extra_vm is not None:
        G[94].vec.append(extra_vm)
    valu = []
    for qt in range(4):
        valu.append((0, V(f"v_add_f32 v{vL+qt}, v{vL+qt}, v{vTS+qt}")))
    n = 0
    for T in range(8):
        a, qt = divmod(T, 4)
        s = St(a, qt)[1]
        p = Pf(par, qt)[1] + 2 * a
        for r in range(4):
            g = exp_gaps[n]
            e = vE + n % 8
            assert not G[g].vec
            G[g].vec.append(V(f"v_exp_f32 v{e}, v{s+r}"))
            if a == 0 and r == 0:
                pass
            elif a == 0 and r == 1:
                valu.append((g + 1, V(f"v_add_f32 v{vTS+qt}, v{e-1}, v{e}")))
            else:
                valu.append((g + 1, V(f"v_add_f32 v{vTS+qt}, v{vTS+qt}, v{e}")))
            if r & 1:
                valu.append((g + 1, V(f"v_cvt_pk_bf16_f32 v{p+(r>>1)}, v{e-1}, v{e}")))
            n += 1
        if T == 6:
            valu.append((g + 1, V(f"v_max3_f32 v1, v{vTS}, v{vTS+1}, v{vTS+2}")))
    valu.append((g + 1, V(f"v_max_f32 v1, v1, v{vTS+3}")))
    valu.append((g + 1, V(f"v_cmp_lt_f32 vcc, s{sTH}, v1")))
    lds = []
    for s in range(6):
        lds.append((s, 14, k_read(j + 1, 1, s)))
    t0 = 6
    for dt in range(6):
        for t in range(2):
            lds.append((t0 + 3 * (2 * dt + t), 48 + 4 * dt - 8, vtype_read(FR(dt), vslot(j), dt, t, ("V", j))))
    if j + 2 < 32:
        for s in range(6):
            lds.append(((27, 33, 38, 43, 47, 50)[s], 70, k_read(j + 2, 0, s)))
    for dt in range(6, 12):
        for t in range(2):
            lds.append((48 + 4 * (dt - 6) + 3, 48 + 4 * dt - 8, vtype_read(FR(dt), vslot(j), dt, t, ("V", j))))
    for gi, g in enumerate(G):
        while g.free() > 0:
            cand = []
            if valu and valu[0][0] <= gi:
                cand.append((min(valu[0][0] + cfg["vslack"], 93), 0, None))
            av = [x for x in lds if x[0] <= gi]
            if av:
                b = min(av, key=lambda x: x[1])
                nl = len([y for y in g.vec if y.kind == "lds"])
                cand.append((b[1] - (100 if nl == 0 and len([v for v in valu if v[0] <= gi]) < 3 else 0), 1, b))
            if not cand:
                break
            c = min(cand, key=lambda x: x[:2])
            if c[1] == 0:
                assert valu[0][0] + 16 >= gi
                g.vec.append(valu.pop(0)[1])
            else:
                assert c[2][1] >= gi, (gi, c[2])
                lds.remove(c[2])
                g.vec.append(c[2][2])
    assert not valu and not lds, (valu, lds)
    if cfg.get("dbgnop"):
        for k in range(cfg["dbgnop"]):
            G[exp_gaps[(k * 32) // cfg["dbgnop"]]].post.append(NOP(3))
    need = [("V", j + 1)] + ([("K", j + 3)] if j + 3 < 32 else [])
    G[92].sca.append(WAITV(*need))
    G[93].sca.append(BARRIER(frees=[("V", j), ("K", j + 1)]))
    G[95].sca.append(I(f"s_cbranch_vccnz KF_fx{lab}", "branch", rd=["vcc"]))
    assert not G[95].vec
    G[95].post.append(LABEL(f"KF_bk{lab}"))
    return G


KORD = [(0, s) for s in range(6)] + [(p, s) for s in range(6) for p in (1, 2, 3)]


def acc3(nt, qt):
    if nt < 4:
        return ("a", 192 + (nt * 4 + qt) * 4)
    return ("v", 64 + ((nt - 4) * 4 + qt) * 4)


def Bf(ks, qt):
    if ks < 6 or ks >= 18:
        return ("v", 160 + ((ks % 6) * 4 + qt) * 4)
    return ("a", ((ks - 6) * 4 + qt) * 4)


def wo_read(dst, ks, nt, tt):
    sl = woslot(ks)
    a, off = (vA3 + 2, sl - VREG) if sl >= VREG else (vA3, sl)
    return DSTR((dst[0], dst[1] + 2 * tt), a + (nt & 1), off + 3072 * tt + 64 * (nt >> 1), ("WO", ks))


def grp_B(ks, cfg):
    p, s = KORD[ks]
    so, pre = (f"s{sOB+p}", []) if s < 4 else (f"s{sOKV}", [S(f"s_add_u32 s{sOKV}, s{sOB+p}, 4096")])
    return [DmaGroup(pre, [VLOAD(Bf(ks, qt), vOB + qt, SO, so, 1024 * (s & 3), ("B", ks), cfg["bflags"]) for qt in range(4)])]


def poll_load(kind):
    off, srd_ = {"c": (6, SD), "o": (vFOP, SF), "p": (vFPP, SF)}[kind]
    return VLOAD(("v", 5), off, srd_, 0, 0 if kind == "c" else 4, None, "sc1", n=1)


def poll_cmp(need):
    return V(f"v_cmp_gt_u32 vcc, {need}, v5")


def slow_path(name, kind, need):
    return [f"KF_sl{name}:", f"s_mov_b32 s{sSPIN}, 0", f"KF_sp{name}:", poll_load(kind).text, "s_waitcnt vmcnt(0)", poll_cmp(need).text,
            f"s_add_u32 s{sSPIN}, s{sSPIN}, 1", f"s_cmp_gt_u32 s{sSPIN}, 0x8000", f"s_cbranch_scc1 KF_rt{name}",
            f"s_cbranch_vccnz KF_sp{name}", f"s_branch KF_rt{name}"]


def check_seq(P, name, kind, need):
    P.slow += slow_path(name, kind, need)
    return [poll_cmp(need), NOP(0), I(f"s_cbranch_vccnz KF_sl{name}", "branch", rd=["vcc"]), LABEL(f"KF_rt{name}")]


def free_gap(G, k, ok=lambda k: True):
    while G[k].vec or G[k].sca or G[k].post or not ok(k):
        k += 1
    return k


def check_gaps(P, G, name, kind, need, g_load, g_chk, ok):
    k = free_gap(G, g_load, ok)
    G[k].vec.append(poll_load(kind))
    k = free_gap(G, max(g_chk, k + 1), ok)
    G[k].vec.append(poll_cmp(need))
    k = free_gap(G, k + 1, ok)
    G[k].sca.append(I(f"s_cbranch_vccnz KF_sl{name}", "branch", rd=["vcc"]))
    G[k].sca.append(LABEL(f"KF_rt{name}"))
    P.slow += slow_path(name, kind, need)
    return k + 1


def flag_gaps(G, tags, val, off, g, ok):
    k = free_gap(G, g, ok)
    G[k].sca.append(WAITV(*tags))
    G[k].vec.append(V(f"v_mov_b32 v7, {val}"))
    k = free_gap(G, k + 1, ok)
    G[k].vec.append(VSTORE(("v", 7), off, SF, 0, 0, "sc1", n=1))
    return k


RCP = [2, 3, 8, 9]
F0 = 48


def pack_muls(G):
    for g in G:
        if g.cost() < 8:
            continue
        out = []
        k = 0
        v = g.vec
        while k < len(v):
            x = v[k]
            y = v[k + 1] if k + 1 < len(v) else None
            if k >= 3 and y is not None and "omul" in x.meta and "omul" in y.meta and x.meta["omul"][0] % 2 == 0 \
                    and y.meta["omul"] == (x.meta["omul"][0] + 1, x.meta["omul"][1]):
                r, f = x.meta["omul"]
                sel = "op_sel_hi:[1,0]" if f % 2 == 0 else "op_sel:[0,1] op_sel_hi:[1,1]"
                z = V(f"v_pk_mul_f32 v[{r}:{r+1}], v[{r}:{r+1}], v[{f&~1}:{(f&~1)+1}] {sel}")
                out.append(z)
                k += 2
            else:
                out.append(x)
                k += 1
        g.vec = out


def phase3(P, cfg, ST, wo_left):
    A = P.seq
    stages = cfg["stages"]
    j = 31
    for dt in range(4):
        for t in range(2):
            A(vtype_read(FR(dt), vslot(j), dt, t, ("V", j)))
    A(check_seq(P, "c", "c", 32))
    for qt in range(4):
        A(V(f"v_add_f32 v{vL+qt}, v{vL+qt}, v{vTS+qt}"))
    A(S(f"s_add_u32 s{sOX}, s{sOB}, 4096"))
    pre = xred([vL + q for q in range(4)], [vE + q for q in range(4)], "v_add_f32")
    pre += [V(f"v_rcp_f32 v{RCP[qt]}, v{vL+qt}") for qt in range(4)]
    pre = [x for x in pre if x.kind != "nop"]
    A(pre[:12])

    def abuf(si, nt):
        L = len(stages[si])
        if L == 2:
            g = 10 * si + nt
            return [FR(2 * (g % 3) + u) for u in range(2)]
        return [("a", (nt % 2) * 24 + u * 4) for u in range(L)]

    def areads(si, nt):
        return [wo_read(d, ks, nt, tt) for d, ks in zip(abuf(si, nt), stages[si]) for tt in range(2)]

    secs = [pv_mfmas(j)]
    for si, kss in enumerate(stages):
        mfs = []
        for nt in range(10):
            ab = abuf(si, nt)
            for qt in range(4):
                for u, ks in enumerate(kss):
                    C = 0 if ks == 0 else acc3(nt, qt)
                    m = MFMA(acc3(nt, qt), ab[u], Bf(ks, qt), C)
                    if qt == 0 and u % 2 == 0:
                        m.rd |= set(regs(ab[u + 1][0], ab[u + 1][1], 4))
                    if nt == 0 and u == 0 and qt == 0 and kss[0] >= 6:
                        for k2 in kss:
                            m.rd |= set(regs(*Bf(k2, 0), 16))
                    mfs.append(m)
        secs.append(mfs)
    G = P.gaps(sum(secs, []))
    base = [F0 + sum(len(x) for x in secs[1:i + 1]) for i in range(len(stages) + 1)]
    ok = lambda k: (k % 4 != 3) if k < F0 else (k % 8 != 7)
    for k, g in enumerate(G):
        g.nomem = not ok(k)
    for dt in range(4, 12):
        g = 0 + 2 * (dt - 4) if dt < 6 else 4 * (dt - 6) + 3
        G[g].vec += [vtype_read(FR(dt), vslot(j), dt, t, ("V", j)) for t in range(2)]
    G[32].sca.append(WAITV(("WO", 0), ("WO", 1)))
    G[33].sca.append(BARRIER(frees=[("V", 31)]))
    put_reads(G, 34, areads(0, 0))
    put_reads(G, 40, areads(0, 1))
    bar = {-1: 33}
    for si, kss in enumerate(stages):
        L = len(kss)
        per = 4 * L
        b = base[si]
        nxtL = len(stages[si + 1]) if si + 1 < len(stages) else 0
        ahead = 2 if L == 2 else 1
        for nt in range(ahead, 10):
            put_reads(G, b + per * (nt - ahead), areads(si, nt), 1 if L == 2 else 2)
        if nxtL:
            gb = b + per * 8
            if cfg.get("p3stamps"):
                ST.gap(G[gb - 1], G[gb + 1], f"s{si}")
            if cfg.get("p3light"):
                ST.light(G[gb - 9], f"s{si}")
            G[gb].sca.append(WAITV(*[("WO", ks) for ks in stages[si + 1]]))
            G[gb + 1].sca.append(BARRIER(frees=[("WO", ks) for ks in kss]))
            bar[si] = gb + 1
            put_reads(G, gb + 2, areads(si + 1, 0))
            if nxtL == 2:
                put_reads(G, b + per * 9, areads(si + 1, 1))
    stage_of = {ks: si for si, kss in enumerate(stages) for ks in kss}
    chunk_of = cfg["chunks"]
    ost = [VSTORE(Bf(s, qt), vOB + qt, SO, f"s{sOB}" if s < 4 else f"s{sOX}", 1024 * (s & 3), cfg["oflags"], tag=("O", chunk_of[s]))
           for s in range(6) for qt in range(4)]
    opos = []
    t = cfg["ostart"]
    for n, x in enumerate(ost):
        k = free_gap(G, max(int(t), (opos[-1] + 1) if opos else 0), ok)
        G[k].vec.append(x)
        opos.append(k)
        t += cfg["opace"](n)
    ee = []
    for c in range(max(chunk_of) + 1):
        lc = max(k for k, x in zip(opos, ost) if x.meta["tag"] == ("O", c))
        k = flag_gaps(G, [("O", c)], c + 1, vFO, lc + cfg["lags"][c][0], ok)
        if cfg.get("ostamps"):
            ST.gap(G[k - 3], G[k - 3], f"preF{c}")
            ST.gap(G[k], G[k], f"F{c}")
        k = max(k + cfg["lags"][c][1], (ee[-1] if ee else 0))
        ee.append(check_gaps(P, G, f"o{c}", "o", c + 1, k, k + cfg["lags"][c][2], ok))
        if cfg.get("ostamps"):
            ST.gap(G[ee[-1] - 5], G[ee[-1] - 5], f"preC{c}")
            ST.gap(G[ee[-1] - 2], G[ee[-1] - 2], f"cmp{c}")
            ST.gap(G[ee[-1] - 1], G[ee[-1] - 1], f"C{c}")
    P.slack.append(("stores", opos, "checks", ee, "base", base))
    e0 = ee[0]
    for g in wo_left:
        t = g.dmas[0].meta["tag"][1]
        g.earliest = bar[stage_of[t - 12]] + 1 if t >= 12 else (34 if t == 11 else 0)
        g.deadline = bar[stage_of[t] - 1] - 2
    wo_left = place_stream(P, G, wo_left, cfg["wstart"], e0 - 4, lambda k: cfg["wpace"], ok)
    bs = [grp_B(ks, cfg)[0] for ks in range(6, 24)]
    for g in bs:
        ks = g.dmas[0].meta["tag"][1]
        g.deadline = base[stage_of[ks]] - 2 + 0.01 * ks
        g.earliest = ee[chunk_of[KORD[ks][1]]]
        if ks >= 18:
            g.earliest = max(g.earliest, base[stage_of[ks - 18] + 1], opos[4 * (ks - 18) + 3] + 3)
    items = sorted(wo_left + bs, key=lambda g: g.deadline)
    left = place_stream(P, G, items, e0, len(G), lambda k: cfg["p3pace"], ok, True)
    assert not left
    bpos = {x.meta["tag"][1]: k for k, g in reversed(list(enumerate(G))) for x in g.vec if x.kind == "vload" and x.meta["tag"]}
    ops = [(0, 14, x) for x in pre[12:]]
    n = 0
    for s in range(6):
        for qt in range(4):
            o = Bf(s, qt)[1]
            t = vOK + 2 * (n % 3)
            dl = min(base[s // 2] + 2 * qt + (s & 1) - 2, opos[n] - 1, bpos[6 + 2 * s] - 1, bpos[7 + 2 * s] - 1)
            n += 1
            for u, dst in enumerate(([o, o + 1, o + 2, o + 3], [o + 2, o + 3, t, t + 1])):
                a = Oa(2 * s + u, qt)[1]
                e = 4 * (2 * s + u) + qt + 5
                ops += [(e, dl, V(f"v_accvgpr_read_b32 v{dst[r]}, a{a+r}")) for r in range(4)]
                ops += [(e, dl, V(f"v_mul_f32 v{dst[r]}, v{RCP[qt]}, v{dst[r]}", omul=(dst[r], RCP[qt]))) for r in range(4)]
                ops += [(e, dl, V(f"v_cvt_pk_bf16_f32 v{o+2*u+r}, v{dst[2*r]}, v{dst[2*r+1]}")) for r in range(2)]
    assert not fill_ops(G, ops)
    pack_muls(G)
    si = len(stages) - 1
    per = 4 * len(stages[si])
    b = base[si]
    tmpbase = 160 if per == 8 else vFR
    work = []
    tmp = 0
    for np_ in range(5):
        e = b + per * (2 * np_ + 1)
        work.append((e, S(f"s_mov_b32 s{sOW}, {np_*15*8192}")))
        for qt in range(4):
            e = b + per * (2 * np_ + 1) + (per // 4) * (qt + 1) + 4
            x, y = acc3(2 * np_, qt), acc3(2 * np_ + 1, qt)
            if x[0] == "a":
                t = tmpbase + (tmp % 2) * 8
                tmp += 1
                for u, z in enumerate((x, y)):
                    for r in range(4):
                        work.append((e - (per // 2 if u == 0 else 0), V(f"v_accvgpr_read_b32 v{t+4*u+r}, a{z[1]+r}")))
                src = [t + r for r in range(8)]
                o = t
            else:
                src = [x[1] + r for r in range(4)] + [y[1] + r for r in range(4)]
                o = x[1]
            for r in range(4):
                work.append((e, V(f"v_cvt_pk_bf16_f32 v{o+r}, v{src[2*r]}, v{src[2*r+1]}")))
            work.append((e, VSTORE(("v", o), vOP + qt, SP, f"s{sOW}", 0, cfg["pflags"], tag=("P", np_))))
    gi = b
    stpos = {}
    while work and gi < len(G):
        g = G[gi]
        while work and work[0][0] <= gi:
            x = work[0][1]
            if x.kind == "salu":
                P.flex_scalar(x, [g, G[min(gi + 1, len(G) - 1)]])
                work.pop(0)
            elif x.kind == "vstore":
                if not g.vec and not g.sca and ok(gi):
                    g.vec.append(x)
                    stpos[x.meta["tag"][1]] = gi
                    work.pop(0)
                break
            elif g.free() > 0:
                g.vec.append(x)
                work.pop(0)
            else:
                break
        gi += 1
    rest = [x for _, x in work]
    pending = {n for x in rest if x.kind == "vstore" for n in [x.meta["tag"][1]]}
    ST.seq(P, "mfend")
    A(NOP(7), rest)
    A(V("v_and_b32 v2, 15, v0"), V("v_mul_u32_u24 v2, 1280, v2"), V("v_lshrrev_b32 v3, 5, v0"), V("v_bfe_u32 v4, v0, 4, 1"),
      V("v_lshl_or_b32 v3, v4, 1, v3"), V("v_lshl_add_u32 v2, v3, 4, v2"), V("v_lshlrev_b32 v1, 4, v0"), V("v_add_u32 v3, 4096, v1"))

    def loads(r):
        return [VLOAD(("a", r * 32 + g * 4) if False else ("v", 160 + r * 32 + g * 4), 1 if g < 4 else 3, SP, f"s{sJ+r}", 1024 * (g & 3), None, cfg["rflags"])
                for g in range(8)]

    def reduce(r):
        out = []
        o = 64 + r * 16
        for g in range(8):
            src = 160 + r * 32 + g * 4
            t = o if g == 0 else 112 + (g & 1) * 8
            for q in range(4):
                out += [V(f"v_lshlrev_b32 v{t+2*q}, 16, v{src+q}"), V(f"v_and_b32 v{t+2*q+1}, 0xffff0000, v{src+q}")]
            if g:
                for q in range(4):
                    out.append(V(f"v_pk_add_f32 v[{o+2*q}:{o+2*q+1}], v[{o+2*q}:{o+2*q+1}], v[{t+2*q}:{t+2*q+1}]"))
        for q in range(4):
            out.append(V(f"v_cvt_pk_bf16_f32 v{o+8+q}, v{o+2*q}, v{o+2*q+1}"))
        out += [NOP(0), V(f"v_permlane16_swap_b32 v{o+8}, v{o+10}"), V(f"v_permlane16_swap_b32 v{o+9}, v{o+11}"),
                VSTORE(("v", o + 8), 2, SOUT, f"s{sJ+3+r}", 0, cfg["outflags"])]
        return out

    def flag(val, tags):
        return [V(f"v_mov_b32 v7, {val}"), WAITV(*tags), BARRIER(), VSTORE(("v", 6), vFP, SF, 0, 0, "sc1", n=4)]

    A(flag(3, [("P", 4)]))
    ST.seq(P, "pdrain")
    A(poll_load("p"), check_seq(P, "p2", "p", 3))
    ST.seq(P, "ppoll")
    A(loads(0), loads(1), loads(2), reduce(0), reduce(1), reduce(2))


def build(cfg):
    P = Prog()
    P.slack = []
    P.slow = []
    ST = Stamper(cfg)
    LA = cfg["LA"]
    stream = prologue(P, cfg, ST)
    phase1(P, cfg, ST, stream)
    ST.seq(P, "attn0")
    if ST.it:
        P.seq(RAW("s_mov_b32 s53, 2"))
    labs = []
    wo = [grp_WO(t, cfg)[0] for t in range(24)]
    NT = cfg["trips"]
    for j in range(0, 31):
        inloop = 1 <= j <= 6 * NT
        if j == 1:
            P.seq(I(f"s_mov_b32 s{sCNT}, {NT}", "raw"))
        if inloop and (j - 1) % 6 == 0:
            P.el.append(I("", "raw", mark=(j - 1) // 6))
        if j == 6 * NT + 1:
            P.el.append(I("", "raw", mark=NT))
        groups = []
        if j + LA < 32:
            groups += grp_K(j + LA, cfg, True)
        if j + LA - 1 < 32:
            groups += grp_V(j + LA - 1, cfg, j + LA < 32)
        while len(groups) < cfg["tailgroups"] and j + LA >= 32 and wo and 26 + (wo[0].dmas[0].meta["tag"][1] + 1) // 2 <= j:
            groups.append(wo.pop(0))
        lab = str((j - 1) % 6) if inloop else f"p{j}"
        if not inloop or j <= 6:
            labs.append((lab, (j + 1) & 1))
        xv = None
        if j == 29:
            xv = VLOAD(("v", 5), 6, SD, 0, 0, None, "sc1", n=1)
        if inloop and (j - 1) % 6 == 1:
            xv = I(f"buffer_atomic_add v7, v6, s[{SD}:{SD+3}], s{sAO} offen sc1", "vstore", ["v6", "v7"], [], data=set(), n=1, tag=None)
        if j == cfg["wopf"]:
            xv = VLOAD(("a", 255), 2, SWO, 0, 0, None, "", n=1)
        if j == 30 and cfg["fwarm"]:
            xv = VLOAD(("a", 255), vFOP, SF, 0, 4, None, "sc1", n=1)
        G = iteration(P, cfg, j, lab, groups, xv)
        if j == cfg["wopf"]:
            G[92].vec.append(V("v_accvgpr_read_b32 v2, a255"))
        if inloop and (j - 1) % 6 == 1:
            G[88].sca.append(S(f"s_cmp_eq_u32 s{sCNT}, s{sTRIP}"))
            G[89].sca.append(S(f"s_cselect_b32 s{sAO}, 0, {OOB}"))
        if j == 28:
            G[94].vec.append(V("v_mov_b32 v6, 0"))
        if j == 25:
            assert not fill_ops(G[:95], [(0, 94, x) for x in unpark()])
        if ST.it:
            G[90].post += [RAW(f"s_memtime s[{sTM}:{sTM+1}]"), RAW(f"s_memrealtime s[{sTM+2}:{sTM+3}]")]
            G[93].post += [RAW("s_mov_b32 m0, s53"), RAW("s_addk_i32 s53, 1"), RAW(f"v_writelane_b32 v{vST}, s{sTM}, m0"), RAW("s_mov_b32 m0, s53"),
                           RAW("s_addk_i32 s53, 1"), RAW(f"v_writelane_b32 v{vST}, s{sTM+2}, m0")]
            ST.names.append(f"i{j}")
        if inloop and (j - 1) % 6 == 5:
            P.flex_scalar(S(f"s_sub_u32 s{sCNT}, s{sCNT}, 1"), G[80:90])
            G[94].sca.append(S(f"s_cmp_lg_u32 s{sCNT}, 0"))
            G[95].post.append(I("s_cbranch_scc1 KF_loop", "branch"))
    ST.seq(P, "attnend")
    phase3(P, cfg, ST, wo)
    if ST.on:
        P.seq(WAIT(vm=0))
        ST.seq(P, "end")
        ST.flush(P)
        if cfg.get("diag"):
            P.seq(RAW("s_getreg_b32 s3, hwreg(HW_REG_XCC_ID, 0, 4)"), RAW(f"v_writelane_b32 v{vST}, s3, 63"))
        P.seq(srd(8, 32, 33, STAMP_OFF, 0x100000), S("s_lshl_b32 s3, s2, 2"), S(f"s_add_u32 s3, s3, s{sW}"), S("s_lshl_b32 s3, s3, 8"),
              V("v_lshlrev_b32 v2, 2, v0"), RAW(f"buffer_store_dword v{vST}, v2, s[8:11], s3 offen"))
    P.insert_waits()
    P.place_flex()
    lin = P.linear()
    lin, notes = fix_hazards(lin)
    P.notes = notes
    probs = check_hazards(lin) + check_lds_protocol(lin, private=lambda t: t[0] == "X")
    trips = {}
    pre, post, cur = [], [], None
    for x in lin:
        if x.kind == "raw" and "mark" in x.meta:
            cur = x.meta["mark"]
            continue
        if cur is None:
            pre.append(x)
        elif cur == NT:
            post.append(x)
        else:
            trips.setdefault(cur, []).append(x)
    t0 = [text_of(x) for x in trips[0]]
    for k in range(1, NT):
        tk = [text_of(x) for x in trips[k]]
        assert tk == t0, [(a, b) for a, b in zip(t0, tk) if a != b][:5]
    out = [text_of(x) for x in pre] + ["KF_loop:"] + t0 + [text_of(x) for x in post]
    out += ["KF_done:", "s_endpgm"]
    out += P.slow
    for lab, par in labs:
        out += [f"KF_fx{lab}:", f"s_call_b64 s[{sRET}:{sRET+1}], KF_fix{par}", f"s_branch KF_bk{lab}"]
    for par in range(2):
        fb = fallback(par)
        probs += check_hazards(fb)
        out += [text_of(x) for x in fb]
    out += ["KF_end:"]
    return out, probs, P, ST


DEFAULT = dict(map="hg4", wflags="", xflags="", kvflags="nt", woflags="", oflags="sc1", bflags="sc1", pflags="sc1", rflags="sc1",
               outflags="", thresh=16384.0, LA=5, trips=4, npro=1, npro2=2, pace=[(960, 5.2)], xearly=4, kvpace=14, tailgroups=3,
               dmagaps={0: [], 1: [[4, 7, 9]], 2: [[4, 7, 9], [34, 44, 54]], 3: [[4, 7, 9], [34, 44, 54], [64, 79, 84]]},
               vslack=8, stages=[[2 * k, 2 * k + 1] for k in range(9)] + [list(range(18, 24))], p3pace=4.2, wstart=0, wpace=9, codepf=5,
               chunks=[0, 1, 1, 2, 2, 2], ostart=44, opace=lambda n: 4 if n < 3 else 14, lags=[(45, 65, 45), (55, 40, 60), (70, 60, 70)],
               p1pf=[0, 6, 14, 22], wopf=26, tour=1, fwarm=0, stamps=False)


def insert_stubs(lines):
    import subprocess, tempfile, os, re
    go = lines.index("KF_go:")
    end = lines.index("KF_done:")
    body = lines[go + 1:end]
    ins = [l for l in body if l and not l.endswith(":")]
    d = tempfile.mkdtemp()
    src = '.amdgcn_target "amdgcn-amd-amdhsa--gfx950"\n.text\nL0:\n' + "\n".join(re.sub(r"KF_\w+", "L0", l) for l in ins) + "\n"
    open(d + "/a.s", "w").write(src)
    subprocess.run(["clang", "-x", "assembler", "-target", "amdgcn-amd-amdhsa", "-mcpu=gfx950", "-c", d + "/a.s", "-o", d + "/a.o"], check=True)
    dis = subprocess.run(["llvm-objdump", "-d", "--mcpu=gfx950", d + "/a.o"], capture_output=True, text=True).stdout
    sizes = [4 * len(re.findall(r"\b[0-9A-F]{8}\b", l.split("//")[1].split(":", 1)[1].split("<")[0])) for l in dis.splitlines() if "//" in l]
    assert len(sizes) == len(ins), (len(sizes), len(ins))
    it = iter(sizes)
    sz = [0 if (not l or l.endswith(":")) else next(it) for l in body]
    out = []
    off = 0
    page = 1
    k = 0
    while k < len(body):
        if off >= page * 4096:
            best = k
            o, j = off, k
            while j < len(body) and o <= page * 4096 + 56:
                prev = body[j - 1]
                if prev.startswith("v_mfma") and body[j].startswith(("v_", "ds_")):
                    best = j
                    break
                o += sz[j]
                j += 1
            while k < best:
                out.append(body[k])
                off += sz[k]
                k += 1
            out += [f"KF_pg{page}:", f"s_cbranch_execz KF_pg{page+4}"]
            off += 4
            page += 1
        out.append(body[k])
        off += sz[k]
        k += 1
    out = [re.sub(r"execz KF_pg(\d+)", lambda m: m.group(0) if int(m.group(1)) < page else "execz KF_tret", l) for l in out]
    return lines[:go + 1] + out + lines[end:]


HDR = open("standalone__mha_block_cached__near_ridge.s.ref").read().split("; Override launch")[0]
NAME = "standalone__mha_block_cached__near_ridge_kernel"


def generate(over=None):
    cfg = dict(DEFAULT)
    cfg.update(over or {})
    o, p, P, ST = build(cfg)
    assert not p, p[:10]
    if cfg["tour"]:
        o = insert_stubs(o)
    if cfg.get("verbose"):
        print(P.slack, file=sys.stderr)
        print(len(P.notes), "nops inserted:", P.notes, file=sys.stderr)
    if P.warn or P.overfull():
        print("warn", len(P.warn), P.warn[:6], "overfull", P.overfull(), file=sys.stderr)
    dg = cfg.get("diag")
    if dg:
        s = HDR + f"; @launch kernel={NAME} grid=(256,1,1) block=(256,1,1) lds={LDS_BYTES}\n; @launch kernel=diag_kernel grid=(1,1,1) block=(64,1,1) lds=0\n"
    else:
        s = HDR + f"; @launch grid=(256,1,1) block=(256,1,1) lds={LDS_BYTES}\n"
    if ST.on:
        s += "; STAMPS " + " ".join(ST.names) + "\n"
    s += '.amdgcn_target "amdgcn-amd-amdhsa--gfx950"\n.text\n'
    s += f".globl {NAME}\n.p2align 8\n.type {NAME},@function\n{NAME}:\n" + "\n".join(("" if l.endswith(":") else "    ") + l for l in o if l) + "\n"
    if dg:
        import gen
        def addr(x):
            wg, nm = x
            return STAMP_OFF + wg * 1024 + (252 if nm == "xcc" else 8 * ST.names.index(nm) + 4)
        s += ".globl diag_kernel\n.p2align 8\n.type diag_kernel,@function\ndiag_kernel:\n" + "\n".join(gen.diag_kernel(addr(dg[0]), addr(dg[1]), dg[2])) + "\n"
    s += f""".section .rodata,"a"
.p2align 6
.amdhsa_kernel {NAME}
  .amdhsa_next_free_vgpr 512
  .amdhsa_next_free_sgpr 102
  .amdhsa_accum_offset 256
  .amdhsa_group_segment_fixed_size 0
  .amdhsa_kernarg_size 64
  .amdhsa_user_sgpr_count 2
  .amdhsa_user_sgpr_kernarg_segment_ptr 1
  .amdhsa_system_sgpr_workgroup_id_x 1
.end_amdhsa_kernel
"""
    if dg:
        s += ".p2align 6\n" + gen.kd("diag_kernel", 8, 8) + "\n"
    return s


if __name__ == "__main__":
    over = eval(sys.argv[2]) if len(sys.argv) > 2 else None
    open(sys.argv[1], "w").write(generate(over))
```

```python
import math, struct, sys
from asmlib import *

SLOT = 12288
KREG = 0
VREG = 6 * SLOT
EREG = 12 * SLOT
LDS_BYTES = 163840
OOB = 0x40000000

O_OFF = 0
PART_OFF = 0x2000000
FLAG_OFF = 0x4000000
STAMP_OFF = 0x10000000

SX, SW, SK, SV, SO = 8, 12, 16, 20, 24
SF, SD = 56, 60
SWO, SP, SOUT = 64, 68, 72
sW, sB, sH, sWOFF, sXB0, sXB1 = 34, 35, 36, 37, 38, 39
sOW, sOX, sOKV, sCNT, sTH = 40, 41, 42, 43, 44
sG = 45
sC = 46
sRET = 48
sPAD, sHL = 50, 51
sHB, sOB = 76, 80
sJ = 84
sSPIN = 90
sTRIP, sAO = 54, 55
sTM = 92
vAK, vAV, vAW, vAX = 8, 10, 14, 18
vOK, vOV, vOW, vOX = 22, 25, 28, 31
vST = 39
vPF = 8
vFR = 40
vS, vP, vNM, vTS, vL, vE = 64, 96, 128, 144, 148, 152
vA3 = 14
vOB = 18
vOWO = 28
vOP = 31
vFL = 35
PARK = [vA3, vA3 + 1, vA3 + 2, vA3 + 3, vOB, vOB + 3, vOWO, vOWO + 1, vOWO + 2, vOP, vOP + 3, vFL, vFL + 1, vFL + 2, vFL + 3, 5]
vFO, vFOP, vFP, vFPP = vFL, vFL + 1, vFL + 2, vFL + 3


def f32(x):
    return "0x%08x" % struct.unpack("<I", struct.pack("<f", x))[0]


def acc(dt, qt):
    return ("v", (160 if dt % 2 == 0 else 64) + ((dt >> 1) * 4 + qt) * 4)


def Qf(qt, s):
    return acc(2 * s, qt)


def Oa(dt, qt):
    return ("a", (dt * 4 + qt) * 4)


def Kf(a, s):
    return ("a", 192 + (a * 6 + s) * 4)


def Xf(beta, u, qt):
    return ("a", beta * 32 + (u * 4 + qt) * 4)


def St(a, qt):
    return ("v", vS + (a * 4 + qt) * 4)


def Pf(par, qt):
    return ("v", vP + par * 16 + qt * 4)


def NM(qt):
    return ("v", vNM + qt * 4)


def Lb(par):
    return ("v", vTS + 4 * par)


def rowsum_mfmas(par):
    return [MFMA(Lb(par), ("a", 240 + 4 * qt), Pf(par, qt), Lb(par ^ 1) if qt == 0 else Lb(par)) for qt in range(4)]


def FR(i):
    return ("v", vFR + (i % 6) * 4)


def wslot(n):
    buf = (n // 2) % 4
    base = {2: KREG, 3: KREG + 2 * SLOT, 0: KREG + 4 * SLOT, 1: VREG + 4 * SLOT}[buf]
    return base + (n % 2) * SLOT


def kslot(n):
    return KREG + (n % 6) * SLOT


def vslot(n):
    return VREG + (n % 6) * SLOT


def woslot(t):
    t %= 12
    return (kslot if t % 2 == 0 else vslot)(26 + t // 2)


def xregion(beta):
    return [(VREG + 2 * beta * SLOT, VREG + 2 * beta * SLOT + 3 * 8192), (EREG + beta * 8192, EREG + beta * 8192 + 8192)]


def vtype_read(dst, slot, dt, t, tag):
    if slot >= VREG:
        a, off = vAV, slot - VREG
    else:
        a, off = vAW, slot
    return DSTR((dst[0], dst[1] + 2 * t), a + (dt & 3), off + 1536 * t + 128 * (dt >> 2), tag)


def k_read(n, a, s):
    return DSR128(Kf(a, s), vAK + (s & 1), kslot(n) + 1536 * a + 128 * (s >> 1), ("K", n))


class DmaGroup:
    def __init__(self, pre, dmas, earliest=0):
        self.pre = pre
        self.dmas = dmas
        self.earliest = earliest
        self.deadline = 10**9


def grp_W(n, cfg):
    sl = wslot(n)
    return [DmaGroup([S(f"s_add_u32 m0, s{sWOFF}, {sl}"), S(f"s_mov_b32 s{sOW}, {n*393216}")],
                     [DMA(vOW + j, SW, f"s{sOW}", 1024 * j, ("W", n), cfg["wflags"], region=[(sl, sl + SLOT)]) for j in range(3)])]


def grp_X(c, cfg, after=()):
    beta = c & 1
    sb = sXB0 + beta
    g0 = DmaGroup([S(f"s_mov_b32 m0, s{sb}"), S(f"s_mov_b32 s{sOX}, {128*c}")],
                  [DMA(vOX + j, SX, f"s{sOX}", 1024 * j, ("X", c), cfg["xflags"], after=after, region=xregion(beta)) for j in range(4)])
    g1 = DmaGroup([S(f"s_add_u32 m0, s{sb}, 4096")],
                  [DMA(vOX + 4 + j, SX, f"s{sOX}", 1024 * j, ("X", c), cfg["xflags"], region=xregion(beta)) for j in range(4)])
    return [g0, g1]


def grp_K(n, cfg, loop=False):
    sl = kslot(n)
    so = S(f"s_add_u32 s{sOKV}, s{sOKV}, {SLOT}") if loop else S(f"s_mov_b32 s{sOKV}, {n*SLOT}")
    return [DmaGroup([S(f"s_add_u32 m0, s{sWOFF}, {sl}"), so],
                     [DMA(vOK + j, SK, f"s{sOKV}", 1024 * j, ("K", n), cfg["kvflags"], region=[(sl, sl + SLOT)]) for j in range(3)])]


def grp_V(n, cfg, loop=False):
    sl = vslot(n)
    pre = [S(f"s_add_u32 m0, s{sWOFF}, {sl}")]
    if not loop:
        pre.append(S(f"s_mov_b32 s{sOKV}, {(n+1)*SLOT}"))
    return [DmaGroup(pre,
                     [DMA(vOV + j, SV, f"s{sOKV}", 1024 * j, ("V", n), cfg["kvflags"], region=[(sl, sl + SLOT)]) for j in range(3)])]


def grp_WO(t, cfg):
    sl = woslot(t)
    return [DmaGroup([S(f"s_add_u32 m0, s{sWOFF}, {sl}"), S(f"s_add_u32 s{sOW}, s{sHB + KORD[t][0]}, {40960*KORD[t][1]}")],
                     [DMA(vOWO + j, SWO, f"s{sOW}", 1024 * j, ("WO", t), cfg["woflags"], region=[(sl, sl + SLOT)]) for j in range(3)])]


def group_seq(g):
    out = list(g.pre)
    if g.pre and g.pre[-1].text.split()[1].startswith("m0"):
        out.append(NOP(0))
    return out + list(g.dmas)


def seq_groups(P, groups):
    for g in groups:
        P.seq(group_seq(g))


def place_stream(P, G, groups, lo, hi, pace, ok, edf=False):
    pos = lo
    tgt = float(lo)
    groups = list(groups)
    while groups:
        if edf:
            av = [x for x in groups if x.earliest <= tgt + 2]
            g = min(av, key=lambda x: x.deadline) if av else min(groups, key=lambda x: x.earliest)
            groups.remove(g)
            groups.insert(0, g)
        g = groups[0]
        idx = []
        t = max(tgt, g.earliest + len(g.pre))
        k = pos + len(g.pre) + (1 if g.pre else 0)
        fail = False
        for d in g.dmas:
            k = max(k, int(t))
            while k < hi and not (ok(k) and not G[k].vec and not G[k].sca and not G[k].post):
                k += 1
            if k >= hi:
                fail = True
                break
            idx.append(k)
            t0 = t
            t = max(t + pace(k), k - 6)
            if edf:
                t += pace(k) * len([1 for q in range(int(t0) + 1, min(int(t) + 1, hi)) if G[q].isdma() and q != k and q not in idx])
            k += 1
        if fail:
            break
        assert idx[-1] <= g.deadline, (g.dmas[0].meta["tag"], idx, g.deadline)
        P.slack.append((g.dmas[0].meta["tag"], idx[0], idx[-1], g.deadline))
        for s_ in g.pre:
            P.flex_scalar(s_, list(reversed(G[pos:idx[0]])))
        for kk, d in zip(idx, g.dmas):
            G[kk].vec.append(d)
        pos = idx[-1] + 1
        tgt = t
        groups.pop(0)
    return groups


class Stamper:
    def __init__(self, cfg):
        self.on = cfg.get("stamps")
        self.it = cfg.get("itstamps")
        self.n = 0
        self.names = []
        self.pool = [4, 6, 8, 10, 12, 14, 16, 18, 20, 22, 28, 30, 96, 98, 100]
        self.pending = []

    def seq(self, P, name):
        if self.on and not self.it:
            k = self.n
            P.seq(RAW(f"s_memtime s[{sTM}:{sTM+1}]"), RAW(f"s_memrealtime s[{sTM+2}:{sTM+3}]"), WAIT(lg=0),
                  RAW(f"v_writelane_b32 v{vST}, s{sTM}, {2*k}"), RAW(f"v_writelane_b32 v{vST}, s{sTM+2}, {2*k+1}"))
            self.n += 1
            self.names.append(name)

    def light(self, g0, name):
        if self.on:
            r = self.pool.pop(0)
            g0.post.append(RAW(f"s_memtime s[{r}:{r+1}]"))
            self.pending.append((r, self.n))
            self.n += 1
            self.names.append(name)

    def flush(self, P):
        for r, k in self.pending:
            P.seq(RAW(f"v_writelane_b32 v{vST}, s{r}, {2*k}"), RAW(f"v_writelane_b32 v{vST}, s{sTM+2}, {2*k+1}"))
        self.pending = []

    def gap(self, g0, g1, name):
        if self.on:
            k = self.n
            g0.post += [RAW(f"s_memtime s[{sTM}:{sTM+1}]"), RAW(f"s_memrealtime s[{sTM+2}:{sTM+3}]")]
            g1.post += [RAW("s_waitcnt lgkmcnt(0)"), RAW(f"v_writelane_b32 v{vST}, s{sTM}, {2*k}"), RAW(f"v_writelane_b32 v{vST}, s{sTM+2}, {2*k+1}")]
            self.n += 1
            self.names.append(name)


def srd(base, lo, hi, off, size):
    return [S(f"s_add_u32 s{base}, s{lo}, {off}"), S(f"s_addc_u32 s{base+1}, s{hi}, 0"),
            S(f"s_mov_b32 s{base+2}, {size}"), S(f"s_mov_b32 s{base+3}, 0x20000")]


def prologue(P, cfg, ST):
    A = P.seq
    A(S("s_cmp_ge_u32 s2, 256"), I("s_cbranch_scc1 KF_done", "branch"))
    A(RAW("s_load_dwordx4 s[4:7], s[0:1], 0"), RAW("s_load_dwordx4 s[28:31], s[0:1], 16"), RAW("s_load_dwordx4 s[96:99], s[0:1], 32"),
      RAW("s_load_dwordx2 s[100:101], s[0:1], 48"), RAW("s_load_dwordx2 s[32:33], s[0:1], 56"))
    if ST.on:
        A(RAW(f"s_memtime s[{sTM}:{sTM+1}]"), RAW(f"s_memrealtime s[{sTM+2}:{sTM+3}]"))
    A(V("v_lshrrev_b32 v1, 6, v0"), V("v_and_b32 v0, 63, v0"))
    A(V(f"v_readfirstlane_b32 s{sW}, v1"))
    if cfg["codepf"]:
        n = cfg["codepf"]
        A(RAW("s_getpc_b64 s[52:53]"), LABEL("KF_pc"), S("s_lshr_b32 s3, s2, 3"), S(f"s_lshl_b32 s3, s3, 2"), S(f"s_add_u32 s3, s3, s{sW}"),
          S(f"s_mul_i32 s3, s3, {n*128}"), V(f"v_min_u32 v2, {n-1}, v0"), V("v_lshl_add_u32 v2, v2, 7, s3"),
          RAW("v_min_u32 v2, KF_end-KF_pc-4, v2"), V("v_mov_b32 v3, s53"), V("v_add_co_u32 v2, vcc, s52, v2"), NOP(1),
          RAW("v_addc_co_u32 v3, vcc, 0, v3, vcc"), RAW("global_load_dword v42, v[2:3], off"))
    m = cfg["map"]
    if m == "hg4":
        A(S(f"s_and_b32 s{sG}, s2, 7"), S(f"s_lshr_b32 s{sB}, s2, 5"), S(f"s_bfe_u32 s{sHL}, s2, 0x20003"))
    elif m == "4x8":
        A(S(f"s_bfe_u32 s{sHL}, s2, 0x20003"), S(f"s_and_b32 s{sG}, s2, 6"), S("s_bfe_u32 s3, s2, 0x10005"), S(f"s_add_u32 s{sG}, s{sG}, s3"),
          S(f"s_and_b32 s{sB}, s2, 1"), S(f"s_lshl_b32 s{sB}, s{sB}, 2"), S("s_lshr_b32 s3, s2, 6"), S(f"s_add_u32 s{sB}, s{sB}, s3"))
    elif m == "batch":
        A(S(f"s_and_b32 s{sB}, s2, 7"), S(f"s_lshr_b32 s{sG}, s2, 5"), S(f"s_bfe_u32 s{sHL}, s2, 0x20003"))
    A(S(f"s_lshl_b32 s{sH}, s{sG}, 2"), S(f"s_add_u32 s{sH}, s{sH}, s{sHL}"))
    A(V("v_lshrrev_b32 v2, 3, v0"), V("v_lshl_add_u32 v2, v1, 6, v2"), V("v_mul_u32_u24 v2, 1280, v2"),
      V("v_lshrrev_b32 v3, 4, v0"), V("v_and_b32 v4, 7, v0"), V("v_xor_b32 v3, v3, v4"),
      V(f"v_lshl_add_u32 v{vOX}, v3, 4, v2"), V("v_xor_b32 v3, 4, v3"), V("v_lshl_add_u32 v4, v3, 4, v2"))
    for j in range(1, 8):
        src = f"v{vOX}" if j % 2 == 0 else "v4"
        A(V(f"v_add_u32 v{vOX+j}, {10240*j - 1024*(j&3)}, {src}"))
    A(S(f"s_mul_i32 s{sWOFF}, s{sW}, 3072"), S(f"s_lshl_b32 s{sXB0}, s{sW}, 13"),
      S(f"s_add_u32 s{sXB1}, s{sXB0}, {VREG+2*SLOT}"), S(f"s_add_u32 s{sXB0}, s{sXB0}, {VREG}"),
      S(f"s_cmp_eq_u32 s{sW}, 3"), S(f"s_cselect_b32 s{sXB0}, {EREG}, s{sXB0}"), S(f"s_cselect_b32 s{sXB1}, {EREG+8192}, s{sXB1}"),
      S(f"s_cselect_b32 s{sPAD}, {f32(-1000.0)}, 0"))
    if ST.on and not ST.it:
        A(RAW("s_memtime s[56:57]"), RAW("s_memrealtime s[58:59]"))
    A(RAW("s_waitcnt lgkmcnt(0)"))
    if ST.on:
        A(RAW(f"v_mov_b32 v{vST}, 0"), RAW(f"v_writelane_b32 v{vST}, s{sTM}, 0"), RAW(f"v_writelane_b32 v{vST}, s{sTM+2}, 1"))
        ST.n = 1
        ST.names.append("start")
        if not ST.it:
            A(RAW(f"v_writelane_b32 v{vST}, s56, 2"), RAW(f"v_writelane_b32 v{vST}, s58, 3"))
            ST.n = 2
            ST.names.append("prewait")
            ST.seq(P, "karg")
    A(S(f"s_mul_i32 s3, s{sB}, 307200"), srd(SX, 4, 5, "s3", 307200))
    seq_groups(P, grp_X(0, cfg))
    A(V("v_and_b32 v5, 1, v1"), V("v_lshlrev_b32 v5, 2, v5"))
    for j in range(3):
        A(V(f"v_add_u32 v2, {64*j}, v0"), V("v_mul_u32_u24 v3, 2731, v2"), V("v_lshrrev_b32 v3, 16, v3"),
          V("v_mul_u32_u24 v4, 24, v3"), V("v_sub_u32 v2, v2, v4"),
          V("v_and_or_b32 v4, v3, 2, v5"), V(f"v_xor_b32 v{vOV+j}, v2, v4"),
          V(f"v_lshl_add_u32 v{vOK+j}, v1, 3, v3"),
          V(f"v_mul_u32_u24 v7, 12288, v{vOK+j}"), V(f"v_lshl_add_u32 v{vOW+j}, v{vOV+j}, 4, v7"))
        if j:
            A(V(f"v_subrev_u32 v{vOW+j}, {1024*j}, v{vOW+j}"))
    A(S(f"s_mul_i32 s3, s{sH}, 384"), srd(SW, 30, 31, "s3", 0), S(f"s_sub_u32 s{SW+2}, 7864320, s3"))
    seq_groups(P, grp_W(0, cfg))
    stream = grp_W(1, cfg)
    for s in range(1, 10):
        gw = grp_W(2 * s, cfg) + grp_W(2 * s + 1, cfg)
        for g in gw:
            g.earliest = 96 * (s - 4) + 82 if s >= 4 else 0
            g.deadline = 96 * (min(s, 8) - 1) + 79
        gx = grp_X(s, cfg, after=[("X", s - 2)] if s >= 2 else ())
        for g in gx:
            g.earliest = xread_gap(s - 2, cfg) + 12 if s >= 3 else 0
            g.deadline = xread_gap(s, cfg) - 2
        stream += gw + gx
    A(S(f"s_lshl_b32 s91, s{sB}, 2"), S(f"s_add_u32 s91, s91, s{sHL}"), S("s_lshl_b32 s91, s91, 2"), S(f"s_add_u32 s91, s91, s{sW}"))
    A(S("s_mul_i32 s3, s91, 12288"), S(f"s_mul_i32 s88, s{sHL}, 384"), S("s_sub_u32 s3, s3, s88"), S(f"s_add_u32 s3, s3, {128*12288}"),
      V("v_min_u32 v2, 11, v0"), V(f"v_lshl_add_u32 v{vPF}, v2, 7, s3"),
      S(f"s_lshl_b32 s3, s{sH}, 2"), S(f"s_add_u32 s3, s3, s{sW}"), S("s_mul_i32 s3, s3, 2560"),
      V("v_bfe_u32 v2, v0, 1, 1"), V("v_mul_u32_u24 v2, 1280, v2"), V("v_and_b32 v3, 1, v0"), V("v_lshl_add_u32 v2, v3, 7, v2"),
      V(f"v_add_u32 v{vPF+1}, s3, v2"))
    for i, pos in reversed(list(enumerate(cfg["p1pf"]))):
        if pos is None:
            continue
        g = DmaGroup([S(f"s_mov_b32 s{sAO}, {i*128*12288}")],
                     [VLOAD(("a", 190), vPF + 1, SX, 0, 256 * (i + 1), "pf", "", n=1), VLOAD(("a", 191), vPF, SW, f"s{sAO}", 0, "pf", "", n=1)])
        stream.insert(pos + 1, g)
    A(V("v_and_b32 v1, 15, v0"), V("v_lshrrev_b32 v2, 4, v0"))
    A(V("v_lshrrev_b32 v3, 1, v1"), V("v_xor_b32 v3, v3, v2"), V("v_lshlrev_b32 v3, 4, v3"), V("v_lshl_add_u32 v3, v1, 7, v3"),
      V("v_xor_b32 v4, 64, v3"),
      V(f"v_add_u32 v{vAX}, s{sXB0}, v3"), V(f"v_add_u32 v{vAX+1}, s{sXB0}, v4"),
      V(f"v_add_u32 v{vAX+2}, s{sXB1}, v3"), V(f"v_add_u32 v{vAX+3}, s{sXB1}, v4"))
    A(V("v_lshrrev_b32 v3, 2, v1"), V("v_lshl_add_u32 v4, v2, 3, v3"), V("v_mul_u32_u24 v4, 384, v4"),
      V("v_and_b32 v5, 3, v1"), V("v_lshl_add_u32 v4, v5, 3, v4"),
      V("v_lshrrev_b32 v3, 3, v1"), V("v_and_b32 v5, 1, v2"), V("v_lshl_or_b32 v3, v5, 1, v3"))
    for e in range(4):
        A(V(f"v_xor_b32 v5, {e}, v3"), V(f"v_lshl_add_u32 v{vAW+e}, v5, 5, v4"), V(f"v_add_u32 v{vAV+e}, {VREG}, v{vAW+e}"))
    seq_groups(P, stream[:cfg["npro"]])
    del stream[:cfg["npro"]]
    stream.append(DmaGroup([], [VSTORE(("a", 184), 2, SF, 0, 0, "sc1", n=1, tag="finit"), VSTORE(("a", 184), 3, SF, 0, 0, "sc1", n=4, tag="finit")]))
    return stream


def background(cfg):
    B_ = []

    def A(*ins):
        for x in ins:
            if isinstance(x, (list, tuple)):
                A(*x)
            else:
                B_.append(x)
    park = {}

    def pk(reg, src):
        park[reg] = True
        A(V(f"v_accvgpr_write_b32 a{240+PARK.index(reg)}, {src}"))
    A(V("v_lshrrev_b32 v3, 1, v2"), V("v_mul_u32_u24 v3, 6144, v3"), V("v_and_b32 v4, 1, v2"), V("v_lshrrev_b32 v5, 2, v1"),
      V("v_lshl_add_u32 v5, v4, 2, v5"), V("v_mul_u32_u24 v5, 320, v5"), V("v_add_u32 v3, v3, v5"), V("v_and_b32 v5, 3, v1"),
      V("v_lshl_add_u32 v3, v5, 3, v3"), V("v_lshl_add_u32 v5, v4, 5, v3"), V("v_xor_b32 v4, 1, v4"), V("v_lshl_add_u32 v4, v4, 5, v3"),
      V(f"v_add_u32 v6, {VREG}, v5"), V(f"v_add_u32 v7, {VREG}, v4"))
    pk(vA3, "v5")
    pk(vA3 + 1, "v4")
    pk(vA3 + 2, "v6")
    pk(vA3 + 3, "v7")
    A(V("v_lshrrev_b32 v3, 2, v1"), V("v_and_b32 v4, 3, v1"), V("v_lshl_add_u32 v4, v3, 3, v4"), V("v_mul_u32_u24 v4, 384, v4"),
      V("v_and_b32 v3, 1, v3"), V("v_and_b32 v5, 2, v1"), V("v_or_b32 v3, v3, v5"), V("v_lshrrev_b32 v5, 3, v1"), V("v_lshl_or_b32 v3, v5, 2, v3"),
      V("v_lshrrev_b32 v5, 1, v2"), V("v_and_b32 v6, 1, v2"), V("v_lshl_or_b32 v5, v6, 1, v5"), V("v_xor_b32 v3, v3, v5"),
      V("v_lshl_add_u32 v6, v3, 4, v4"), V("v_xor_b32 v3, 4, v3"), V("v_lshl_add_u32 v7, v3, 4, v4"))
    A(V(f"v_mov_b32 v1, s{sW}"))
    A(S(f"s_and_b32 s3, s{sW}, 1"), S("s_mul_i32 s3, s3, 5"), S(f"s_lshr_b32 s88, s{sW}, 1"), S("s_lshl_b32 s88, s88, 2"), S("s_xor_b32 s3, s3, s88"))
    for j in range(3):
        A(V(f"v_mul_u32_u24 v3, 384, v{vOK+j}"))
        if j:
            A(V(f"v_subrev_u32 v3, {1024*j}, v3"))
        A(V(f"v_xor_b32 v2, s3, v{vOV+j}"), V(f"v_lshl_add_u32 v{vOK+j}, v2, 4, v3"), V(f"v_lshl_add_u32 v{vOV+j}, v{vOV+j}, 4, v3"))
    A(S(f"s_lshl_b32 s{sCNT}, s{sB}, 5"), S(f"s_add_u32 s{sCNT}, s{sCNT}, s{sH}"), S(f"s_mul_i32 s3, s{sCNT}, 393216"),
      srd(SK, 6, 7, "s3", 393216), srd(SV, 28, 29, "s3", 393216 + SLOT),
      S(f"s_sub_u32 s{SV}, s{SV}, {SLOT}"), S(f"s_subb_u32 s{SV+1}, s{SV+1}, 0"))
    A(srd(SF, 32, 33, FLAG_OFF, 0x60000))
    A(S(f"s_sub_u32 s3, s{sCNT}, s{sHL}"), S("s_mul_i32 s3, s3, 92160"), srd(SO, 32, 33, "s3", 4 * 92160))
    A(S(f"s_mul_i32 s3, s{sG}, {768*1280}"), S(f"s_mul_i32 s52, s{sHL}, 320"), S("s_add_u32 s3, s3, s52"),
      srd(SWO, 96, 97, "s3", 0), S(f"s_sub_u32 s{SWO+2}, 7864320, s3"))
    A(S(f"s_lshl_b32 s3, s{sB}, 2"), S(f"s_add_u32 s3, s3, s{sHL}"), S(f"s_mul_i32 s3, s3, {75*8192}"), S(f"s_add_u32 s3, s3, {PART_OFF}"),
      srd(SP, 32, 33, "s3", 75 * 8192))
    A(S(f"s_mul_i32 s3, s{sB}, 307200"), S("s_add_u32 s3, s3, s52"), srd(SOUT, 98, 99, "s3", 0), S(f"s_sub_u32 s{SOUT+2}, 2457600, s3"))
    A(S(f"s_lshl_b32 s3, s{sB}, 5"), srd(SD, 100, 101, "s3", 4), S(f"s_add_u32 s{sTRIP}, s{sHL}, 1"))
    for p in range(4):
        A(S(f"s_add_u32 s3, s{sHL}, {p}"), S("s_and_b32 s3, s3, 3"), S(f"s_mul_i32 s{sHB+p}, s3, 245760"), S(f"s_mul_i32 s{sOB+p}, s3, 92160"))
    c = math.log2(math.e) / math.sqrt(192.0)
    A(S(f"s_mov_b32 s{sC}, {f32(c)}"), S(f"s_mov_b32 s{sTH}, {f32(cfg['thresh'])}"))
    A(S("s_mul_i32 s3, s91, 6"),
      V("v_min_u32 v2, 59, v0"), V("v_mul_u32_u24 v3, 6554, v2"), V("v_lshrrev_b32 v3, 16, v3"), V("v_mul_u32_u24 v4, 10, v3"),
      V("v_sub_u32 v2, v2, v4"), V("v_add_u32 v3, s3, v3"), V("v_mul_u32_u24 v3, 1280, v3"), V("v_lshl_add_u32 v2, v2, 7, v3"),
      V("v_subrev_u32 v2, s52, v2"), V("v_max_i32 v2, 0, v2"))
    pk(5, "v2")
    A(V("v_and_b32 v5, 1, v1"), V("v_lshrrev_b32 v4, 1, v1"), V("v_lshl_or_b32 v5, v5, 1, v4"))
    for j in range(3):
        A(V(f"v_add_u32 v2, {64*j}, v0"), V("v_mul_u32_u24 v3, 3277, v2"), V("v_lshrrev_b32 v3, 16, v3"),
          V("v_mul_u32_u24 v4, 20, v3"), V("v_sub_u32 v2, v2, v4"),
          V("v_lshrrev_b32 v4, 1, v3"), V("v_and_b32 v4, 2, v4"), V("v_xor_b32 v2, v2, v4"),
          V("v_lshl_add_u32 v3, v5, 3, v3"), V("v_mul_u32_u24 v3, 1280, v3"), V("v_lshl_add_u32 v2, v2, 4, v3"))
        if j:
            A(V(f"v_subrev_u32 v2, {1024*j}, v2"))
        if j == 2:
            A(V("v_lshrrev_b32 v3, 5, v0"), V("v_lshl_or_b32 v2, v3, 30, v2"))
        pk(vOWO + j, "v2")
    A(S(f"s_cmp_eq_u32 s{sW}, 3"), S(f"s_cselect_b32 s88, {OOB}, 0"))
    A(V("v_mul_u32_u24 v2, 24576, v1"), V("v_lshl_add_u32 v2, v0, 4, v2"), V("v_add_u32 v3, s88, v2"), V(f"v_add_u32 v3, {3*6144}, v3"))
    pk(vOB, "v2")
    pk(vOB + 3, "v3")
    A(S(f"s_lshl_b32 s3, s{sG}, 10"), V("v_lshlrev_b32 v2, 15, v1"), V("v_lshl_add_u32 v2, v0, 4, v2"), V("v_add_u32 v2, s3, v2"),
      V("v_add_u32 v3, s88, v2"), V(f"v_add_u32 v3, {3*8192}, v3"))
    pk(vOP, "v2")
    pk(vOP + 3, "v3")
    A(S(f"s_lshl_b32 s84, s{sB}, 3"), S(f"s_add_u32 s84, s84, s{sG}"), S("s_lshl_b32 s84, s84, 2"), S(f"s_add_u32 s84, s84, s{sW}"),
      S("s_lshl_b32 s84, s84, 9"),
      S(f"s_lshl_b32 s85, s{sB}, 2"), S(f"s_add_u32 s85, s85, s{sHL}"), S("s_lshl_b32 s85, s85, 13"), S("s_add_u32 s85, s85, 0x20000"),
      S(f"s_lshl_b32 s86, s{sHL}, 7"), S("s_add_u32 s86, s86, s84"),
      S(f"s_lshl_b32 s87, s{sG}, 7"), S("s_add_u32 s87, s87, s85"),
      S("s_add_u32 s3, s3, s85"))
    A(V("v_bfe_u32 v4, v0, 4, 2"), V("v_lshl_add_u32 v4, v4, 7, s84"), V("v_lshrrev_b32 v2, 3, v0"), V("v_lshl_add_u32 v5, v2, 7, s3"),
      V("v_lshl_add_u32 v3, v2, 10, s87"), V("v_and_b32 v2, 7, v0"), V("v_lshl_add_u32 v3, v2, 4, v3"), V("v_min_u32 v2, 1, v1"),
      V("v_lshl_or_b32 v3, v2, 30, v3"), V("v_and_b32 v2, 31, v0"), V("v_lshl_add_u32 v2, v2, 2, s86"))
    pk(vFO, "v2")
    pk(vFP, "v3")
    pk(vFOP, "v4")
    pk(vFPP, "v5")
    assert len(park) == len(PARK)
    A([V(f"v_accvgpr_write_b32 a{184+k}, 0") for k in range(4)])
    A(S(f"s_lshl_b32 s3, s{sW}, 3"), S(f"s_add_u32 s3, s3, s{sG}"))
    for r in range(3):
        A(S(f"s_add_u32 s{sSPIN}, s3, {30*r}"), S(f"s_lshl_b32 s{sJ+r}, s{sSPIN}, 13"),
          S(f"s_mul_i32 s91, s{sSPIN}, 4370"), S("s_lshr_b32 s91, s91, 16"),
          S(f"s_mul_i32 s{sJ+3+r}, s91, {64 - 15*20480}"), S(f"s_mul_i32 s{sSPIN}, s{sSPIN}, 20480"),
          S(f"s_add_u32 s{sJ+3+r}, s{sJ+3+r}, s{sSPIN}"),
          S(f"s_cmp_lt_u32 s3, {(30, 30, 15)[r]}"), S(f"s_cselect_b32 s91, 0, {OOB}"),
          S(f"s_or_b32 s{sJ+r}, s{sJ+r}, s91"), S(f"s_or_b32 s{sJ+3+r}, s{sJ+3+r}, s91"))
    late = [V(f"v_mov_b32 v{vAK}, v6"), V(f"v_mov_b32 v{vAK+1}, v7"),
            V(f"v_or_b32 v6, s{sW}, v0"), V("v_lshlrev_b32 v6, 8, v6"), V("v_mov_b32 v7, 1")]
    return B_, late


def fill_background(G, ins, lo, hi):
    k = 0
    gi = lo
    while k < len(ins):
        n = 2 if k + 1 < len(ins) and ins[k + 1].text.startswith(("s_addc", "s_subb", "s_cselect")) else 1
        while G[gi].free() < n:
            gi += 1
        assert gi < hi
        G[gi].vec += ins[k:k + n]
        k += n
    return gi


def xread_gap(c, cfg):
    if c == 9:
        return 96 * 7 + 86
    return 96 * (c - 1) + (84 if c < cfg["xearly"] else 42)


def Xr(c, u, qt):
    return Xf(2 if c == 9 else c & 1, u, qt)


def x_read(c, u, qt):
    return DSR128(Xr(c, u, qt), vAX + 2 * (c & 1) + u, 2048 * qt, ("X", c))


def AL(dt, u):
    return ("a", (128 if dt == 11 else 96 + (dt & 1) * 16) + 4 * u)


def K0f(a, s):
    return ("a", 144 + (a * 6 + s) * 4)


def w_reads(stage, dt):
    gdt = stage * 12 + dt
    out = []
    for u in range(4 if stage == 8 else 2):
        n = 2 * stage + u
        for t in range(2):
            out.append(vtype_read(AL(dt, u) if stage == 8 else FR(2 * (gdt % 3) + u), wslot(n), dt, t, ("W", n)))
    return out


BL1, BL2 = 768 + 13, 768 + 161


def kv_prefill(cfg):
    LA = cfg["LA"]
    out = []
    seq = [("K", 0)]
    for n in range(1, LA):
        seq += [("K", n), ("V", n - 1)]
    free = {("K", 0): 658, ("K", 1): 658, ("K", 2): 754, ("K", 3): 754, ("K", 4): BL2 + 1, ("K", 5): BL2 + 1,
            ("V", 0): BL1 + 1, ("V", 1): BL1 + 1, ("V", 2): BL1 + 1, ("V", 3): BL1 + 1, ("V", 4): BL2 + 1}
    if LA >= 3:
        seq[2], seq[3] = seq[3], seq[2]
    for t in seq:
        g = (grp_K if t[0] == "K" else grp_V)(t[1], cfg)[0]
        g.earliest = free[t]
        if t in (("K", 0), ("K", 1)):
            g.deadline = BL2 - 2
        out.append(g)
    return out


def put_reads(G, g, r, step=1):
    for k in range(0, len(r), 2):
        assert G[g].free() >= 2, g
        G[g].vec += r[k:k + 2]
        g += step


def phase1(P, cfg, ST, stream):
    A = P.seq
    ST.seq(P, "issued")
    if cfg["tour"]:
        A(RAW("s_mov_b64 exec, 0"))
        for w in range(1, 4):
            A(RAW(f"s_cmp_eq_u32 s{sW}, {w}"), RAW(f"s_cbranch_scc1 KF_pg{w}"))
        A(RAW("s_branch KF_pg4"), LABEL("KF_tret"), RAW("s_mov_b64 exec, -1"))
    A(RAW("s_branch KF_go"), RAW(".p2align 12"), LABEL("KF_go"))
    ST.seq(P, "toured")
    seq_groups(P, stream[:cfg["npro2"]])
    stream = stream[cfg["npro2"]:]
    A(WAITV(("X", 0), ("W", 0), ("W", 1)), BARRIER())
    ST.seq(P, "landed")
    for u in range(2):
        for qt in range(4):
            A(x_read(0, u, qt))
    A(w_reads(0, 0), w_reads(0, 1))
    mfs = []
    for st in range(8):
        for dt in range(12):
            gdt = st * 12 + dt
            for qt in range(4):
                for u in range(2):
                    C = 0 if (st == 0 and u == 0) else acc(dt, qt)
                    m = MFMA(acc(dt, qt), FR(2 * (gdt % 3) + u), Xr(st, u, qt), C)
                    if qt == 0 and u == 0:
                        m.rd |= set(regs("v", FR(2 * (gdt % 3) + 1)[1], 4))
                        if dt == 0:
                            m.rd |= set(regs("a", Xr(st, 0, 0)[1], 32))
                    mfs.append(m)
    done = {}
    order = [(dt, qt) for dt in range(10) for qt in range(4)] + [(dt, qt) for qt in range(4) for dt in (10, 11)]
    for dt, qt in order:
        for u in range(4):
            m = MFMA(acc(dt, qt), AL(dt, u), Xr(8 + u // 2, u & 1, qt), acc(dt, qt))
            if qt == 0 and u == 0:
                m.rd |= set(regs("a", AL(dt, 0)[1], 16))
                if dt == 0:
                    m.rd |= set(regs("a", Xr(9, 0, 0)[1], 32))
            mfs.append(m)
        done[(dt, qt)] = len(mfs) - 1
    assert len(mfs) == 960
    for qt in range(4):
        for a in range(2):
            for s in range(6):
                m = MFMA(St(a, qt), K0f(a, s), Qf(qt, s), 0 if s == 0 else St(a, qt))
                if qt == 0 and s == 0:
                    m.rd |= set(regs("a", K0f(a, 0)[1], 24))
                mfs.append(m)
    G = P.gaps(mfs)
    for st in range(8):
        b = 96 * st
        for dt in range(2, 12):
            put_reads(G, b + 8 * (dt - 2), w_reads(st, dt))
        put_reads(G, b + 82, w_reads(st + 1, 0))
        if st < 7:
            put_reads(G, b + 88, w_reads(st + 1, 1))
        need = [("W", 2 * st + 2), ("W", 2 * st + 3)] if st < 7 else [("W", n) for n in range(16, 20)]
        if cfg.get("p1stamps"):
            ST.gap(G[b + 79], G[b + 81], f"st{st}")
        G[b + 80].sca.append(WAITV(*need))
        G[b + 81].sca.append(BARRIER(frees=[("W", 2 * st), ("W", 2 * st + 1)]))
    for c in range(1, 10):
        g = xread_gap(c, cfg)
        G[g - 1].sca.append(WAITV(("X", c)))
        put_reads(G, g, [x_read(c, u, qt) for u in range(2) for qt in range(4)])
    for dt in range(1, 11):
        put_reads(G, 768 + 16 * (dt - 1), w_reads(8, dt))
    put_reads(G, 768 + 16 * 9 + 4, w_reads(8, 11))
    G[BL1].sca.append(BARRIER(frees=[("X", 8), ("X", 9)]))
    G[BL2 - 1].sca.append(WAITV(("K", 0), ("K", 1), "finit"))
    G[BL2].sca.append(BARRIER(frees=[("W", n) for n in range(16, 20)]))
    r = [DSR128(K0f(a, s), vAK + (s & 1), kslot(0) + 1536 * a + 128 * (s >> 1), ("K", 0)) for a in range(2) for s in range(6)]
    put_reads(G, BL2 + 1, r, 3)
    put_reads(G, 962, [k_read(1, 0, s) for s in range(6)], 3)
    ok = lambda k: k % 8 != 7
    pc = cfg["pace"]

    def pace(k):
        for lim, p in pc:
            if k < lim:
                return p
        return pc[-1][1]
    left = place_stream(P, G, stream, 0, 960, pace, ok)
    assert not left
    last = max(k for k, g in enumerate(G) if g.isdma())
    left = place_stream(P, G, kv_prefill(cfg), last + 1, len(G), lambda k: cfg["kvpace"], ok)
    bg, late = background(cfg)
    first_use = min(k for k, g in enumerate(G) for x in g.vec if x.meta.get("tag") in ("finit", ("K", 0)))
    k = fill_background(G, bg, cfg["bgstart"], first_use - 8)
    lastpf = max([k] + [q for q, g in enumerate(G) for x in g.vec if x.meta.get("tag") == "pf"])
    fill_background(G, late, lastpf + 1, 760)
    ops = []
    swaps = []
    LAG = 5

    def muls(dt, qt, dl):
        r = acc(dt, qt)[1]
        return [(done[(dt, qt)] + LAG, dl, V(f"v_mul_f32 v{r+k}, s{sC}, v{r+k}")) for k in range(4)]
    for s in range(6):
        if s < 5:
            for qt in range(4):
                ops += muls(2 * s, qt, 958)
        for qt in range(4):
            dl = 960 + 12 * qt + s - 2
            if s == 5:
                ops += muls(10, qt, dl)
            ops += muls(2 * s + 1, qt, dl)
            ops += swaps
            a_, b_ = acc(2 * s, qt)[1], acc(2 * s + 1, qt)[1]
            e = done[(2 * s + 1, qt)] + LAG
            ops += [(e, dl, V(f"v_cvt_pk_bf16_f32 v{a_}, v{a_}, v{a_+1}")), (e, dl, V(f"v_cvt_pk_bf16_f32 v{a_+1}, v{a_+2}, v{a_+3}")),
                    (e, dl, V(f"v_cvt_pk_bf16_f32 v{a_+2}, v{b_}, v{b_+1}")), (e, dl, V(f"v_cvt_pk_bf16_f32 v{a_+3}, v{b_+2}, v{b_+3}"))]
            swaps = [(e, dl, V(f"v_permlane16_swap_b32 v{a_}, v{a_+2}")), (e, dl, V(f"v_permlane16_swap_b32 v{a_+1}, v{a_+3}"))]
            if s == 5:
                ops += swaps
                swaps = []
    INF = 10**9
    rm = rowmax(1)
    for pr in range(2):
        q0, q1 = 2 * pr, 2 * pr + 1
        ops += [(960 + 12 * q0 + 11 + LAG, INF, x) for x in rm[4 * q0:4 * q0 + 4]]
        e = 960 + 12 * q1 + 11 + LAG
        blk = rm[4 * q1:4 * q1 + 4] + xred([1 + q0, 1 + q1], [vE, vE + 1], "v_max_f32")
        if pr == 1:
            blk.append(V(f"v_subrev_f32 v4, s{sPAD}, v4"))
        for qt in (q0, q1):
            blk += [V(f"v_sub_f32 v{vNM+4*qt+r}, 0, v{1+qt}") for r in range(4)]
            blk.append(V(f"v_mov_b32 v{vL+qt}, 0") if qt < 3 else V(f"v_sub_f32 v{vL+qt}, 0, s{sPAD}"))
        blk += softmax_seq(0, 1, [q0, q1], not cfg["R"])
        ops += [(e, INF, x) for x in blk if x.kind != "nop"]
    rest = [x for _, _, x in fill_ops(G, ops, 768)]
    if cfg.get("dbgp1"):
        lo_, hi_, st_ = cfg["dbgp1"]
        for k in range(lo_, hi_, st_):
            G[k].post.append(RAW("s_nop 7"))
    ST.seq(P, "qk0end")
    dm = sum((group_seq(g) for g in left), [])
    step = max(1, len(rest) // (len(dm) + 1))
    for k, x in enumerate(rest):
        if dm and k % step == step - 1:
            A(dm.pop(0))
        A(x)
    A(dm)
    A(WAITV(("V", 0), ("K", 2)), BARRIER(frees=[("K", 0)]))


def qk_mfmas(first):
    out = []
    for a in range(2):
        for qt in range(4):
            for s in range(6):
                C = (0 if first else NM(qt)) if s == 0 else St(a, qt)
                m = MFMA(St(a, qt), Kf(a, s), Qf(qt, s), C)
                if qt == 0 and s in (0, 3):
                    m.rd |= set(regs("a", Kf(a, s)[1], 12))
                out.append(m)
    return out


def pv_mfmas(j):
    out = []
    for dt in range(12):
        for qt in range(4):
            out.append(MFMA(Oa(dt, qt), FR(dt), Pf(j & 1, qt), 0 if j == 0 else Oa(dt, qt)))
    return out


def xred(x, t, op):
    out = []
    for sw in ("v_permlane32_swap_b32", "v_permlane16_swap_b32"):
        for a, b in zip(x, t):
            out.append(V(f"v_mov_b32 v{b}, v{a}"))
        out.append(NOP(0))
        for a, b in zip(x, t):
            out.append(V(f"{sw} v{b}, v{a}"))
        for a, b in zip(x, t):
            out.append(V(f"{op} v{a}, v{a}, v{b}"))
    return out


def rowmax(dst):
    out = []
    for qt in range(4):
        s0, s1 = St(0, qt)[1], St(1, qt)[1]
        d = dst + qt
        out += [V(f"v_max3_f32 v{d}, v{s0}, v{s0+1}, v{s0+2}"), V(f"v_max3_f32 v{d}, v{d}, v{s0+3}, v{s1}"),
                V(f"v_max3_f32 v{d}, v{d}, v{s1+1}, v{s1+2}"), V(f"v_max_f32 v{d}, v{d}, v{s1+3}")]
    return out


def softmax_seq(par, delta, qts=range(4), adds=True):
    out = []
    for qt in qts:
        for a in range(2):
            s = St(a, qt)[1]
            for r in range(4):
                out.append(V(f"v_sub_f32 v{vE+4*a+r}, v{s+r}, v{delta+qt}"))
        for k in range(8):
            out.append(V(f"v_exp_f32 v{vE+k}, v{vE+k}"))
        p = Pf(par, qt)[1]
        if adds:
            out.append(V(f"v_add_f32 v{vTS+qt}, v{vE}, v{vE+1}"))
            for k in range(2, 8):
                out.append(V(f"v_add_f32 v{vTS+qt}, v{vTS+qt}, v{vE+k}"))
        for k in range(4):
            out.append(V(f"v_cvt_pk_bf16_f32 v{p+k}, v{vE+2*k}, v{vE+2*k+1}"))
    return out


def unpark():
    un = [V(f"v_accvgpr_read_b32 v{r}, a{240+k}") for k, r in enumerate(PARK)]
    un += [V(f"v_add_u32 v{vOB+1}, 6144, v{vOB}"), V(f"v_add_u32 v{vOB+2}, 12288, v{vOB}"),
           V(f"v_add_u32 v{vOP+1}, 8192, v{vOP}"), V(f"v_add_u32 v{vOP+2}, 16384, v{vOP}")]
    return un


def asel_setup():
    out = [V("v_and_b32 v2, 3, v0"), V("v_mov_b32 v3, 0x3f803f80")]
    for qt in range(4):
        out += [V(f"v_cmp_eq_u32 vcc, {qt}, v2"), V("v_cndmask_b32 v4, 0, v3, vcc")]
        out += [V(f"v_accvgpr_write_b32 a{240+4*qt+k}, v4") for k in range(4)]
    return out


def fallback(par, cfg):
    out = [LABEL(f"KF_fix{par}"), NOP(7)]
    out += rowmax(1)
    out += xred([1, 2, 3, 4], [vE, vE + 1, vE + 2, vE + 3], "v_max_f32")
    for qt in range(4):
        out.append(V(f"v_max_f32 v{1+qt}, 0, v{1+qt}"))
    out += softmax_seq(par, 1, range(4), not cfg["R"])
    for qt in range(4):
        for r in range(4):
            out.append(V(f"v_sub_f32 v{vNM+4*qt+r}, v{vNM+4*qt+r}, v{1+qt}"))
    for qt in range(4):
        out.append(V(f"v_exp_f32 v{1+qt}, -v{1+qt}"))
    out.append(NOP(0))
    for qt in range(4):
        lo = Lb(par ^ 1)[1] if cfg["R"] else vL
        out.append(V(f"v_mul_f32 v{lo+qt}, v{lo+qt}, v{1+qt}"))
    if cfg["R"]:
        out += [NOP(1)] + rowsum_mfmas(par)
    for dt in range(12):
        for qt in range(4):
            a = Oa(dt, qt)[1]
            e = vE + 4 * (qt & 1)
            for r in range(4):
                out.append(V(f"v_accvgpr_read_b32 v{e+r}, a{a+r}"))
            for r in range(4):
                out.append(V(f"v_mul_f32 v{e+r}, v{e+r}, v{1+qt}"))
            for r in range(4):
                out.append(V(f"v_accvgpr_write_b32 a{a+r}, v{e+r}"))
    out += [NOP(1), I(f"s_setpc_b64 s[{sRET}:{sRET+1}]", "branch")]
    return out


def iteration(P, cfg, j, lab, groups, extra_vm=None, opre=(), extra_valu=()):
    par = (j + 1) & 1
    R = cfg["R"]
    mf = qk_mfmas(False) + pv_mfmas(j)
    RP = cfg["rpos"]
    rs = ((rowsum_mfmas(0) if j == 0 else []) + rowsum_mfmas(par)) if R else []
    G = P.gaps(mf[:RP] + rs + mf[RP:])
    pos = lambda n: n if n < RP else n + len(rs)
    E = len(G) - 1
    exp_gaps = cfg["expgaps"] if R else [11 + 5 * k + o for k in range(16) for o in (0, 2)]
    slots = cfg["dmagaps"][len(groups)]
    lo = 0
    for g, idx in zip(groups, slots):
        for s_ in g.pre:
            P.flex_scalar(s_, G[lo:idx[0]])
        for k, d in zip(idx, g.dmas):
            assert k not in exp_gaps
            G[k].vec.append(d)
        lo = idx[-1] + 1
    if extra_vm is not None:
        G[E - 1].vec.append(extra_vm)
    valu = []
    if not R:
        for qt in range(4):
            valu.append((0, V(f"v_add_f32 v{vL+qt}, v{vL+qt}, v{vTS+qt}")))
    n = 0
    for T in range(8):
        a, qt = divmod(T, 4)
        s = St(a, qt)[1]
        p = Pf(par, qt)[1] + 2 * a
        for r in range(4):
            g = exp_gaps[n]
            e = vE + n % 8
            assert not G[g].vec and g >= 6 * T + 9
            G[g].vec.append(V(f"v_exp_f32 v{e}, v{s+r}"))
            if R or (a == 0 and r == 0):
                pass
            elif a == 0 and r == 1:
                valu.append((g + 1, V(f"v_add_f32 v{vTS+qt}, v{e-1}, v{e}")))
            else:
                valu.append((g + 1, V(f"v_add_f32 v{vTS+qt}, v{vTS+qt}, v{e}")))
            if r & 1:
                valu.append((g + 1, V(f"v_cvt_pk_bf16_f32 v{p+(r>>1)}, v{e-1}, v{e}")))
            n += 1
        if T == 6 and not R:
            valu.append((g + 1, V(f"v_max3_f32 v1, v{vTS}, v{vTS+1}, v{vTS+2}")))
    if R:
        l = Lb(par)[1]
        G[E - 3].vec += [V(f"v_max3_f32 v1, v{l}, v{l+1}, v{l+2}"), V(f"v_max_f32 v1, v1, v{l+3}")]
        G[E - 2].vec.append(V(f"v_cmp_nge_f32 vcc, s{sTH}, v1"))
    else:
        valu.append((g + 1, V(f"v_max_f32 v1, v1, v{vTS+3}")))
        valu.append((g + 1, V(f"v_cmp_lt_f32 vcc, s{sTH}, v1")))
    lds = []
    for s in range(6):
        lds.append((s, 14, k_read(j + 1, 1, s)))
    t0 = 6
    for dt in range(6):
        for t in range(2):
            lds.append((t0 + 3 * (2 * dt + t), 48 + 4 * dt - 8, vtype_read(FR(dt), vslot(j), dt, t, ("V", j))))
    if j + 2 < 32:
        for s in range(6):
            lds.append(((27, 33, 38, 43, 47, 50)[s], 70, k_read(j + 2, 0, s)))
    for dt in range(6, 12):
        for t in range(2):
            lds.append((pos(48 + 4 * (dt - 6) + 3), pos(48 + 4 * dt) - 8, vtype_read(FR(dt), vslot(j), dt, t, ("V", j))))
    for gi, g in enumerate(G):
        while g.free() > 0:
            cand = []
            if valu and valu[0][0] <= gi:
                cand.append((min(valu[0][0] + cfg["vslack"], (RP - 2) if R else 93), 0, None))
            av = [x for x in lds if x[0] <= gi]
            if av:
                b = min(av, key=lambda x: x[1])
                nl = len([y for y in g.vec if y.kind == "lds"])
                cand.append((b[1] - (100 if nl == 0 and len([v for v in valu if v[0] <= gi]) < 3 else 0), 1, b))
            if not cand:
                break
            c = min(cand, key=lambda x: x[:2])
            if c[1] == 0:
                assert valu[0][0] + 16 >= gi and (not R or gi < RP)
                g.vec.append(valu.pop(0)[1])
            else:
                assert c[2][1] >= gi, (gi, c[2])
                lds.remove(c[2])
                g.vec.append(c[2][2])
    assert not valu and not lds, (valu, lds)
    if extra_valu:
        assert not fill_ops(G[:RP], [(0, RP - 2, x) for x in extra_valu])
    if cfg.get("dbgnop"):
        for k in range(cfg["dbgnop"]):
            G[exp_gaps[(k * 32) // cfg["dbgnop"]]].post.append(NOP(3))
    need = [("V", j + 1)] + ([("K", j + 3)] if j + 3 < 32 else [])
    G[E - 3].sca.append(WAITV(*need))
    G[E - 2].sca.append(BARRIER(frees=[("V", j), ("K", j + 1)]))
    G[E].sca.append(I(f"s_cbranch_vccnz KF_fx{lab}", "branch", rd=["vcc"]))
    assert not G[E].vec
    G[E].post.append(LABEL(f"KF_bk{lab}"))
    return G


KORD = [(0, s) for s in range(6)] + [(p, s) for s in range(6) for p in (1, 2, 3)]


def acc3(nt, qt):
    if nt < 4:
        return ("a", 192 + (nt * 4 + qt) * 4)
    return ("v", 64 + ((nt - 4) * 4 + qt) * 4)


def Bf(ks, qt):
    if ks < 6 or ks >= 18:
        return ("v", 160 + ((ks % 6) * 4 + qt) * 4)
    return ("a", ((ks - 6) * 4 + qt) * 4)


def wo_read(dst, ks, nt, tt):
    sl = woslot(ks)
    a, off = (vA3 + 2, sl - VREG) if sl >= VREG else (vA3, sl)
    return DSTR((dst[0], dst[1] + 2 * tt), a + (nt & 1), off + 3072 * tt + 64 * (nt >> 1), ("WO", ks))


def grp_B(ks, cfg):
    p, s = KORD[ks]
    so, pre = (f"s{sOB+p}", []) if s < 4 else (f"s{sOKV}", [S(f"s_add_u32 s{sOKV}, s{sOB+p}, 4096")])
    return [DmaGroup(pre, [VLOAD(Bf(ks, qt), vOB + qt, SO, so, 1024 * (s & 3), ("B", ks), cfg["bflags"]) for qt in range(4)])]


def poll_load(kind):
    off, srd_ = {"c": (6, SD), "o": (vFOP, SF), "p": (vFPP, SF)}[kind]
    return VLOAD(("v", 5), off, srd_, 0, 0 if kind == "c" else 4, None, "sc1", n=1)


def poll_cmp(need):
    return V(f"v_cmp_gt_u32 vcc, {need}, v5")


def slow_path(name, kind, need):
    return [f"KF_sl{name}:", f"s_mov_b32 s{sSPIN}, 0", f"KF_sp{name}:", poll_load(kind).text, "s_waitcnt vmcnt(0)", poll_cmp(need).text,
            f"s_add_u32 s{sSPIN}, s{sSPIN}, 1", f"s_cmp_gt_u32 s{sSPIN}, 0x8000", f"s_cbranch_scc1 KF_rt{name}",
            f"s_cbranch_vccnz KF_sp{name}", f"s_branch KF_rt{name}"]


def check_seq(P, name, kind, need):
    P.slow += slow_path(name, kind, need)
    return [poll_cmp(need), NOP(0), I(f"s_cbranch_vccnz KF_sl{name}", "branch", rd=["vcc"]), LABEL(f"KF_rt{name}")]


def free_gap(G, k, ok=lambda k: True):
    while G[k].vec or G[k].sca or G[k].post or not ok(k):
        k += 1
    return k


def check_gaps(P, G, name, kind, need, g_load, g_chk, ok):
    k = free_gap(G, g_load, ok)
    G[k].vec.append(poll_load(kind))
    k = free_gap(G, max(g_chk, k + 1), ok)
    G[k].vec.append(poll_cmp(need))
    k = free_gap(G, k + 1, ok)
    G[k].sca.append(I(f"s_cbranch_vccnz KF_sl{name}", "branch", rd=["vcc"]))
    G[k].sca.append(LABEL(f"KF_rt{name}"))
    P.slow += slow_path(name, kind, need)
    return k + 1


def flag_gaps(G, tags, val, off, g, ok):
    k = free_gap(G, g, ok)
    G[k].sca.append(WAITV(*tags))
    G[k].vec.append(V(f"v_mov_b32 v7, {val}"))
    k = free_gap(G, k + 1, ok)
    G[k].vec.append(VSTORE(("v", 7), off, SF, 0, 0, "sc1", n=1))
    return k


RCP = [2, 3, 8, 9]
F0 = 48


def pack_muls(G):
    for g in G:
        if g.cost() < 8:
            continue
        out = []
        k = 0
        v = g.vec
        while k < len(v):
            x = v[k]
            y = v[k + 1] if k + 1 < len(v) else None
            if k >= 3 and y is not None and "omul" in x.meta and "omul" in y.meta and x.meta["omul"][0] % 2 == 0 \
                    and y.meta["omul"] == (x.meta["omul"][0] + 1, x.meta["omul"][1]):
                r, f = x.meta["omul"]
                sel = "op_sel_hi:[1,0]" if f % 2 == 0 else "op_sel:[0,1] op_sel_hi:[1,1]"
                z = V(f"v_pk_mul_f32 v[{r}:{r+1}], v[{r}:{r+1}], v[{f&~1}:{(f&~1)+1}] {sel}")
                out.append(z)
                k += 2
            else:
                out.append(x)
                k += 1
        g.vec = out


def phase3(P, cfg, ST, wo_left):
    A = P.seq
    stages = cfg["stages"]
    j = 31
    for dt in range(4):
        for t in range(2):
            A(vtype_read(FR(dt), vslot(j), dt, t, ("V", j)))
    A(check_seq(P, "c", "c", 32))
    A(S(f"s_add_u32 s{sOX}, s{sOB}, 4096"))
    pre = []
    if not cfg["R"]:
        A([V(f"v_add_f32 v{vL+qt}, v{vL+qt}, v{vTS+qt}") for qt in range(4)])
        pre = xred([vL + q for q in range(4)], [vE + q for q in range(4)], "v_add_f32")
    pre += [V(f"v_rcp_f32 v{RCP[qt]}, v{vL+qt}") for qt in range(4)]
    pre = [x for x in pre if x.kind != "nop"]
    A(pre[:12])

    def abuf(si, nt):
        L = len(stages[si])
        if L == 2:
            g = 10 * si + nt
            return [FR(2 * (g % 3) + u) for u in range(2)]
        return [("a", (nt % 2) * 24 + u * 4) for u in range(L)]

    def areads(si, nt):
        return [wo_read(d, ks, nt, tt) for d, ks in zip(abuf(si, nt), stages[si]) for tt in range(2)]

    secs = [pv_mfmas(j)]
    for si, kss in enumerate(stages):
        mfs = []
        for nt in range(10):
            ab = abuf(si, nt)
            for qt in range(4):
                for u, ks in enumerate(kss):
                    C = 0 if ks == 0 else acc3(nt, qt)
                    m = MFMA(acc3(nt, qt), ab[u], Bf(ks, qt), C)
                    if qt == 0 and u % 2 == 0:
                        m.rd |= set(regs(ab[u + 1][0], ab[u + 1][1], 4))
                    if nt == 0 and u == 0 and qt == 0 and kss[0] >= 6:
                        for k2 in kss:
                            m.rd |= set(regs(*Bf(k2, 0), 16))
                    mfs.append(m)
        secs.append(mfs)
    G = P.gaps(sum(secs, []))
    base = [F0 + sum(len(x) for x in secs[1:i + 1]) for i in range(len(stages) + 1)]
    ok = lambda k: (k % 4 != 3) if k < F0 else (k % 8 != 7)
    for k, g in enumerate(G):
        g.nomem = not ok(k)
    for dt in range(4, 12):
        g = 0 + 2 * (dt - 4) if dt < 6 else 4 * (dt - 6) + 3
        G[g].vec += [vtype_read(FR(dt), vslot(j), dt, t, ("V", j)) for t in range(2)]
    G[32].sca.append(WAITV(("WO", 0), ("WO", 1)))
    G[33].sca.append(BARRIER(frees=[("V", 31)]))
    put_reads(G, 34, areads(0, 0))
    put_reads(G, 40, areads(0, 1))
    bar = {-1: 33}
    for si, kss in enumerate(stages):
        L = len(kss)
        per = 4 * L
        b = base[si]
        nxtL = len(stages[si + 1]) if si + 1 < len(stages) else 0
        ahead = 2 if L == 2 else 1
        for nt in range(ahead, 10):
            put_reads(G, b + per * (nt - ahead), areads(si, nt), 1 if L == 2 else 2)
        if nxtL:
            gb = b + per * 8
            if cfg.get("p3stamps"):
                ST.gap(G[gb - 1], G[gb + 1], f"s{si}")
            if cfg.get("p3light"):
                ST.light(G[gb - 9], f"s{si}")
            G[gb].sca.append(WAITV(*[("WO", ks) for ks in stages[si + 1]]))
            G[gb + 1].sca.append(BARRIER(frees=[("WO", ks) for ks in kss]))
            bar[si] = gb + 1
            put_reads(G, gb + 2, areads(si + 1, 0))
            if nxtL == 2:
                put_reads(G, b + per * 9, areads(si + 1, 1))
    stage_of = {ks: si for si, kss in enumerate(stages) for ks in kss}
    chunk_of = cfg["chunks"]
    ost = [VSTORE(Bf(s, qt), vOB + qt, SO, f"s{sOB}" if s < 4 else f"s{sOX}", 1024 * (s & 3), cfg["oflags"], tag=("O", chunk_of[s]))
           for s in range(6) for qt in range(4)]
    opos = []
    t = cfg["ostart"]
    for n, x in enumerate(ost):
        k = free_gap(G, max(int(t), (opos[-1] + 1) if opos else 0), ok)
        G[k].vec.append(x)
        opos.append(k)
        t += cfg["opace"](n)
    ee = []
    for c in range(max(chunk_of) + 1):
        lc = max(k for k, x in zip(opos, ost) if x.meta["tag"] == ("O", c))
        k = flag_gaps(G, [("O", c)], c + 1, vFO, lc + cfg["lags"][c][0], ok)
        if cfg.get("ostamps"):
            ST.gap(G[k - 3], G[k - 3], f"preF{c}")
            ST.gap(G[k], G[k], f"F{c}")
        k = max(k + cfg["lags"][c][1], (ee[-1] if ee else 0))
        ee.append(check_gaps(P, G, f"o{c}", "o", c + 1, k, k + cfg["lags"][c][2], ok))
        if cfg.get("ostamps"):
            ST.gap(G[ee[-1] - 5], G[ee[-1] - 5], f"preC{c}")
            ST.gap(G[ee[-1] - 2], G[ee[-1] - 2], f"cmp{c}")
            ST.gap(G[ee[-1] - 1], G[ee[-1] - 1], f"C{c}")
    P.slack.append(("stores", opos, "checks", ee, "base", base))
    e0 = ee[0]
    for g in wo_left:
        t = g.dmas[0].meta["tag"][1]
        g.earliest = bar[stage_of[t - 12]] + 1 if t >= 12 else (34 if t == 11 else 0)
        g.deadline = bar[stage_of[t] - 1] - 2
    wo_left = place_stream(P, G, wo_left, cfg["wstart"], e0 - 4, lambda k: cfg["wpace"], ok)
    bs = [grp_B(ks, cfg)[0] for ks in range(6, 24)]
    for g in bs:
        ks = g.dmas[0].meta["tag"][1]
        g.deadline = base[stage_of[ks]] - 2 + 0.01 * ks
        g.earliest = ee[chunk_of[KORD[ks][1]]]
        if ks >= 18:
            g.earliest = max(g.earliest, base[stage_of[ks - 18] + 1], opos[4 * (ks - 18) + 3] + 3)
    items = sorted(wo_left + bs, key=lambda g: g.deadline)
    left = place_stream(P, G, items, e0, len(G), lambda k: cfg["p3pace"], ok, True)
    assert not left
    bpos = {x.meta["tag"][1]: k for k, g in reversed(list(enumerate(G))) for x in g.vec if x.kind == "vload" and x.meta["tag"]}
    ops = [(0, 14, x) for x in pre[12:]]
    n = 0
    for s in range(6):
        for qt in range(4):
            o = Bf(s, qt)[1]
            t = vOK + 2 * (n % 3)
            dl = min(base[s // 2] + 2 * qt + (s & 1) - 2, opos[n] - 1, bpos[6 + 2 * s] - 1, bpos[7 + 2 * s] - 1)
            n += 1
            for u, dst in enumerate(([o, o + 1, o + 2, o + 3], [o + 2, o + 3, t, t + 1])):
                a = Oa(2 * s + u, qt)[1]
                e = 4 * (2 * s + u) + qt + 5
                ops += [(e, dl, V(f"v_accvgpr_read_b32 v{dst[r]}, a{a+r}")) for r in range(4)]
                ops += [(e, dl, V(f"v_mul_f32 v{dst[r]}, v{RCP[qt]}, v{dst[r]}", omul=(dst[r], RCP[qt]))) for r in range(4)]
                ops += [(e, dl, V(f"v_cvt_pk_bf16_f32 v{o+2*u+r}, v{dst[2*r]}, v{dst[2*r+1]}")) for r in range(2)]
    assert not fill_ops(G, ops)
    pack_muls(G)
    si = len(stages) - 1
    per = 4 * len(stages[si])
    b = base[si]
    tmpbase = 160 if per == 8 else vFR
    work = []
    tmp = 0
    for np_ in range(5):
        e = b + per * (2 * np_ + 1)
        work.append((e, S(f"s_mov_b32 s{sOW}, {np_*15*8192}")))
        for qt in range(4):
            e = b + per * (2 * np_ + 1) + (per // 4) * (qt + 1) + 4
            x, y = acc3(2 * np_, qt), acc3(2 * np_ + 1, qt)
            if x[0] == "a":
                t = tmpbase + (tmp % 2) * 8
                tmp += 1
                for u, z in enumerate((x, y)):
                    for r in range(4):
                        work.append((e - (per // 2 if u == 0 else 0), V(f"v_accvgpr_read_b32 v{t+4*u+r}, a{z[1]+r}")))
                src = [t + r for r in range(8)]
                o = t
            else:
                src = [x[1] + r for r in range(4)] + [y[1] + r for r in range(4)]
                o = x[1]
            for r in range(4):
                work.append((e, V(f"v_cvt_pk_bf16_f32 v{o+r}, v{src[2*r]}, v{src[2*r+1]}")))
            work.append((e, VSTORE(("v", o), vOP + qt, SP, f"s{sOW}", 0, cfg["pflags"], tag=("P", np_))))
    gi = b
    stpos = {}
    while work and gi < len(G):
        g = G[gi]
        while work and work[0][0] <= gi:
            x = work[0][1]
            if x.kind == "salu":
                P.flex_scalar(x, [g, G[min(gi + 1, len(G) - 1)]])
                work.pop(0)
            elif x.kind == "vstore":
                if not g.vec and not g.sca and ok(gi):
                    g.vec.append(x)
                    stpos[x.meta["tag"][1]] = gi
                    work.pop(0)
                break
            elif g.free() > 0:
                g.vec.append(x)
                work.pop(0)
            else:
                break
        gi += 1
    rest = [x for _, x in work]
    pending = {n for x in rest if x.kind == "vstore" for n in [x.meta["tag"][1]]}
    ST.seq(P, "mfend")
    A(NOP(7), rest)
    A(V("v_and_b32 v2, 15, v0"), V("v_mul_u32_u24 v2, 1280, v2"), V("v_lshrrev_b32 v3, 5, v0"), V("v_bfe_u32 v4, v0, 4, 1"),
      V("v_lshl_or_b32 v3, v4, 1, v3"), V("v_lshl_add_u32 v2, v3, 4, v2"), V("v_lshlrev_b32 v1, 4, v0"), V("v_add_u32 v3, 4096, v1"))

    def loads(r):
        return [VLOAD(("a", r * 32 + g * 4) if False else ("v", 160 + r * 32 + g * 4), 1 if g < 4 else 3, SP, f"s{sJ+r}", 1024 * (g & 3), None, cfg["rflags"])
                for g in range(8)]

    def reduce(r):
        out = []
        o = 64 + r * 16
        for g in range(8):
            src = 160 + r * 32 + g * 4
            t = o if g == 0 else 112 + (g & 1) * 8
            for q in range(4):
                out += [V(f"v_lshlrev_b32 v{t+2*q}, 16, v{src+q}"), V(f"v_and_b32 v{t+2*q+1}, 0xffff0000, v{src+q}")]
            if g:
                for q in range(4):
                    out.append(V(f"v_pk_add_f32 v[{o+2*q}:{o+2*q+1}], v[{o+2*q}:{o+2*q+1}], v[{t+2*q}:{t+2*q+1}]"))
        for q in range(4):
            out.append(V(f"v_cvt_pk_bf16_f32 v{o+8+q}, v{o+2*q}, v{o+2*q+1}"))
        out += [NOP(0), V(f"v_permlane16_swap_b32 v{o+8}, v{o+10}"), V(f"v_permlane16_swap_b32 v{o+9}, v{o+11}"),
                VSTORE(("v", o + 8), 2, SOUT, f"s{sJ+3+r}", 0, cfg["outflags"])]
        return out

    def flag(val, tags):
        return [V(f"v_mov_b32 v7, {val}"), WAITV(*tags), BARRIER(), VSTORE(("v", 6), vFP, SF, 0, 0, "sc1", n=4)]

    A(flag(3, [("P", 4)]))
    ST.seq(P, "pdrain")
    A(poll_load("p"), check_seq(P, "p2", "p", 3))
    ST.seq(P, "ppoll")
    A(loads(0), loads(1), loads(2), reduce(0), reduce(1), reduce(2))


def build(cfg):
    P = Prog()
    P.slack = []
    P.slow = []
    ST = Stamper(cfg)
    LA = cfg["LA"]
    stream = prologue(P, cfg, ST)
    phase1(P, cfg, ST, stream)
    ST.seq(P, "attn0")
    if ST.it:
        P.seq(RAW("s_mov_b32 s53, 2"))
    labs = []
    wo = [grp_WO(t, cfg)[0] for t in range(24)]
    NT = cfg["trips"]
    for j in range(0, 31):
        inloop = 1 <= j <= 6 * NT
        if j == 1:
            P.seq(I(f"s_mov_b32 s{sCNT}, {NT}", "raw"))
        if inloop and (j - 1) % 6 == 0:
            P.el.append(I("", "raw", mark=(j - 1) // 6))
        if j == 6 * NT + 1:
            P.el.append(I("", "raw", mark=NT))
        groups = []
        if j + LA < 32:
            groups += grp_K(j + LA, cfg, True)
        if j + LA - 1 < 32:
            groups += grp_V(j + LA - 1, cfg, j + LA < 32)
        while len(groups) < cfg["tailgroups"] and j + LA >= 32 and wo and 26 + (wo[0].dmas[0].meta["tag"][1] + 1) // 2 <= j:
            groups.append(wo.pop(0))
        lab = str((j - 1) % 6) if inloop else f"p{j}"
        if not inloop or j <= 6:
            labs.append((lab, (j + 1) & 1))
        xv = None
        if j == 29:
            xv = poll_load("c")
        if inloop and (j - 1) % 6 == 1:
            xv = I(f"buffer_atomic_add v7, v6, s[{SD}:{SD+3}], s{sAO} offen sc1", "vstore", ["v6", "v7"], [], data=set(), n=1, tag=None)
        if j == cfg["wopf"]:
            xv = VLOAD(("v", 5), 5, SWO, 0, 0, None, "", n=1)
        ev = []
        if j == (0 if cfg["R"] else 25):
            ev = unpark() + (asel_setup() if cfg["R"] else [])
        if j == 28:
            ev = [V("v_mov_b32 v6, 0")]
        G = iteration(P, cfg, j, lab, groups, xv, (), ev)
        if inloop and (j - 1) % 6 == 1:
            G[-8].sca.append(S(f"s_cmp_eq_u32 s{sCNT}, s{sTRIP}"))
            G[-7].sca.append(S(f"s_cselect_b32 s{sAO}, 0, {OOB}"))
        if ST.it:
            G[-6].post += [RAW(f"s_memtime s[{sTM}:{sTM+1}]"), RAW(f"s_memrealtime s[{sTM+2}:{sTM+3}]")]
            G[-3].post += [RAW("s_mov_b32 m0, s53"), RAW("s_addk_i32 s53, 1"), RAW(f"v_writelane_b32 v{vST}, s{sTM}, m0"), RAW("s_mov_b32 m0, s53"),
                           RAW("s_addk_i32 s53, 1"), RAW(f"v_writelane_b32 v{vST}, s{sTM+2}, m0")]
            ST.names.append(f"i{j}")
        if inloop and (j - 1) % 6 == 5:
            P.flex_scalar(S(f"s_sub_u32 s{sCNT}, s{sCNT}, 1"), G[80:90])
            G[-2].sca.append(S(f"s_cmp_lg_u32 s{sCNT}, 0"))
            G[-1].post.append(I("s_cbranch_scc1 KF_loop", "branch"))
    ST.seq(P, "attnend")
    phase3(P, cfg, ST, wo)
    if ST.on:
        P.seq(WAIT(vm=0))
        ST.seq(P, "end")
        ST.flush(P)
        if cfg.get("diag"):
            P.seq(RAW("s_getreg_b32 s3, hwreg(HW_REG_XCC_ID, 0, 4)"), RAW(f"v_writelane_b32 v{vST}, s3, 63"))
        P.seq(srd(8, 32, 33, STAMP_OFF, 0x100000), S("s_lshl_b32 s3, s2, 2"), S(f"s_add_u32 s3, s3, s{sW}"), S("s_lshl_b32 s3, s3, 8"),
              V("v_lshlrev_b32 v2, 2, v0"), RAW(f"buffer_store_dword v{vST}, v2, s[8:11], s3 offen"))
    P.insert_waits()
    P.place_flex()
    lin = P.linear()
    lin, notes = fix_hazards(lin)
    P.notes = notes
    probs = check_hazards(lin) + check_lds_protocol(lin, private=lambda t: t[0] == "X")
    trips = {}
    pre, post, cur = [], [], None
    for x in lin:
        if x.kind == "raw" and "mark" in x.meta:
            cur = x.meta["mark"]
            continue
        if cur is None:
            pre.append(x)
        elif cur == NT:
            post.append(x)
        else:
            trips.setdefault(cur, []).append(x)
    t0 = [text_of(x) for x in trips[0]]
    for k in range(1, NT):
        tk = [text_of(x) for x in trips[k]]
        assert tk == t0, [(a, b) for a, b in zip(t0, tk) if a != b][:5]
    out = [text_of(x) for x in pre] + ["KF_loop:"] + t0 + [text_of(x) for x in post]
    out += ["KF_done:", "s_endpgm"]
    out += P.slow
    for lab, par in labs:
        out += [f"KF_fx{lab}:", f"s_call_b64 s[{sRET}:{sRET+1}], KF_fix{par}", f"s_branch KF_bk{lab}"]
    for par in range(2):
        fb = fallback(par, cfg)
        probs += check_hazards(fb)
        out += [text_of(x) for x in fb]
    out += ["KF_end:"]
    return out, probs, P, ST


DEFAULT = dict(map="hg4", wflags="", xflags="", kvflags="nt", woflags="", oflags="sc1", bflags="sc1", pflags="sc1", rflags="sc1",
               outflags="", thresh=16384.0, LA=5, trips=4, npro=1, npro2=3, bgstart=100, pace=[(960, 5.2)], xearly=4, kvpace=14, tailgroups=3,
               dmagaps={0: [], 1: [[4, 7, 9]], 2: [[4, 7, 9], [34, 44, 54]], 3: [[4, 7, 9], [34, 44, 54], [64, 79, 84]]},
               vslack=8, stages=[[2 * k, 2 * k + 1] for k in range(9)] + [list(range(18, 24))], p3pace=4.2, wstart=0, wpace=9, codepf=5,
               chunks=[0, 1, 1, 2, 2, 2], ostart=44, opace=lambda n: 4 if n < 3 else 14, lags=[(45, 65, 45), (55, 40, 60), (70, 60, 70)],
               p1pf=[0, 6, 14, 22], wopf=26, tour=1, R=0, rpos=84, stamps=False)


RCFG = dict(thresh=16777216.0, expgaps=[11 + 9 * (k // 4) + 2 * (k % 4) for k in range(32)],
            dmagaps={0: [], 1: [[4, 7, 9]], 2: [[4, 7, 9], [37, 46, 54]], 3: [[4, 7, 9], [37, 46, 54], [64, 73, 86]]})


def insert_stubs(lines):
    import subprocess, tempfile, os, re
    go = lines.index("KF_go:")
    end = lines.index("KF_done:")
    body = lines[go + 1:end]
    ins = [l for l in body if l and not l.endswith(":")]
    d = tempfile.mkdtemp()
    src = '.amdgcn_target "amdgcn-amd-amdhsa--gfx950"\n.text\nL0:\n' + "\n".join(re.sub(r"KF_\w+", "L0", l) for l in ins) + "\n"
    open(d + "/a.s", "w").write(src)
    subprocess.run(["clang", "-x", "assembler", "-target", "amdgcn-amd-amdhsa", "-mcpu=gfx950", "-c", d + "/a.s", "-o", d + "/a.o"], check=True)
    dis = subprocess.run(["llvm-objdump", "-d", "--mcpu=gfx950", d + "/a.o"], capture_output=True, text=True).stdout
    sizes = [4 * len(re.findall(r"\b[0-9A-F]{8}\b", l.split("//")[1].split(":", 1)[1].split("<")[0])) for l in dis.splitlines() if "//" in l]
    assert len(sizes) == len(ins), (len(sizes), len(ins))
    it = iter(sizes)
    sz = [0 if (not l or l.endswith(":")) else next(it) for l in body]
    out = []
    off = 0
    page = 1
    k = 0
    while k < len(body):
        if off >= page * 4096:
            best = k
            o, j = off, k
            while j < len(body) and o <= page * 4096 + 56:
                prev = body[j - 1]
                if prev.startswith("v_mfma") and body[j].startswith(("v_", "ds_")):
                    best = j
                    break
                o += sz[j]
                j += 1
            while k < best:
                out.append(body[k])
                off += sz[k]
                k += 1
            out += [f"KF_pg{page}:", f"s_cbranch_execz KF_pg{page+4}"]
            off += 4
            page += 1
        out.append(body[k])
        off += sz[k]
        k += 1
    out = [re.sub(r"execz KF_pg(\d+)", lambda m: m.group(0) if int(m.group(1)) < page else "execz KF_tret", l) for l in out]
    return lines[:go + 1] + out + lines[end:]


HDR = open("standalone__mha_block_cached__near_ridge.s.ref").read().split("; Override launch")[0]
NAME = "standalone__mha_block_cached__near_ridge_kernel"


def generate(over=None):
    cfg = dict(DEFAULT)
    if over and over.get("R"):
        cfg.update(RCFG)
    cfg.update(over or {})
    o, p, P, ST = build(cfg)
    assert not p, p[:10]
    if cfg["tour"]:
        o = insert_stubs(o)
    if cfg.get("verbose"):
        print(P.slack, file=sys.stderr)
        print(len(P.notes), "nops inserted:", P.notes, file=sys.stderr)
    if P.warn or P.overfull():
        print("warn", len(P.warn), P.warn[:6], "overfull", P.overfull(), file=sys.stderr)
    dg = cfg.get("diag")
    if dg:
        s = HDR + f"; @launch kernel={NAME} grid=(256,1,1) block=(256,1,1) lds={LDS_BYTES}\n; @launch kernel=diag_kernel grid=(1,1,1) block=(64,1,1) lds=0\n"
    else:
        s = HDR + f"; @launch grid=(256,1,1) block=(256,1,1) lds={LDS_BYTES}\n"
    if ST.on:
        s += "; STAMPS " + " ".join(ST.names) + "\n"
    s += '.amdgcn_target "amdgcn-amd-amdhsa--gfx950"\n.text\n'
    s += f".globl {NAME}\n.p2align 8\n.type {NAME},@function\n{NAME}:\n" + "\n".join(("" if l.endswith(":") else "    ") + l for l in o if l) + "\n"
    if dg:
        import gen
        def addr(x):
            wg, nm = x
            return STAMP_OFF + wg * 1024 + (252 if nm == "xcc" else 8 * ST.names.index(nm) + 4)
        s += ".globl diag_kernel\n.p2align 8\n.type diag_kernel,@function\ndiag_kernel:\n" + "\n".join(gen.diag_kernel(addr(dg[0]), addr(dg[1]), dg[2])) + "\n"
    s += f""".section .rodata,"a"
.p2align 6
.amdhsa_kernel {NAME}
  .amdhsa_next_free_vgpr 512
  .amdhsa_next_free_sgpr 102
  .amdhsa_accum_offset 256
  .amdhsa_group_segment_fixed_size 0
  .amdhsa_kernarg_size 64
  .amdhsa_user_sgpr_count 2
  .amdhsa_user_sgpr_kernarg_segment_ptr 1
  .amdhsa_system_sgpr_workgroup_id_x 1
.end_amdhsa_kernel
"""
    if dg:
        s += ".p2align 6\n" + gen.kd("diag_kernel", 8, 8) + "\n"
    return s


if __name__ == "__main__":
    over = eval(sys.argv[2]) if len(sys.argv) > 2 else None
    open(sys.argv[1], "w").write(generate(over))
```

```python
import re


def regs(cls, base, n=1):
    return [f"{cls}{base+i}" for i in range(n)]


def rng(cls, base, n):
    return f"{cls}{base}" if n == 1 else f"{cls}[{base}:{base+n-1}]"


class I:
    __slots__ = ("text", "kind", "rd", "wr", "meta")

    def __init__(self, text, kind, rd=(), wr=(), **meta):
        self.text = text
        self.kind = kind
        self.rd = set(rd)
        self.wr = set(wr)
        self.meta = meta

    def __repr__(self):
        return f"<{self.text}>"


_REG_RE = re.compile(r"(?<![\w.])([vas])(?:(\d+)|\[(\d+):(\d+)\])(?![\w])")


def _parse_regs(op):
    out = []
    for m in _REG_RE.finditer(op):
        c = m.group(1)
        if m.group(2) is not None:
            out.append(f"{c}{m.group(2)}")
        else:
            out += [f"{c}{k}" for k in range(int(m.group(3)), int(m.group(4)) + 1)]
    for sp in ("vcc", "m0", "exec"):
        if re.search(rf"(?<![\w]){sp}(?![\w])", op):
            out.append(sp)
    return out


TRANS = ("v_exp_f32", "v_log_f32", "v_rcp_f32", "v_rsq_f32", "v_sqrt_f32")


def V(text, **meta):
    op, rest = text.split(None, 1)
    ops = [o.strip() for o in rest.split(",")]
    wr = _parse_regs(ops[0])
    rd = []
    for o in ops[1:]:
        rd += _parse_regs(o)
    kind = "valu"
    if op.startswith(TRANS):
        kind = "trans"
    if op.startswith("v_permlane"):
        kind = "perm"
        rd += wr
        wr = wr + _parse_regs(ops[1])
    if op.startswith(("v_fmac", "v_writelane")):
        rd += wr
    return I(text, kind, rd, wr, **meta)


def S(text, **meta):
    parts = text.split(None, 1)
    op = parts[0]
    ops = [o.strip() for o in parts[1].split(",")] if len(parts) > 1 else []
    if op.startswith(("s_cmp", "s_bitcmp")):
        wr = []
        rd = sum((_parse_regs(o) for o in ops), [])
    else:
        wr = _parse_regs(ops[0]) if ops else []
        rd = sum((_parse_regs(o) for o in ops[1:]), [])
    return I(text, "salu", rd, wr, **meta)


def NOP(n):
    return I(f"s_nop {n}", "nop", n=n + 1)


def RAW(text):
    return I(text, "raw")


def LABEL(name):
    return I(f"{name}:", "label")


def MFMA(D, A, B, C):
    ct = "0" if C == 0 else rng(C[0], C[1], 4)
    t = f"v_mfma_f32_16x16x32_bf16 {rng(D[0], D[1], 4)}, {rng(A[0], A[1], 4)}, {rng(B[0], B[1], 4)}, {ct}"
    ab = regs(A[0], A[1], 4) + regs(B[0], B[1], 4)
    c = [] if C == 0 else regs(C[0], C[1], 4)
    return I(t, "mfma", ab + c, regs(D[0], D[1], 4), ab=set(ab), c=set(c), D=D, C=C)


def DSR128(dst, addr, off, tag=None):
    assert 0 <= off < 65536, off
    return I(f"ds_read_b128 {rng(dst[0], dst[1], 4)}, v{addr} offset:{off}", "lds", [f"v{addr}"],
             regs(dst[0], dst[1], 4), tag=tag)


def DSTR(dst, addr, off, tag=None):
    assert 0 <= off < 65536, off
    return I(f"ds_read_b64_tr_b16 {rng(dst[0], dst[1], 2)}, v{addr} offset:{off}", "lds", [f"v{addr}"],
             regs(dst[0], dst[1], 2), tag=tag)


def DMA(voff, srd, soff, imm, tag, flags="", after=(), region=None):
    so = soff if isinstance(soff, str) else str(soff)
    o = f" offset:{imm}" if imm else ""
    f = f" {flags}" if flags else ""
    rd = [f"v{voff}", "m0"] + regs("s", srd, 4) + ([so] if so.startswith("s") else [])
    return I(f"buffer_load_dwordx4 v{voff}, s[{srd}:{srd+3}], {so} offen{o}{f} lds", "dma", rd, [], tag=tag,
             after=tuple(after), region=region)


def VLOAD(dst, voff, srd, soff, imm, tag=None, flags="", n=4):
    so = soff if isinstance(soff, str) else str(soff)
    o = f" offset:{imm}" if imm else ""
    f = f" {flags}" if flags else ""
    sfx = {1: "dword", 2: "dwordx2", 4: "dwordx4"}[n]
    rd = [f"v{voff}"] + regs("s", srd, 4) + ([so] if so.startswith("s") else [])
    return I(f"buffer_load_{sfx} {rng(dst[0], dst[1], n)}, v{voff}, s[{srd}:{srd+3}], {so} offen{o}{f}", "vload", rd,
             regs(dst[0], dst[1], n), tag=tag)


def VSTORE(src, voff, srd, soff, imm, flags="", n=4, tag=None):
    so = soff if isinstance(soff, str) else str(soff)
    o = f" offset:{imm}" if imm else ""
    f = f" {flags}" if flags else ""
    sfx = {1: "dword", 2: "dwordx2", 4: "dwordx4"}[n]
    rd = [f"v{voff}"] + regs(src[0], src[1], n) + regs("s", srd, 4) + ([so] if so.startswith("s") else [])
    return I(f"buffer_store_{sfx} {rng(src[0], src[1], n)}, v{voff}, s[{srd}:{srd+3}], {so} offen{o}{f}", "vstore", rd,
             [], data=set(regs(src[0], src[1], n)), tag=tag, n=n)


def WAITV(*tags):
    return I("s_waitcnt", "wait", vtags=tuple(tags), vm=None, lg=None)


def WAIT(vm=None, lg=None):
    return I("s_waitcnt", "wait", vtags=(), vm=vm, lg=lg)


def BARRIER(frees=()):
    return I("s_barrier", "barrier", after=tuple(frees))


class Gap:
    def __init__(self, mf):
        self.mf = mf
        self.sca = []
        self.vec = []
        self.post = []

    def cost(self):
        c = 0
        for x in self.vec:
            c += {"trans": 2, "dma": 3, "vload": 3, "vstore": 3}.get(x.kind, 1)
        return c

    def isdma(self):
        return any(x.kind in ("dma", "vload", "vstore") for x in self.vec)

    def free(self):
        return 0 if self.isdma() else 2 - self.cost()

    def lin(self):
        v = [x for x in self.vec if x.kind in ("lds", "ldsw")] + [x for x in self.vec if x.kind not in ("lds", "ldsw")]
        return ([self.mf] if self.mf else []) + self.sca + v + self.post


class Prog:
    def __init__(self):
        self.el = []
        self.flex = []

    def seq(self, *ins):
        for x in ins:
            if isinstance(x, (list, tuple)):
                self.seq(*x)
            else:
                self.el.append(x)

    def gaps(self, mfs):
        g = [Gap(m) for m in mfs]
        self.el += g
        return g

    def flex_scalar(self, ins, cands):
        self.flex.append((ins, list(cands)))

    def flex_chain(self, ins, cands):
        self.flex.append((list(ins), list(cands)))

    def prune(self, pred, start):
        on = False
        out = []
        for e in self.el:
            if isinstance(e, Gap):
                if on:
                    if pred(e.mf):
                        e.mf = None
                    e.vec = [x for x in e.vec if not pred(x)]
            else:
                if e.text == start:
                    on = True
                if on and pred(e):
                    continue
            out.append(e)
        self.el = out

    def insert_waits(self):
        lds_issued = 0
        lds_done = 0
        pend = {}
        tag_last = {}
        vm_issued = 0
        vm_done = 0
        vpend = {}
        vtag_last = {}
        gap_hist = []
        out = []

        def add_wait(slotlist, kind, cnt):
            for x in slotlist:
                if x.kind == "wait":
                    if x.meta[kind] is None or x.meta[kind] > cnt:
                        x.meta[kind] = cnt
                    return
            w = WAIT()
            w.meta[kind] = cnt
            slotlist.insert(0, w)

        def need_of(x):
            k = -1
            for r in (x.rd | x.wr):
                if r in pend and pend[r] >= lds_done:
                    k = max(k, pend[r])
            for t in x.meta.get("after", ()):
                if t in tag_last and tag_last[t] >= lds_done:
                    k = max(k, tag_last[t])
            kv = -1
            for r in (x.rd | x.wr):
                if r in vpend and vpend[r] >= vm_done:
                    kv = max(kv, vpend[r])
            return k, kv

        def account(x):
            nonlocal lds_issued, vm_issued, lds_done, vm_done
            if x.kind in ("lds", "ldsw"):
                for r in x.wr:
                    pend[r] = lds_issued
                if x.meta.get("tag") is not None:
                    tag_last[x.meta["tag"]] = lds_issued
                lds_issued += 1
                assert lds_issued - lds_done <= 15 or True
            elif x.kind in ("dma", "vload", "vstore"):
                for r in x.wr:
                    vpend[r] = vm_issued
                if x.meta.get("tag") is not None:
                    vtag_last[x.meta["tag"]] = vm_issued
                vm_issued += 1
            elif x.kind == "wait":
                if x.meta["vtags"]:
                    k = max(vtag_last[t] for t in x.meta["vtags"])
                    c = min(vm_issued - k - 1, 63)
                    if k >= vm_done and (x.meta["vm"] is None or x.meta["vm"] > c):
                        x.meta["vm"] = c
                if x.meta["vm"] is not None:
                    vm_done = max(vm_done, vm_issued - x.meta["vm"])
                if x.meta["lg"] is not None:
                    lds_done = max(lds_done, lds_issued - x.meta["lg"])

        def place(cands, k, which):
            nonlocal lds_done, vm_done
            idx = 1 if which == "lg" else 2
            best = None
            for c in cands:
                if c[idx] <= k:
                    break
                ok = (not c[3]) and (len(c[0]) == 0 or any(y.kind == "wait" for y in c[0]))
                if ok:
                    best = c
                    break
            if best is None:
                for c in cands:
                    if c[idx] > k:
                        best = c
                        self.warn.append(f"wait costs a slot near lds#{k} {which}")
                        break
            if best is None:
                return False
            cnt = min(best[idx] - k - 1, 15 if which == "lg" else 63)
            add_wait(best[0], which, cnt)
            if which == "lg":
                lds_done = max(lds_done, best[idx] - cnt)
            else:
                vm_done = max(vm_done, best[idx] - cnt)
            return True

        self.warn = []
        for e in self.el:
            if isinstance(e, Gap):
                k, kv = need_of(e.mf) if e.mf else (-1, -1)
                cands = [(g.sca, li, vi, g.isdma()) for (g, li, vi) in reversed(gap_hist[-3:])]
                for kk, which in ((k, "lg"), (kv, "vm")):
                    if kk >= 0 and not place(cands, kk, which):
                        w = WAIT()
                        w.meta[which] = min((lds_issued if which == "lg" else vm_issued) - kk - 1, 15 if which == "lg" else 63)
                        if gap_hist:
                            gap_hist[-1][0].post.insert(0, w)
                            self.warn.append(f"late wait before {e.mf.text}")
                        else:
                            out.append(w)
                        account(w)
                gap_hist.append((e, lds_issued, vm_issued))
                for x in list(e.sca):
                    k, kv = need_of(x)
                    if k >= 0:
                        cands = [(g.sca, li, vi, g.isdma()) for (g, li, vi) in reversed(gap_hist[-4:-1])]
                        if not place(cands, k, "lg"):
                            add_wait(e.sca, "lg", min(lds_issued - k - 1, 15))
                            lds_done = k + 1
                            self.warn.append(f"wait in same slot as {x.text}")
                    account(x)
                for x in e.lin()[(1 if e.mf else 0) + len(e.sca):]:
                    k, kv = need_of(x)
                    cands = [(g.sca, li, vi, g.isdma()) for (g, li, vi) in reversed(gap_hist[-4:])]
                    for kk, which in ((k, "lg"), (kv, "vm")):
                        if kk >= 0:
                            assert place(cands, kk, which), f"cannot place wait for {x.text}"
                    account(x)
                out.append(e)
            else:
                if e.kind not in ("label", "raw") or e.meta.get("brk"):
                    gap_hist = []
                k, kv = need_of(e)
                if k >= 0 or kv >= 0:
                    w = WAIT(vm=(min(vm_issued - kv - 1, 63) if kv >= 0 else None), lg=(min(lds_issued - k - 1, 15) if k >= 0 else None))
                    out.append(w)
                    account(w)
                account(e)
                out.append(e)
        dead = lambda x: x.kind == "wait" and x.meta["vm"] is None and x.meta["lg"] is None
        for e in out:
            if isinstance(e, Gap):
                e.sca = [x for x in e.sca if not dead(x)]
        self.el = [e for e in out if isinstance(e, Gap) or not dead(e)]

    def place_flex(self):
        for ins, cands in self.flex:
            if isinstance(ins, list):
                it = iter(cands)
                for x in ins:
                    for g in it:
                        if not g.isdma() and len(g.sca) == 0:
                            g.sca.append(x)
                            break
                    else:
                        raise AssertionError("chain does not fit")
                continue
            for g in cands:
                if not g.isdma() and len(g.sca) == 0:
                    g.sca.append(ins)
                    break
            else:
                for g in cands:
                    if not g.isdma() and len(g.sca) - 1 + g.cost() < 2:
                        g.sca.append(ins)
                        break
                else:
                    self.warn.append(f"flex scalar costs a slot: {ins.text}")
                    [g for g in cands if not g.isdma()][0].sca.append(ins)
        self.flex = []

    def linear(self):
        out = []
        for e in self.el:
            out += e.lin() if isinstance(e, Gap) else [e]
        return out

    def overfull(self):
        n = 0
        for e in self.el:
            if isinstance(e, Gap):
                ns = len([p for p in e.sca + e.post if p.kind not in ("label", "raw")])
                c = e.cost()
                tot = (c + ns) if e.isdma() else (c + max(ns, 1))
                if tot > 3:
                    n += tot - 3
        return n


def text_of(x):
    if x.kind == "wait":
        p = []
        if x.meta["vm"] is not None:
            p.append(f"vmcnt({x.meta['vm']})")
        if x.meta["lg"] is not None:
            p.append(f"lgkmcnt({x.meta['lg']})")
        assert p
        return "s_waitcnt " + " ".join(p)
    return x.text


def fix_hazards(lin, fix=True):
    notes = []
    out = []
    pos = 0
    last = {}
    mf_last = {}
    for x in lin:
        if x.kind == "label" or (x.kind == "raw" and not x.text):
            out.append(x)
            continue
        if x.kind == "raw":
            out.append(x)
            continue
        need = [0, ""]

        def req(key, n, why):
            if key in last:
                short = n - (pos - last[key] - 1)
                if short > need[0]:
                    need[0] = short
                    need[1] = f"{why} {key[1]}"

        isv = x.kind in ("valu", "trans", "perm")
        ismem = x.kind in ("lds", "ldsw", "dma", "vload", "vstore")
        if x.kind == "mfma":
            for r in x.meta["ab"] | x.meta["c"]:
                req(("valu_w", r), 2, "VALU->MFMA")
            for r in x.meta["ab"]:
                req(("mf_w", r), 8, "MFMA D->AB")
            for r in x.meta["c"]:
                if r in mf_last and mf_last[r] != x.meta["C"]:
                    req(("mf_w", r), 6, "MFMA D->C overlap")
        if isv or ismem:
            for r in (x.rd | x.wr):
                req(("mf_w", r), 8, "MFMA D->VALU/mem")
        if isv:
            for r in x.wr:
                req(("mf_c", r), 3, "MFMA C WAR")
                req(("st_d", r), 2, "store data WAR")
            if x.kind != "trans":
                for r in x.rd:
                    req(("trans_w", r), 1, "trans->use")
            if x.kind == "perm":
                for r in x.rd:
                    req(("valu_w", r), 2, "VALU->perm")
            if x.text.startswith(("v_readfirstlane", "v_readlane")):
                for r in x.rd:
                    req(("valu_w", r), 1, "VALU->readlane")
            for r in x.rd:
                if r.startswith("s") or r == "vcc":
                    req(("valu_w", r), 2, "VALU sgpr->VALU")
        if x.kind in ("lds", "vload"):
            for r in x.wr:
                req(("st_d", r), 1, "store data WAR")
        if x.kind in ("dma", "vload", "vstore"):
            for r in x.rd:
                if r.startswith("s"):
                    req(("valu_w", r), 5, "VALU sgpr->VMEM")
            if x.kind == "dma":
                req(("salu_w", "m0"), 1, "m0->DMA")
        if ismem:
            for r in x.rd:
                req(("trans_w", r), 1, "trans->mem")
        if need[0] > 0:
            notes.append(f"{need[1]} short {need[0]}: {x.text}")
            if fix:
                out.append(NOP(need[0] - 1))
                pos += need[0]
        out.append(x)
        if x.kind == "mfma":
            for r in x.wr:
                last[("mf_w", r)] = pos
                mf_last[r] = x.meta["D"]
            for r in x.meta["c"]:
                last[("mf_c", r)] = pos
        elif isv:
            for r in x.wr:
                last[("valu_w", r)] = pos
                last.pop(("mf_w", r), None)
                if x.kind == "trans":
                    last[("trans_w", r)] = pos
                else:
                    last.pop(("trans_w", r), None)
        elif x.kind == "salu":
            for r in x.wr:
                last[("salu_w", r)] = pos
        elif x.kind == "vstore" and x.meta.get("n", 4) >= 3:
            for r in x.meta["data"]:
                last[("st_d", r)] = pos
        pos += x.meta["n"] if x.kind == "nop" else 1
    return out, notes


def check_hazards(lin):
    return fix_hazards(lin, False)[1]


def fill_ops(G, ops, lo=0):
    ops = list(ops)
    dl = [o[1] for o in ops]
    for k in range(len(ops) - 2, -1, -1):
        dl[k] = min(dl[k], dl[k + 1])
    k = 0
    for gi in range(lo, len(G)):
        g = G[gi]
        while k < len(ops) and ops[k][0] <= gi:
            x = ops[k][2]
            c = {"trans": 2, "vstore": 3, "dma": 3, "vload": 3}.get(x.kind, 1)
            if c == 3:
                fits = not g.vec and not g.sca and not g.post and not getattr(g, "nomem", False)
            else:
                fits = g.free() >= c
            if fits or dl[k] <= gi:
                g.vec.append(x)
                k += 1
            else:
                break
        assert k >= len(ops) or dl[k] > gi, (gi, ops[k])
    return ops[k:]


def check_lds_protocol(lin, private=lambda tag: False):
    probs = []
    vm_issued = 0
    vm_done = 0
    lds_issued = 0
    lds_done = 0
    dma_last = {}
    visible = set()
    landed_pos = {}
    read_last = {}
    freed = set()
    occupant = []
    for x in lin:
        if x.kind == "wait":
            if x.meta["vm"] is not None:
                vm_done = max(vm_done, vm_issued - x.meta["vm"])
            if x.meta["lg"] is not None:
                lds_done = max(lds_done, lds_issued - x.meta["lg"])
        elif x.kind == "barrier":
            for t, k in dma_last.items():
                if k < vm_done:
                    visible.add(t)
            for t, k in read_last.items():
                if k < lds_done:
                    freed.add(t)
        elif x.kind in ("lds", "ldsw"):
            t = x.meta.get("tag")
            if t is not None and x.kind == "lds":
                if t in dma_last:
                    if private(t):
                        if dma_last[t] >= vm_done:
                            probs.append(f"RAW private {t}: {x.text}")
                    elif t not in visible:
                        probs.append(f"RAW shared {t}: {x.text}")
                    if not any(o[2] == t for o in occupant):
                        probs.append(f"read of evicted tile {t}: {x.text}")
                else:
                    probs.append(f"read of never-loaded tile {t}: {x.text}")
                read_last[t] = lds_issued
                freed.discard(t)
            lds_issued += 1
        elif x.kind in ("dma", "vload", "vstore"):
            if x.kind == "dma":
                t = x.meta["tag"]
                if t in read_last:
                    probs.append(f"DMA after read of {t}")
                for (lo, hi) in x.meta["region"]:
                    for o in list(occupant):
                        if o[2] != t and o[0] < hi and lo < o[1]:
                            pt = o[2]
                            if pt in read_last:
                                if private(pt) and private(t):
                                    if read_last[pt] >= lds_done:
                                        probs.append(f"WAR private {pt}->{t}")
                                elif pt not in freed:
                                    probs.append(f"WAR shared {pt}->{t}")
                            occupant.remove(o)
                    if (lo, hi, t) not in occupant:
                        occupant.append((lo, hi, t))
                dma_last[t] = vm_issued
                visible.discard(t)
            vm_issued += 1
    return probs
```

```python
import math, struct, sys
from asmlib import *

SLOT = 12288
KREG = 0
VREG = 6 * SLOT
EREG = 12 * SLOT
LDS_BYTES = 163840
OOB = 0x40000000

O_OFF = 0
PART_OFF = 0x2000000
FLAG_OFF = 0x4000000
STAMP_OFF = 0x10000000

SX, SW, SK, SV, SO = 8, 12, 16, 20, 24
SF, SD = 56, 60
SWO, SP, SOUT = 64, 68, 72
sW, sB, sH, sWOFF, sXB0, sXB1 = 34, 35, 36, 37, 38, 39
sOW, sOX, sOKV, sCNT, sTH = 40, 41, 42, 43, 44
sG = 45
sC = 46
sRET = 48
sPAD, sHL = 50, 51
sHB, sOB = 76, 80
sJ = 84
sSPIN = 90
sTRIP, sAO = 54, 55
sIT, sMASK, sSL, sMK, sMV, sSO, sSTEP, sWOFFV = 4, 5, 6, 7, 28, 29, 30, 31
sTM = 92
vAK, vAV, vAW, vAX = 8, 10, 14, 18
vOK, vOV, vOW, vOX = 22, 25, 28, 31
vST = 39
vPF = 8
vFR = 40
vS, vP, vNM, vTS, vL, vE = 64, 96, 128, 144, 148, 152
vA3 = 14
vOB = 18
vOWO = 28
vOP = 31
vFL = 35
PARK = [vA3, vA3 + 1, vA3 + 2, vA3 + 3, vOB, vOB + 3, vOWO, vOWO + 1, vOWO + 2, vOP, vOP + 3, vFL, vFL + 1, vFL + 2, vFL + 3, 5]
vFO, vFOP, vFP, vFPP = vFL, vFL + 1, vFL + 2, vFL + 3


def f32(x):
    return "0x%08x" % struct.unpack("<I", struct.pack("<f", x))[0]


def Q(qt, x):
    for y in (x if isinstance(x, list) else [x]):
        (y[-1] if isinstance(y, tuple) else y).meta["q"] = qt
    return x


def acc(dt, qt):
    return ("v", (160 if dt % 2 == 0 else 64) + ((dt >> 1) * 4 + qt) * 4)


def Qf(qt, s):
    return acc(2 * s, qt)


def Oa(dt, qt):
    return ("a", (dt * 4 + qt) * 4)


def Kf(a, s):
    return ("a", 192 + (a * 6 + s) * 4)


def Xf(beta, u, qt):
    return ("a", beta * 32 + (u * 4 + qt) * 4)


def St(a, qt):
    return ("v", vS + (a * 4 + qt) * 4)


def Pf(par, qt):
    return ("v", vP + par * 16 + qt * 4)


def NM(qt):
    return ("v", vNM + qt * 4)


def Lb(par):
    return ("v", vTS + 4 * par)


def rowsum_mfmas(par):
    return [Q(qt, MFMA(Lb(par), ("a", 240 + 4 * qt), Pf(par, qt), Lb(par ^ 1) if qt == 0 else Lb(par))) for qt in range(4)]


def FR(i):
    return ("v", vFR + (i % 6) * 4)


def wslot(n):
    buf = (n // 2) % 4
    base = {2: KREG, 3: KREG + 2 * SLOT, 0: KREG + 4 * SLOT, 1: VREG + 4 * SLOT}[buf]
    return base + (n % 2) * SLOT


def kslot(n):
    return KREG + (n % 6) * SLOT


def vslot(n):
    return VREG + (n % 6) * SLOT


def woslot(t):
    t %= 12
    return (kslot if t % 2 == 0 else vslot)(26 + t // 2)


def xregion(beta):
    return [(VREG + 2 * beta * SLOT, VREG + 2 * beta * SLOT + 3 * 8192), (EREG + beta * 8192, EREG + beta * 8192 + 8192)]


def vtype_read(dst, slot, dt, t, tag):
    if slot >= VREG:
        a, off = vAV, slot - VREG
    else:
        a, off = vAW, slot
    return DSTR((dst[0], dst[1] + 2 * t), a + (dt & 3), off + 1536 * t + 128 * (dt >> 2), tag)


def k_read(n, a, s):
    return DSR128(Kf(a, s), vAK + (s & 1), kslot(n) + 1536 * a + 128 * (s >> 1), ("K", n))


class DmaGroup:
    def __init__(self, pre, dmas, earliest=0):
        self.pre = pre
        self.dmas = dmas
        self.earliest = earliest
        self.deadline = 10**9


def grp_W(n, cfg):
    sl = wslot(n)
    return [DmaGroup([S(f"s_add_u32 m0, s{sWOFF}, {sl}"), S(f"s_mov_b32 s{sOW}, {n*393216}")],
                     [DMA(vOW + j, SW, f"s{sOW}", 1024 * j, ("W", n), cfg["wflags"], region=[(sl, sl + SLOT)]) for j in range(3)])]


def grp_X(c, cfg, after=()):
    beta = c & 1
    sb = sXB0 + beta
    g0 = DmaGroup([S(f"s_mov_b32 m0, s{sb}"), S(f"s_mov_b32 s{sOX}, {128*c}")],
                  [DMA(vOX + j, SX, f"s{sOX}", 1024 * j, ("X", c), cfg["xflags"], after=after, region=xregion(beta)) for j in range(4)])
    g1 = DmaGroup([S(f"s_add_u32 m0, s{sb}, 4096")],
                  [Q(2 + j // 2, DMA(vOX + 4 + j, SX, f"s{sOX}", 1024 * j, ("X", c), cfg["xflags"], region=xregion(beta))) for j in range(4)])
    return [g0, g1]


def grp_K(n, cfg, loop=False):
    sl = kslot(n)
    so = S(f"s_add_u32 s{sOKV}, s{sOKV}, {SLOT}") if loop else S(f"s_mov_b32 s{sOKV}, {n*SLOT}")
    return [DmaGroup([S(f"s_add_u32 m0, s{sWOFF}, {sl}"), so],
                     [DMA(vOK + j, SK, f"s{sOKV}", 1024 * j, ("K", n), cfg["kvflags"], region=[(sl, sl + SLOT)]) for j in range(3)])]


def grp_V(n, cfg, loop=False):
    sl = vslot(n)
    pre = [S(f"s_add_u32 m0, s{sWOFF}, {sl}")]
    if not loop:
        pre.append(S(f"s_mov_b32 s{sOKV}, {(n+1)*SLOT}"))
    return [DmaGroup(pre,
                     [DMA(vOV + j, SV, f"s{sOKV}", 1024 * j, ("V", n), cfg["kvflags"], region=[(sl, sl + SLOT)]) for j in range(3)])]


def grp_dyn(kind, n, cfg):
    sl = EREG if n is None else (kslot if kind == "K" else vslot)(n)
    tag = ("D", kind) if n is None else (kind, n)
    pre = [S(f"s_add_u32 m0, s{sWOFF}, s{sMK}") if kind == "K" else S(f"s_add_u32 m0, s{sWOFFV}, s{sMV}")]
    vo, sr = (vOK, SK) if kind == "K" else (vOV, SV)
    return [DmaGroup(pre, [DMA(vo + j, sr, f"s{sSO}", 1024 * j, tag, cfg["kvflags"], region=[(sl, sl + SLOT)]) for j in range(3)])]


def dyn_prepare():
    return [S(f"s_add_u32 s{sIT}, s{sIT}, 1"), S(f"s_bitcmp1_b32 s{sMASK}, s{sIT}"),
            S(f"s_cselect_b32 s{sMV}, {EREG-VREG}, s{sSL}"), S(f"s_cselect_b32 s{sSTEP}, 0, {SLOT}"), S(f"s_cselect_b32 s{sSO}, {OOB}, 0"),
            S(f"s_add_u32 s{sOKV}, s{sOKV}, s{sSTEP}"), S(f"s_or_b32 s{sSO}, s{sSO}, s{sOKV}"),
            S(f"s_add_u32 s{sSL}, s{sSL}, s{sSTEP}"), S(f"s_cmp_eq_u32 s{sSL}, {6*SLOT}"), S(f"s_cselect_b32 s{sSL}, 0, s{sSL}"),
            S(f"s_cmp_eq_u32 s{sSTEP}, 0"), S(f"s_cselect_b32 s{sMK}, {EREG}, s{sSL}")]


def grp_WO(t, cfg):
    sl = woslot(t)
    return [DmaGroup([S(f"s_add_u32 m0, s{sWOFF}, {sl}"), S(f"s_add_u32 s{sOW}, s{sHB + KORD[t][0]}, {40960*KORD[t][1]}")],
                     [DMA(vOWO + j, SWO, f"s{sOW}", 1024 * j, ("WO", t), cfg["woflags"], region=[(sl, sl + SLOT)]) for j in range(3)])]


def group_seq(g):
    out = list(g.pre)
    if g.pre and g.pre[-1].text.split()[1].startswith("m0"):
        out.append(NOP(0))
    return out + list(g.dmas)


def seq_groups(P, groups):
    for g in groups:
        P.seq(group_seq(g))


def place_stream(P, G, groups, lo, hi, pace, ok, edf=False):
    pos = lo
    tgt = float(lo)
    groups = list(groups)
    while groups:
        if edf:
            av = [x for x in groups if x.earliest <= tgt + 2]
            g = min(av, key=lambda x: x.deadline) if av else min(groups, key=lambda x: x.earliest)
            groups.remove(g)
            groups.insert(0, g)
        g = groups[0]
        idx = []
        t = max(tgt, g.earliest + len(g.pre))
        k = pos + len(g.pre) + (1 if g.pre else 0)
        fail = False
        for d in g.dmas:
            k = max(k, int(t))
            while k < hi and not (ok(k) and not G[k].vec and not G[k].sca and not G[k].post):
                k += 1
            if k >= hi:
                fail = True
                break
            idx.append(k)
            t0 = t
            t = max(t + pace(k), k - 6)
            if edf:
                t += pace(k) * len([1 for q in range(int(t0) + 1, min(int(t) + 1, hi)) if G[q].isdma() and q != k and q not in idx])
            k += 1
        if fail:
            break
        assert idx[-1] <= g.deadline, (g.dmas[0].meta["tag"], idx, g.deadline)
        P.slack.append((g.dmas[0].meta["tag"], idx[0], idx[-1], g.deadline))
        for s_ in g.pre:
            P.flex_scalar(s_, list(reversed(G[pos:idx[0]])))
        for kk, d in zip(idx, g.dmas):
            G[kk].vec.append(d)
        pos = idx[-1] + 1
        tgt = t
        groups.pop(0)
    return groups


class Stamper:
    def __init__(self, cfg):
        self.on = cfg.get("stamps")
        self.it = cfg.get("itstamps")
        self.n = 0
        self.names = []
        self.pool = [4, 6, 8, 10, 12, 14, 16, 18, 20, 22, 28, 30, 96, 98, 100]
        self.pending = []

    def seq(self, P, name):
        if self.on and not self.it:
            k = self.n
            P.seq(RAW(f"s_memtime s[{sTM}:{sTM+1}]"), RAW(f"s_memrealtime s[{sTM+2}:{sTM+3}]"), WAIT(lg=0),
                  RAW(f"v_writelane_b32 v{vST}, s{sTM}, {2*k}"), RAW(f"v_writelane_b32 v{vST}, s{sTM+2}, {2*k+1}"))
            self.n += 1
            self.names.append(name)

    def light(self, g0, name):
        if self.on:
            r = self.pool.pop(0)
            g0.post.append(RAW(f"s_memtime s[{r}:{r+1}]"))
            self.pending.append((r, self.n))
            self.n += 1
            self.names.append(name)

    def flush(self, P):
        for r, k in self.pending:
            P.seq(RAW(f"v_writelane_b32 v{vST}, s{r}, {2*k}"), RAW(f"v_writelane_b32 v{vST}, s{sTM+2}, {2*k+1}"))
        self.pending = []

    def gap(self, g0, g1, name):
        if self.on:
            k = self.n
            g0.post += [RAW(f"s_memtime s[{sTM}:{sTM+1}]"), RAW(f"s_memrealtime s[{sTM+2}:{sTM+3}]")]
            g1.post += [RAW("s_waitcnt lgkmcnt(0)"), RAW(f"v_writelane_b32 v{vST}, s{sTM}, {2*k}"), RAW(f"v_writelane_b32 v{vST}, s{sTM+2}, {2*k+1}")]
            self.n += 1
            self.names.append(name)


def srd(base, lo, hi, off, size):
    return [S(f"s_add_u32 s{base}, s{lo}, {off}"), S(f"s_addc_u32 s{base+1}, s{hi}, 0"),
            S(f"s_mov_b32 s{base+2}, {size}"), S(f"s_mov_b32 s{base+3}, 0x20000")]


def prologue(P, cfg, ST):
    A = P.seq
    A(S("s_cmp_ge_u32 s2, 256"), I("s_cbranch_scc1 KF_done", "branch"))
    A(RAW("s_load_dwordx4 s[4:7], s[0:1], 0"), RAW("s_load_dwordx4 s[28:31], s[0:1], 16"), RAW("s_load_dwordx4 s[96:99], s[0:1], 32"),
      RAW("s_load_dwordx2 s[100:101], s[0:1], 48"), RAW("s_load_dwordx2 s[32:33], s[0:1], 56"))
    if ST.on:
        A(RAW(f"s_memtime s[{sTM}:{sTM+1}]"), RAW(f"s_memrealtime s[{sTM+2}:{sTM+3}]"))
    A(V("v_lshrrev_b32 v1, 6, v0"), V("v_and_b32 v0, 63, v0"))
    A(V(f"v_readfirstlane_b32 s{sW}, v1"))
    if cfg["codepf"]:
        n = cfg["codepf"] + (4 if cfg["split3"] else 0)
        A(RAW("s_getpc_b64 s[52:53]"), LABEL("KF_pc"), S("s_lshr_b32 s3, s2, 3"), S(f"s_lshl_b32 s3, s3, 2"), S(f"s_add_u32 s3, s3, s{sW}"),
          S(f"s_mul_i32 s3, s3, {n*128}"), V(f"v_min_u32 v2, {n-1}, v0"), V("v_lshl_add_u32 v2, v2, 7, s3"),
          RAW("v_min_u32 v2, KF_end-KF_pc-4, v2"), V("v_mov_b32 v3, s53"), V("v_add_co_u32 v2, vcc, s52, v2"), NOP(1),
          RAW("v_addc_co_u32 v3, vcc, 0, v3, vcc"), RAW("global_load_dword v42, v[2:3], off"))
    m = cfg["map"]
    if m == "hg4":
        A(S(f"s_and_b32 s{sG}, s2, 7"), S(f"s_lshr_b32 s{sB}, s2, 5"), S(f"s_bfe_u32 s{sHL}, s2, 0x20003"))
    elif m == "4x8":
        A(S(f"s_bfe_u32 s{sHL}, s2, 0x20003"), S(f"s_and_b32 s{sG}, s2, 6"), S("s_bfe_u32 s3, s2, 0x10005"), S(f"s_add_u32 s{sG}, s{sG}, s3"),
          S(f"s_and_b32 s{sB}, s2, 1"), S(f"s_lshl_b32 s{sB}, s{sB}, 2"), S("s_lshr_b32 s3, s2, 6"), S(f"s_add_u32 s{sB}, s{sB}, s3"))
    elif m == "batch":
        A(S(f"s_and_b32 s{sB}, s2, 7"), S(f"s_lshr_b32 s{sG}, s2, 5"), S(f"s_bfe_u32 s{sHL}, s2, 0x20003"))
    A(S(f"s_lshl_b32 s{sH}, s{sG}, 2"), S(f"s_add_u32 s{sH}, s{sH}, s{sHL}"))
    A(V("v_lshrrev_b32 v2, 3, v0"), V("v_lshl_add_u32 v2, v1, 6, v2"), V("v_mul_u32_u24 v2, 1280, v2"),
      V("v_lshrrev_b32 v3, 4, v0"), V("v_and_b32 v4, 7, v0"), V("v_xor_b32 v3, v3, v4"),
      V(f"v_lshl_add_u32 v{vOX}, v3, 4, v2"), V("v_xor_b32 v3, 4, v3"), V("v_lshl_add_u32 v4, v3, 4, v2"))
    for j in range(1, 8):
        src = f"v{vOX}" if j % 2 == 0 else "v4"
        A(V(f"v_add_u32 v{vOX+j}, {10240*j - 1024*(j&3)}, {src}"))
    A(S(f"s_mul_i32 s{sWOFF}, s{sW}, 3072"), S(f"s_lshl_b32 s{sXB0}, s{sW}, 13"),
      S(f"s_add_u32 s{sXB1}, s{sXB0}, {VREG+2*SLOT}"), S(f"s_add_u32 s{sXB0}, s{sXB0}, {VREG}"),
      S(f"s_cmp_eq_u32 s{sW}, 3"), S(f"s_cselect_b32 s{sXB0}, {EREG}, s{sXB0}"), S(f"s_cselect_b32 s{sXB1}, {EREG+8192}, s{sXB1}"),
      S(f"s_cselect_b32 s{sPAD}, {f32(-1000.0)}, 0"))
    A(S(f"s_lshl_b32 s52, s{sHL}, 2"), S(f"s_add_u32 s52, s52, s{sW}"), S(f"s_lshl_b32 s91, s{sB}, 4"), S("s_add_u32 s91, s91, s52"))
    A(S("s_mul_i32 s3, s91, 12288"), S(f"s_mul_i32 s88, s{sHL}, 384"), S("s_sub_u32 s3, s3, s88"), S("s_mul_i32 s52, s52, 19200"),
      V("v_min_u32 v2, 11, v0"), V("v_lshl_add_u32 v44, v2, 7, s3"), V(f"v_add_u32 v{vPF}, {128*12288}, v44"),
      V("v_min_u32 v2, 14, v0"), V("v_mul_u32_u24 v2, 1280, v2"), V("v_add_u32 v45, s52, v2"))
    if ST.on and not ST.it:
        A(RAW("s_memtime s[56:57]"), RAW("s_memrealtime s[58:59]"))
    A(RAW("s_waitcnt lgkmcnt(0)"))
    if ST.on:
        A(RAW(f"v_mov_b32 v{vST}, 0"), RAW(f"v_writelane_b32 v{vST}, s{sTM}, 0"), RAW(f"v_writelane_b32 v{vST}, s{sTM+2}, 1"))
        ST.n = 1
        ST.names.append("start")
        if not ST.it:
            A(RAW(f"v_writelane_b32 v{vST}, s56, 2"), RAW(f"v_writelane_b32 v{vST}, s58, 3"))
            ST.n = 2
            ST.names.append("prewait")
            ST.seq(P, "karg")
    A(S(f"s_mul_i32 s3, s{sB}, 307200"), srd(SX, 4, 5, "s3", 307200))
    A(S(f"s_mul_i32 s3, s{sH}, 384"), srd(SW, 30, 31, "s3", 0), S(f"s_sub_u32 s{SW+2}, 7864320, s3"))
    if cfg["pfa"]:
        A(VLOAD(("a", 188), 44, SW, 0, 0, "pfa", "", n=1), VLOAD(("a", 189), 45, SX, 0, 128, "pfa", "", n=1))
    seq_groups(P, grp_X(0, cfg))
    A(V("v_and_b32 v5, 1, v1"), V("v_lshlrev_b32 v5, 2, v5"))
    for j in range(3):
        A(V(f"v_add_u32 v2, {64*j}, v0"), V("v_mul_u32_u24 v3, 2731, v2"), V("v_lshrrev_b32 v3, 16, v3"),
          V("v_mul_u32_u24 v4, 24, v3"), V("v_sub_u32 v2, v2, v4"),
          V("v_and_or_b32 v4, v3, 2, v5"), V(f"v_xor_b32 v{vOV+j}, v2, v4"),
          V(f"v_lshl_add_u32 v{vOK+j}, v1, 3, v3"),
          V(f"v_mul_u32_u24 v7, 12288, v{vOK+j}"), V(f"v_lshl_add_u32 v{vOW+j}, v{vOV+j}, 4, v7"))
        if j:
            A(V(f"v_subrev_u32 v{vOW+j}, {1024*j}, v{vOW+j}"))
    if not cfg["pfa"]:
        seq_groups(P, grp_W(0, cfg))
    stream = grp_W(1, cfg)
    for s in range(1, 10):
        gw = grp_W(2 * s, cfg) + grp_W(2 * s + 1, cfg)
        for g in gw:
            g.earliest = 96 * (s - 4) + 82 if s >= 4 else 0
            g.deadline = 96 * (min(s, 8) - 1) + 79
        gx = grp_X(s, cfg, after=[("X", s - 2)] if s >= 2 else ())
        for g in gx:
            g.earliest = xread_gap(s - 2, cfg) + 12 if s >= 3 else 0
            g.deadline = xread_gap(s, cfg) - 2
        stream += gw + gx
    A(
      S(f"s_lshl_b32 s3, s{sH}, 2"), S(f"s_add_u32 s3, s3, s{sW}"), S("s_mul_i32 s3, s3, 2560"),
      V("v_bfe_u32 v2, v0, 1, 1"), V("v_mul_u32_u24 v2, 1280, v2"), V("v_and_b32 v3, 1, v0"), V("v_lshl_add_u32 v2, v3, 7, v2"),
      V(f"v_add_u32 v{vPF+1}, s3, v2"))
    for i, pos in reversed(list(enumerate(cfg["p1pf"]))):
        if pos is None:
            continue
        g = DmaGroup([S(f"s_mov_b32 s{sAO}, {i*128*12288}")],
                     [VLOAD(("a", 190), vPF + 1, SX, 0, 256 * (i + 1), "pf", "", n=1), VLOAD(("a", 191), vPF, SW, f"s{sAO}", 0, "pf", "", n=1)])
        stream.insert(pos + 1, g)
    A(V("v_and_b32 v1, 15, v0"), V("v_lshrrev_b32 v2, 4, v0"))
    A(V("v_lshrrev_b32 v3, 1, v1"), V("v_xor_b32 v3, v3, v2"), V("v_lshlrev_b32 v3, 4, v3"), V("v_lshl_add_u32 v3, v1, 7, v3"),
      V("v_xor_b32 v4, 64, v3"),
      V(f"v_add_u32 v{vAX}, s{sXB0}, v3"), V(f"v_add_u32 v{vAX+1}, s{sXB0}, v4"),
      V(f"v_add_u32 v{vAX+2}, s{sXB1}, v3"), V(f"v_add_u32 v{vAX+3}, s{sXB1}, v4"))
    A(V("v_lshrrev_b32 v3, 2, v1"), V("v_lshl_add_u32 v4, v2, 3, v3"), V("v_mul_u32_u24 v4, 384, v4"),
      V("v_and_b32 v5, 3, v1"), V("v_lshl_add_u32 v4, v5, 3, v4"),
      V("v_lshrrev_b32 v3, 3, v1"), V("v_and_b32 v5, 1, v2"), V("v_lshl_or_b32 v3, v5, 1, v3"))
    for e in range(4):
        A(V(f"v_xor_b32 v5, {e}, v3"), V(f"v_lshl_add_u32 v{vAW+e}, v5, 5, v4"), V(f"v_add_u32 v{vAV+e}, {VREG}, v{vAW+e}"))
    if cfg["pfa"]:
        seq_groups(P, grp_W(0, cfg))
    seq_groups(P, stream[:cfg["npro"]])
    del stream[:cfg["npro"]]
    stream.append(DmaGroup([], [VSTORE(("a", 184), 2, SF, 0, 0, "sc1", n=1, tag="finit"), VSTORE(("a", 184), 3, SF, 0, 0, "sc1", n=4, tag="finit")]))
    return stream


def background(cfg):
    B_ = []

    def A(*ins):
        for x in ins:
            if isinstance(x, (list, tuple)):
                A(*x)
            else:
                B_.append(x)
    park = {}

    def pk(reg, src):
        park[reg] = True
        A(V(f"v_accvgpr_write_b32 a{240+PARK.index(reg)}, {src}"))
    A(V("v_lshrrev_b32 v3, 1, v2"), V("v_mul_u32_u24 v3, 6144, v3"), V("v_and_b32 v4, 1, v2"), V("v_lshrrev_b32 v5, 2, v1"),
      V("v_lshl_add_u32 v5, v4, 2, v5"), V("v_mul_u32_u24 v5, 320, v5"), V("v_add_u32 v3, v3, v5"), V("v_and_b32 v5, 3, v1"),
      V("v_lshl_add_u32 v3, v5, 3, v3"), V("v_lshl_add_u32 v5, v4, 5, v3"), V("v_xor_b32 v4, 1, v4"), V("v_lshl_add_u32 v4, v4, 5, v3"),
      V(f"v_add_u32 v6, {VREG}, v5"), V(f"v_add_u32 v7, {VREG}, v4"))
    pk(vA3, "v5")
    pk(vA3 + 1, "v4")
    pk(vA3 + 2, "v6")
    pk(vA3 + 3, "v7")
    A(V("v_lshrrev_b32 v3, 2, v1"), V("v_and_b32 v4, 3, v1"), V("v_lshl_add_u32 v4, v3, 3, v4"), V("v_mul_u32_u24 v4, 384, v4"),
      V("v_and_b32 v3, 1, v3"), V("v_and_b32 v5, 2, v1"), V("v_or_b32 v3, v3, v5"), V("v_lshrrev_b32 v5, 3, v1"), V("v_lshl_or_b32 v3, v5, 2, v3"),
      V("v_lshrrev_b32 v5, 1, v2"), V("v_and_b32 v6, 1, v2"), V("v_lshl_or_b32 v5, v6, 1, v5"), V("v_xor_b32 v3, v3, v5"),
      V("v_lshl_add_u32 v6, v3, 4, v4"), V("v_xor_b32 v3, 4, v3"), V("v_lshl_add_u32 v7, v3, 4, v4"))
    A(V(f"v_mov_b32 v1, s{sW}"))
    A(S(f"s_and_b32 s3, s{sW}, 1"), S("s_mul_i32 s3, s3, 5"), S(f"s_lshr_b32 s88, s{sW}, 1"), S("s_lshl_b32 s88, s88, 2"), S("s_xor_b32 s3, s3, s88"))
    for j in range(3):
        A(V(f"v_mul_u32_u24 v3, 384, v{vOK+j}"))
        if j:
            A(V(f"v_subrev_u32 v3, {1024*j}, v3"))
        A(V(f"v_xor_b32 v2, s3, v{vOV+j}"), V(f"v_lshl_add_u32 v{vOK+j}, v2, 4, v3"), V(f"v_lshl_add_u32 v{vOV+j}, v{vOV+j}, 4, v3"))
    A(S(f"s_lshl_b32 s{sCNT}, s{sB}, 5"), S(f"s_add_u32 s{sCNT}, s{sCNT}, s{sH}"), S(f"s_mul_i32 s3, s{sCNT}, 393216"),
      srd(SK, 6, 7, "s3", 393216), srd(SV, 28, 29, "s3", 393216 + SLOT),
      S(f"s_sub_u32 s{SV}, s{SV}, {SLOT}"), S(f"s_subb_u32 s{SV+1}, s{SV+1}, 0"))
    A(srd(SF, 32, 33, FLAG_OFF, 0x60000))
    A(S(f"s_sub_u32 s3, s{sCNT}, s{sHL}"), S("s_mul_i32 s3, s3, 92160"), srd(SO, 32, 33, "s3", 4 * 92160))
    A(S(f"s_mul_i32 s3, s{sG}, {768*1280}"), S(f"s_mul_i32 s52, s{sHL}, 320"), S("s_add_u32 s3, s3, s52"),
      srd(SWO, 96, 97, "s3", 0), S(f"s_sub_u32 s{SWO+2}, 7864320, s3"))
    A(S(f"s_lshl_b32 s3, s{sB}, 2"), S(f"s_add_u32 s3, s3, s{sHL}"), S(f"s_mul_i32 s3, s3, {75*8192}"), S(f"s_add_u32 s3, s3, {PART_OFF}"),
      srd(SP, 32, 33, "s3", 75 * 8192))
    A(S(f"s_mul_i32 s3, s{sB}, 307200"), S("s_add_u32 s3, s3, s52"), srd(SOUT, 98, 99, "s3", 0), S(f"s_sub_u32 s{SOUT+2}, 2457600, s3"))
    A(S(f"s_lshl_b32 s3, s{sB}, 5"), srd(SD, 100, 101, "s3", 4), S(f"s_add_u32 s{sTRIP}, s{sHL}, 1"))
    for p in range(4):
        A(S(f"s_add_u32 s3, s{sHL}, {p}"), S("s_and_b32 s3, s3, 3"), S(f"s_mul_i32 s{sHB+p}, s3, 245760"), S(f"s_mul_i32 s{sOB+p}, s3, 92160"))
    c = math.log2(math.e) / math.sqrt(192.0)
    A(S(f"s_mov_b32 s{sC}, {f32(c)}"), S(f"s_mov_b32 s{sTH}, {f32(cfg['thresh'])}"))
    A(S("s_lshr_b32 s3, s91, 5"), S("s_mul_i32 s3, s3, 160"), S("s_add_u32 s3, s3, s91"),
      V("v_min_u32 v2, 19, v0"), V("v_mul_u32_u24 v3, 6554, v2"), V("v_lshrrev_b32 v3, 16, v3"), V("v_mul_u32_u24 v4, 10, v3"),
      V("v_sub_u32 v2, v2, v4"), V("v_lshl_add_u32 v3, v3, 5, s3"), V("v_mul_u32_u24 v3, 1280, v3"), V("v_lshl_add_u32 v2, v2, 7, v3"),
      V("v_subrev_u32 v2, s52, v2"), V("v_max_i32 v2, 0, v2"))
    pk(5, "v2")
    A(V("v_and_b32 v5, 1, v1"), V("v_lshrrev_b32 v4, 1, v1"), V("v_lshl_or_b32 v5, v5, 1, v4"))
    for j in range(3):
        A(V(f"v_add_u32 v2, {64*j}, v0"), V("v_mul_u32_u24 v3, 3277, v2"), V("v_lshrrev_b32 v3, 16, v3"),
          V("v_mul_u32_u24 v4, 20, v3"), V("v_sub_u32 v2, v2, v4"),
          V("v_lshrrev_b32 v4, 1, v3"), V("v_and_b32 v4, 2, v4"), V("v_xor_b32 v2, v2, v4"),
          V("v_lshl_add_u32 v3, v5, 3, v3"), V("v_mul_u32_u24 v3, 1280, v3"), V("v_lshl_add_u32 v2, v2, 4, v3"))
        if j:
            A(V(f"v_subrev_u32 v2, {1024*j}, v2"))
        if j == 2:
            A(V("v_lshrrev_b32 v3, 5, v0"), V("v_lshl_or_b32 v2, v3, 30, v2"))
        pk(vOWO + j, "v2")
    A(S(f"s_cmp_eq_u32 s{sW}, 3"), S(f"s_cselect_b32 s88, {OOB}, 0"))
    A(V("v_mul_u32_u24 v2, 24576, v1"), V("v_lshl_add_u32 v2, v0, 4, v2"), V("v_add_u32 v3, s88, v2"), V(f"v_add_u32 v3, {3*6144}, v3"))
    pk(vOB, "v2")
    pk(vOB + 3, "v3")
    A(S(f"s_lshl_b32 s3, s{sG}, 10"), V("v_lshlrev_b32 v2, 15, v1"), V("v_lshl_add_u32 v2, v0, 4, v2"), V("v_add_u32 v2, s3, v2"),
      V("v_add_u32 v3, s88, v2"), V(f"v_add_u32 v3, {3*8192}, v3"))
    pk(vOP, "v2")
    pk(vOP + 3, "v3")
    A(S(f"s_lshl_b32 s84, s{sB}, 3"), S(f"s_add_u32 s84, s84, s{sG}"), S("s_lshl_b32 s84, s84, 2"), S(f"s_add_u32 s84, s84, s{sW}"),
      S("s_lshl_b32 s84, s84, 9"),
      S(f"s_lshl_b32 s85, s{sB}, 2"), S(f"s_add_u32 s85, s85, s{sHL}"), S("s_lshl_b32 s85, s85, 13"), S("s_add_u32 s85, s85, 0x20000"),
      S(f"s_lshl_b32 s86, s{sHL}, 7"), S("s_add_u32 s86, s86, s84"),
      S(f"s_lshl_b32 s87, s{sG}, 7"), S("s_add_u32 s87, s87, s85"),
      S("s_add_u32 s3, s3, s85"))
    A(V("v_bfe_u32 v4, v0, 4, 2"), V("v_lshl_add_u32 v4, v4, 7, s84"), V("v_lshrrev_b32 v2, 3, v0"), V("v_lshl_add_u32 v5, v2, 7, s3"),
      V("v_lshl_add_u32 v3, v2, 10, s87"), V("v_and_b32 v2, 7, v0"), V("v_lshl_add_u32 v3, v2, 4, v3"), V("v_min_u32 v2, 1, v1"),
      V("v_lshl_or_b32 v3, v2, 30, v3"), V("v_and_b32 v2, 31, v0"), V("v_lshl_add_u32 v2, v2, 2, s86"))
    pk(vFO, "v2")
    pk(vFP, "v3")
    pk(vFOP, "v4")
    pk(vFPP, "v5")
    assert len(park) == len(PARK)
    A([V(f"v_accvgpr_write_b32 a{184+k}, 0") for k in range(4)])
    A(S(f"s_lshl_b32 s3, s{sW}, 3"), S(f"s_add_u32 s3, s3, s{sG}"))
    for r in range(3):
        A(S(f"s_add_u32 s{sSPIN}, s3, {30*r}"), S(f"s_lshl_b32 s{sJ+r}, s{sSPIN}, 13"),
          S(f"s_mul_i32 s91, s{sSPIN}, 4370"), S("s_lshr_b32 s91, s91, 16"),
          S(f"s_mul_i32 s{sJ+3+r}, s91, {64 - 15*20480}"), S(f"s_mul_i32 s{sSPIN}, s{sSPIN}, 20480"),
          S(f"s_add_u32 s{sJ+3+r}, s{sJ+3+r}, s{sSPIN}"),
          S(f"s_cmp_lt_u32 s3, {(30, 30, 15)[r]}"), S(f"s_cselect_b32 s91, 0, {OOB}"),
          S(f"s_or_b32 s{sJ+r}, s{sJ+r}, s91"), S(f"s_or_b32 s{sJ+3+r}, s{sJ+3+r}, s91"))
    NS = len(cfg["skips"])
    if NS:
        per = 24 // NS
        A(S("s_lshr_b32 s3, s2, 3"), S(f"s_add_u32 s3, s3, s{sG}"), S(f"s_mul_i32 s91, s3, {65536//per+1}"), S("s_lshr_b32 s91, s91, 16"),
          S(f"s_mul_i32 s91, s91, {per}"), S("s_sub_u32 s3, s3, s91"),
          S(f"s_lshl_b32 s{sMASK}, {sum(2 << (per*k) for k in range(NS))}, s3"),
          S(f"s_mov_b32 s{sIT}, 0"), S(f"s_mov_b32 s{sSL}, {(cfg['LA'] % 6) * SLOT}"), S(f"s_add_u32 s{sWOFFV}, s{sWOFF}, {VREG}"))
    late = [V(f"v_mov_b32 v{vAK}, v6"), V(f"v_mov_b32 v{vAK+1}, v7"),
            V(f"v_or_b32 v6, s{sW}, v0"), V("v_lshlrev_b32 v6, 8, v6"), V("v_mov_b32 v7, 1")]
    return B_, late


def fill_background(G, ins, lo, hi):
    k = 0
    gi = lo
    while k < len(ins):
        n = 2 if k + 1 < len(ins) and ins[k + 1].text.startswith(("s_addc", "s_subb", "s_cselect")) else 1
        while G[gi].free() < n:
            gi += 1
        assert gi < hi
        G[gi].vec += ins[k:k + n]
        k += n
    return gi


def xread_gap(c, cfg):
    if c == 9:
        return 96 * 7 + 86
    return 96 * (c - 1) + (84 if c < cfg["xearly"] else 42)


def Xr(c, u, qt):
    return Xf(2 if c == 9 else c & 1, u, qt)


def x_read(c, u, qt):
    return Q(qt, DSR128(Xr(c, u, qt), vAX + 2 * (c & 1) + u, 2048 * qt, ("X", c)))


def AL(dt, u):
    return ("a", (128 if dt == 11 else 96 + (dt & 1) * 16) + 4 * u)


def K0f(a, s):
    return ("a", 144 + (a * 6 + s) * 4)


def w_reads(stage, dt):
    gdt = stage * 12 + dt
    out = []
    for u in range(4 if stage == 8 else 2):
        n = 2 * stage + u
        for t in range(2):
            out.append(vtype_read(AL(dt, u) if stage == 8 else FR(2 * (gdt % 3) + u), wslot(n), dt, t, ("W", n)))
    return out


BL1, BL2 = 768 + 13, 768 + 161


def kv_prefill(cfg):
    LA = cfg["LA"]
    out = []
    seq = [("K", 0)]
    for n in range(1, LA):
        seq += [("K", n), ("V", n - 1)]
    free = {("K", 0): 658, ("K", 1): 658, ("K", 2): 754, ("K", 3): 754, ("K", 4): BL2 + 1, ("K", 5): BL2 + 1,
            ("V", 0): BL1 + 1, ("V", 1): BL1 + 1, ("V", 2): BL1 + 1, ("V", 3): BL1 + 1, ("V", 4): BL2 + 1}
    if LA >= 3:
        seq[2], seq[3] = seq[3], seq[2]
    for t in seq:
        g = (grp_K if t[0] == "K" else grp_V)(t[1], cfg)[0]
        g.earliest = free[t]
        if t in (("K", 0), ("K", 1)):
            g.deadline = BL2 - 2
        out.append(g)
    return out


def put_reads(G, g, r, step=1):
    for k in range(0, len(r), 2):
        assert G[g].free() >= 2, g
        G[g].vec += r[k:k + 2]
        g += step


def phase1(P, cfg, ST, stream):
    A = P.seq
    ST.seq(P, "issued")
    if cfg["tour"] and not cfg["split3"]:
        A(RAW("s_mov_b64 exec, 0"))
        for w in range(1, 4):
            A(RAW(f"s_cmp_eq_u32 s{sW}, {w}"), RAW(f"s_cbranch_scc1 KF_pg{w}"))
        A(RAW("s_branch KF_pg4"), LABEL("KF_tret"), RAW("s_mov_b64 exec, -1"))
    A(RAW("s_branch KF_go"), RAW(".p2align 12"), LABEL("KF_go"))
    ST.seq(P, "toured")
    seq_groups(P, stream[:cfg["npro2"]])
    stream = stream[cfg["npro2"]:]
    A(WAITV(("X", 0), ("W", 0), ("W", 1)), BARRIER())
    ST.seq(P, "landed")
    for u in range(2):
        for qt in range(4):
            A(x_read(0, u, qt))
    A(w_reads(0, 0), w_reads(0, 1))
    mfs = []
    for st in range(8):
        for dt in range(12):
            gdt = st * 12 + dt
            for qt in range(4):
                for u in range(2):
                    C = 0 if (st == 0 and u == 0) else acc(dt, qt)
                    m = Q(qt, MFMA(acc(dt, qt), FR(2 * (gdt % 3) + u), Xr(st, u, qt), C))
                    if qt == 0 and u == 0:
                        m.rd |= set(regs("v", FR(2 * (gdt % 3) + 1)[1], 4))
                        if dt == 0:
                            m.rd |= set(regs("a", Xr(st, 0, 0)[1], 32))
                    mfs.append(m)
    done = {}
    order = [(dt, qt) for dt in range(10) for qt in range(4)] + [(dt, qt) for qt in range(4) for dt in (10, 11)]
    for dt, qt in order:
        for u in range(4):
            m = Q(qt, MFMA(acc(dt, qt), AL(dt, u), Xr(8 + u // 2, u & 1, qt), acc(dt, qt)))
            if qt == 0 and u == 0:
                m.rd |= set(regs("a", AL(dt, 0)[1], 16))
                if dt == 0:
                    m.rd |= set(regs("a", Xr(9, 0, 0)[1], 32))
            mfs.append(m)
        done[(dt, qt)] = len(mfs) - 1
    assert len(mfs) == 960
    for qt in range(4):
        for a in range(2):
            for s in range(6):
                m = Q(qt, MFMA(St(a, qt), K0f(a, s), Qf(qt, s), 0 if s == 0 else St(a, qt)))
                if qt == 0 and s == 0:
                    m.rd |= set(regs("a", K0f(a, 0)[1], 24))
                mfs.append(m)
    G = P.gaps(mfs)
    for st in range(8):
        b = 96 * st
        for dt in range(2, 12):
            put_reads(G, b + 8 * (dt - 2), w_reads(st, dt))
        put_reads(G, b + 82, w_reads(st + 1, 0))
        if st < 7:
            put_reads(G, b + 88, w_reads(st + 1, 1))
        need = [("W", 2 * st + 2), ("W", 2 * st + 3)] if st < 7 else [("W", n) for n in range(16, 20)]
        if cfg.get("p1stamps"):
            ST.gap(G[b + 79], G[b + 81], f"st{st}")
        G[b + 80].sca.append(WAITV(*need))
        G[b + 81].sca.append(BARRIER(frees=[("W", 2 * st), ("W", 2 * st + 1)]))
    for c in range(1, 10):
        g = xread_gap(c, cfg)
        G[g - 1].sca.append(WAITV(("X", c)))
        put_reads(G, g, [x_read(c, u, qt) for u in range(2) for qt in range(4)])
    for dt in range(1, 11):
        put_reads(G, 768 + 16 * (dt - 1), w_reads(8, dt))
    put_reads(G, 768 + 16 * 9 + 4, w_reads(8, 11))
    G[BL1].sca.append(BARRIER(frees=[("X", 8), ("X", 9)]))
    G[BL2 - 1].sca.append(WAITV(("K", 0), ("K", 1), "finit"))
    G[BL2].sca.append(BARRIER(frees=[("W", n) for n in range(16, 20)]))
    r = [DSR128(K0f(a, s), vAK + (s & 1), kslot(0) + 1536 * a + 128 * (s >> 1), ("K", 0)) for a in range(2) for s in range(6)]
    put_reads(G, BL2 + 1, r, 3)
    put_reads(G, 962, [k_read(1, 0, s) for s in range(6)], 3)
    ok = lambda k: k % 8 != 7
    pc = cfg["pace"]

    def pace(k):
        for lim, p in pc:
            if k < lim:
                return p
        return pc[-1][1]
    left = place_stream(P, G, stream, 0, 960, pace, ok)
    assert not left
    last = max(k for k, g in enumerate(G) if g.isdma())
    left = place_stream(P, G, kv_prefill(cfg), last + 1, len(G), lambda k: cfg["kvpace"], ok)
    bg, late = background(cfg)
    first_use = min(k for k, g in enumerate(G) for x in g.vec if x.meta.get("tag") in ("finit", ("K", 0)))
    k = fill_background(G, bg, cfg["bgstart"], first_use - 8)
    lastpf = max([k] + [q for q, g in enumerate(G) for x in g.vec if x.meta.get("tag") == "pf"])
    fill_background(G, late, lastpf + 1, 760)
    ops = []
    swaps = []
    LAG = 5

    def muls(dt, qt, dl):
        r = acc(dt, qt)[1]
        return Q(qt, [(done[(dt, qt)] + LAG, dl, V(f"v_mul_f32 v{r+k}, s{sC}, v{r+k}")) for k in range(4)])
    for s in range(6):
        if s < 5:
            for qt in range(4):
                ops += muls(2 * s, qt, 958)
        for qt in range(4):
            dl = 960 + 12 * qt + s - 2
            if s == 5:
                ops += muls(10, qt, dl)
            ops += muls(2 * s + 1, qt, dl)
            ops += swaps
            a_, b_ = acc(2 * s, qt)[1], acc(2 * s + 1, qt)[1]
            e = done[(2 * s + 1, qt)] + LAG
            ops += [(e, dl, V(f"v_cvt_pk_bf16_f32 v{a_}, v{a_}, v{a_+1}")), (e, dl, V(f"v_cvt_pk_bf16_f32 v{a_+1}, v{a_+2}, v{a_+3}")),
                    (e, dl, V(f"v_cvt_pk_bf16_f32 v{a_+2}, v{b_}, v{b_+1}")), (e, dl, V(f"v_cvt_pk_bf16_f32 v{a_+3}, v{b_+2}, v{b_+3}"))]
            swaps = [(e, dl, V(f"v_permlane16_swap_b32 v{a_}, v{a_+2}")), (e, dl, V(f"v_permlane16_swap_b32 v{a_+1}, v{a_+3}"))]
            Q(qt, ops[-4:] + swaps)
            if s == 5:
                ops += swaps
                swaps = []
    INF = 10**9
    rm = rowmax(1)
    for pr in range(2):
        q0, q1 = 2 * pr, 2 * pr + 1
        ops += [(960 + 12 * q0 + 11 + LAG, INF, x) for x in rm[4 * q0:4 * q0 + 4]]
        e = 960 + 12 * q1 + 11 + LAG
        blk = rm[4 * q1:4 * q1 + 4] + xred([1 + q0, 1 + q1], [vE, vE + 1], "v_max_f32")
        if pr == 1 and not cfg["split3"]:
            blk.append(V(f"v_subrev_f32 v4, s{sPAD}, v4"))
        for qt in (q0, q1):
            blk += Q(qt, [V(f"v_sub_f32 v{vNM+4*qt+r}, 0, v{1+qt}") for r in range(4)])
            blk.append(V(f"v_mov_b32 v{vL+qt}, 0") if qt < 3 else V(f"v_sub_f32 v{vL+qt}, 0, s{sPAD}"))
        blk += softmax_seq(0, 1, [q0, q1], not cfg["R"])
        ops += [(e, INF, x) for x in blk if x.kind != "nop"]
    rest = [x for _, _, x in fill_ops(G, ops, 768)]
    if cfg.get("dbgp1"):
        lo_, hi_, st_ = cfg["dbgp1"]
        for k in range(lo_, hi_, st_):
            G[k].post.append(RAW("s_nop 7"))
    ST.seq(P, "qk0end")
    dm = sum((group_seq(g) for g in left), [])
    step = max(1, len(rest) // (len(dm) + 1))
    for k, x in enumerate(rest):
        if dm and k % step == step - 1:
            A(dm.pop(0))
        A(x)
    A(dm)
    A(WAITV(("V", 0)) if cfg["bpos"] else WAITV(("V", 0), ("K", 2)), BARRIER(frees=[("K", 0)]))


def qk_mfmas(first):
    out = []
    for a in range(2):
        for qt in range(4):
            for s in range(6):
                C = (0 if first else NM(qt)) if s == 0 else St(a, qt)
                m = Q(qt, MFMA(St(a, qt), Kf(a, s), Qf(qt, s), C))
                if qt == 0 and s in (0, 3):
                    m.rd |= set(regs("a", Kf(a, s)[1], 12))
                out.append(m)
    return out


def pv_mfmas(j):
    out = []
    for dt in range(12):
        for qt in range(4):
            out.append(Q(qt, MFMA(Oa(dt, qt), FR(dt), Pf(j & 1, qt), 0 if j == 0 else Oa(dt, qt))))
    return out


def xred(x, t, op):
    out = []
    for sw in ("v_permlane32_swap_b32", "v_permlane16_swap_b32"):
        for a, b in zip(x, t):
            out.append(V(f"v_mov_b32 v{b}, v{a}"))
        out.append(NOP(0))
        for a, b in zip(x, t):
            out.append(V(f"{sw} v{b}, v{a}"))
        for a, b in zip(x, t):
            out.append(V(f"{op} v{a}, v{a}, v{b}"))
    for y in out:
        if op == "v_max_f32" and "v4" in (y.rd | y.wr):
            Q(3, y)
    return out


def rowmax(dst):
    out = []
    for qt in range(4):
        s0, s1 = St(0, qt)[1], St(1, qt)[1]
        d = dst + qt
        out += [V(f"v_max3_f32 v{d}, v{s0}, v{s0+1}, v{s0+2}"), V(f"v_max3_f32 v{d}, v{d}, v{s0+3}, v{s1}"),
                V(f"v_max3_f32 v{d}, v{d}, v{s1+1}, v{s1+2}"), V(f"v_max_f32 v{d}, v{d}, v{s1+3}")]
        Q(qt, out[-4:])
    return out


def softmax_seq(par, delta, qts=range(4), adds=True):
    out = []
    for qt in qts:
        n0 = len(out)
        for a in range(2):
            s = St(a, qt)[1]
            for r in range(4):
                out.append(V(f"v_sub_f32 v{vE+4*a+r}, v{s+r}, v{delta+qt}"))
        for k in range(8):
            out.append(V(f"v_exp_f32 v{vE+k}, v{vE+k}"))
        p = Pf(par, qt)[1]
        if adds:
            out.append(V(f"v_add_f32 v{vTS+qt}, v{vE}, v{vE+1}"))
            for k in range(2, 8):
                out.append(V(f"v_add_f32 v{vTS+qt}, v{vTS+qt}, v{vE+k}"))
        for k in range(4):
            out.append(V(f"v_cvt_pk_bf16_f32 v{p+k}, v{vE+2*k}, v{vE+2*k+1}"))
        Q(qt, out[n0:])
    return out


def unpark():
    un = [V(f"v_accvgpr_read_b32 v{r}, a{240+k}") for k, r in enumerate(PARK)]
    un += [V(f"v_add_u32 v{vOB+1}, 6144, v{vOB}"), V(f"v_add_u32 v{vOB+2}, 12288, v{vOB}"),
           V(f"v_add_u32 v{vOP+1}, 8192, v{vOP}"), V(f"v_add_u32 v{vOP+2}, 16384, v{vOP}")]
    return un


def asel_setup():
    out = [V("v_and_b32 v2, 3, v0"), V("v_mov_b32 v3, 0x3f803f80")]
    for qt in range(4):
        out += [V(f"v_cmp_eq_u32 vcc, {qt}, v2"), V("v_cndmask_b32 v4, 0, v3, vcc")]
        out += [V(f"v_accvgpr_write_b32 a{240+4*qt+k}, v4") for k in range(4)]
        Q(qt, out[-6:])
    return out


def fallback(par, cfg):
    out = [LABEL(f"KF_fix{par}"), RAW("s_waitcnt vmcnt(0)"), NOP(7)]
    out += rowmax(1)
    out += xred([1, 2, 3, 4], [vE, vE + 1, vE + 2, vE + 3], "v_max_f32")
    for qt in range(4):
        out.append(Q(qt, V(f"v_max_f32 v{1+qt}, 0, v{1+qt}")))
    out += softmax_seq(par, 1, range(4), not cfg["R"])
    for qt in range(4):
        for r in range(4):
            out.append(Q(qt, V(f"v_sub_f32 v{vNM+4*qt+r}, v{vNM+4*qt+r}, v{1+qt}")))
    for qt in range(4):
        out.append(Q(qt, V(f"v_exp_f32 v{1+qt}, -v{1+qt}")))
    out.append(NOP(0))
    for qt in range(4):
        lo = Lb(par ^ 1)[1] if cfg["R"] else vL
        out.append(Q(qt, V(f"v_mul_f32 v{lo+qt}, v{lo+qt}, v{1+qt}")))
    if cfg["R"]:
        out += [NOP(1)] + rowsum_mfmas(par)
    for dt in range(12):
        for qt in range(4):
            a = Oa(dt, qt)[1]
            e = vE + 4 * (qt & 1)
            for r in range(4):
                out.append(V(f"v_accvgpr_read_b32 v{e+r}, a{a+r}"))
            for r in range(4):
                out.append(V(f"v_mul_f32 v{e+r}, v{e+r}, v{1+qt}"))
            for r in range(4):
                out.append(V(f"v_accvgpr_write_b32 a{a+r}, v{e+r}"))
            Q(qt, out[-12:])
    out += [NOP(1), I(f"s_setpc_b64 s[{sRET}:{sRET+1}]", "branch")]
    return out


def iteration(P, cfg, j, lab, groups, extra_vm=None, opre=(), extra_valu=(), forcevm=None):
    par = (j + 1) & 1
    R = cfg["R"]
    mf = qk_mfmas(False) + pv_mfmas(j)
    RP = cfg["rpos"]
    rs = ((rowsum_mfmas(0) if j == 0 else []) + rowsum_mfmas(par)) if R else []
    G = P.gaps(mf[:RP] + rs + mf[RP:])
    pos = lambda n: n if n < RP else n + len(rs)
    E = len(G) - 1
    exp_gaps = cfg["expgaps"] if R else [11 + 5 * k + o for k in range(16) for o in (0, 2)]
    slots = cfg["dmagaps"][len(groups)]
    lo = 0
    for g, idx in zip(groups, slots):
        for s_ in g.pre:
            P.flex_scalar(s_, G[lo:idx[0]])
        for k, d in zip(idx, g.dmas):
            assert k not in exp_gaps
            G[k].vec.append(d)
        lo = idx[-1] + 1
    if extra_vm is not None:
        G[E - 1].vec.append(extra_vm)
    for k, sc, x in opre:
        assert not G[k].vec and k not in exp_gaps
        G[k].vec.append(x)
        P.flex_scalar(sc, list(reversed(G[k - 6:k])))
    valu = []
    if not R:
        for qt in range(4):
            valu.append((0, V(f"v_add_f32 v{vL+qt}, v{vL+qt}, v{vTS+qt}")))
    n = 0
    for T in range(8):
        a, qt = divmod(T, 4)
        s = St(a, qt)[1]
        p = Pf(par, qt)[1] + 2 * a
        for r in range(4):
            g = exp_gaps[n]
            e = vE + n % 8
            assert not G[g].vec and g >= 6 * T + 9
            G[g].vec.append(Q(qt, V(f"v_exp_f32 v{e}, v{s+r}")))
            if R or (a == 0 and r == 0):
                pass
            elif a == 0 and r == 1:
                valu.append((g + 1, V(f"v_add_f32 v{vTS+qt}, v{e-1}, v{e}")))
            else:
                valu.append((g + 1, V(f"v_add_f32 v{vTS+qt}, v{vTS+qt}, v{e}")))
            if r & 1:
                valu.append((g + 1, Q(qt, V(f"v_cvt_pk_bf16_f32 v{p+(r>>1)}, v{e-1}, v{e}"))))
            n += 1
        if T == 6 and not R:
            valu.append((g + 1, V(f"v_max3_f32 v1, v{vTS}, v{vTS+1}, v{vTS+2}")))
    if R:
        l = Lb(par)[1]
        G[E - 3].vec += [V(f"v_max3_f32 v1, v{l}, v{l+1}, v{l+2}"), V(f"v_max_f32 v1, v1, v{l+3}")]
        G[E - 2].vec.append(V(f"v_cmp_nge_f32 vcc, s{sTH}, v1"))
    else:
        valu.append((g + 1, V(f"v_max_f32 v1, v1, v{vTS+3}")))
        valu.append((g + 1, V(f"v_cmp_lt_f32 vcc, s{sTH}, v1")))
    lds = []
    for s in range(6):
        lds.append((s, 14, k_read(j + 1, 1, s)))
    t0 = 6
    for dt in range(6):
        for t in range(2):
            lds.append((t0 + 3 * (2 * dt + t), 48 + 4 * dt - 8, vtype_read(FR(dt), vslot(j), dt, t, ("V", j))))
    BP = cfg["bpos"]
    if BP and j == 0:
        BP += 4
    if j + 2 < 32:
        for s in range(6):
            lds.append(((27, 33, 38, 43, 47, 50)[s], 70, k_read(j + 2, 0, s)) if not BP else (BP + 1 + s // 2, BP + 6, k_read(j + 2, 0, s)))
    for dt in range(6, 12):
        for t in range(2):
            lds.append((pos(48 + 4 * (dt - 6) + 3), pos(48 + 4 * dt) - 8, vtype_read(FR(dt), vslot(j), dt, t, ("V", j))))
    for gi, g in enumerate(G):
        while g.free() > 0:
            cand = []
            if valu and valu[0][0] <= gi:
                cand.append((min(valu[0][0] + cfg["vslack"], (RP - 2) if R else 93), 0, None))
            av = [x for x in lds if x[0] <= gi]
            if av:
                b = min(av, key=lambda x: x[1])
                nl = len([y for y in g.vec if y.kind == "lds"])
                cand.append((b[1] - (100 if nl == 0 and len([v for v in valu if v[0] <= gi]) < 3 else 0), 1, b))
            if not cand:
                break
            c = min(cand, key=lambda x: x[:2])
            if c[1] == 0:
                assert valu[0][0] + 16 >= gi and (not R or gi < RP)
                g.vec.append(valu.pop(0)[1])
            else:
                assert c[2][1] >= gi, (gi, c[2])
                lds.remove(c[2])
                g.vec.append(c[2][2])
    assert not valu and not lds, (valu, lds)
    if extra_valu:
        assert not fill_ops(G[:RP], [(0, RP - 2, x) for x in extra_valu])
    if cfg.get("dbgnop"):
        for k in range(cfg["dbgnop"]):
            G[exp_gaps[(k * 32) // cfg["dbgnop"]]].post.append(NOP(3))
    kn = j + 2 if BP else j + 3
    need = [("V", j + 1)] + ([("K", kn)] if kn < 32 else [])
    w = WAITV(*need)
    if forcevm is not None:
        w.meta["vm"] = forcevm
    P.itwait[j] = w
    G[BP - 1 if BP else E - 3].sca.append(w)
    G[BP if BP else E - 2].sca.append(BARRIER(frees=[("V", j), ("K", j + 1)]))
    G[E].sca.append(I(f"s_cbranch_vccnz KF_fx{lab}", "branch", rd=["vcc"]))
    assert not G[E].vec
    G[E].post.append(LABEL(f"KF_bk{lab}"))
    return G


KORD = [(0, s) for s in range(6)] + [(p, s) for s in range(6) for p in (1, 2, 3)]


def acc3(nt, qt):
    if nt < 4:
        return ("a", 192 + (nt * 4 + qt) * 4)
    return ("v", 64 + ((nt - 4) * 4 + qt) * 4)


def Bf(ks, qt):
    if ks < 6 or ks >= 18:
        return ("v", 160 + ((ks % 6) * 4 + qt) * 4)
    return ("a", ((ks - 6) * 4 + qt) * 4)


def wo_read(dst, ks, nt, tt):
    sl = woslot(ks)
    a, off = (vA3 + 2, sl - VREG) if sl >= VREG else (vA3, sl)
    return DSTR((dst[0], dst[1] + 2 * tt), a + (nt & 1), off + 3072 * tt + 64 * (nt >> 1), ("WO", ks))


def grp_B(ks, cfg):
    p, s = KORD[ks]
    so, pre = (f"s{sOB+p}", []) if s < 4 else (f"s{sOKV}", [S(f"s_add_u32 s{sOKV}, s{sOB+p}, 4096")])
    return [DmaGroup(pre, [Q(qt, VLOAD(Bf(ks, qt), vOB + qt, SO, so, 1024 * (s & 3), ("B", ks), cfg["bflags"])) for qt in range(4)])]


def poll_load(kind):
    off, srd_ = {"c": (6, SD), "o": (vFOP, SF), "p": (vFPP, SF)}[kind]
    return VLOAD(("v", 5), off, srd_, 0, 0 if kind == "c" else 4, None, "sc1", n=1)


def poll_cmp(need):
    return V(f"v_cmp_gt_u32 vcc, {need}, v5")


def slow_path(name, kind, need):
    return [f"KF_sl{name}:", f"s_mov_b32 s{sSPIN}, 0", f"KF_sp{name}:", poll_load(kind).text, "s_waitcnt vmcnt(0)", poll_cmp(need).text,
            f"s_add_u32 s{sSPIN}, s{sSPIN}, 1", f"s_cmp_gt_u32 s{sSPIN}, 0x8000", f"s_cbranch_scc1 KF_rt{name}",
            f"s_cbranch_vccnz KF_sp{name}", f"s_branch KF_rt{name}"]


def check_seq(P, name, kind, need):
    P.slow += slow_path(name, kind, need)
    return [poll_cmp(need), NOP(0), I(f"s_cbranch_vccnz KF_sl{name}", "branch", rd=["vcc"]), LABEL(f"KF_rt{name}")]


def free_gap(G, k, ok=lambda k: True):
    while G[k].vec or G[k].sca or G[k].post or not ok(k):
        k += 1
    return k


def check_gaps(P, G, name, kind, need, g_load, g_chk, ok):
    k = free_gap(G, g_load, ok)
    G[k].vec.append(poll_load(kind))
    k = free_gap(G, max(g_chk, k + 1), ok)
    G[k].vec.append(poll_cmp(need))
    k = free_gap(G, k + 1, ok)
    G[k].sca.append(I(f"s_cbranch_vccnz KF_sl{name}", "branch", rd=["vcc"]))
    G[k].sca.append(LABEL(f"KF_rt{name}"))
    P.slow += slow_path(name, kind, need)
    return k + 1


def flag_gaps(G, tags, val, off, g, ok):
    k = free_gap(G, g, ok)
    G[k].sca.append(WAITV(*tags))
    G[k].vec.append(V(f"v_mov_b32 v7, {val}"))
    k = free_gap(G, k + 1, ok)
    G[k].vec.append(VSTORE(("v", 7), off, SF, 0, 0, "sc1", n=1))
    return k


def otouch(s, cfg):
    x = VLOAD(("v", 4), 1, SO, f"s{sOB}" if s < 4 else f"s{sOX}", 1024 * (s & 3), None, cfg["otflags"], n=1)
    if s < 5:
        x.wr = set()
    return x


RCP = [2, 3, 8, 9]
F0 = 48


def pack_muls(G):
    for g in G:
        if g.cost() < 8:
            continue
        out = []
        k = 0
        v = g.vec
        while k < len(v):
            x = v[k]
            y = v[k + 1] if k + 1 < len(v) else None
            if k >= 3 and y is not None and "omul" in x.meta and "omul" in y.meta and x.meta["omul"][0] % 2 == 0 \
                    and y.meta["omul"] == (x.meta["omul"][0] + 1, x.meta["omul"][1]):
                r, f = x.meta["omul"]
                sel = "op_sel_hi:[1,0]" if f % 2 == 0 else "op_sel:[0,1] op_sel_hi:[1,1]"
                z = V(f"v_pk_mul_f32 v[{r}:{r+1}], v[{r}:{r+1}], v[{f&~1}:{(f&~1)+1}] {sel}")
                out.append(Q(x.meta["q"], z))
                k += 2
            else:
                out.append(x)
                k += 1
        g.vec = out


def unified_schedule(P, G, cfg, ost, wo_left, base, bar, stage_of, ok):
    c_st, c_miss, c_hit, lead = cfg["p3sched"]
    chunk_of = cfg["chunks"]
    ready = cfg["oready"]
    for g in wo_left:
        t = g.dmas[0].meta["tag"][1]
        g.earliest = bar[stage_of[t - 12]] + 1 if t >= 12 else (34 if t == 11 else 0)
        g.deadline = bar[stage_of[t] - 1] - 2
        g.cost = c_hit
    bs = [grp_B(ks, cfg)[0] for ks in range(6, 24)]
    for g in bs:
        ks = g.dmas[0].meta["tag"][1]
        g.deadline = base[stage_of[ks]] - 2 + 0.01 * ks
        g.earliest = None
        g.cost = c_miss if KORD[ks][0] == 1 else c_hit
    need = {}
    for g in bs:
        need.setdefault(chunk_of[KORD[g.dmas[0].meta["tag"][1]][1]], g.deadline)
    sts = []
    for n, x in enumerate(ost):
        g = DmaGroup([], [x], ready(n))
        c = chunk_of[n // 4]
        left = len([m for m in range(n + 1, 24) if chunk_of[m // 4] == c])
        g.deadline = need[c] - lead - sum(cfg["lags"][c]) - left * c_st
        g.cost = c_st
        sts.append(g)
    opos, ee = [], []
    groups = list(wo_left) + bs
    t = float(cfg["wstart"])
    pos = 0
    while groups or sts:
        cand = [g for g in groups if g.earliest is not None] + sts[:1]
        av = [g for g in cand if g.earliest <= t + 2]
        g = min(av, key=lambda x: x.deadline) if av else min(cand, key=lambda x: x.earliest)
        t = max(t, g.earliest + len(g.pre))
        k = pos + len(g.pre) + (1 if g.pre else 0)
        idx = []
        for d in g.dmas:
            k = free_gap(G, max(k, int(t)), ok)
            G[k].vec.append(d)
            idx.append(k)
            t = max(t + g.cost, k - 6)
            k += 1
        for s_ in g.pre:
            P.flex_scalar(s_, list(reversed(G[pos:idx[0]])))
        pos = idx[-1] + 1
        if sts and g is sts[0]:
            sts.pop(0)
            opos.append(idx[0])
            n = len(opos) - 1
            c = chunk_of[n // 4]
            if n == 23 or chunk_of[(n + 1) // 4] != c:
                k = flag_gaps(G, [("O", c)], c + 1, vFO, idx[0] + cfg["lags"][c][0], ok)
                k = max(k + cfg["lags"][c][1], (ee[-1] if ee else 0))
                ee.append(check_gaps(P, G, f"o{c}", "o", c + 1, k, k + cfg["lags"][c][2], ok))
                for h in bs:
                    ks = h.dmas[0].meta["tag"][1]
                    if chunk_of[KORD[ks][1]] == c:
                        h.earliest = ee[-1]
                        if ks >= 18:
                            assert n >= 4 * (ks - 18) + 3
                            h.earliest = max(h.earliest, base[stage_of[ks - 18] + 1])
        else:
            groups.remove(g)
            assert idx[-1] <= g.deadline, (g.dmas[0].meta["tag"], idx, g.deadline)
            P.slack.append((g.dmas[0].meta["tag"], idx[0], idx[-1], int(g.deadline)))
    P.slack.append(("stores", opos, "checks", ee))
    return opos


def phase3(P, cfg, ST, wo_left):
    A = P.seq
    stages = cfg["stages"]
    j = 31
    for dt in range(4):
        for t in range(2):
            A(vtype_read(FR(dt), vslot(j), dt, t, ("V", j)))
    A(check_seq(P, "c", "c", 32))
    A(S(f"s_add_u32 s{sOX}, s{sOB}, 4096"))
    if cfg["otouch"]:
        A(V("v_lshrrev_b32 v1, 4, v0"), V("v_mul_u32_u24 v1, 6144, v1"), V("v_bfe_u32 v4, v0, 1, 3"), V("v_lshl_add_u32 v1, v4, 7, v1"),
          V(f"v_lshl_add_u32 v1, s{sWOFF}, 3, v1"))
    pre = []
    if not cfg["R"]:
        A([V(f"v_add_f32 v{vL+qt}, v{vL+qt}, v{vTS+qt}") for qt in range(4)])
        pre = xred([vL + q for q in range(4)], [vE + q for q in range(4)], "v_add_f32")
    pre += [Q(qt, V(f"v_rcp_f32 v{RCP[qt]}, v{vL+qt}")) for qt in range(4)]
    pre = [x for x in pre if x.kind != "nop"]
    A(pre[:12])

    def abuf(si, nt):
        L = len(stages[si])
        if L == 2:
            g = 10 * si + nt
            return [FR(2 * (g % 3) + u) for u in range(2)]
        return [("a", (nt % 2) * 24 + u * 4) for u in range(L)]

    def areads(si, nt):
        return [wo_read(d, ks, nt, tt) for d, ks in zip(abuf(si, nt), stages[si]) for tt in range(2)]

    secs = [pv_mfmas(j)]
    for si, kss in enumerate(stages):
        mfs = []
        for nt in range(10):
            ab = abuf(si, nt)
            for qt in range(4):
                for u, ks in enumerate(kss):
                    C = 0 if ks == 0 else acc3(nt, qt)
                    m = Q(qt, MFMA(acc3(nt, qt), ab[u], Bf(ks, qt), C))
                    if qt == 0 and u % 2 == 0:
                        m.rd |= set(regs(ab[u + 1][0], ab[u + 1][1], 4))
                    if nt == 0 and u == 0 and qt == 0 and kss[0] >= 6:
                        for k2 in kss:
                            m.rd |= set(regs(*Bf(k2, 0), 16))
                    mfs.append(m)
        secs.append(mfs)
    G = P.gaps(sum(secs, []))
    base = [F0 + sum(len(x) for x in secs[1:i + 1]) for i in range(len(stages) + 1)]
    ok = lambda k: (k % 4 != 3) if k < F0 else (k % 8 != 7)
    for k, g in enumerate(G):
        g.nomem = not ok(k)
    for dt in range(4, 12):
        g = 0 + 2 * (dt - 4) if dt < 6 else 4 * (dt - 6) + 3
        G[g].vec += [vtype_read(FR(dt), vslot(j), dt, t, ("V", j)) for t in range(2)]
    G[32].sca.append(WAITV(("WO", 0), ("WO", 1)))
    G[33].sca.append(BARRIER(frees=[("V", 31)]))
    put_reads(G, 34, areads(0, 0))
    put_reads(G, 40, areads(0, 1))
    bar = {-1: 33}
    for si, kss in enumerate(stages):
        L = len(kss)
        per = 4 * L
        b = base[si]
        nxtL = len(stages[si + 1]) if si + 1 < len(stages) else 0
        ahead = 2 if L == 2 else 1
        for nt in range(ahead, 10):
            put_reads(G, b + per * (nt - ahead), areads(si, nt), 1 if L == 2 else 2)
        if nxtL:
            gb = b + per * 8
            if cfg.get("p3stamps"):
                ST.gap(G[gb - 1], G[gb + 1], f"s{si}")
            if cfg.get("p3light"):
                ST.light(G[gb - 9], f"s{si}")
            G[gb].sca.append(WAITV(*[("WO", ks) for ks in stages[si + 1]]))
            G[gb + 1].sca.append(BARRIER(frees=[("WO", ks) for ks in kss]))
            bar[si] = gb + 1
            put_reads(G, gb + 2, areads(si + 1, 0))
            if nxtL == 2:
                put_reads(G, b + per * 9, areads(si + 1, 1))
    stage_of = {ks: si for si, kss in enumerate(stages) for ks in kss}
    for s, g in enumerate(cfg["otouch"]):
        if g >= 0:
            G[free_gap(G, g, ok)].vec.append(otouch(s, cfg))
    chunk_of = cfg["chunks"]
    ost = [Q(qt, VSTORE(Bf(s, qt), vOB + qt, SO, f"s{sOB}" if s < 4 else f"s{sOX}", 1024 * (s & 3), cfg["oflags"], tag=("O", chunk_of[s])))
           for s in range(6) for qt in range(4)]
    if cfg["p3sched"]:
        opos = unified_schedule(P, G, cfg, ost, wo_left, base, bar, stage_of, ok)
    else:
        opos = []
        t = cfg["ostart"]
        for n, x in enumerate(ost):
            k = free_gap(G, max(int(t), (opos[-1] + 1) if opos else 0), ok)
            G[k].vec.append(x)
            opos.append(k)
            t += cfg["opace"](n)
        ee = []
        for c in range(max(chunk_of) + 1):
            lc = max(k for k, x in zip(opos, ost) if x.meta["tag"] == ("O", c))
            k = flag_gaps(G, [("O", c)], c + 1, vFO, lc + cfg["lags"][c][0], ok)
            if cfg.get("ostamps"):
                ST.gap(G[k - 3], G[k - 3], f"preF{c}")
                ST.gap(G[k], G[k], f"F{c}")
            k = max(k + cfg["lags"][c][1], (ee[-1] if ee else 0))
            ee.append(check_gaps(P, G, f"o{c}", "o", c + 1, k, k + cfg["lags"][c][2], ok))
            if cfg.get("ostamps"):
                ST.gap(G[ee[-1] - 5], G[ee[-1] - 5], f"preC{c}")
                ST.gap(G[ee[-1] - 2], G[ee[-1] - 2], f"cmp{c}")
                ST.gap(G[ee[-1] - 1], G[ee[-1] - 1], f"C{c}")
        P.slack.append(("stores", opos, "checks", ee, "base", base))
        e0 = ee[0]
        for g in wo_left:
            t = g.dmas[0].meta["tag"][1]
            g.earliest = bar[stage_of[t - 12]] + 1 if t >= 12 else (34 if t == 11 else 0)
            g.deadline = bar[stage_of[t] - 1] - 2
        wo_left = place_stream(P, G, wo_left, cfg["wstart"], e0 - 4, lambda k: cfg["wpace"], ok)
        bs = [grp_B(ks, cfg)[0] for ks in range(6, 24)]
        for g in bs:
            ks = g.dmas[0].meta["tag"][1]
            g.deadline = base[stage_of[ks]] - 2 + 0.01 * ks
            g.earliest = ee[chunk_of[KORD[ks][1]]]
            if ks >= 18:
                g.earliest = max(g.earliest, base[stage_of[ks - 18] + 1], opos[4 * (ks - 18) + 3] + 3)
        items = sorted(wo_left + bs, key=lambda g: g.deadline)
        left = place_stream(P, G, items, e0, len(G), lambda k: cfg["p3pace"], ok, True)
        assert not left
    bpos = {x.meta["tag"][1]: k for k, g in reversed(list(enumerate(G))) for x in g.vec if x.kind == "vload" and x.meta["tag"]}
    ops = [(0, 14, x) for x in pre[12:]]
    n = 0
    for s in range(6):
        for qt in range(4):
            o = Bf(s, qt)[1]
            t = vOK + 2 * (n % 3)
            dl = min(base[s // 2] + 2 * qt + (s & 1) - 2, opos[n] - 1, bpos[6 + 2 * s] - 1, bpos[7 + 2 * s] - 1)
            n += 1
            for u, dst in enumerate(([o, o + 1, o + 2, o + 3], [o + 2, o + 3, t, t + 1])):
                a = Oa(2 * s + u, qt)[1]
                e = 4 * (2 * s + u) + qt + 5
                ops += [(e, dl, V(f"v_accvgpr_read_b32 v{dst[r]}, a{a+r}")) for r in range(4)]
                ops += [(e, dl, V(f"v_mul_f32 v{dst[r]}, v{RCP[qt]}, v{dst[r]}", omul=(dst[r], RCP[qt]))) for r in range(4)]
                ops += [(e, dl, V(f"v_cvt_pk_bf16_f32 v{o+2*u+r}, v{dst[2*r]}, v{dst[2*r+1]}")) for r in range(2)]
                Q(qt, ops[-10:])
    assert not fill_ops(G, ops)
    pack_muls(G)
    si = len(stages) - 1
    per = 4 * len(stages[si])
    b = base[si]
    tmpbase = 160 if per == 8 else vFR
    work = []
    tmp = 0
    for np_ in range(5):
        e = b + per * (2 * np_ + 1)
        work.append((e, S(f"s_mov_b32 s{sOW}, {np_*15*8192}")))
        for qt in range(4):
            e = b + per * (2 * np_ + 1) + (per // 4) * (qt + 1) + 4
            n0 = len(work)
            x, y = acc3(2 * np_, qt), acc3(2 * np_ + 1, qt)
            if x[0] == "a":
                t = tmpbase + (tmp % 2) * 8
                tmp += 1
                for u, z in enumerate((x, y)):
                    for r in range(4):
                        work.append((e - (per // 2 if u == 0 else 0), V(f"v_accvgpr_read_b32 v{t+4*u+r}, a{z[1]+r}")))
                src = [t + r for r in range(8)]
                o = t
            else:
                src = [x[1] + r for r in range(4)] + [y[1] + r for r in range(4)]
                o = x[1]
            for r in range(4):
                work.append((e, V(f"v_cvt_pk_bf16_f32 v{o+r}, v{src[2*r]}, v{src[2*r+1]}")))
            work.append((e, VSTORE(("v", o), vOP + qt, SP, f"s{sOW}", 0, cfg["pflags"], tag=("P", np_))))
            Q(qt, work[n0:])
    gi = b
    stpos = {}
    while work and gi < len(G):
        g = G[gi]
        while work and work[0][0] <= gi:
            x = work[0][1]
            if x.kind == "salu":
                P.flex_scalar(x, [g, G[min(gi + 1, len(G) - 1)]])
                work.pop(0)
            elif x.kind == "vstore":
                if not g.vec and not g.sca and ok(gi):
                    g.vec.append(x)
                    stpos[x.meta["tag"][1]] = gi
                    work.pop(0)
                break
            elif g.free() > 0:
                g.vec.append(x)
                work.pop(0)
            else:
                break
        gi += 1
    rest = [x for _, x in work]
    pending = {n for x in rest if x.kind == "vstore" for n in [x.meta["tag"][1]]}
    addr = [V("v_and_b32 v2, 15, v0"), V("v_mul_u32_u24 v2, 1280, v2"), V("v_lshrrev_b32 v3, 5, v0"), V("v_bfe_u32 v4, v0, 4, 1"),
            V("v_lshl_or_b32 v3, v4, 1, v3"), V("v_lshl_add_u32 v2, v3, 4, v2"), V("v_lshlrev_b32 v1, 4, v0"), V("v_add_u32 v3, 4096, v1")]
    assert not fill_ops(G, [(b, len(G) - 1, x) for x in addr], b)
    if cfg["ptail"] == 2:
        k = free_gap(G, stpos[1] + cfg["plagA"][0], ok)
        G[k].sca.append(WAITV(("P", 1)))
        G[k].vec.append(V("v_mov_b32 v7, 1"))
        k += 1
        while G[k].sca or G[k].isdma() or not ok(k):
            k += 1
        G[k].sca.append(BARRIER())
        k = free_gap(G, k + 1, ok)
        G[k].vec.append(VSTORE(("v", 6), vFP, SF, 0, 0, "sc1", n=4))
        k = free_gap(G, k + cfg["plagA"][1], ok)
        G[k].vec.append(poll_load("p"))
        P.slack.append(("pollA", k, stpos))
    ST.seq(P, "mfend")
    A(rest)

    def loads(r):
        return [VLOAD(("a", r * 32 + g * 4) if False else ("v", 160 + r * 32 + g * 4), 1 if g < 4 else 3, SP, f"s{sJ+r}", 1024 * (g & 3), None, cfg["rflags"])
                for g in range(8)]

    def reduce(r):
        out = []
        o = 64 + r * 16
        for g in range(8):
            src = 160 + r * 32 + g * 4
            t = o if g == 0 else 112 + (g & 1) * 8
            for q in range(4):
                out += [V(f"v_lshlrev_b32 v{t+2*q}, 16, v{src+q}"), V(f"v_and_b32 v{t+2*q+1}, 0xffff0000, v{src+q}")]
            if g:
                for q in range(4):
                    out.append(V(f"v_pk_add_f32 v[{o+2*q}:{o+2*q+1}], v[{o+2*q}:{o+2*q+1}], v[{t+2*q}:{t+2*q+1}]"))
        for q in range(4):
            out.append(V(f"v_cvt_pk_bf16_f32 v{o+8+q}, v{o+2*q}, v{o+2*q+1}"))
        out += [NOP(0), V(f"v_permlane16_swap_b32 v{o+8}, v{o+10}"), V(f"v_permlane16_swap_b32 v{o+9}, v{o+11}"),
                VSTORE(("v", o + 8), 2, SOUT, f"s{sJ+3+r}", 0, cfg["outflags"])]
        return out

    def flag(val, tags):
        return [V(f"v_mov_b32 v7, {val}"), WAITV(*tags), BARRIER(), VSTORE(("v", 6), vFP, SF, 0, 0, "sc1", n=4)]

    if cfg["ptail"] == 1:
        A(flag(3, [("P", 4)]))
        ST.seq(P, "pdrain")
        A(poll_load("p"), check_seq(P, "p2", "p", 3))
        ST.seq(P, "ppoll")
        A(loads(0), loads(1), loads(2), reduce(0), reduce(1), reduce(2))
    else:
        fl = flag(2, [("P", 4)])
        A(fl[0], poll_cmp(1), NOP(0), I("s_cbranch_vccnz KF_lateA", "branch", rd=["vcc"]))
        A(loads(0), fl[1], fl[2], RAW(fl[3].text), LABEL("KF_joinA"))
        sp = slow_path("pA", "p", 1)
        P.slow += ["KF_lateA:", "s_waitcnt vmcnt(0)", "s_barrier", fl[3].text] + sp[:-1] + ["KF_rtpA:"] + [x.text for x in loads(0)] + ["s_branch KF_joinA"]
        ST.seq(P, "pdrain")
        r0 = reduce(0)
        cut = 8 + 12 * (cfg["pcut"] - 1)
        A(r0[:cut], poll_load("p"), r0[cut:-1], check_seq(P, "p2", "p", 2))
        ST.seq(P, "ppoll")
        A(loads(1), loads(2), r0[-1], reduce(1), reduce(2))


def build(cfg):
    P = Prog()
    P.slack = []
    P.slow = []
    P.itwait = {}
    ST = Stamper(cfg)
    LA = cfg["LA"]
    stream = prologue(P, cfg, ST)
    phase1(P, cfg, ST, stream)
    ST.seq(P, "attn0")
    if ST.it:
        P.seq(RAW("s_mov_b32 s53, 2"))
    labs = []
    wo = [grp_WO(t, cfg)[0] for t in range(24)]
    NT = cfg["trips"]
    NS = len(cfg["skips"])
    for j in range(0, 31):
        inloop = 1 <= j <= 6 * NT
        if j == 1:
            P.seq(I(f"s_mov_b32 s{sCNT}, {NT}", "raw"))
        if inloop and (j - 1) % 6 == 0:
            P.el.append(I("", "raw", mark=(j - 1) // 6))
        if j == 6 * NT + 1:
            P.el.append(I("", "raw", mark=NT))
        groups = []
        if inloop and NS:
            if j in cfg["skips"]:
                LA -= 1
                groups += grp_dyn("K", None, cfg) + grp_dyn("V", None, cfg)
            else:
                groups += grp_dyn("K", j + LA, cfg) + grp_dyn("V", j + LA - 1, cfg)
        else:
            if j + LA < 32:
                groups += grp_K(j + LA, cfg, inloop or j == 0)
            if j + LA - 1 < 32:
                groups += grp_V(j + LA - 1, cfg, j + LA < 32)
        while len(groups) < cfg["tailgroups"] and j >= cfg["wostart"] and wo and 26 + (wo[0].dmas[0].meta["tag"][1] + 1) // 2 <= j:
            groups.append(wo.pop(0))
        lab = str((j - 1) % 6) if inloop else f"p{j}"
        if not inloop or j <= 6:
            labs.append((lab, (j + 1) & 1))
        xv = None
        if j == 29:
            xv = poll_load("c")
        if inloop and (j - 1) % 6 == 1:
            xv = I(f"buffer_atomic_add v7, v6, s[{SD}:{SD+3}], s{sAO} offen sc1", "vstore", ["v6", "v7"], [], data=set(), n=1, tag=None)
        pieces = [(g, S(f"s_mov_b32 s{sAO}, {i*81920}"), VLOAD(("v", 4), 5 if jj < 29 else vOK + 1, SWO, f"s{sAO}", 0, None, "", n=1))
                  for i, (jj, g) in enumerate(cfg["wopf"]) if jj == j]
        ev = []
        if j == (0 if cfg["R"] else 25):
            ev = unpark() + (asel_setup() if cfg["R"] else [])
        if j == 28:
            ev = [V("v_mov_b32 v6, 0")]
        if j == 29:
            assert j + LA >= 32
            ev = ev + [V(f"v_mov_b32 v{vOK+1}, v5")]
        G = iteration(P, cfg, j, lab, groups, xv, pieces, ev, 6 * (cfg["LA"] - NS - 2) if inloop and NS else cfg.get("vmforce", {}).get(j))
        if NS and j <= 6 * NT:
            P.flex_chain(dyn_prepare(), G[cfg["dmagaps"][2][1][-1] + 1:cfg["bpos"] - 2])
        if inloop and (j - 1) % 6 == 1:
            G[-8].sca.append(S(f"s_cmp_eq_u32 s{sCNT}, s{sTRIP}"))
            G[-7].sca.append(S(f"s_cselect_b32 s{sAO}, 0, {OOB}"))
        if ST.it:
            G[-6].post += [RAW(f"s_memtime s[{sTM}:{sTM+1}]"), RAW(f"s_memrealtime s[{sTM+2}:{sTM+3}]")]
            G[-3].post += [RAW("s_mov_b32 m0, s53"), RAW("s_addk_i32 s53, 1"), RAW(f"v_writelane_b32 v{vST}, s{sTM}, m0"), RAW("s_mov_b32 m0, s53"),
                           RAW("s_addk_i32 s53, 1"), RAW(f"v_writelane_b32 v{vST}, s{sTM+2}, m0")]
            ST.names.append(f"i{j}")
        if inloop and (j - 1) % 6 == 5:
            P.flex_scalar(S(f"s_sub_u32 s{sCNT}, s{sCNT}, 1"), G[80:90])
            G[-2].sca.append(S(f"s_cmp_lg_u32 s{sCNT}, 0"))
            G[-1].post.append(I("s_cbranch_scc1 KF_loop", "branch"))
    ST.seq(P, "attnend")
    phase3(P, cfg, ST, wo)
    if ST.on:
        P.seq(WAIT(vm=0))
        ST.seq(P, "end")
        ST.flush(P)
        if cfg.get("diag"):
            P.seq(RAW("s_getreg_b32 s3, hwreg(HW_REG_XCC_ID, 0, 4)"), RAW(f"v_writelane_b32 v{vST}, s3, 63"))
        P.seq(srd(8, 32, 33, STAMP_OFF, 0x100000), S("s_lshl_b32 s3, s2, 2"), S(f"s_add_u32 s3, s3, s{sW}"), S("s_lshl_b32 s3, s3, 8"),
              V("v_lshlrev_b32 v2, 2, v0"), RAW(f"buffer_store_dword v{vST}, v2, s[8:11], s3 offen"))
    if cfg.get("w3"):
        P.prune(lambda x: x.meta.get("q") == 3, "KF_go:")
    P.insert_waits()
    P.place_flex()
    lin = P.linear()
    lin, notes = fix_hazards(lin)
    P.notes = notes
    probs = check_hazards(lin) + check_lds_protocol(lin, private=lambda t: t[0] == "X")
    trips = {}
    pre, post, cur = [], [], None
    for x in lin:
        if x.kind == "raw" and "mark" in x.meta:
            cur = x.meta["mark"]
            continue
        if cur is None:
            pre.append(x)
        elif cur == NT:
            post.append(x)
        else:
            trips.setdefault(cur, []).append(x)
    t0 = [text_of(x) for x in trips[0]]
    for k in range(1, NT):
        tk = [text_of(x) for x in trips[k]]
        assert tk == t0, [(a, b) for a, b in zip(t0, tk) if a != b][:5]
    out = [text_of(x) for x in pre] + ["KF_loop:"] + t0 + [text_of(x) for x in post]
    out += ["KF_done:", "s_endpgm"]
    out += P.slow
    for lab, par in labs:
        out += [f"KF_fx{lab}:", f"s_call_b64 s[{sRET}:{sRET+1}], KF_fix{par}", f"s_branch KF_bk{lab}"]
    for par in range(2):
        fb = fallback(par, cfg)
        if cfg.get("w3"):
            fb = fix_hazards([x for x in fb if x.meta.get("q") != 3])[0]
        probs += check_hazards(fb)
        out += [text_of(x) for x in fb]
    out += ["KF_end:"]
    return out, probs, P, ST


DEFAULT = dict(map="hg4", wflags="", xflags="", kvflags="nt", woflags="", oflags="sc1", bflags="sc1", pflags="sc1", rflags="sc1",
               outflags="", thresh=16384.0, LA=5, trips=4, npro=1, npro2=3, bgstart=100, pace=[(960, 5.2)], xearly=4, kvpace=14, tailgroups=3,
               dmagaps={0: [], 1: [[4, 7, 9]], 2: [[4, 7, 9], [34, 44, 54]], 3: [[4, 7, 9], [34, 44, 54], [64, 79, 84]]},
               vslack=8, stages=[[2 * k, 2 * k + 1] for k in range(9)] + [list(range(18, 24))], p3pace=4.2, wstart=0, wpace=9, codepf=5,
               chunks=[0, 1, 1, 2, 2, 2], ostart=44, opace=lambda n: 4 if n < 3 else 14, lags=[(45, 65, 45), (55, 40, 60), (70, 60, 70)],
               p1pf=[0, 6, 14, 22], wopf=[(25, 82), (26, 82), (27, 82)], pfa=0, tour3=0, otouch=[], otflags='', p3sched=None,
               oready=lambda n: [26, 38, 48, 49, 50, 52, 54, 56, 74, 92, 110, 128, 130, 132, 134, 136, 154, 172, 190, 208, 210, 212, 214, 216][n], tour=1, R=1, rpos=84, bpos=84, split3=1, nskip=2, ptail=2, plagA=(55, 55), pcut=4, wostart=27, stamps=False)


RCFG = dict(thresh=16777216.0, expgaps=[11 + 9 * (k // 4) + 2 * (k % 4) for k in range(32)],
            dmagaps={0: [], 1: [[4, 7, 9]], 2: [[4, 7, 9], [37, 46, 54]], 3: [[4, 7, 9], [37, 46, 54], [64, 73, 92]], 4: [[4, 7, 9], [19, 28, 37], [46, 54, 64], [73, 90, 92]]})


def line_sizes(body):
    import subprocess, tempfile, re
    ins = [l for l in body if l and not l.endswith(":")]
    d = tempfile.mkdtemp()
    src = '.amdgcn_target "amdgcn-amd-amdhsa--gfx950"\n.text\nL0:\n' + "\n".join(re.sub(r"K[FX]_\w+", "L0", re.sub(r"K[FX]_\w+-[\w-]+", "0x12345", l)) for l in ins) + "\n"
    open(d + "/a.s", "w").write(src)
    subprocess.run(["clang", "-x", "assembler", "-target", "amdgcn-amd-amdhsa", "-mcpu=gfx950", "-c", d + "/a.s", "-o", d + "/a.o"], check=True)
    dis = subprocess.run(["llvm-objdump", "-d", "--mcpu=gfx950", d + "/a.o"], capture_output=True, text=True).stdout
    sizes = [4 * len(re.findall(r"\b[0-9A-F]{8}\b", l.split("//")[1].split(":", 1)[1].split("<")[0])) for l in dis.splitlines() if "//" in l]
    assert len(sizes) == len(ins), (len(sizes), len(ins))
    it = iter(sizes)
    return [0 if (not l or l.endswith(":")) else next(it) for l in body]


def merge_streams(o, o3, tour3):
    import re
    go = o.index("KF_go:")
    assert o[:go] == o3[:go]
    call = lambda t: f"s_call_b64 s[{sRET}:{sRET+1}], {t}"
    lp, le = o3.index("KF_loop:"), o3.index("s_cbranch_scc1 KF_loop")
    head = []
    nb = 0
    for l in o3[:lp]:
        if l == "s_barrier":
            nb += 1
            if tour3 and 2 <= nb <= 11:
                head += ["s_mov_b64 exec, 0", call(f"KF_EAR{nb-2}"), "s_mov_b64 exec, -1"]
        head.append(l)
    out = head + ["s_getpc_b64 s[52:53]", "KF_pc2:", "s_sub_u32 s52, s52, KF_pc2-KX_go", "s_subb_u32 s53, s53, 0", "v_lshlrev_b32 v92, 12, v0",
                     "v_min_u32 v92, KX_end-KX_go-4, v92", "v_mov_b32 v93, s53", "v_add_co_u32 v92, vcc, s52, v92", "s_nop 1",
                     "v_addc_co_u32 v93, vcc, 0, v93, vcc"]
    site = 0
    for l in o3[lp:le]:
        if l == "s_barrier":
            for t in range(3):
                out += [f"s_cmp_eq_u32 s{sCNT}, {3-t}", f"s_cbranch_scc0 KF_h{site}_{t}", "s_mov_b64 exec, 0", call(f"KF_HOP{6*t+site}"),
                        "s_mov_b64 exec, -1", f"KF_h{site}_{t}:"]
            site += 1
        out.append(l)
        if l == "s_barrier" and site == 5:
            out.append("global_load_dword v94, v[92:93], off")
    assert site == 6
    out += o3[le:]
    o3 = insert_stubs(out)
    o = insert_stubs(o)
    off_ = False
    for l in o3:
        off_ = l == "s_mov_b64 exec, 0" or (off_ and l != "s_mov_b64 exec, -1")
        assert not (off_ and "execz" in l)
    early, late = [], []
    for pre, t in (("KX", o), ("KF", o3)):
        e = t.index("s_cbranch_scc1 KF_loop")
        for k, l in enumerate(t):
            m = re.match(r"KF_(pg\d+):", l)
            if m:
                (early if k < e else late).append((int(m.group(1)[2:]), f"{pre}_{m.group(1)}"))
    early = [x for _, x in sorted(early)]
    late = [x for _, x in sorted(late)]
    assert len(late) <= 18
    if tour3:
        early = [x for x in early if x not in ("KF_pg1", "KF_pg2", "KF_pg3")]
        assert len(early) <= 10
        o3 = [re.sub(r"KF_EAR(\d+)", lambda m: early[int(m.group(1))] if int(m.group(1)) < len(early) else "KX_tramp", l) for l in o3]
        early = []
    o3 = [re.sub(r"KF_HOP(\d+)", lambda m: late[int(m.group(1))] if int(m.group(1)) < len(late) else "KX_tramp", l) for l in o3]
    o3 = [re.sub(r"execz KF_\w+", "execz KX_tramp", l) for l in o3]
    o = [re.sub(r"execz KF_\w+", "execz KF_tramp", l) for l in o]
    ren = lambda l: l.replace("KF_", "KG_").replace("KX_", "KF_")
    tour = ["s_mov_b64 exec, 0"]
    for w in range(4):
        if w < 3:
            tour += [f"s_cmp_eq_u32 s{sW}, {w}", f"s_cbranch_scc0 KF_tw{w}"]
        tour += [call(ren(x)) for x in early[w::4]]
        tour += ["s_mov_b64 exec, -1", "s_branch KF_go" if w < 3 else "s_branch KG_go"]
        if w < 3:
            tour += [f"KF_tw{w}:"]
    if tour3:
        tour = [f"s_cmp_eq_u32 s{sW}, 3", "s_cbranch_scc1 KG_go", "s_branch KF_go"]
    k = o.index("s_branch KF_go")
    o = o[:k] + tour + ["KF_tramp:", f"s_setpc_b64 s[{sRET}:{sRET+1}]"] + o[k + 1:]
    return o[:-1] + [".p2align 12"] + [ren(l) for l in o3[go:-1]] + ["KF_end:"]


def insert_stubs(lines):
    import re
    go = lines.index("KF_go:")
    end = lines.index("KF_done:")
    body = lines[go + 1:end]
    sz = line_sizes(body)
    out = []
    off = 0
    page = 1
    k = 0
    while k < len(body):
        if off >= page * 4096:
            best = k
            o, j = off, k
            while j < len(body) and o <= page * 4096 + 56:
                prev = body[j - 1]
                if prev.startswith("v_mfma") and body[j].startswith(("v_", "ds_")):
                    best = j
                    break
                o += sz[j]
                j += 1
            while k < best:
                out.append(body[k])
                off += sz[k]
                k += 1
            out += [f"KF_pg{page}:", f"s_cbranch_execz KF_pg{page+4}"]
            off += 4
            page += 1
        out.append(body[k])
        off += sz[k]
        k += 1
    out = [re.sub(r"execz KF_pg(\d+)", lambda m: m.group(0) if int(m.group(1)) < page else "execz KF_tret", l) for l in out]
    return lines[:go + 1] + out + lines[end:]


HDR = open("standalone__mha_block_cached__near_ridge.s.ref").read().split("; Override launch")[0]
NAME = "standalone__mha_block_cached__near_ridge_kernel"


def generate(over=None):
    cfg = dict(DEFAULT)
    if (over or {}).get("R", 1):
        cfg.update(RCFG)
    cfg.update(over or {})
    NS = cfg["nskip"]
    cfg["skips"] = [1 + (24 // NS) * k for k in range(NS)]
    o, p, P, ST = build(cfg)
    assert not p, p[:10]
    if NS:
        for off in range(1, 24 // NS + 1):
            c2 = dict(cfg, skips=[off + (24 // NS) * k for k in range(NS)], vmforce={j: w.meta["vm"] for j, w in P.itwait.items()})
            o2, p2, _, _ = build(c2)
            assert not p2 and o2 == o, (off, p2[:5], [(a, b) for a, b in zip(o, o2) if a != b][:5])
    if cfg["split3"]:
        o3, p3, P3, _ = build(dict(cfg, w3=True))
        assert not p3, p3[:10]
        for off in range(2, 24 // NS + 1 if NS else 0):
            o2, p2, _, _ = build(dict(cfg, w3=True, skips=[off + (24 // NS) * k for k in range(NS)], vmforce={j: w.meta["vm"] for j, w in P3.itwait.items()}))
            assert not p2 and o2 == o3
        o = merge_streams(o, o3, cfg["tour3"])
    elif cfg["tour"]:
        o = insert_stubs(o)
    if cfg.get("verbose"):
        print(P.slack, file=sys.stderr)
        print(len(P.notes), "nops inserted:", P.notes, file=sys.stderr)
    if P.warn or P.overfull():
        print("warn", len(P.warn), P.warn[:6], "overfull", P.overfull(), file=sys.stderr)
    dg = cfg.get("diag")
    if dg:
        s = HDR + f"; @launch kernel={NAME} grid=(256,1,1) block=(256,1,1) lds={LDS_BYTES}\n; @launch kernel=diag_kernel grid=(1,1,1) block=(64,1,1) lds=0\n"
    else:
        s = HDR + f"; @launch grid=(256,1,1) block=(256,1,1) lds={LDS_BYTES}\n"
    if ST.on:
        s += "; STAMPS " + " ".join(ST.names) + "\n"
    s += '.amdgcn_target "amdgcn-amd-amdhsa--gfx950"\n.text\n'
    s += f".globl {NAME}\n.p2align 8\n.type {NAME},@function\n{NAME}:\n" + "\n".join(l for l in o if l) + "\n"
    if dg:
        import gen
        def addr(x):
            wg, nm = x
            return STAMP_OFF + wg * 1024 + (252 if nm == "xcc" else 8 * ST.names.index(nm) + 4)
        s += ".globl diag_kernel\n.p2align 8\n.type diag_kernel,@function\ndiag_kernel:\n" + "\n".join(gen.diag_kernel(addr(dg[0]), addr(dg[1]), dg[2])) + "\n"
    s += f""".section .rodata,"a"
.p2align 6
.amdhsa_kernel {NAME}
  .amdhsa_next_free_vgpr 512
  .amdhsa_next_free_sgpr 102
  .amdhsa_accum_offset 256
  .amdhsa_group_segment_fixed_size 0
  .amdhsa_kernarg_size 64
  .amdhsa_user_sgpr_count 2
  .amdhsa_user_sgpr_kernarg_segment_ptr 1
  .amdhsa_system_sgpr_workgroup_id_x 1
.end_amdhsa_kernel
"""
    if dg:
        s += ".p2align 6\n" + gen.kd("diag_kernel", 8, 8) + "\n"
    return s


if __name__ == "__main__":
    over = eval(sys.argv[2]) if len(sys.argv) > 2 else None
    open(sys.argv[1], "w").write(generate(over))
```

```python
import math, struct, sys
from asmlib import *

SLOT = 12288
KREG = 0
VREG = 6 * SLOT
EREG = 12 * SLOT
LDS_BYTES = 163840
OOB = 0x40000000

O_OFF = 0
PART_OFF = 0x2000000
FLAG_OFF = 0x4000000
STAMP_OFF = 0x10000000

SX, SW, SK, SV, SO = 8, 12, 16, 20, 24
SF, SD = 56, 60
SWO, SP, SOUT = 64, 68, 72
sW, sB, sH, sWOFF, sXB0, sXB1 = 34, 35, 36, 37, 38, 39
sOW, sOX, sOKV, sCNT, sTH = 40, 41, 42, 43, 44
sG = 45
sC = 46
sRET = 48
sPAD, sHL = 50, 51
sHB, sOB = 76, 80
sJ = 84
sSPIN = 90
sTRIP, sAO = 54, 55
sGE = 47
sOWN = 8
sIT, sMASK, sSL, sMK, sMV, sSO, sSTEP, sWOFFV = 4, 5, 6, 7, 28, 29, 30, 31
sTM = 92
vAK, vAV, vAW, vAX = 8, 10, 14, 18
vOK, vOV, vOW, vOX = 22, 25, 28, 31
vST = 39
vPF = 8
vFR = 40
vS, vP, vNM, vTS, vL, vE = 64, 96, 128, 144, 148, 152
vA3 = 14
vOB = 18
vOWO = 28
vOP = 31
vFL = 35
PARK = [vA3, vA3 + 1, vA3 + 2, vA3 + 3, vOB, vOB + 3, vOWO, vOWO + 1, vOWO + 2, vOP, vOP + 3, vFL, vFL + 1, vFL + 2, vFL + 3, 5]
vFO, vFOP, vFP, vFPP = vFL, vFL + 1, vFL + 2, vFL + 3


def f32(x):
    return "0x%08x" % struct.unpack("<I", struct.pack("<f", x))[0]


def Q(qt, x):
    for y in (x if isinstance(x, list) else [x]):
        (y[-1] if isinstance(y, tuple) else y).meta["q"] = qt
    return x


def acc(dt, qt):
    return ("v", (160 if dt % 2 == 0 else 64) + ((dt >> 1) * 4 + qt) * 4)


def Qf(qt, s):
    return acc(2 * s, qt)


def Oa(dt, qt):
    return ("a", (dt * 4 + qt) * 4)


def Kf(a, s):
    return ("a", 192 + (a * 6 + s) * 4)


def Xf(beta, u, qt):
    return ("a", beta * 32 + (u * 4 + qt) * 4)


def St(a, qt):
    return ("v", vS + (a * 4 + qt) * 4)


def Pf(par, qt):
    return ("v", vP + par * 16 + qt * 4)


def NM(qt):
    return ("v", vNM + qt * 4)


def Lb(par):
    return ("v", vTS + 4 * par)


def rowsum_mfmas(par):
    return [Q(qt, MFMA(Lb(par), ("a", 240 + 4 * qt), Pf(par, qt), Lb(par ^ 1) if qt == 0 else Lb(par))) for qt in range(4)]


def FR(i):
    return ("v", vFR + (i % 6) * 4)


def wslot(n):
    buf = (n // 2) % 4
    base = {2: KREG, 3: KREG + 2 * SLOT, 0: KREG + 4 * SLOT, 1: VREG + 4 * SLOT}[buf]
    return base + (n % 2) * SLOT


def kslot(n):
    return KREG + (n % 6) * SLOT


def vslot(n):
    return VREG + (n % 6) * SLOT


def woslot(t):
    t %= 12
    return (kslot if t % 2 == 0 else vslot)(26 + t // 2)


def xregion(beta):
    return [(VREG + 2 * beta * SLOT, VREG + 2 * beta * SLOT + 3 * 8192), (EREG + beta * 8192, EREG + beta * 8192 + 8192)]


def vtype_read(dst, slot, dt, t, tag):
    if slot >= VREG:
        a, off = vAV, slot - VREG
    else:
        a, off = vAW, slot
    return DSTR((dst[0], dst[1] + 2 * t), a + (dt & 3), off + 1536 * t + 128 * (dt >> 2), tag)


def k_read(n, a, s):
    return DSR128(Kf(a, s), vAK + (s & 1), kslot(n) + 1536 * a + 128 * (s >> 1), ("K", n))


class DmaGroup:
    def __init__(self, pre, dmas, earliest=0):
        self.pre = pre
        self.dmas = dmas
        self.earliest = earliest
        self.deadline = 10**9


def grp_W(n, cfg):
    sl = wslot(n)
    return [DmaGroup([S(f"s_add_u32 m0, s{sWOFF}, {sl}"), S(f"s_mov_b32 s{sOW}, {n*393216}")],
                     [DMA(vOW + j, SW, f"s{sOW}", 1024 * j, ("W", n), cfg["wflags"], region=[(sl, sl + SLOT)]) for j in range(3)])]


def grp_X(c, cfg, after=()):
    beta = c & 1
    sb = sXB0 + beta
    g0 = DmaGroup([S(f"s_mov_b32 m0, s{sb}"), S(f"s_mov_b32 s{sOX}, {128*c}")],
                  [DMA(vOX + j, SX, f"s{sOX}", 1024 * j, ("X", c), cfg["xflags"], after=after, region=xregion(beta)) for j in range(4)])
    g1 = DmaGroup([S(f"s_add_u32 m0, s{sb}, 4096")],
                  [Q(2 + j // 2, DMA(vOX + 4 + j, SX, f"s{sOX}", 1024 * j, ("X", c), cfg["xflags"], region=xregion(beta))) for j in range(4)])
    return [g0, g1]


def grp_K(n, cfg, loop=False):
    sl = kslot(n)
    so = S(f"s_add_u32 s{sOKV}, s{sOKV}, {SLOT}") if loop else S(f"s_mov_b32 s{sOKV}, {n*SLOT}")
    return [DmaGroup([S(f"s_add_u32 m0, s{sWOFF}, {sl}"), so],
                     [DMA(vOK + j, SK, f"s{sOKV}", 1024 * j, ("K", n), cfg["kvflags"], region=[(sl, sl + SLOT)]) for j in range(3)])]


def grp_V(n, cfg, loop=False):
    sl = vslot(n)
    pre = [S(f"s_add_u32 m0, s{sWOFF}, {sl}")]
    if not loop:
        pre.append(S(f"s_mov_b32 s{sOKV}, {(n+1)*SLOT}"))
    return [DmaGroup(pre,
                     [DMA(vOV + j, SV, f"s{sOKV}", 1024 * j, ("V", n), cfg["kvflags"], region=[(sl, sl + SLOT)]) for j in range(3)])]


def grp_dyn(kind, n, cfg):
    sl = EREG if n is None else (kslot if kind == "K" else vslot)(n)
    tag = ("D", kind) if n is None else (kind, n)
    pre = [S(f"s_add_u32 m0, s{sWOFF}, s{sMK}") if kind == "K" else S(f"s_add_u32 m0, s{sWOFFV}, s{sMV}")]
    vo, sr = (vOK, SK) if kind == "K" else (vOV, SV)
    return [DmaGroup(pre, [DMA(vo + j, sr, f"s{sSO}", 1024 * j, tag, cfg["kvflags"], region=[(sl, sl + SLOT)]) for j in range(3)])]


def dyn_prepare():
    return [S(f"s_add_u32 s{sIT}, s{sIT}, 1"), S(f"s_bitcmp1_b32 s{sMASK}, s{sIT}"),
            S(f"s_cselect_b32 s{sMV}, {EREG-VREG}, s{sSL}"), S(f"s_cselect_b32 s{sSTEP}, 0, {SLOT}"), S(f"s_cselect_b32 s{sSO}, {OOB}, 0"),
            S(f"s_add_u32 s{sOKV}, s{sOKV}, s{sSTEP}"), S(f"s_or_b32 s{sSO}, s{sSO}, s{sOKV}"),
            S(f"s_add_u32 s{sSL}, s{sSL}, s{sSTEP}"), S(f"s_cmp_eq_u32 s{sSL}, {6*SLOT}"), S(f"s_cselect_b32 s{sSL}, 0, s{sSL}"),
            S(f"s_cmp_eq_u32 s{sSTEP}, 0"), S(f"s_cselect_b32 s{sMK}, {EREG}, s{sSL}")]


def grp_WO(t, cfg):
    sl = woslot(t)
    return [DmaGroup([S(f"s_add_u32 m0, s{sWOFF}, {sl}"), S(f"s_add_u32 s{sOW}, s{sHB + KORD[t][0]}, {40960*KORD[t][1]}")],
                     [DMA(vOWO + j, SWO, f"s{sOW}", 1024 * j, ("WO", t), cfg["woflags"], region=[(sl, sl + SLOT)]) for j in range(3)])]


def group_seq(g):
    out = list(g.pre)
    if g.pre and g.pre[-1].text.split()[1].startswith("m0"):
        out.append(NOP(0))
    return out + list(g.dmas)


def seq_groups(P, groups):
    for g in groups:
        P.seq(group_seq(g))


def place_stream(P, G, groups, lo, hi, pace, ok, edf=False):
    pos = lo
    tgt = float(lo)
    groups = list(groups)
    while groups:
        if edf:
            av = [x for x in groups if x.earliest <= tgt + 2]
            g = min(av, key=lambda x: x.deadline) if av else min(groups, key=lambda x: x.earliest)
            groups.remove(g)
            groups.insert(0, g)
        g = groups[0]
        idx = []
        t = max(tgt, g.earliest + len(g.pre))
        k = pos + len(g.pre) + (1 if g.pre else 0)
        fail = False
        for d in g.dmas:
            k = max(k, int(t))
            while k < hi and not (ok(k) and not G[k].vec and not G[k].sca and not G[k].post):
                k += 1
            if k >= hi:
                fail = True
                break
            idx.append(k)
            t0 = t
            t = max(t + pace(k), k - 6)
            if edf:
                t += pace(k) * len([1 for q in range(int(t0) + 1, min(int(t) + 1, hi)) if G[q].isdma() and q != k and q not in idx])
            k += 1
        if fail:
            break
        assert idx[-1] <= g.deadline, (g.dmas[0].meta["tag"], idx, g.deadline)
        P.slack.append((g.dmas[0].meta["tag"], idx[0], idx[-1], g.deadline))
        for s_ in g.pre:
            P.flex_scalar(s_, list(reversed(G[pos:idx[0]])))
        for kk, d in zip(idx, g.dmas):
            G[kk].vec.append(d)
        pos = idx[-1] + 1
        tgt = t
        groups.pop(0)
    return groups


class Stamper:
    def __init__(self, cfg):
        self.on = cfg.get("stamps")
        self.it = cfg.get("itstamps")
        self.n = 0
        self.names = []
        self.pool = [4, 6, 28, 30, 96, 98, 100, 0, 38, 52]
        self.pending = []

    def seq(self, P, name):
        if self.on and not self.it:
            k = self.n
            P.seq(RAW(f"s_memtime s[{sTM}:{sTM+1}]"), RAW(f"s_memrealtime s[{sTM+2}:{sTM+3}]"), WAIT(lg=0),
                  RAW(f"v_writelane_b32 v{vST}, s{sTM}, {2*k}"), RAW(f"v_writelane_b32 v{vST}, s{sTM+2}, {2*k+1}"))
            self.n += 1
            self.names.append(name)

    def light(self, g0, name):
        if self.on:
            r = self.pool.pop(0)
            g0.post.append(RAW(f"s_memtime s[{r}:{r+1}]"))
            self.pending.append((r, self.n))
            self.n += 1
            self.names.append(name)

    def flush(self, P):
        for r, k in self.pending:
            P.seq(RAW(f"v_writelane_b32 v{vST}, s{r}, {2*k}"), RAW(f"v_writelane_b32 v{vST}, s{sTM+2}, {2*k+1}"))
        self.pending = []

    def gap(self, g0, g1, name):
        if self.on:
            k = self.n
            g0.post += [RAW(f"s_memtime s[{sTM}:{sTM+1}]"), RAW(f"s_memrealtime s[{sTM+2}:{sTM+3}]")]
            g1.post += [RAW("s_waitcnt lgkmcnt(0)"), RAW(f"v_writelane_b32 v{vST}, s{sTM}, {2*k}"), RAW(f"v_writelane_b32 v{vST}, s{sTM+2}, {2*k+1}")]
            self.n += 1
            self.names.append(name)


def srd(base, lo, hi, off, size):
    return [S(f"s_add_u32 s{base}, s{lo}, {off}"), S(f"s_addc_u32 s{base+1}, s{hi}, 0"),
            S(f"s_mov_b32 s{base+2}, {size}"), S(f"s_mov_b32 s{base+3}, 0x20000")]


def prologue(P, cfg, ST):
    A = P.seq
    A(S("s_cmp_ge_u32 s2, 256"), I("s_cbranch_scc1 KF_done", "branch"))
    A(RAW("s_load_dwordx4 s[4:7], s[0:1], 0"), RAW("s_load_dwordx4 s[28:31], s[0:1], 16"), RAW("s_load_dwordx4 s[96:99], s[0:1], 32"),
      RAW("s_load_dwordx2 s[100:101], s[0:1], 48"), RAW("s_load_dwordx2 s[32:33], s[0:1], 56"))
    if ST.on:
        A(RAW(f"s_memtime s[{sTM}:{sTM+1}]"), RAW(f"s_memrealtime s[{sTM+2}:{sTM+3}]"))
    A(V("v_lshrrev_b32 v1, 6, v0"), V("v_and_b32 v0, 63, v0"))
    A(V(f"v_readfirstlane_b32 s{sW}, v1"))
    if cfg["codepf"]:
        n = cfg["codepf"] + (4 if cfg["split3"] else 0)
        A(RAW("s_getpc_b64 s[52:53]"), LABEL("KF_pc"), S("s_lshr_b32 s3, s2, 3"), S(f"s_lshl_b32 s3, s3, 2"), S(f"s_add_u32 s3, s3, s{sW}"),
          S(f"s_mul_i32 s3, s3, {n*128}"), V(f"v_min_u32 v2, {n-1}, v0"), V("v_lshl_add_u32 v2, v2, 7, s3"),
          RAW("v_min_u32 v2, KF_end-KF_pc-4, v2"), V("v_mov_b32 v3, s53"), V("v_add_co_u32 v2, vcc, s52, v2"), NOP(1),
          RAW("v_addc_co_u32 v3, vcc, 0, v3, vcc"), RAW("global_load_dword v42, v[2:3], off"))
    m = cfg["map"]
    if m == "hg4":
        A(S(f"s_and_b32 s{sG}, s2, 7"), S(f"s_lshr_b32 s{sB}, s2, 5"), S(f"s_bfe_u32 s{sHL}, s2, 0x20003"))
    elif m == "4x8":
        A(S(f"s_bfe_u32 s{sHL}, s2, 0x20003"), S(f"s_and_b32 s{sG}, s2, 6"), S("s_bfe_u32 s3, s2, 0x10005"), S(f"s_add_u32 s{sG}, s{sG}, s3"),
          S(f"s_and_b32 s{sB}, s2, 1"), S(f"s_lshl_b32 s{sB}, s{sB}, 2"), S("s_lshr_b32 s3, s2, 6"), S(f"s_add_u32 s{sB}, s{sB}, s3"))
    elif m == "batch":
        A(S(f"s_and_b32 s{sB}, s2, 7"), S(f"s_lshr_b32 s{sG}, s2, 5"), S(f"s_bfe_u32 s{sHL}, s2, 0x20003"))
    A(S(f"s_lshl_b32 s{sH}, s{sG}, 2"), S(f"s_add_u32 s{sH}, s{sH}, s{sHL}"))
    A(V("v_lshrrev_b32 v2, 3, v0"), V("v_lshl_add_u32 v2, v1, 6, v2"), V("v_mul_u32_u24 v2, 1280, v2"),
      V("v_lshrrev_b32 v3, 4, v0"), V("v_and_b32 v4, 7, v0"), V("v_xor_b32 v3, v3, v4"),
      V(f"v_lshl_add_u32 v{vOX}, v3, 4, v2"), V("v_xor_b32 v3, 4, v3"), V("v_lshl_add_u32 v4, v3, 4, v2"))
    for j in range(1, 8):
        src = f"v{vOX}" if j % 2 == 0 else "v4"
        A(V(f"v_add_u32 v{vOX+j}, {10240*j - 1024*(j&3)}, {src}"))
    A(S(f"s_mul_i32 s{sWOFF}, s{sW}, 3072"), S(f"s_lshl_b32 s{sXB0}, s{sW}, 13"),
      S(f"s_add_u32 s{sXB1}, s{sXB0}, {VREG+2*SLOT}"), S(f"s_add_u32 s{sXB0}, s{sXB0}, {VREG}"),
      S(f"s_cmp_eq_u32 s{sW}, 3"), S(f"s_cselect_b32 s{sXB0}, {EREG}, s{sXB0}"), S(f"s_cselect_b32 s{sXB1}, {EREG+8192}, s{sXB1}"),
      S(f"s_cselect_b32 s{sPAD}, {f32(-1000.0)}, 0"))
    A(S(f"s_lshl_b32 s52, s{sHL}, 2"), S(f"s_add_u32 s52, s52, s{sW}"), S(f"s_lshl_b32 s91, s{sB}, 4"), S("s_add_u32 s91, s91, s52"))
    A(S("s_mul_i32 s3, s91, 12288"), S(f"s_mul_i32 s88, s{sHL}, 384"), S("s_sub_u32 s3, s3, s88"), S("s_mul_i32 s52, s52, 19200"),
      V("v_min_u32 v2, 11, v0"), V("v_lshl_add_u32 v44, v2, 7, s3"), V(f"v_add_u32 v{vPF}, {128*12288}, v44"),
      V("v_min_u32 v2, 14, v0"), V("v_mul_u32_u24 v2, 1280, v2"), V("v_add_u32 v45, s52, v2"))
    if ST.on and not ST.it:
        A(RAW("s_memtime s[56:57]"), RAW("s_memrealtime s[58:59]"))
    A(RAW("s_waitcnt lgkmcnt(0)"))
    if ST.on:
        A(RAW(f"v_mov_b32 v{vST}, 0"), RAW(f"v_writelane_b32 v{vST}, s{sTM}, 0"), RAW(f"v_writelane_b32 v{vST}, s{sTM+2}, 1"))
        ST.n = 1
        ST.names.append("start")
        if not ST.it:
            A(RAW(f"v_writelane_b32 v{vST}, s56, 2"), RAW(f"v_writelane_b32 v{vST}, s58, 3"))
            ST.n = 2
            ST.names.append("prewait")
            ST.seq(P, "karg")
    A(S(f"s_mul_i32 s3, s{sB}, 307200"), srd(SX, 4, 5, "s3", 307200))
    A(S(f"s_mul_i32 s3, s{sH}, 384"), srd(SW, 30, 31, "s3", 0), S(f"s_sub_u32 s{SW+2}, 7864320, s3"))
    if cfg["pfa"]:
        A(VLOAD(("a", 188), 44, SW, 0, 0, "pfa", "", n=1), VLOAD(("a", 189), 45, SX, 0, 128, "pfa", "", n=1))
    seq_groups(P, grp_X(0, cfg))
    A(V("v_and_b32 v5, 1, v1"), V("v_lshlrev_b32 v5, 2, v5"))
    for j in range(3):
        A(V(f"v_add_u32 v2, {64*j}, v0"), V("v_mul_u32_u24 v3, 2731, v2"), V("v_lshrrev_b32 v3, 16, v3"),
          V("v_mul_u32_u24 v4, 24, v3"), V("v_sub_u32 v2, v2, v4"),
          V("v_and_or_b32 v4, v3, 2, v5"), V(f"v_xor_b32 v{vOV+j}, v2, v4"),
          V(f"v_lshl_add_u32 v{vOK+j}, v1, 3, v3"),
          V(f"v_mul_u32_u24 v7, 12288, v{vOK+j}"), V(f"v_lshl_add_u32 v{vOW+j}, v{vOV+j}, 4, v7"))
        if j:
            A(V(f"v_subrev_u32 v{vOW+j}, {1024*j}, v{vOW+j}"))
    if not cfg["pfa"]:
        seq_groups(P, grp_W(0, cfg))
    stream = grp_W(1, cfg)
    for s in range(1, 10):
        gw = grp_W(2 * s, cfg) + grp_W(2 * s + 1, cfg)
        for g in gw:
            g.earliest = 96 * (s - 4) + 82 if s >= 4 else 0
            g.deadline = 96 * (min(s, 8) - 1) + 79
        gx = grp_X(s, cfg, after=[("X", s - 2)] if s >= 2 else ())
        for g in gx:
            g.earliest = xread_gap(s - 2, cfg) + 12 if s >= 3 else 0
            g.deadline = xread_gap(s, cfg) - 2
        stream += gw + gx
    A(
      S(f"s_lshl_b32 s3, s{sH}, 2"), S(f"s_add_u32 s3, s3, s{sW}"), S("s_mul_i32 s3, s3, 2560"),
      V("v_bfe_u32 v2, v0, 1, 1"), V("v_mul_u32_u24 v2, 1280, v2"), V("v_and_b32 v3, 1, v0"), V("v_lshl_add_u32 v2, v3, 7, v2"),
      V(f"v_add_u32 v{vPF+1}, s3, v2"))
    for i, pos in reversed(list(enumerate(cfg["p1pf"]))):
        if pos is None:
            continue
        g = DmaGroup([S(f"s_mov_b32 s{sAO}, {i*128*12288}")],
                     [VLOAD(("a", 190), vPF + 1, SX, 0, 256 * (i + 1), "pf", "", n=1), VLOAD(("a", 191), vPF, SW, f"s{sAO}", 0, "pf", "", n=1)])
        stream.insert(pos + 1, g)
    A(V("v_and_b32 v1, 15, v0"), V("v_lshrrev_b32 v2, 4, v0"))
    A(V("v_lshrrev_b32 v3, 1, v1"), V("v_xor_b32 v3, v3, v2"), V("v_lshlrev_b32 v3, 4, v3"), V("v_lshl_add_u32 v3, v1, 7, v3"),
      V("v_xor_b32 v4, 64, v3"),
      V(f"v_add_u32 v{vAX}, s{sXB0}, v3"), V(f"v_add_u32 v{vAX+1}, s{sXB0}, v4"),
      V(f"v_add_u32 v{vAX+2}, s{sXB1}, v3"), V(f"v_add_u32 v{vAX+3}, s{sXB1}, v4"))
    A(V("v_lshrrev_b32 v3, 2, v1"), V("v_lshl_add_u32 v4, v2, 3, v3"), V("v_mul_u32_u24 v4, 384, v4"),
      V("v_and_b32 v5, 3, v1"), V("v_lshl_add_u32 v4, v5, 3, v4"),
      V("v_lshrrev_b32 v3, 3, v1"), V("v_and_b32 v5, 1, v2"), V("v_lshl_or_b32 v3, v5, 1, v3"))
    for e in range(4):
        A(V(f"v_xor_b32 v5, {e}, v3"), V(f"v_lshl_add_u32 v{vAW+e}, v5, 5, v4"), V(f"v_add_u32 v{vAV+e}, {VREG}, v{vAW+e}"))
    if cfg["pfa"]:
        seq_groups(P, grp_W(0, cfg))
    seq_groups(P, stream[:cfg["npro"]])
    del stream[:cfg["npro"]]
    stream.append(DmaGroup([], [VSTORE(("a", 184), 2, SF, 0, 0, "sc1", n=1, tag="finit"), VSTORE(("a", 184), 3, SF, 0, 0, "sc1", n=4, tag="finit")]))
    return stream


def background(cfg):
    B_ = []

    def A(*ins):
        for x in ins:
            if isinstance(x, (list, tuple)):
                A(*x)
            else:
                B_.append(x)
    park = {}

    def pk(reg, src):
        park[reg] = True
        A(V(f"v_accvgpr_write_b32 a{240+PARK.index(reg)}, {src}"))
    A(V("v_lshrrev_b32 v3, 1, v2"), V("v_mul_u32_u24 v3, 6144, v3"), V("v_and_b32 v4, 1, v2"), V("v_lshrrev_b32 v5, 2, v1"),
      V("v_lshl_add_u32 v5, v4, 2, v5"), V("v_mul_u32_u24 v5, 320, v5"), V("v_add_u32 v3, v3, v5"), V("v_and_b32 v5, 3, v1"),
      V("v_lshl_add_u32 v3, v5, 3, v3"), V("v_lshl_add_u32 v5, v4, 5, v3"), V("v_xor_b32 v4, 1, v4"), V("v_lshl_add_u32 v4, v4, 5, v3"),
      V(f"v_add_u32 v6, {VREG}, v5"), V(f"v_add_u32 v7, {VREG}, v4"))
    pk(vA3, "v5")
    pk(vA3 + 1, "v4")
    pk(vA3 + 2, "v6")
    pk(vA3 + 3, "v7")
    A(V("v_lshrrev_b32 v3, 2, v1"), V("v_and_b32 v4, 3, v1"), V("v_lshl_add_u32 v4, v3, 3, v4"), V("v_mul_u32_u24 v4, 384, v4"),
      V("v_and_b32 v3, 1, v3"), V("v_and_b32 v5, 2, v1"), V("v_or_b32 v3, v3, v5"), V("v_lshrrev_b32 v5, 3, v1"), V("v_lshl_or_b32 v3, v5, 2, v3"),
      V("v_lshrrev_b32 v5, 1, v2"), V("v_and_b32 v6, 1, v2"), V("v_lshl_or_b32 v5, v6, 1, v5"), V("v_xor_b32 v3, v3, v5"),
      V("v_lshl_add_u32 v6, v3, 4, v4"), V("v_xor_b32 v3, 4, v3"), V("v_lshl_add_u32 v7, v3, 4, v4"))
    A(V(f"v_mov_b32 v1, s{sW}"))
    A(S(f"s_and_b32 s3, s{sW}, 1"), S("s_mul_i32 s3, s3, 5"), S(f"s_lshr_b32 s88, s{sW}, 1"), S("s_lshl_b32 s88, s88, 2"), S("s_xor_b32 s3, s3, s88"))
    for j in range(3):
        A(V(f"v_mul_u32_u24 v3, 384, v{vOK+j}"))
        if j:
            A(V(f"v_subrev_u32 v3, {1024*j}, v3"))
        A(V(f"v_xor_b32 v2, s3, v{vOV+j}"), V(f"v_lshl_add_u32 v{vOK+j}, v2, 4, v3"), V(f"v_lshl_add_u32 v{vOV+j}, v{vOV+j}, 4, v3"))
    A(S(f"s_lshl_b32 s{sCNT}, s{sB}, 5"), S(f"s_add_u32 s{sCNT}, s{sCNT}, s{sH}"), S(f"s_mul_i32 s3, s{sCNT}, 393216"),
      srd(SK, 6, 7, "s3", 393216), srd(SV, 28, 29, "s3", 393216 + SLOT),
      S(f"s_sub_u32 s{SV}, s{SV}, {SLOT}"), S(f"s_subb_u32 s{SV+1}, s{SV+1}, 0"))
    A(srd(SF, 32, 33, FLAG_OFF, 0x60000))
    A(S(f"s_sub_u32 s3, s{sCNT}, s{sHL}"), S("s_mul_i32 s3, s3, 92160"), srd(SO, 32, 33, "s3", 4 * 92160))
    A(S(f"s_mul_i32 s3, s{sG}, {768*1280}"), S(f"s_mul_i32 s52, s{sHL}, 320"), S("s_add_u32 s3, s3, s52"),
      srd(SWO, 96, 97, "s3", 0), S(f"s_sub_u32 s{SWO+2}, 7864320, s3"))
    A(S(f"s_lshl_b32 s3, s{sB}, 2"), S(f"s_add_u32 s3, s3, s{sHL}"), S(f"s_mul_i32 s3, s3, {75*8192}"), S(f"s_add_u32 s3, s3, {PART_OFF}"),
      srd(SP, 32, 33, "s3", 75 * 8192))
    A(S(f"s_mul_i32 s3, s{sB}, 307200"), S("s_add_u32 s3, s3, s52"), srd(SOUT, 98, 99, "s3", 0), S(f"s_sub_u32 s{SOUT+2}, 2457600, s3"))
    A(S(f"s_lshl_b32 s3, s{sB}, 5"), srd(SD, 100, 101, "s3", 4), S(f"s_add_u32 s{sTRIP}, s{sHL}, 1"))
    for p in range(4):
        A(S(f"s_add_u32 s3, s{sHL}, {p}"), S("s_and_b32 s3, s3, 3"), S(f"s_mul_i32 s{sHB+p}, s3, 245760"), S(f"s_mul_i32 s{sOB+p}, s3, 92160"))
    c = math.log2(math.e) / math.sqrt(192.0)
    A(S(f"s_mov_b32 s{sC}, {f32(c)}"), S(f"s_mov_b32 s{sTH}, {f32(cfg['thresh'])}"))
    A(S("s_lshr_b32 s3, s91, 5"), S("s_mul_i32 s3, s3, 160"), S("s_add_u32 s3, s3, s91"),
      V("v_min_u32 v2, 19, v0"), V("v_mul_u32_u24 v3, 6554, v2"), V("v_lshrrev_b32 v3, 16, v3"), V("v_mul_u32_u24 v4, 10, v3"),
      V("v_sub_u32 v2, v2, v4"), V("v_lshl_add_u32 v3, v3, 5, s3"), V("v_mul_u32_u24 v3, 1280, v3"), V("v_lshl_add_u32 v2, v2, 7, v3"),
      V("v_subrev_u32 v2, s52, v2"), V("v_max_i32 v2, 0, v2"))
    pk(5, "v2")
    A(V("v_and_b32 v5, 1, v1"), V("v_lshrrev_b32 v4, 1, v1"), V("v_lshl_or_b32 v5, v5, 1, v4"))
    for j in range(3):
        A(V(f"v_add_u32 v2, {64*j}, v0"), V("v_mul_u32_u24 v3, 3277, v2"), V("v_lshrrev_b32 v3, 16, v3"),
          V("v_mul_u32_u24 v4, 20, v3"), V("v_sub_u32 v2, v2, v4"),
          V("v_lshrrev_b32 v4, 1, v3"), V("v_and_b32 v4, 2, v4"), V("v_xor_b32 v2, v2, v4"),
          V("v_lshl_add_u32 v3, v5, 3, v3"), V("v_mul_u32_u24 v3, 1280, v3"), V("v_lshl_add_u32 v2, v2, 4, v3"))
        if j:
            A(V(f"v_subrev_u32 v2, {1024*j}, v2"))
        if j == 2:
            A(V("v_lshrrev_b32 v3, 5, v0"), V("v_lshl_or_b32 v2, v3, 30, v2"))
        pk(vOWO + j, "v2")
    A(S(f"s_cmp_eq_u32 s{sW}, 3"), S(f"s_cselect_b32 s88, {OOB}, 0"))
    A(V("v_mul_u32_u24 v2, 24576, v1"), V("v_lshl_add_u32 v2, v0, 4, v2"), V("v_add_u32 v3, s88, v2"), V(f"v_add_u32 v3, {3*6144}, v3"))
    pk(vOB, "v2")
    pk(vOB + 3, "v3")
    A(S(f"s_lshl_b32 s3, s{sG}, 10"), V("v_lshlrev_b32 v2, 15, v1"), V("v_lshl_add_u32 v2, v0, 4, v2"),
      V("v_add_u32 v3, s88, v2"), V(f"v_add_u32 v3, {3*8192}, v3"))
    pk(vOP, "v2")
    pk(vOP + 3, "v3")
    A(S(f"s_lshl_b32 s84, s{sB}, 3"), S(f"s_add_u32 s84, s84, s{sG}"), S("s_lshl_b32 s84, s84, 2"), S(f"s_add_u32 s84, s84, s{sW}"),
      S("s_lshl_b32 s84, s84, 9"),
      S(f"s_lshl_b32 s85, s{sB}, 2"), S(f"s_add_u32 s85, s85, s{sHL}"), S("s_lshl_b32 s85, s85, 13"), S("s_add_u32 s85, s85, 0x20000"),
      S(f"s_lshl_b32 s86, s{sHL}, 7"), S("s_add_u32 s86, s86, s84"),
      S("s_add_u32 s3, s3, s85"))
    A(V("v_bfe_u32 v4, v0, 4, 2"), V("v_lshl_add_u32 v4, v4, 7, s84"), V("v_lshrrev_b32 v2, 3, v0"), V("v_max_u32 v5, 1, v2"),
      V("v_lshl_add_u32 v5, v5, 7, s3"),
      V("v_lshl_add_u32 v3, v2, 10, s85"), V(f"v_xor_b32 v2, s{sG}, v2"), V("v_lshl_add_u32 v3, v2, 7, v3"),
      V("v_and_b32 v2, 7, v0"), V("v_lshl_add_u32 v3, v2, 4, v3"), V("v_min_u32 v2, 1, v1"),
      V("v_lshl_or_b32 v3, v2, 30, v3"), V("v_and_b32 v2, 31, v0"), V("v_lshl_add_u32 v2, v2, 2, s86"))
    pk(vFO, "v2")
    pk(vFP, "v3")
    pk(vFOP, "v4")
    pk(vFPP, "v5")
    assert len(park) == len(PARK)
    A([V(f"v_accvgpr_write_b32 a{184+k}, 0") for k in range(4)])
    A(S(f"s_and_b32 s3, s{sW}, 1"), S("s_lshl_b32 s3, s3, 2"), S(f"s_xor_b32 s{sGE}, s3, s{sG}"),
      S(f"s_and_b32 s3, s{sGE}, 3"), S(f"s_lshl_b32 s91, s{sW}, 2"), S("s_add_u32 s3, s3, s91"), S(f"s_lshr_b32 s{sSPIN}, s{sGE}, 2"),
      S(f"s_mul_i32 s{sJ}, s{sSPIN}, 15"), S(f"s_add_u32 s{sJ}, s{sJ}, s3"), S(f"s_lshl_b32 s{sJ}, s{sJ}, 13"),
      S(f"s_mul_i32 s{sJ+3}, s3, 20480"), S(f"s_lshl_b32 s91, s{sSPIN}, 6"), S(f"s_add_u32 s{sJ+3}, s{sJ+3}, s91"),
      S("s_cmp_eq_u32 s3, 15"), S(f"s_cselect_b32 s91, {OOB}, 0"), S(f"s_or_b32 s{sJ}, s{sJ}, s91"), S(f"s_or_b32 s{sJ+3}, s{sJ+3}, s91"),
      S(f"s_add_u32 s{sJ+1}, s{sJ}, {30*8192}"), S(f"s_add_u32 s{sJ+4}, s{sJ+3}, 128"),
      S(f"s_add_u32 s{sJ+2}, s{sJ}, {60*8192}"), S(f"s_add_u32 s{sJ+5}, s{sJ+3}, 256"),
      S(f"s_lshl_b32 s91, s{sSPIN}, 30"), S(f"s_or_b32 s{sJ+2}, s{sJ+2}, s91"), S(f"s_or_b32 s{sJ+5}, s{sJ+5}, s91"),
      S(f"s_lshl_b32 s{sGE}, s{sGE}, 10"))
    NS = len(cfg["skips"])
    if NS:
        per = 24 // NS
        A(S("s_lshr_b32 s3, s2, 3"), S(f"s_add_u32 s3, s3, s{sG}"), S(f"s_mul_i32 s91, s3, {65536//per+1}"), S("s_lshr_b32 s91, s91, 16"),
          S(f"s_mul_i32 s91, s91, {per}"), S("s_sub_u32 s3, s3, s91"),
          S(f"s_lshl_b32 s{sMASK}, {sum(2 << (per*k) for k in range(NS))}, s3"),
          S(f"s_mov_b32 s{sIT}, 0"), S(f"s_mov_b32 s{sSL}, {(cfg['LA'] % 6) * SLOT}"), S(f"s_add_u32 s{sWOFFV}, s{sWOFF}, {VREG}"))
    late = [V(f"v_mov_b32 v{vAK}, v6"), V(f"v_mov_b32 v{vAK+1}, v7"),
            V(f"v_or_b32 v6, s{sW}, v0"), V("v_lshlrev_b32 v6, 8, v6"), V("v_mov_b32 v7, 1")]
    return B_, late


def fill_background(G, ins, lo, hi):
    k = 0
    gi = lo
    while k < len(ins):
        n = 1
        while k + n < len(ins) and ins[k + n].text.startswith(("s_addc", "s_subb", "s_cselect")):
            n += 1
        while G[gi].free() < min(n, 2):
            gi += 1
        assert gi < hi
        G[gi].vec += ins[k:k + n]
        k += n
    return gi


def xread_gap(c, cfg):
    if c == 9:
        return 96 * 7 + 86
    return 96 * (c - 1) + (84 if c < cfg["xearly"] else 42)


def Xr(c, u, qt):
    return Xf(2 if c == 9 else c & 1, u, qt)


def x_read(c, u, qt):
    return Q(qt, DSR128(Xr(c, u, qt), vAX + 2 * (c & 1) + u, 2048 * qt, ("X", c)))


def AL(dt, u):
    return ("a", (128 if dt == 11 else 96 + (dt & 1) * 16) + 4 * u)


def K0f(a, s):
    return ("a", 144 + (a * 6 + s) * 4)


def w_reads(stage, dt):
    gdt = stage * 12 + dt
    out = []
    for u in range(4 if stage == 8 else 2):
        n = 2 * stage + u
        for t in range(2):
            out.append(vtype_read(AL(dt, u) if stage == 8 else FR(2 * (gdt % 3) + u), wslot(n), dt, t, ("W", n)))
    return out


BL1, BL2 = 768 + 13, 768 + 161


def kv_prefill(cfg):
    LA = cfg["LA"]
    out = []
    seq = [("K", 0)]
    for n in range(1, LA):
        seq += [("K", n), ("V", n - 1)]
    free = {("K", 0): 658, ("K", 1): 658, ("K", 2): 754, ("K", 3): 754, ("K", 4): BL2 + 1, ("K", 5): BL2 + 1,
            ("V", 0): BL1 + 1, ("V", 1): BL1 + 1, ("V", 2): BL1 + 1, ("V", 3): BL1 + 1, ("V", 4): BL2 + 1}
    if LA >= 3:
        seq[2], seq[3] = seq[3], seq[2]
    for t in seq:
        g = (grp_K if t[0] == "K" else grp_V)(t[1], cfg)[0]
        g.earliest = free[t]
        if t in (("K", 0), ("K", 1)):
            g.deadline = BL2 - 2
        out.append(g)
    return out


def put_reads(G, g, r, step=1):
    for k in range(0, len(r), 2):
        assert G[g].free() >= 2, g
        G[g].vec += r[k:k + 2]
        g += step


def phase1(P, cfg, ST, stream):
    A = P.seq
    ST.seq(P, "issued")
    if cfg["tour"] and not cfg["split3"]:
        A(RAW("s_mov_b64 exec, 0"))
        for w in range(1, 4):
            A(RAW(f"s_cmp_eq_u32 s{sW}, {w}"), RAW(f"s_cbranch_scc1 KF_pg{w}"))
        A(RAW("s_branch KF_pg4"), LABEL("KF_tret"), RAW("s_mov_b64 exec, -1"))
    A(RAW("s_branch KF_go"), RAW(".p2align 12"), LABEL("KF_go"))
    ST.seq(P, "toured")
    seq_groups(P, stream[:cfg["npro2"]])
    stream = stream[cfg["npro2"]:]
    A(WAITV(("X", 0), ("W", 0), ("W", 1)), BARRIER())
    ST.seq(P, "landed")
    for u in range(2):
        for qt in range(4):
            A(x_read(0, u, qt))
    A(w_reads(0, 0), w_reads(0, 1))
    mfs = []
    for st in range(8):
        for dt in range(12):
            gdt = st * 12 + dt
            for qt in range(4):
                for u in range(2):
                    C = 0 if (st == 0 and u == 0) else acc(dt, qt)
                    m = Q(qt, MFMA(acc(dt, qt), FR(2 * (gdt % 3) + u), Xr(st, u, qt), C))
                    if qt == 0 and u == 0:
                        m.rd |= set(regs("v", FR(2 * (gdt % 3) + 1)[1], 4))
                        if dt == 0:
                            m.rd |= set(regs("a", Xr(st, 0, 0)[1], 32))
                    mfs.append(m)
    done = {}
    order = [(dt, qt) for dt in range(10) for qt in range(4)] + [(dt, qt) for qt in range(4) for dt in (10, 11)]
    for dt, qt in order:
        for u in range(4):
            m = Q(qt, MFMA(acc(dt, qt), AL(dt, u), Xr(8 + u // 2, u & 1, qt), acc(dt, qt)))
            if qt == 0 and u == 0:
                m.rd |= set(regs("a", AL(dt, 0)[1], 16))
                if dt == 0:
                    m.rd |= set(regs("a", Xr(9, 0, 0)[1], 32))
            mfs.append(m)
        done[(dt, qt)] = len(mfs) - 1
    assert len(mfs) == 960
    for qt in range(4):
        for a in range(2):
            for s in range(6):
                m = Q(qt, MFMA(St(a, qt), K0f(a, s), Qf(qt, s), 0 if s == 0 else St(a, qt)))
                if qt == 0 and s == 0:
                    m.rd |= set(regs("a", K0f(a, 0)[1], 24))
                mfs.append(m)
    G = P.gaps(mfs)
    for st in range(8):
        b = 96 * st
        for dt in range(2, 12):
            put_reads(G, b + 8 * (dt - 2), w_reads(st, dt))
        put_reads(G, b + 82, w_reads(st + 1, 0))
        if st < 7:
            put_reads(G, b + 88, w_reads(st + 1, 1))
        need = [("W", 2 * st + 2), ("W", 2 * st + 3)] if st < 7 else [("W", n) for n in range(16, 20)]
        if cfg.get("p1stamps"):
            ST.gap(G[b + 79], G[b + 81], f"st{st}")
        G[b + 80].sca.append(WAITV(*need))
        G[b + 81].sca.append(BARRIER(frees=[("W", 2 * st), ("W", 2 * st + 1)]))
    for c in range(1, 10):
        g = xread_gap(c, cfg)
        G[g - 1].sca.append(WAITV(("X", c)))
        put_reads(G, g, [x_read(c, u, qt) for u in range(2) for qt in range(4)])
    for dt in range(1, 11):
        put_reads(G, 768 + 16 * (dt - 1), w_reads(8, dt))
    put_reads(G, 768 + 16 * 9 + 4, w_reads(8, 11))
    G[BL1].sca.append(BARRIER(frees=[("X", 8), ("X", 9)]))
    G[BL2 - 1].sca.append(WAITV(("K", 0), ("K", 1), "finit"))
    G[BL2].sca.append(BARRIER(frees=[("W", n) for n in range(16, 20)]))
    r = [DSR128(K0f(a, s), vAK + (s & 1), kslot(0) + 1536 * a + 128 * (s >> 1), ("K", 0)) for a in range(2) for s in range(6)]
    put_reads(G, BL2 + 1, r, 3)
    put_reads(G, 962, [k_read(1, 0, s) for s in range(6)], 3)
    ok = lambda k: k % 8 != 7
    pc = cfg["pace"]

    def pace(k):
        for lim, p in pc:
            if k < lim:
                return p
        return pc[-1][1]
    left = place_stream(P, G, stream, 0, 960, pace, ok)
    assert not left
    last = max(k for k, g in enumerate(G) if g.isdma())
    left = place_stream(P, G, kv_prefill(cfg), last + 1, len(G), lambda k: cfg["kvpace"], ok)
    bg, late = background(cfg)
    first_use = min(k for k, g in enumerate(G) for x in g.vec if x.meta.get("tag") in ("finit", ("K", 0)))
    k = fill_background(G, bg, cfg["bgstart"], first_use - 8)
    lastpf = max([k] + [q for q, g in enumerate(G) for x in g.vec if x.meta.get("tag") == "pf"])
    fill_background(G, late, lastpf + 1, 760)
    ops = []
    swaps = []
    LAG = 5

    def muls(dt, qt, dl):
        r = acc(dt, qt)[1]
        return Q(qt, [(done[(dt, qt)] + LAG, dl, V(f"v_mul_f32 v{r+k}, s{sC}, v{r+k}")) for k in range(4)])
    for s in range(6):
        if s < 5:
            for qt in range(4):
                ops += muls(2 * s, qt, 958)
        for qt in range(4):
            dl = 960 + 12 * qt + s - 2
            if s == 5:
                ops += muls(10, qt, dl)
            ops += muls(2 * s + 1, qt, dl)
            ops += swaps
            a_, b_ = acc(2 * s, qt)[1], acc(2 * s + 1, qt)[1]
            e = done[(2 * s + 1, qt)] + LAG
            ops += [(e, dl, V(f"v_cvt_pk_bf16_f32 v{a_}, v{a_}, v{a_+1}")), (e, dl, V(f"v_cvt_pk_bf16_f32 v{a_+1}, v{a_+2}, v{a_+3}")),
                    (e, dl, V(f"v_cvt_pk_bf16_f32 v{a_+2}, v{b_}, v{b_+1}")), (e, dl, V(f"v_cvt_pk_bf16_f32 v{a_+3}, v{b_+2}, v{b_+3}"))]
            swaps = [(e, dl, V(f"v_permlane16_swap_b32 v{a_}, v{a_+2}")), (e, dl, V(f"v_permlane16_swap_b32 v{a_+1}, v{a_+3}"))]
            Q(qt, ops[-4:] + swaps)
            if s == 5:
                ops += swaps
                swaps = []
    INF = 10**9
    rm = rowmax(1)
    for pr in range(2):
        q0, q1 = 2 * pr, 2 * pr + 1
        ops += [(960 + 12 * q0 + 11 + LAG, INF, x) for x in rm[4 * q0:4 * q0 + 4]]
        e = 960 + 12 * q1 + 11 + LAG
        blk = rm[4 * q1:4 * q1 + 4] + xred([1 + q0, 1 + q1], [vE, vE + 1], "v_max_f32")
        if pr == 1 and not cfg["split3"]:
            blk.append(V(f"v_subrev_f32 v4, s{sPAD}, v4"))
        for qt in (q0, q1):
            blk += Q(qt, [V(f"v_sub_f32 v{vNM+4*qt+r}, 0, v{1+qt}") for r in range(4)])
            blk.append(V(f"v_mov_b32 v{vL+qt}, 0") if qt < 3 else V(f"v_sub_f32 v{vL+qt}, 0, s{sPAD}"))
        blk += softmax_seq(0, 1, [q0, q1], not cfg["R"])
        ops += [(e, INF, x) for x in blk if x.kind != "nop"]
    rest = [x for _, _, x in fill_ops(G, ops, 768)]
    if cfg.get("dbgp1"):
        lo_, hi_, st_ = cfg["dbgp1"]
        for k in range(lo_, hi_, st_):
            G[k].post.append(RAW("s_nop 7"))
    ST.seq(P, "qk0end")
    dm = sum((group_seq(g) for g in left), [])
    step = max(1, len(rest) // (len(dm) + 1))
    for k, x in enumerate(rest):
        if dm and k % step == step - 1:
            A(dm.pop(0))
        A(x)
    A(dm)
    A(WAITV(("V", 0)) if cfg["bpos"] else WAITV(("V", 0), ("K", 2)), BARRIER(frees=[("K", 0)]))


def qk_mfmas(first):
    out = []
    for a in range(2):
        for qt in range(4):
            for s in range(6):
                C = (0 if first else NM(qt)) if s == 0 else St(a, qt)
                m = Q(qt, MFMA(St(a, qt), Kf(a, s), Qf(qt, s), C))
                if qt == 0 and s in (0, 3):
                    m.rd |= set(regs("a", Kf(a, s)[1], 12))
                out.append(m)
    return out


def pv_mfmas(j):
    out = []
    for dt in range(12):
        for qt in range(4):
            out.append(Q(qt, MFMA(Oa(dt, qt), FR(dt), Pf(j & 1, qt), 0 if j == 0 else Oa(dt, qt))))
    return out


def xred(x, t, op):
    out = []
    for sw in ("v_permlane32_swap_b32", "v_permlane16_swap_b32"):
        for a, b in zip(x, t):
            out.append(V(f"v_mov_b32 v{b}, v{a}"))
        out.append(NOP(0))
        for a, b in zip(x, t):
            out.append(V(f"{sw} v{b}, v{a}"))
        for a, b in zip(x, t):
            out.append(V(f"{op} v{a}, v{a}, v{b}"))
    for y in out:
        if op == "v_max_f32" and "v4" in (y.rd | y.wr):
            Q(3, y)
    return out


def rowmax(dst):
    out = []
    for qt in range(4):
        s0, s1 = St(0, qt)[1], St(1, qt)[1]
        d = dst + qt
        out += [V(f"v_max3_f32 v{d}, v{s0}, v{s0+1}, v{s0+2}"), V(f"v_max3_f32 v{d}, v{d}, v{s0+3}, v{s1}"),
                V(f"v_max3_f32 v{d}, v{d}, v{s1+1}, v{s1+2}"), V(f"v_max_f32 v{d}, v{d}, v{s1+3}")]
        Q(qt, out[-4:])
    return out


def softmax_seq(par, delta, qts=range(4), adds=True):
    out = []
    for qt in qts:
        n0 = len(out)
        for a in range(2):
            s = St(a, qt)[1]
            for r in range(4):
                out.append(V(f"v_sub_f32 v{vE+4*a+r}, v{s+r}, v{delta+qt}"))
        for k in range(8):
            out.append(V(f"v_exp_f32 v{vE+k}, v{vE+k}"))
        p = Pf(par, qt)[1]
        if adds:
            out.append(V(f"v_add_f32 v{vTS+qt}, v{vE}, v{vE+1}"))
            for k in range(2, 8):
                out.append(V(f"v_add_f32 v{vTS+qt}, v{vTS+qt}, v{vE+k}"))
        for k in range(4):
            out.append(V(f"v_cvt_pk_bf16_f32 v{p+k}, v{vE+2*k}, v{vE+2*k+1}"))
        Q(qt, out[n0:])
    return out


def unpark():
    un = [V(f"v_accvgpr_read_b32 v{r}, a{240+k}") for k, r in enumerate(PARK)]
    un += [V(f"v_add_u32 v{vOB+1}, 6144, v{vOB}"), V(f"v_add_u32 v{vOB+2}, 12288, v{vOB}"),
           V(f"v_add_u32 v{vOP+1}, 8192, v{vOP}"), V(f"v_add_u32 v{vOP+2}, 16384, v{vOP}")]
    return un


def asel_setup():
    out = [V("v_and_b32 v2, 3, v0"), V("v_mov_b32 v3, 0x3f803f80")]
    for qt in range(4):
        out += [V(f"v_cmp_eq_u32 vcc, {qt}, v2"), V("v_cndmask_b32 v4, 0, v3, vcc")]
        out += [V(f"v_accvgpr_write_b32 a{240+4*qt+k}, v4") for k in range(4)]
        Q(qt, out[-6:])
    return out


def fallback(par, cfg):
    out = [LABEL(f"KF_fix{par}"), RAW("s_waitcnt vmcnt(0)"), NOP(7)]
    out += rowmax(1)
    out += xred([1, 2, 3, 4], [vE, vE + 1, vE + 2, vE + 3], "v_max_f32")
    for qt in range(4):
        out.append(Q(qt, V(f"v_max_f32 v{1+qt}, 0, v{1+qt}")))
    out += softmax_seq(par, 1, range(4), not cfg["R"])
    for qt in range(4):
        for r in range(4):
            out.append(Q(qt, V(f"v_sub_f32 v{vNM+4*qt+r}, v{vNM+4*qt+r}, v{1+qt}")))
    for qt in range(4):
        out.append(Q(qt, V(f"v_exp_f32 v{1+qt}, -v{1+qt}")))
    out.append(NOP(0))
    for qt in range(4):
        lo = Lb(par ^ 1)[1] if cfg["R"] else vL
        out.append(Q(qt, V(f"v_mul_f32 v{lo+qt}, v{lo+qt}, v{1+qt}")))
    if cfg["R"]:
        out += [NOP(1)] + rowsum_mfmas(par)
    for dt in range(12):
        for qt in range(4):
            a = Oa(dt, qt)[1]
            e = vE + 4 * (qt & 1)
            for r in range(4):
                out.append(V(f"v_accvgpr_read_b32 v{e+r}, a{a+r}"))
            for r in range(4):
                out.append(V(f"v_mul_f32 v{e+r}, v{e+r}, v{1+qt}"))
            for r in range(4):
                out.append(V(f"v_accvgpr_write_b32 a{a+r}, v{e+r}"))
            Q(qt, out[-12:])
    out += [NOP(1), I(f"s_setpc_b64 s[{sRET}:{sRET+1}]", "branch")]
    return out


def iteration(P, cfg, j, lab, groups, extra_vm=None, opre=(), extra_valu=(), forcevm=None):
    par = (j + 1) & 1
    R = cfg["R"]
    mf = qk_mfmas(False) + pv_mfmas(j)
    RP = cfg["rpos"]
    rs = ((rowsum_mfmas(0) if j == 0 else []) + rowsum_mfmas(par)) if R else []
    G = P.gaps(mf[:RP] + rs + mf[RP:])
    pos = lambda n: n if n < RP else n + len(rs)
    E = len(G) - 1
    exp_gaps = cfg["expgaps"] if R else [11 + 5 * k + o for k in range(16) for o in (0, 2)]
    slots = cfg["dmagaps"][len(groups)]
    lo = 0
    for g, idx in zip(groups, slots):
        for s_ in g.pre:
            P.flex_scalar(s_, G[lo:idx[0]])
        for k, d in zip(idx, g.dmas):
            assert k not in exp_gaps
            G[k].vec.append(d)
        lo = idx[-1] + 1
    if extra_vm is not None:
        G[E - 1].vec.append(extra_vm)
    for k, sc, x in opre:
        assert not G[k].vec and k not in exp_gaps
        G[k].vec.append(x)
        P.flex_scalar(sc, list(reversed(G[k - 6:k])))
    valu = []
    if not R:
        for qt in range(4):
            valu.append((0, V(f"v_add_f32 v{vL+qt}, v{vL+qt}, v{vTS+qt}")))
    n = 0
    for T in range(8):
        a, qt = divmod(T, 4)
        s = St(a, qt)[1]
        p = Pf(par, qt)[1] + 2 * a
        for r in range(4):
            g = exp_gaps[n]
            e = vE + n % 8
            assert not G[g].vec and g >= 6 * T + 9
            G[g].vec.append(Q(qt, V(f"v_exp_f32 v{e}, v{s+r}")))
            if R or (a == 0 and r == 0):
                pass
            elif a == 0 and r == 1:
                valu.append((g + 1, V(f"v_add_f32 v{vTS+qt}, v{e-1}, v{e}")))
            else:
                valu.append((g + 1, V(f"v_add_f32 v{vTS+qt}, v{vTS+qt}, v{e}")))
            if r & 1:
                valu.append((g + 1, Q(qt, V(f"v_cvt_pk_bf16_f32 v{p+(r>>1)}, v{e-1}, v{e}"))))
            n += 1
        if T == 6 and not R:
            valu.append((g + 1, V(f"v_max3_f32 v1, v{vTS}, v{vTS+1}, v{vTS+2}")))
    if R:
        l = Lb(par)[1]
        G[E - 3].vec += [V(f"v_max3_f32 v1, v{l}, v{l+1}, v{l+2}"), V(f"v_max_f32 v1, v1, v{l+3}")]
        G[E - 2].vec.append(V(f"v_cmp_nge_f32 vcc, s{sTH}, v1"))
    else:
        valu.append((g + 1, V(f"v_max_f32 v1, v1, v{vTS+3}")))
        valu.append((g + 1, V(f"v_cmp_lt_f32 vcc, s{sTH}, v1")))
    lds = []
    for s in range(6):
        lds.append((s, 14, k_read(j + 1, 1, s)))
    t0 = 6
    for dt in range(6):
        for t in range(2):
            lds.append((t0 + 3 * (2 * dt + t), 48 + 4 * dt - 8, vtype_read(FR(dt), vslot(j), dt, t, ("V", j))))
    BP = cfg["bpos"]
    if BP and j == 0:
        BP += 4
    if j + 2 < 32:
        for s in range(6):
            lds.append(((27, 33, 38, 43, 47, 50)[s], 70, k_read(j + 2, 0, s)) if not BP else (BP + 1 + s // 2, BP + 6, k_read(j + 2, 0, s)))
    for dt in range(6, 12):
        for t in range(2):
            lds.append((pos(48 + 4 * (dt - 6) + 3), pos(48 + 4 * dt) - 8, vtype_read(FR(dt), vslot(j), dt, t, ("V", j))))
    for gi, g in enumerate(G):
        while g.free() > 0:
            cand = []
            if valu and valu[0][0] <= gi:
                cand.append((min(valu[0][0] + cfg["vslack"], (RP - 2) if R else 93), 0, None))
            av = [x for x in lds if x[0] <= gi]
            if av:
                b = min(av, key=lambda x: x[1])
                nl = len([y for y in g.vec if y.kind == "lds"])
                cand.append((b[1] - (100 if nl == 0 and len([v for v in valu if v[0] <= gi]) < 3 else 0), 1, b))
            if not cand:
                break
            c = min(cand, key=lambda x: x[:2])
            if c[1] == 0:
                assert valu[0][0] + 16 >= gi and (not R or gi < RP)
                g.vec.append(valu.pop(0)[1])
            else:
                assert c[2][1] >= gi, (gi, c[2])
                lds.remove(c[2])
                g.vec.append(c[2][2])
    assert not valu and not lds, (valu, lds)
    if extra_valu:
        assert not fill_ops(G[:RP], [(0, RP - 2, x) for x in extra_valu])
    if cfg.get("dbgnop"):
        for k in range(cfg["dbgnop"]):
            G[exp_gaps[(k * 32) // cfg["dbgnop"]]].post.append(NOP(3))
    kn = j + 2 if BP else j + 3
    need = [("V", j + 1)] + ([("K", kn)] if kn < 32 else [])
    w = WAITV(*need)
    if forcevm is not None:
        w.meta["vm"] = forcevm
    P.itwait[j] = w
    G[BP - 1 if BP else E - 3].sca.append(w)
    G[BP if BP else E - 2].sca.append(BARRIER(frees=[("V", j), ("K", j + 1)]))
    G[E].sca.append(I(f"s_cbranch_vccnz KF_fx{lab}", "branch", rd=["vcc"]))
    assert not G[E].vec
    G[E].post.append(LABEL(f"KF_bk{lab}"))
    return G


KORD = [(0, s) for s in range(6)] + [(p, s) for s in range(6) for p in (1, 2, 3)]


def acc3(nt, qt):
    if nt < 4:
        return ("a", 192 + (nt * 4 + qt) * 4)
    return ("v", 64 + ((nt - 4) * 4 + qt) * 4)


def Bf(ks, qt):
    if ks < 6 or ks >= 18:
        return ("v", 160 + ((ks % 6) * 4 + qt) * 4)
    return ("a", ((ks - 6) * 4 + qt) * 4)


def wo_read(dst, ks, nt, tt):
    sl = woslot(ks)
    a, off = (vA3 + 2, sl - VREG) if sl >= VREG else (vA3, sl)
    return DSTR((dst[0], dst[1] + 2 * tt), a + (nt & 1), off + 3072 * tt + 64 * (nt >> 1), ("WO", ks))


def grp_B(ks, cfg):
    p, s = KORD[ks]
    so, pre = (f"s{sOB+p}", []) if s < 4 else (f"s{sOKV}", [S(f"s_add_u32 s{sOKV}, s{sOB+p}, 4096")])
    return [DmaGroup(pre, [Q(qt, VLOAD(Bf(ks, qt), vOB + qt, SO, so, 1024 * (s & 3), ("B", ks), cfg["bflags"])) for qt in range(4)])]


def poll_load(kind):
    off, srd_ = {"c": (6, SD), "o": (vFOP, SF), "p": (vFPP, SF)}[kind]
    return VLOAD(("v", 5), off, srd_, 0, 0 if kind == "c" else 4, None, "sc1", n=1)


def poll_cmp(need):
    return V(f"v_cmp_gt_u32 vcc, {need}, v5")


def slow_path(name, kind, need):
    return [f"KF_sl{name}:", f"s_mov_b32 s{sSPIN}, 0", f"KF_sp{name}:", poll_load(kind).text, "s_waitcnt vmcnt(0)", poll_cmp(need).text,
            f"s_add_u32 s{sSPIN}, s{sSPIN}, 1", f"s_cmp_gt_u32 s{sSPIN}, 0x8000", f"s_cbranch_scc1 KF_rt{name}",
            f"s_cbranch_vccnz KF_sp{name}", f"s_branch KF_rt{name}"]


def check_seq(P, name, kind, need):
    P.slow += slow_path(name, kind, need)
    return [poll_cmp(need), NOP(0), I(f"s_cbranch_vccnz KF_sl{name}", "branch", rd=["vcc"]), LABEL(f"KF_rt{name}")]


def free_gap(G, k, ok=lambda k: True):
    while G[k].vec or G[k].sca or G[k].post or not ok(k):
        k += 1
    return k


def check_gaps(P, G, name, kind, need, g_load, g_chk, ok):
    k = free_gap(G, g_load, ok)
    G[k].vec.append(poll_load(kind))
    k = free_gap(G, max(g_chk, k + 1), ok)
    G[k].vec.append(poll_cmp(need))
    k = free_gap(G, k + 1, ok)
    G[k].sca.append(I(f"s_cbranch_vccnz KF_sl{name}", "branch", rd=["vcc"]))
    G[k].sca.append(LABEL(f"KF_rt{name}"))
    P.slow += slow_path(name, kind, need)
    return k + 1


def flag_gaps(G, tags, val, off, g, ok):
    k = free_gap(G, g, ok)
    G[k].sca.append(WAITV(*tags))
    G[k].vec.append(V(f"v_mov_b32 v7, {val}"))
    k = free_gap(G, k + 1, ok)
    G[k].vec.append(VSTORE(("v", 7), off, SF, 0, 0, "sc1", n=1))
    return k


def otouch(s, cfg):
    x = VLOAD(("v", 4), 1, SO, f"s{sOB}" if s < 4 else f"s{sOX}", 1024 * (s & 3), None, cfg["otflags"], n=1)
    if s < 5:
        x.wr = set()
    return x


RCP = [2, 3, 8, 9]
F0 = 48


def pack_muls(G):
    for g in G:
        if g.cost() < 8:
            continue
        out = []
        k = 0
        v = g.vec
        while k < len(v):
            x = v[k]
            y = v[k + 1] if k + 1 < len(v) else None
            if k >= 3 and y is not None and "omul" in x.meta and "omul" in y.meta and x.meta["omul"][0] % 2 == 0 \
                    and y.meta["omul"] == (x.meta["omul"][0] + 1, x.meta["omul"][1]):
                r, f = x.meta["omul"]
                sel = "op_sel_hi:[1,0]" if f % 2 == 0 else "op_sel:[0,1] op_sel_hi:[1,1]"
                z = V(f"v_pk_mul_f32 v[{r}:{r+1}], v[{r}:{r+1}], v[{f&~1}:{(f&~1)+1}] {sel}")
                out.append(Q(x.meta["q"], z))
                k += 2
            else:
                out.append(x)
                k += 1
        g.vec = out


def unified_schedule(P, G, cfg, ost, wo_left, base, bar, stage_of, ok):
    c_st, c_miss, c_hit, lead = cfg["p3sched"]
    chunk_of = cfg["chunks"]
    ready = cfg["oready"]
    for g in wo_left:
        t = g.dmas[0].meta["tag"][1]
        g.earliest = bar[stage_of[t - 12]] + 1 if t >= 12 else (34 if t == 11 else 0)
        g.deadline = bar[stage_of[t] - 1] - 2
        g.cost = c_hit
    bs = [grp_B(ks, cfg)[0] for ks in range(6, 24)]
    for g in bs:
        ks = g.dmas[0].meta["tag"][1]
        g.deadline = base[stage_of[ks]] - 2 + 0.01 * ks
        g.earliest = None
        g.cost = c_miss if KORD[ks][0] == 1 else c_hit
    need = {}
    for g in bs:
        need.setdefault(chunk_of[KORD[g.dmas[0].meta["tag"][1]][1]], g.deadline)
    sts = []
    for n, x in enumerate(ost):
        g = DmaGroup([], [x], ready(n))
        c = chunk_of[n // 4]
        left = len([m for m in range(n + 1, 24) if chunk_of[m // 4] == c])
        g.deadline = need[c] - lead - sum(cfg["lags"][c]) - left * c_st
        g.cost = c_st
        sts.append(g)
    opos, ee = [], []
    groups = list(wo_left) + bs
    t = float(cfg["wstart"])
    pos = 0
    while groups or sts:
        cand = [g for g in groups if g.earliest is not None] + sts[:1]
        av = [g for g in cand if g.earliest <= t + 2]
        g = min(av, key=lambda x: x.deadline) if av else min(cand, key=lambda x: x.earliest)
        t = max(t, g.earliest + len(g.pre))
        k = pos + len(g.pre) + (1 if g.pre else 0)
        idx = []
        for d in g.dmas:
            k = free_gap(G, max(k, int(t)), ok)
            G[k].vec.append(d)
            idx.append(k)
            t = max(t + g.cost, k - 6)
            k += 1
        for s_ in g.pre:
            P.flex_scalar(s_, list(reversed(G[pos:idx[0]])))
        pos = idx[-1] + 1
        if sts and g is sts[0]:
            sts.pop(0)
            opos.append(idx[0])
            n = len(opos) - 1
            c = chunk_of[n // 4]
            if n == 23 or chunk_of[(n + 1) // 4] != c:
                k = flag_gaps(G, [("O", c)], c + 1, vFO, idx[0] + cfg["lags"][c][0], ok)
                k = max(k + cfg["lags"][c][1], (ee[-1] if ee else 0))
                ee.append(check_gaps(P, G, f"o{c}", "o", c + 1, k, k + cfg["lags"][c][2], ok))
                for h in bs:
                    ks = h.dmas[0].meta["tag"][1]
                    if chunk_of[KORD[ks][1]] == c:
                        h.earliest = ee[-1]
                        if ks >= 18:
                            assert n >= 4 * (ks - 18) + 3
                            h.earliest = max(h.earliest, base[stage_of[ks - 18] + 1])
        else:
            groups.remove(g)
            assert idx[-1] <= g.deadline, (g.dmas[0].meta["tag"], idx, g.deadline)
            P.slack.append((g.dmas[0].meta["tag"], idx[0], idx[-1], int(g.deadline)))
    P.slack.append(("stores", opos, "checks", ee))
    return opos


def phase3(P, cfg, ST, wo_left):
    A = P.seq
    stages = cfg["stages"]
    j = 31
    for dt in range(4):
        for t in range(2):
            A(vtype_read(FR(dt), vslot(j), dt, t, ("V", j)))
    A(check_seq(P, "c", "c", 32))
    A(S(f"s_add_u32 s{sOX}, s{sOB}, 4096"))
    if cfg["otouch"]:
        A(V("v_lshrrev_b32 v1, 4, v0"), V("v_mul_u32_u24 v1, 6144, v1"), V("v_bfe_u32 v4, v0, 1, 3"), V("v_lshl_add_u32 v1, v4, 7, v1"),
          V(f"v_lshl_add_u32 v1, s{sWOFF}, 3, v1"))
    pre = []
    if not cfg["R"]:
        A([V(f"v_add_f32 v{vL+qt}, v{vL+qt}, v{vTS+qt}") for qt in range(4)])
        pre = xred([vL + q for q in range(4)], [vE + q for q in range(4)], "v_add_f32")
    pre += [Q(qt, V(f"v_rcp_f32 v{RCP[qt]}, v{vL+qt}")) for qt in range(4)]
    pre = [x for x in pre if x.kind != "nop"]
    A(pre[:12])

    def abuf(si, nt):
        L = len(stages[si])
        if L == 2:
            g = 10 * si + nt
            return [FR(2 * (g % 3) + u) for u in range(2)]
        return [("a", (nt % 2) * 24 + u * 4) for u in range(L)]

    def areads(si, nt):
        return [wo_read(d, ks, nt, tt) for d, ks in zip(abuf(si, nt), stages[si]) for tt in range(2)]

    secs = [pv_mfmas(j)]
    for si, kss in enumerate(stages):
        mfs = []
        for nt in range(10):
            ab = abuf(si, nt)
            for qt in range(4):
                for u, ks in enumerate(kss):
                    C = 0 if ks == 0 else acc3(nt, qt)
                    m = Q(qt, MFMA(acc3(nt, qt), ab[u], Bf(ks, qt), C))
                    if qt == 0 and u % 2 == 0:
                        m.rd |= set(regs(ab[u + 1][0], ab[u + 1][1], 4))
                    if nt == 0 and u == 0 and qt == 0 and kss[0] >= 6:
                        for k2 in kss:
                            m.rd |= set(regs(*Bf(k2, 0), 16))
                    mfs.append(m)
        secs.append(mfs)
    G = P.gaps(sum(secs, []))
    base = [F0 + sum(len(x) for x in secs[1:i + 1]) for i in range(len(stages) + 1)]
    ok = lambda k: (k % 4 != 3) if k < F0 else (k % 8 != 7)
    for k, g in enumerate(G):
        g.nomem = not ok(k)
    for dt in range(4, 12):
        g = 0 + 2 * (dt - 4) if dt < 6 else 4 * (dt - 6) + 3
        G[g].vec += [vtype_read(FR(dt), vslot(j), dt, t, ("V", j)) for t in range(2)]
    G[32].sca.append(WAITV(("WO", 0), ("WO", 1)))
    G[33].sca.append(BARRIER(frees=[("V", 31)]))
    put_reads(G, 34, areads(0, 0))
    put_reads(G, 40, areads(0, 1))
    bar = {-1: 33}
    for si, kss in enumerate(stages):
        L = len(kss)
        per = 4 * L
        b = base[si]
        nxtL = len(stages[si + 1]) if si + 1 < len(stages) else 0
        ahead = 2 if L == 2 else 1
        for nt in range(ahead, 10):
            put_reads(G, b + per * (nt - ahead), areads(si, nt), 1 if L == 2 else 2)
        if nxtL:
            gb = b + per * 8
            if cfg.get("p3stamps"):
                ST.gap(G[gb - 1], G[gb + 1], f"s{si}")
            if cfg.get("p3light"):
                ST.light(G[gb - 9], f"s{si}")
            G[gb].sca.append(WAITV(*[("WO", ks) for ks in stages[si + 1]]))
            G[gb + 1].sca.append(BARRIER(frees=[("WO", ks) for ks in kss]))
            bar[si] = gb + 1
            put_reads(G, gb + 2, areads(si + 1, 0))
            if nxtL == 2:
                put_reads(G, b + per * 9, areads(si + 1, 1))
    stage_of = {ks: si for si, kss in enumerate(stages) for ks in kss}
    for s, g in enumerate(cfg["otouch"]):
        if g >= 0:
            G[free_gap(G, g, ok)].vec.append(otouch(s, cfg))
    chunk_of = cfg["chunks"]
    ost = [Q(qt, VSTORE(Bf(s, qt), vOB + qt, SO, f"s{sOB}" if s < 4 else f"s{sOX}", 1024 * (s & 3), cfg["oflags"], tag=("O", chunk_of[s])))
           for s in range(6) for qt in range(4)]
    if cfg["p3sched"]:
        opos = unified_schedule(P, G, cfg, ost, wo_left, base, bar, stage_of, ok)
    else:
        opos = []
        t = cfg["ostart"]
        for n, x in enumerate(ost):
            k = free_gap(G, max(int(t), (opos[-1] + 1) if opos else 0), ok)
            G[k].vec.append(x)
            opos.append(k)
            t += cfg["opace"](n)
        ee = []
        for c in range(max(chunk_of) + 1):
            lc = max(k for k, x in zip(opos, ost) if x.meta["tag"] == ("O", c))
            k = flag_gaps(G, [("O", c)], c + 1, vFO, lc + cfg["lags"][c][0], ok)
            if cfg.get("ostamps"):
                ST.gap(G[k - 3], G[k - 3], f"preF{c}")
                ST.gap(G[k], G[k], f"F{c}")
            k = max(k + cfg["lags"][c][1], (ee[-1] if ee else 0))
            ee.append(check_gaps(P, G, f"o{c}", "o", c + 1, k, k + cfg["lags"][c][2], ok))
            if cfg.get("ostamps"):
                ST.gap(G[ee[-1] - 5], G[ee[-1] - 5], f"preC{c}")
                ST.gap(G[ee[-1] - 2], G[ee[-1] - 2], f"cmp{c}")
                ST.gap(G[ee[-1] - 1], G[ee[-1] - 1], f"C{c}")
        P.slack.append(("stores", opos, "checks", ee, "base", base))
        e0 = ee[0]
        for g in wo_left:
            t = g.dmas[0].meta["tag"][1]
            g.earliest = bar[stage_of[t - 12]] + 1 if t >= 12 else (34 if t == 11 else 0)
            g.deadline = bar[stage_of[t] - 1] - 2
        wo_left = place_stream(P, G, wo_left, cfg["wstart"], e0 - 4, lambda k: cfg["wpace"], ok)
        bs = [grp_B(ks, cfg)[0] for ks in range(6, 24)]
        for g in bs:
            ks = g.dmas[0].meta["tag"][1]
            g.deadline = base[stage_of[ks]] - 2 + 0.01 * ks
            g.earliest = ee[chunk_of[KORD[ks][1]]]
            if ks >= 18:
                g.earliest = max(g.earliest, base[stage_of[ks - 18] + 1], opos[4 * (ks - 18) + 3] + 3)
        items = sorted(wo_left + bs, key=lambda g: g.deadline)
        left = place_stream(P, G, items, e0, len(G), lambda k: cfg["p3pace"], ok, True)
        assert not left
    bpos = {x.meta["tag"][1]: k for k, g in reversed(list(enumerate(G))) for x in g.vec if x.kind == "vload" and x.meta["tag"]}
    ops = [(0, 14, x) for x in pre[12:]]
    n = 0
    for s in range(6):
        for qt in range(4):
            o = Bf(s, qt)[1]
            t = vOK + 2 * (n % 3)
            dl = min(base[s // 2] + 2 * qt + (s & 1) - 2, opos[n] - 1, bpos[6 + 2 * s] - 1, bpos[7 + 2 * s] - 1)
            n += 1
            for u, dst in enumerate(([o, o + 1, o + 2, o + 3], [o + 2, o + 3, t, t + 1])):
                a = Oa(2 * s + u, qt)[1]
                e = 4 * (2 * s + u) + qt + 5
                ops += [(e, dl, V(f"v_accvgpr_read_b32 v{dst[r]}, a{a+r}")) for r in range(4)]
                ops += [(e, dl, V(f"v_mul_f32 v{dst[r]}, v{RCP[qt]}, v{dst[r]}", omul=(dst[r], RCP[qt]))) for r in range(4)]
                ops += [(e, dl, V(f"v_cvt_pk_bf16_f32 v{o+2*u+r}, v{dst[2*r]}, v{dst[2*r+1]}")) for r in range(2)]
                Q(qt, ops[-10:])
    assert not fill_ops(G, ops)
    pack_muls(G)
    si = len(stages) - 1
    per = 4 * len(stages[si])
    b = base[si]
    tmpbase = 160 if per == 8 else vFR
    vOPx = lambda t: (vAV if t & 4 else vOP) + (t & 3)
    own = lambda t, dst, src: [V(f"v_cndmask_b32 v{dst+r}, v{dst+r}, v{src+r}, s[{sOWN+2*(t&7)}:{sOWN+2*(t&7)+1}]") for r in range(4)]
    bg = []
    for t in range(7, -1, -1):
        bg += [S(f"s_xor_b32 s3, s{sGE}, {t << 10}"), S(f"s_cselect_b64 s[{sOWN+2*t}:{sOWN+2*t+1}], 0, -1"), S(f"s_cselect_b32 s3, s3, {OOB}"),
               V(f"v_add_u32 v{vOPx(t)}, s3, v{vOP+(t&3)}")]
    fill_background(G, bg, base[6], b)
    KEEP = [vFR + 16, 192, 224]
    late_own = []
    work = []
    tmp = 0
    for np_ in range(5):
        e = b + per * (2 * np_ + 1)
        work.append((e, S(f"s_mov_b32 s{sOW}, {np_*15*8192}")))
        for qt in range(4):
            e = b + per * (2 * np_ + 1) + (per // 4) * (qt + 1) + 4
            n0 = len(work)
            x, y = acc3(2 * np_, qt), acc3(2 * np_ + 1, qt)
            if x[0] == "a":
                t = tmpbase + (tmp % 2) * 8
                tmp += 1
                for u, z in enumerate((x, y)):
                    for r in range(4):
                        work.append((e - (per // 2 if u == 0 else 0), V(f"v_accvgpr_read_b32 v{t+4*u+r}, a{z[1]+r}")))
                src = [t + r for r in range(8)]
                o = t
            else:
                src = [x[1] + r for r in range(4)] + [y[1] + r for r in range(4)]
                o = x[1]
            for r in range(4):
                work.append((e, V(f"v_cvt_pk_bf16_f32 v{o+r}, v{src[2*r]}, v{src[2*r+1]}")))
            work.append((e, VSTORE(("v", o), vOPx(4 * np_ + qt), SP, f"s{sOW}", 0, cfg["pflags"], tag=("P", np_))))
            if x[0] == "a":
                work += [(e, z) for z in own(4 * np_ + qt, KEEP[0], o)]
            else:
                late_own += Q(qt, own(4 * np_ + qt, KEEP[np_ // 2], o))
            Q(qt, work[n0:])
    gi = b
    stpos = {}
    while work and gi < len(G):
        g = G[gi]
        while work and work[0][0] <= gi:
            x = work[0][1]
            if x.kind == "salu":
                P.flex_scalar(x, [g, G[min(gi + 1, len(G) - 1)]])
                work.pop(0)
            elif x.kind == "vstore":
                if not g.vec and not g.sca and ok(gi):
                    g.vec.append(x)
                    stpos[x.meta["tag"][1]] = gi
                    work.pop(0)
                break
            elif g.free() > 0:
                g.vec.append(x)
                work.pop(0)
            else:
                break
        gi += 1
    rest = [x for _, x in work]
    pending = {n for x in rest if x.kind == "vstore" for n in [x.meta["tag"][1]]}
    addr = [V("v_and_b32 v2, 15, v0"), V("v_mul_u32_u24 v2, 1280, v2"), V("v_lshrrev_b32 v3, 5, v0"), V("v_bfe_u32 v4, v0, 4, 1"),
            V("v_lshl_or_b32 v3, v4, 1, v3"), V("v_lshl_add_u32 v2, v3, 4, v2"), V("v_lshlrev_b32 v1, 4, v0"), V("v_add_u32 v3, 4096, v1")]
    assert not fill_ops(G, [(b, len(G) - 1, x) for x in addr], b)
    if cfg["ptail"] == 2:
        k = free_gap(G, stpos[1] + cfg["plagA"][0], ok)
        G[k].sca.append(WAITV(("P", 1)))
        G[k].vec.append(V("v_mov_b32 v7, 1"))
        k += 1
        while G[k].sca or G[k].isdma() or not ok(k):
            k += 1
        G[k].sca.append(BARRIER())
        k = free_gap(G, k + 1, ok)
        G[k].vec.append(VSTORE(("v", 6), vFP, SF, 0, 0, "sc1", n=4))
        k = free_gap(G, k + cfg["plagA"][1], ok)
        G[k].vec.append(poll_load("p"))
        P.slack.append(("pollA", k, stpos))
    ST.seq(P, "mfend")
    A(rest)

    def loads(r):
        return [VLOAD(("a", r * 32 + g * 4) if False else ("v", 160 + r * 32 + g * 4), 1 if g < 4 else 3, SP, f"s{sJ+r}", 1024 * (g & 3), None, cfg["rflags"])
                for g in range(1, 8)]

    def reduce(r):
        out = []
        o = 64 + r * 16
        for g in range(8):
            src = 160 + r * 32 + g * 4 if g else KEEP[r]
            t = o if g == 0 else 112 + (g & 1) * 8
            for q in range(4):
                out += [V(f"v_lshlrev_b32 v{t+2*q}, 16, v{src+q}"), V(f"v_and_b32 v{t+2*q+1}, 0xffff0000, v{src+q}")]
            if g:
                for q in range(4):
                    out.append(V(f"v_pk_add_f32 v[{o+2*q}:{o+2*q+1}], v[{o+2*q}:{o+2*q+1}], v[{t+2*q}:{t+2*q+1}]"))
        for q in range(4):
            out.append(V(f"v_cvt_pk_bf16_f32 v{o+8+q}, v{o+2*q}, v{o+2*q+1}"))
        out += [NOP(0), V(f"v_permlane16_swap_b32 v{o+8}, v{o+10}"), V(f"v_permlane16_swap_b32 v{o+9}, v{o+11}"),
                VSTORE(("v", o + 8), 2, SOUT, f"s{sJ+3+r}", 0, cfg["outflags"])]
        return out

    def flag(val, tags):
        return [V(f"v_mov_b32 v7, {val}"), WAITV(*tags), BARRIER(), VSTORE(("v", 6), vFP, SF, 0, 0, "sc1", n=4)]

    fl = flag(2, [("P", 4)])
    txt = lambda L: [text_of(x) for x in L]
    A(fl[0])
    if cfg["pfirst"]:
        n0 = cfg["pfirst"] - 1
        A(late_own)
        late_own = []
        A(fl[1], fl[2], fl[3], check_seq(P, "pA", "p", 1), loads(0))
    else:
        A(poll_cmp(1), NOP(0), I("s_cbranch_vccnz KF_lateA", "branch", rd=["vcc"]))
        A(loads(0), fl[1], fl[2], RAW(fl[3].text), LABEL("KF_joinA"))
        sp = slow_path("pA", "p", 1)
        P.slow += ["KF_lateA:", "s_waitcnt vmcnt(0)", "s_barrier", fl[3].text] + sp[:-1] + ["KF_rtpA:"] + txt(loads(0)) + ["s_branch KF_joinA"]
    ST.seq(P, "pdrain")
    if cfg["pfast"]:
        A(poll_cmp(2), NOP(0), I("s_cbranch_vccz KF_rtp2", "branch", rd=["vcc"]))
        A(RAW(f"s_waitcnt vmcnt({8-cfg['pcut']})"), RAW(poll_load("p").text), RAW("s_waitcnt vmcnt(0)"), check_seq(P, "p2", "p", 2))
        ST.seq(P, "ppoll")
        A(loads(1), loads(2), late_own, reduce(0), reduce(1), reduce(2))
    else:
        r0 = reduce(0)
        cut = 8 + 12 * (cfg["pcut"] - 1)
        A(late_own, r0[:cut], poll_load("p"), r0[cut:-1], check_seq(P, "p2", "p", 2))
        ST.seq(P, "ppoll")
        A(loads(1), loads(2), r0[-1], reduce(1), reduce(2))


def build(cfg):
    P = Prog()
    P.slack = []
    P.slow = []
    P.itwait = {}
    ST = Stamper(cfg)
    LA = cfg["LA"]
    stream = prologue(P, cfg, ST)
    phase1(P, cfg, ST, stream)
    ST.seq(P, "attn0")
    if ST.it:
        P.seq(RAW("s_mov_b32 s53, 2"))
    labs = []
    wo = [grp_WO(t, cfg)[0] for t in range(24)]
    NT = cfg["trips"]
    NS = len(cfg["skips"])
    for j in range(0, 31):
        inloop = 1 <= j <= 6 * NT
        if j == 1:
            P.seq(I(f"s_mov_b32 s{sCNT}, {NT}", "raw"))
        if inloop and (j - 1) % 6 == 0:
            P.el.append(I("", "raw", mark=(j - 1) // 6))
        if j == 6 * NT + 1:
            P.el.append(I("", "raw", mark=NT))
        groups = []
        if inloop and NS:
            if j in cfg["skips"]:
                LA -= 1
                groups += grp_dyn("K", None, cfg) + grp_dyn("V", None, cfg)
            else:
                groups += grp_dyn("K", j + LA, cfg) + grp_dyn("V", j + LA - 1, cfg)
        else:
            if j + LA < 32:
                groups += grp_K(j + LA, cfg, inloop or j == 0)
            if j + LA - 1 < 32:
                groups += grp_V(j + LA - 1, cfg, j + LA < 32)
        while len(groups) < cfg["tailgroups"] and j >= cfg["wostart"] and wo and 26 + (wo[0].dmas[0].meta["tag"][1] + 1) // 2 <= j:
            groups.append(wo.pop(0))
        lab = str((j - 1) % 6) if inloop else f"p{j}"
        if not inloop or j <= 6:
            labs.append((lab, (j + 1) & 1))
        xv = None
        if j == 29:
            xv = poll_load("c")
        if inloop and (j - 1) % 6 == 1:
            xv = I(f"buffer_atomic_add v7, v6, s[{SD}:{SD+3}], s{sAO} offen sc1", "vstore", ["v6", "v7"], [], data=set(), n=1, tag=None)
        pieces = [(g, S(f"s_mov_b32 s{sAO}, {i*81920}"), VLOAD(("v", 4), 5 if jj < 29 else vOK + 1, SWO, f"s{sAO}", 0, None, "", n=1))
                  for i, (jj, g) in enumerate(cfg["wopf"]) if jj == j]
        ev = []
        if j == (0 if cfg["R"] else 25):
            ev = unpark() + (asel_setup() if cfg["R"] else [])
        if j == 28:
            ev = [V("v_mov_b32 v6, 0")]
        if j == 29:
            assert j + LA >= 32
            ev = ev + [V(f"v_mov_b32 v{vOK+1}, v5")]
        G = iteration(P, cfg, j, lab, groups, xv, pieces, ev, 6 * (cfg["LA"] - NS - 2) if inloop and NS else cfg.get("vmforce", {}).get(j))
        if NS and j <= 6 * NT:
            P.flex_chain(dyn_prepare(), G[cfg["dmagaps"][2][1][-1] + 1:cfg["bpos"] - 2])
        if inloop and (j - 1) % 6 == 1:
            G[-8].sca.append(S(f"s_cmp_eq_u32 s{sCNT}, s{sTRIP}"))
            G[-7].sca.append(S(f"s_cselect_b32 s{sAO}, 0, {OOB}"))
        if ST.it:
            G[-6].post += [RAW(f"s_memtime s[{sTM}:{sTM+1}]"), RAW(f"s_memrealtime s[{sTM+2}:{sTM+3}]")]
            G[-3].post += [RAW("s_mov_b32 m0, s53"), RAW("s_addk_i32 s53, 1"), RAW(f"v_writelane_b32 v{vST}, s{sTM}, m0"), RAW("s_mov_b32 m0, s53"),
                           RAW("s_addk_i32 s53, 1"), RAW(f"v_writelane_b32 v{vST}, s{sTM+2}, m0")]
            ST.names.append(f"i{j}")
        if inloop and (j - 1) % 6 == 5:
            P.flex_scalar(S(f"s_sub_u32 s{sCNT}, s{sCNT}, 1"), G[80:90])
            G[-2].sca.append(S(f"s_cmp_lg_u32 s{sCNT}, 0"))
            G[-1].post.append(I("s_cbranch_scc1 KF_loop", "branch"))
    ST.seq(P, "attnend")
    phase3(P, cfg, ST, wo)
    if ST.on:
        P.seq(WAIT(vm=0))
        ST.seq(P, "end")
        ST.flush(P)
        if cfg.get("diag"):
            P.seq(RAW("s_getreg_b32 s3, hwreg(HW_REG_XCC_ID, 0, 4)"), RAW(f"v_writelane_b32 v{vST}, s3, 63"))
        P.seq(srd(8, 32, 33, STAMP_OFF, 0x100000), S("s_lshl_b32 s3, s2, 2"), S(f"s_add_u32 s3, s3, s{sW}"), S("s_lshl_b32 s3, s3, 8"),
              V("v_lshlrev_b32 v2, 2, v0"), RAW(f"buffer_store_dword v{vST}, v2, s[8:11], s3 offen"))
    if cfg.get("w3"):
        P.prune(lambda x: x.meta.get("q") == 3, "KF_go:")
    P.insert_waits()
    P.place_flex()
    lin = P.linear()
    lin, notes = fix_hazards(lin)
    P.notes = notes
    probs = check_hazards(lin) + check_lds_protocol(lin, private=lambda t: t[0] == "X")
    trips = {}
    pre, post, cur = [], [], None
    for x in lin:
        if x.kind == "raw" and "mark" in x.meta:
            cur = x.meta["mark"]
            continue
        if cur is None:
            pre.append(x)
        elif cur == NT:
            post.append(x)
        else:
            trips.setdefault(cur, []).append(x)
    t0 = [text_of(x) for x in trips[0]]
    for k in range(1, NT):
        tk = [text_of(x) for x in trips[k]]
        assert tk == t0, [(a, b) for a, b in zip(t0, tk) if a != b][:5]
    out = [text_of(x) for x in pre] + ["KF_loop:"] + t0 + [text_of(x) for x in post]
    out += ["KF_done:", "s_endpgm"]
    out += P.slow
    for lab, par in labs:
        out += [f"KF_fx{lab}:", f"s_call_b64 s[{sRET}:{sRET+1}], KF_fix{par}", f"s_branch KF_bk{lab}"]
    for par in range(2):
        fb = fallback(par, cfg)
        if cfg.get("w3"):
            fb = fix_hazards([x for x in fb if x.meta.get("q") != 3])[0]
        probs += check_hazards(fb)
        out += [text_of(x) for x in fb]
    out += ["KF_end:"]
    return out, probs, P, ST


DEFAULT = dict(map="hg4", wflags="", xflags="", kvflags="nt", woflags="", oflags="sc1", bflags="sc1", pflags="sc1", rflags="sc1",
               outflags="", thresh=16384.0, LA=5, trips=4, npro=1, npro2=3, bgstart=100, pace=[(960, 5.2)], xearly=4, kvpace=14, tailgroups=3,
               dmagaps={0: [], 1: [[4, 7, 9]], 2: [[4, 7, 9], [34, 44, 54]], 3: [[4, 7, 9], [34, 44, 54], [64, 79, 84]]},
               vslack=8, stages=[[2 * k, 2 * k + 1] for k in range(9)] + [list(range(18, 24))], p3pace=4.2, wstart=0, wpace=9, codepf=5,
               chunks=[0, 1, 1, 2, 2, 2], ostart=44, opace=lambda n: 4 if n < 3 else 14, lags=[(45, 65, 45), (55, 40, 60), (70, 60, 70)],
               p1pf=[0, 6, 14, 22], wopf=[(25, 82), (26, 82), (27, 82)], pfa=0, tour3=0, otouch=[], otflags='', p3sched=None,
               oready=lambda n: [26, 38, 48, 49, 50, 52, 54, 56, 74, 92, 110, 128, 130, 132, 134, 136, 154, 172, 190, 208, 210, 212, 214, 216][n], tour=1, R=1, rpos=84, bpos=84, split3=0, nskip=2, ptail=2, pfast=1, pfirst=1, plagA=(50, 50), pcut=4, wostart=27, stamps=False)


RCFG = dict(thresh=16777216.0, expgaps=[11 + 9 * (k // 4) + 2 * (k % 4) for k in range(32)],
            dmagaps={0: [], 1: [[4, 7, 9]], 2: [[4, 7, 9], [37, 46, 54]], 3: [[4, 7, 9], [37, 46, 54], [64, 73, 92]], 4: [[4, 7, 9], [19, 28, 37], [46, 54, 64], [73, 90, 92]]})


def line_sizes(body):
    import subprocess, tempfile, re
    ins = [l for l in body if l and not l.endswith(":")]
    d = tempfile.mkdtemp()
    src = '.amdgcn_target "amdgcn-amd-amdhsa--gfx950"\n.text\nL0:\n' + "\n".join(re.sub(r"K[FX]_\w+", "L0", re.sub(r"K[FX]_\w+-[\w-]+", "0x12345", l)) for l in ins) + "\n"
    open(d + "/a.s", "w").write(src)
    subprocess.run(["clang", "-x", "assembler", "-target", "amdgcn-amd-amdhsa", "-mcpu=gfx950", "-c", d + "/a.s", "-o", d + "/a.o"], check=True)
    dis = subprocess.run(["llvm-objdump", "-d", "--mcpu=gfx950", d + "/a.o"], capture_output=True, text=True).stdout
    sizes = [4 * len(re.findall(r"\b[0-9A-F]{8}\b", l.split("//")[1].split(":", 1)[1].split("<")[0])) for l in dis.splitlines() if "//" in l]
    assert len(sizes) == len(ins), (len(sizes), len(ins))
    it = iter(sizes)
    return [0 if (not l or l.endswith(":")) else next(it) for l in body]


def merge_streams(o, o3, tour3):
    import re
    go = o.index("KF_go:")
    assert o[:go] == o3[:go]
    call = lambda t: f"s_call_b64 s[{sRET}:{sRET+1}], {t}"
    lp, le = o3.index("KF_loop:"), o3.index("s_cbranch_scc1 KF_loop")
    head = []
    nb = 0
    for l in o3[:lp]:
        if l == "s_barrier":
            nb += 1
            if tour3 and 2 <= nb <= 11:
                head += ["s_mov_b64 exec, 0", call(f"KF_EAR{nb-2}"), "s_mov_b64 exec, -1"]
        head.append(l)
    out = head + ["s_getpc_b64 s[52:53]", "KF_pc2:", "s_sub_u32 s52, s52, KF_pc2-KX_go", "s_subb_u32 s53, s53, 0", "v_lshlrev_b32 v92, 12, v0",
                     "v_min_u32 v92, KX_end-KX_go-4, v92", "v_mov_b32 v93, s53", "v_add_co_u32 v92, vcc, s52, v92", "s_nop 1",
                     "v_addc_co_u32 v93, vcc, 0, v93, vcc"]
    site = 0
    for l in o3[lp:le]:
        if l == "s_barrier":
            for t in range(3):
                out += [f"s_cmp_eq_u32 s{sCNT}, {3-t}", f"s_cbranch_scc0 KF_h{site}_{t}", "s_mov_b64 exec, 0", call(f"KF_HOP{6*t+site}"),
                        "s_mov_b64 exec, -1", f"KF_h{site}_{t}:"]
            site += 1
        out.append(l)
        if l == "s_barrier" and site == 5:
            out.append("global_load_dword v94, v[92:93], off")
    assert site == 6
    out += o3[le:]
    o3 = insert_stubs(out)
    o = insert_stubs(o)
    off_ = False
    for l in o3:
        off_ = l == "s_mov_b64 exec, 0" or (off_ and l != "s_mov_b64 exec, -1")
        assert not (off_ and "execz" in l)
    early, late = [], []
    for pre, t in (("KX", o), ("KF", o3)):
        e = t.index("s_cbranch_scc1 KF_loop")
        for k, l in enumerate(t):
            m = re.match(r"KF_(pg\d+):", l)
            if m:
                (early if k < e else late).append((int(m.group(1)[2:]), f"{pre}_{m.group(1)}"))
    early = [x for _, x in sorted(early)]
    late = [x for _, x in sorted(late)]
    assert len(late) <= 18
    if tour3:
        early = [x for x in early if x not in ("KF_pg1", "KF_pg2", "KF_pg3")]
        assert len(early) <= 10
        o3 = [re.sub(r"KF_EAR(\d+)", lambda m: early[int(m.group(1))] if int(m.group(1)) < len(early) else "KX_tramp", l) for l in o3]
        early = []
    o3 = [re.sub(r"KF_HOP(\d+)", lambda m: late[int(m.group(1))] if int(m.group(1)) < len(late) else "KX_tramp", l) for l in o3]
    o3 = [re.sub(r"execz KF_\w+", "execz KX_tramp", l) for l in o3]
    o = [re.sub(r"execz KF_\w+", "execz KF_tramp", l) for l in o]
    ren = lambda l: l.replace("KF_", "KG_").replace("KX_", "KF_")
    tour = ["s_mov_b64 exec, 0"]
    for w in range(4):
        if w < 3:
            tour += [f"s_cmp_eq_u32 s{sW}, {w}", f"s_cbranch_scc0 KF_tw{w}"]
        tour += [call(ren(x)) for x in early[w::4]]
        tour += ["s_mov_b64 exec, -1", "s_branch KF_go" if w < 3 else "s_branch KG_go"]
        if w < 3:
            tour += [f"KF_tw{w}:"]
    if tour3:
        tour = [f"s_cmp_eq_u32 s{sW}, 3", "s_cbranch_scc1 KG_go", "s_branch KF_go"]
    k = o.index("s_branch KF_go")
    o = o[:k] + tour + ["KF_tramp:", f"s_setpc_b64 s[{sRET}:{sRET+1}]"] + o[k + 1:]
    return o[:-1] + [".p2align 12"] + [ren(l) for l in o3[go:-1]] + ["KF_end:"]


def insert_stubs(lines):
    import re
    go = lines.index("KF_go:")
    end = lines.index("KF_done:")
    body = lines[go + 1:end]
    sz = line_sizes(body)
    out = []
    off = 0
    page = 1
    k = 0
    while k < len(body):
        if off >= page * 4096:
            best = k
            o, j = off, k
            while j < len(body) and o <= page * 4096 + 56:
                prev = body[j - 1]
                if prev.startswith("v_mfma") and body[j].startswith(("v_", "ds_")):
                    best = j
                    break
                o += sz[j]
                j += 1
            while k < best:
                out.append(body[k])
                off += sz[k]
                k += 1
            out += [f"KF_pg{page}:", f"s_cbranch_execz KF_pg{page+4}"]
            off += 4
            page += 1
        out.append(body[k])
        off += sz[k]
        k += 1
    out = [re.sub(r"execz KF_pg(\d+)", lambda m: m.group(0) if int(m.group(1)) < page else "execz KF_tret", l) for l in out]
    return lines[:go + 1] + out + lines[end:]


HDR = open("standalone__mha_block_cached__near_ridge.s.ref").read().split("; Override launch")[0]
NAME = "standalone__mha_block_cached__near_ridge_kernel"


def generate(over=None):
    cfg = dict(DEFAULT)
    if (over or {}).get("R", 1):
        cfg.update(RCFG)
    cfg.update(over or {})
    NS = cfg["nskip"]
    cfg["skips"] = [1 + (24 // NS) * k for k in range(NS)]
    o, p, P, ST = build(cfg)
    assert not p, p[:10]
    if NS:
        for off in range(1, 24 // NS + 1):
            c2 = dict(cfg, skips=[off + (24 // NS) * k for k in range(NS)], vmforce={j: w.meta["vm"] for j, w in P.itwait.items()})
            o2, p2, _, _ = build(c2)
            assert not p2 and o2 == o, (off, p2[:5], [(a, b) for a, b in zip(o, o2) if a != b][:5])
    if cfg["split3"]:
        o3, p3, P3, _ = build(dict(cfg, w3=True))
        assert not p3, p3[:10]
        for off in range(2, 24 // NS + 1 if NS else 0):
            o2, p2, _, _ = build(dict(cfg, w3=True, skips=[off + (24 // NS) * k for k in range(NS)], vmforce={j: w.meta["vm"] for j, w in P3.itwait.items()}))
            assert not p2 and o2 == o3
        o = merge_streams(o, o3, cfg["tour3"])
    elif cfg["tour"]:
        o = insert_stubs(o)
    if cfg.get("verbose"):
        print(P.slack, file=sys.stderr)
        print(len(P.notes), "nops inserted:", P.notes, file=sys.stderr)
    if P.warn or P.overfull():
        print("warn", len(P.warn), P.warn[:6], "overfull", P.overfull(), file=sys.stderr)
    dg = cfg.get("diag")
    if dg:
        s = HDR + f"; @launch kernel={NAME} grid=(256,1,1) block=(256,1,1) lds={LDS_BYTES}\n; @launch kernel=diag_kernel grid=(1,1,1) block=(64,1,1) lds=0\n"
    else:
        s = HDR + f"; @launch grid=(256,1,1) block=(256,1,1) lds={LDS_BYTES}\n"
    if ST.on:
        s += "; STAMPS " + " ".join(ST.names) + "\n"
    s += '.amdgcn_target "amdgcn-amd-amdhsa--gfx950"\n.text\n'
    s += f".globl {NAME}\n.p2align 8\n.type {NAME},@function\n{NAME}:\n" + "\n".join(l for l in o if l) + "\n"
    if dg:
        import gen
        def addr(x):
            wg, nm = x
            return STAMP_OFF + wg * 1024 + (252 if nm == "xcc" else 8 * ST.names.index(nm) + 4)
        s += ".globl diag_kernel\n.p2align 8\n.type diag_kernel,@function\ndiag_kernel:\n" + "\n".join(gen.diag_kernel(addr(dg[0]), addr(dg[1]), dg[2])) + "\n"
    s += f""".section .rodata,"a"
.p2align 6
.amdhsa_kernel {NAME}
  .amdhsa_next_free_vgpr 512
  .amdhsa_next_free_sgpr 102
  .amdhsa_accum_offset 256
  .amdhsa_group_segment_fixed_size 0
  .amdhsa_kernarg_size 64
  .amdhsa_user_sgpr_count 2
  .amdhsa_user_sgpr_kernarg_segment_ptr 1
  .amdhsa_system_sgpr_workgroup_id_x 1
.end_amdhsa_kernel
"""
    if dg:
        s += ".p2align 6\n" + gen.kd("diag_kernel", 8, 8) + "\n"
    return s


if __name__ == "__main__":
    over = eval(sys.argv[2]) if len(sys.argv) > 2 else None
    open(sys.argv[1], "w").write(generate(over))
```

```python
import math, struct, sys
from asmlib import *

SLOT = 12288
KREG = 0
VREG = 6 * SLOT
EREG = 12 * SLOT
LDS_BYTES = 163840
OOB = 0x40000000

O_OFF = 0
PART_OFF = 0x2000000
FLAG_OFF = 0x4000000
STAMP_OFF = 0x10000000

SX, SW, SK, SV, SO = 8, 12, 16, 20, 24
SF, SD = 56, 60
SWO, SP, SOUT = 64, 68, 72
sW, sB, sH, sWOFF, sXB0, sXB1 = 34, 35, 36, 37, 38, 39
sOW, sOX, sOKV, sCNT, sTH = 40, 41, 42, 43, 44
sG = 45
sC = 46
sRET = 48
sPAD, sHL = 50, 51
sHB, sOB = 76, 80
sJ = 84
sSPIN = 90
sTRIP, sAO = 54, 55
sGE = 47
sOWN = 8
sIT, sMASK, sSL, sMK, sMV, sSO, sSTEP, sWOFFV = 4, 5, 6, 7, 28, 29, 30, 31
sTM = 92
vAK, vAV, vAW, vAX = 8, 10, 14, 18
vOK, vOV, vOW, vOX = 22, 25, 28, 31
vST = 39
vPF = 8
vFR = 40
vS, vP, vNM, vTS, vL, vE = 64, 96, 128, 144, 148, 152
vA3 = 14
vOB = 18
vOWO = 28
vOP = 31
vFL = 35
PARK = [vA3, vA3 + 1, vA3 + 2, vA3 + 3, vOB, vOB + 3, vOWO, vOWO + 1, vOWO + 2, vOP, vOP + 3, vFL, vFL + 1, vFL + 2, vFL + 3, 5]
vFO, vFOP, vFP, vFPP = vFL, vFL + 1, vFL + 2, vFL + 3


def f32(x):
    return "0x%08x" % struct.unpack("<I", struct.pack("<f", x))[0]


def Q(qt, x):
    for y in (x if isinstance(x, list) else [x]):
        (y[-1] if isinstance(y, tuple) else y).meta["q"] = qt
    return x


def acc(dt, qt):
    return ("v", (160 if dt % 2 == 0 else 64) + ((dt >> 1) * 4 + qt) * 4)


def Qf(qt, s):
    return acc(2 * s, qt)


def Oa(dt, qt):
    return ("a", (dt * 4 + qt) * 4)


def Kf(a, s):
    return ("a", 192 + (a * 6 + s) * 4)


def Xf(beta, u, qt):
    return ("a", beta * 32 + (u * 4 + qt) * 4)


def St(a, qt):
    return ("v", vS + (a * 4 + qt) * 4)


def Pf(par, qt):
    return ("v", vP + par * 16 + qt * 4)


def NM(qt):
    return ("v", vNM + qt * 4)


def Lb(par):
    return ("v", vTS + 4 * par)


def rowsum_mfmas(par):
    return [Q(qt, MFMA(Lb(par), ("a", 240 + 4 * qt), Pf(par, qt), Lb(par ^ 1) if qt == 0 else Lb(par))) for qt in range(4)]


def FR(i):
    return ("v", vFR + (i % 6) * 4)


def wslot(n):
    buf = (n // 2) % 4
    base = {2: KREG, 3: KREG + 2 * SLOT, 0: KREG + 4 * SLOT, 1: VREG + 4 * SLOT}[buf]
    return base + (n % 2) * SLOT


def kslot(n):
    return KREG + (n % 6) * SLOT


def vslot(n):
    return VREG + (n % 6) * SLOT


def woslot(t):
    t %= 12
    return (kslot if t % 2 == 0 else vslot)(26 + t // 2)


def xregion(beta):
    return [(VREG + 2 * beta * SLOT, VREG + 2 * beta * SLOT + 3 * 8192), (EREG + beta * 8192, EREG + beta * 8192 + 8192)]


def vtype_read(dst, slot, dt, t, tag):
    if slot >= VREG:
        a, off = vAV, slot - VREG
    else:
        a, off = vAW, slot
    return DSTR((dst[0], dst[1] + 2 * t), a + (dt & 3), off + 1536 * t + 128 * (dt >> 2), tag)


def k_read(n, a, s):
    return DSR128(Kf(a, s), vAK + (s & 1), kslot(n) + 1536 * a + 128 * (s >> 1), ("K", n))


class DmaGroup:
    def __init__(self, pre, dmas, earliest=0):
        self.pre = pre
        self.dmas = dmas
        self.earliest = earliest
        self.deadline = 10**9


def grp_W(n, cfg):
    sl = wslot(n)
    return [DmaGroup([S(f"s_add_u32 m0, s{sWOFF}, {sl}"), S(f"s_mov_b32 s{sOW}, {n*393216}")],
                     [DMA(vOW + j, SW, f"s{sOW}", 1024 * j, ("W", n), cfg["wflags"], region=[(sl, sl + SLOT)]) for j in range(3)])]


def grp_X(c, cfg, after=()):
    beta = c & 1
    sb = sXB0 + beta
    g0 = DmaGroup([S(f"s_mov_b32 m0, s{sb}"), S(f"s_mov_b32 s{sOX}, {128*c}")],
                  [DMA(vOX + j, SX, f"s{sOX}", 1024 * j, ("X", c), cfg["xflags"], after=after, region=xregion(beta)) for j in range(4)])
    g1 = DmaGroup([S(f"s_add_u32 m0, s{sb}, 4096")],
                  [Q(2 + j // 2, DMA(vOX + 4 + j, SX, f"s{sOX}", 1024 * j, ("X", c), cfg["xflags"], region=xregion(beta))) for j in range(4)])
    return [g0, g1]


def grp_K(n, cfg, loop=False):
    sl = kslot(n)
    so = S(f"s_add_u32 s{sOKV}, s{sOKV}, {SLOT}") if loop else S(f"s_mov_b32 s{sOKV}, {n*SLOT}")
    return [DmaGroup([S(f"s_add_u32 m0, s{sWOFF}, {sl}"), so],
                     [DMA(vOK + j, SK, f"s{sOKV}", 1024 * j, ("K", n), cfg["kvflags"], region=[(sl, sl + SLOT)]) for j in range(3)])]


def grp_V(n, cfg, loop=False):
    sl = vslot(n)
    pre = [S(f"s_add_u32 m0, s{sWOFF}, {sl}")]
    if not loop:
        pre.append(S(f"s_mov_b32 s{sOKV}, {(n+1)*SLOT}"))
    return [DmaGroup(pre,
                     [DMA(vOV + j, SV, f"s{sOKV}", 1024 * j, ("V", n), cfg["kvflags"], region=[(sl, sl + SLOT)]) for j in range(3)])]


def grp_dyn(kind, n, cfg):
    sl = EREG if n is None else (kslot if kind == "K" else vslot)(n)
    tag = ("D", kind) if n is None else (kind, n)
    pre = [S(f"s_add_u32 m0, s{sWOFF}, s{sMK}") if kind == "K" else S(f"s_add_u32 m0, s{sWOFFV}, s{sMV}")]
    vo, sr = (vOK, SK) if kind == "K" else (vOV, SV)
    return [DmaGroup(pre, [DMA(vo + j, sr, f"s{sSO}", 1024 * j, tag, cfg["kvflags"], region=[(sl, sl + SLOT)]) for j in range(3)])]


def dyn_prepare():
    return [S(f"s_add_u32 s{sIT}, s{sIT}, 1"), S(f"s_bitcmp1_b32 s{sMASK}, s{sIT}"),
            S(f"s_cselect_b32 s{sMV}, {EREG-VREG}, s{sSL}"), S(f"s_cselect_b32 s{sSTEP}, 0, {SLOT}"), S(f"s_cselect_b32 s{sSO}, {OOB}, 0"),
            S(f"s_add_u32 s{sOKV}, s{sOKV}, s{sSTEP}"), S(f"s_or_b32 s{sSO}, s{sSO}, s{sOKV}"),
            S(f"s_add_u32 s{sSL}, s{sSL}, s{sSTEP}"), S(f"s_cmp_eq_u32 s{sSL}, {6*SLOT}"), S(f"s_cselect_b32 s{sSL}, 0, s{sSL}"),
            S(f"s_cmp_eq_u32 s{sSTEP}, 0"), S(f"s_cselect_b32 s{sMK}, {EREG}, s{sSL}")]


def grp_WO(t, cfg):
    sl = woslot(t)
    return [DmaGroup([S(f"s_add_u32 m0, s{sWOFF}, {sl}"), S(f"s_add_u32 s{sOW}, s{sHB + KORD[t][0]}, {40960*KORD[t][1]}")],
                     [DMA(vOWO + j, SWO, f"s{sOW}", 1024 * j, ("WO", t), cfg["woflags"], region=[(sl, sl + SLOT)]) for j in range(3)])]


def group_seq(g):
    out = list(g.pre)
    if g.pre and g.pre[-1].text.split()[1].startswith("m0"):
        out.append(NOP(0))
    return out + list(g.dmas)


def seq_groups(P, groups):
    for g in groups:
        P.seq(group_seq(g))


def place_stream(P, G, groups, lo, hi, pace, ok, edf=False):
    pos = lo
    tgt = float(lo)
    groups = list(groups)
    while groups:
        if edf:
            av = [x for x in groups if x.earliest <= tgt + 2]
            g = min(av, key=lambda x: x.deadline) if av else min(groups, key=lambda x: x.earliest)
            groups.remove(g)
            groups.insert(0, g)
        g = groups[0]
        idx = []
        t = max(tgt, g.earliest + len(g.pre))
        k = pos + len(g.pre) + (1 if g.pre else 0)
        fail = False
        for d in g.dmas:
            k = max(k, int(t))
            while k < hi and not (ok(k) and not G[k].vec and not G[k].sca and not G[k].post):
                k += 1
            if k >= hi:
                fail = True
                break
            idx.append(k)
            t0 = t
            t = max(t + pace(k), k - 6)
            if edf:
                t += pace(k) * len([1 for q in range(int(t0) + 1, min(int(t) + 1, hi)) if G[q].isdma() and q != k and q not in idx])
            k += 1
        if fail:
            break
        assert idx[-1] <= g.deadline, (g.dmas[0].meta["tag"], idx, g.deadline)
        P.slack.append((g.dmas[0].meta["tag"], idx[0], idx[-1], g.deadline))
        for s_ in g.pre:
            P.flex_scalar(s_, list(reversed(G[pos:idx[0]])))
        for kk, d in zip(idx, g.dmas):
            G[kk].vec.append(d)
        pos = idx[-1] + 1
        tgt = t
        groups.pop(0)
    return groups


class Stamper:
    def __init__(self, cfg):
        self.on = cfg.get("stamps")
        self.it = cfg.get("itstamps")
        self.n = 0
        self.names = []
        self.pool = [4, 6, 28, 30, 96, 98, 100, 0, 38, 52]
        self.pending = []

    def seq(self, P, name):
        if self.on and not self.it:
            k = self.n
            P.seq(RAW(f"s_memtime s[{sTM}:{sTM+1}]"), RAW(f"s_memrealtime s[{sTM+2}:{sTM+3}]"), WAIT(lg=0),
                  RAW(f"v_writelane_b32 v{vST}, s{sTM}, {2*k}"), RAW(f"v_writelane_b32 v{vST}, s{sTM+2}, {2*k+1}"))
            self.n += 1
            self.names.append(name)

    def light(self, g0, name):
        if self.on:
            r = self.pool.pop(0)
            g0.post.append(RAW(f"s_memtime s[{r}:{r+1}]"))
            self.pending.append((r, self.n))
            self.n += 1
            self.names.append(name)

    def light2(self, g0, g1, name):
        if self.on:
            g0.post.append(RAW(f"s_memtime s[{sTM}:{sTM+1}]"))
            g1.post.append(RAW(f"v_writelane_b32 v{vST}, s{sTM}, {2*self.n}"))
            self.n += 1
            self.names.append(name)

    def flush(self, P):
        for r, k in self.pending:
            P.seq(RAW(f"v_writelane_b32 v{vST}, s{r}, {2*k}"), RAW(f"v_writelane_b32 v{vST}, s{sTM+2}, {2*k+1}"))
        self.pending = []

    def gap(self, g0, g1, name):
        if self.on:
            k = self.n
            g0.post += [RAW(f"s_memtime s[{sTM}:{sTM+1}]"), RAW(f"s_memrealtime s[{sTM+2}:{sTM+3}]")]
            g1.post += [RAW("s_waitcnt lgkmcnt(0)"), RAW(f"v_writelane_b32 v{vST}, s{sTM}, {2*k}"), RAW(f"v_writelane_b32 v{vST}, s{sTM+2}, {2*k+1}")]
            self.n += 1
            self.names.append(name)


def srd(base, lo, hi, off, size):
    return [S(f"s_add_u32 s{base}, s{lo}, {off}"), S(f"s_addc_u32 s{base+1}, s{hi}, 0"),
            S(f"s_mov_b32 s{base+2}, {size}"), S(f"s_mov_b32 s{base+3}, 0x20000")]


def prologue(P, cfg, ST):
    A = P.seq
    A(S("s_cmp_ge_u32 s2, 256"), I("s_cbranch_scc1 KF_done", "branch"))
    A(RAW("s_load_dwordx4 s[4:7], s[0:1], 0"), RAW("s_load_dwordx4 s[28:31], s[0:1], 16"), RAW("s_load_dwordx4 s[96:99], s[0:1], 32"),
      RAW("s_load_dwordx2 s[100:101], s[0:1], 48"), RAW("s_load_dwordx2 s[32:33], s[0:1], 56"))
    if ST.on:
        A(RAW(f"s_memtime s[{sTM}:{sTM+1}]"), RAW(f"s_memrealtime s[{sTM+2}:{sTM+3}]"))
    A(V("v_lshrrev_b32 v1, 6, v0"), V("v_and_b32 v0, 63, v0"))
    A(V(f"v_readfirstlane_b32 s{sW}, v1"))
    if cfg["codepf"]:
        n = cfg["codepf"] + (4 if cfg["split3"] else 0)
        A(RAW("s_getpc_b64 s[52:53]"), LABEL("KF_pc"), S("s_lshr_b32 s3, s2, 3"), S(f"s_lshl_b32 s3, s3, 2"), S(f"s_add_u32 s3, s3, s{sW}"),
          S(f"s_mul_i32 s3, s3, {n*128}"), V(f"v_min_u32 v2, {n-1}, v0"), V("v_lshl_add_u32 v2, v2, 7, s3"),
          RAW("v_min_u32 v2, KF_end-KF_pc-4, v2"), V("v_mov_b32 v3, s53"), V("v_add_co_u32 v2, vcc, s52, v2"), NOP(1),
          RAW("v_addc_co_u32 v3, vcc, 0, v3, vcc"), RAW("global_load_dword v42, v[2:3], off"))
    m = cfg["map"]
    if m == "hg4":
        A(S(f"s_and_b32 s{sG}, s2, 7"), S(f"s_lshr_b32 s{sB}, s2, 5"), S(f"s_bfe_u32 s{sHL}, s2, 0x20003"))
    elif m == "4x8":
        A(S(f"s_bfe_u32 s{sHL}, s2, 0x20003"), S(f"s_and_b32 s{sG}, s2, 6"), S("s_bfe_u32 s3, s2, 0x10005"), S(f"s_add_u32 s{sG}, s{sG}, s3"),
          S(f"s_and_b32 s{sB}, s2, 1"), S(f"s_lshl_b32 s{sB}, s{sB}, 2"), S("s_lshr_b32 s3, s2, 6"), S(f"s_add_u32 s{sB}, s{sB}, s3"))
    elif m == "batch":
        A(S(f"s_and_b32 s{sB}, s2, 7"), S(f"s_lshr_b32 s{sG}, s2, 5"), S(f"s_bfe_u32 s{sHL}, s2, 0x20003"))
    A(S(f"s_lshl_b32 s{sH}, s{sG}, 2"), S(f"s_add_u32 s{sH}, s{sH}, s{sHL}"))
    A(V("v_lshrrev_b32 v2, 3, v0"), V("v_lshl_add_u32 v2, v1, 6, v2"), V("v_mul_u32_u24 v2, 1280, v2"),
      V("v_lshrrev_b32 v3, 4, v0"), V("v_and_b32 v4, 7, v0"), V("v_xor_b32 v3, v3, v4"),
      V(f"v_lshl_add_u32 v{vOX}, v3, 4, v2"), V("v_xor_b32 v3, 4, v3"), V("v_lshl_add_u32 v4, v3, 4, v2"))
    for j in range(1, 8):
        src = f"v{vOX}" if j % 2 == 0 else "v4"
        A(V(f"v_add_u32 v{vOX+j}, {10240*j - 1024*(j&3)}, {src}"))
    A(S(f"s_mul_i32 s{sWOFF}, s{sW}, 3072"), S(f"s_lshl_b32 s{sXB0}, s{sW}, 13"),
      S(f"s_add_u32 s{sXB1}, s{sXB0}, {VREG+2*SLOT}"), S(f"s_add_u32 s{sXB0}, s{sXB0}, {VREG}"),
      S(f"s_cmp_eq_u32 s{sW}, 3"), S(f"s_cselect_b32 s{sXB0}, {EREG}, s{sXB0}"), S(f"s_cselect_b32 s{sXB1}, {EREG+8192}, s{sXB1}"),
      S(f"s_cselect_b32 s{sPAD}, {f32(-1000.0)}, 0"))
    A(S(f"s_lshl_b32 s52, s{sHL}, 2"), S(f"s_add_u32 s52, s52, s{sW}"), S(f"s_lshl_b32 s91, s{sB}, 4"), S("s_add_u32 s91, s91, s52"))
    A(S("s_mul_i32 s3, s91, 12288"), S(f"s_mul_i32 s88, s{sHL}, 384"), S("s_sub_u32 s3, s3, s88"), S("s_mul_i32 s52, s52, 19200"),
      V("v_min_u32 v2, 11, v0"), V("v_lshl_add_u32 v44, v2, 7, s3"), V(f"v_add_u32 v{vPF}, {128*12288}, v44"),
      V("v_min_u32 v2, 14, v0"), V("v_mul_u32_u24 v2, 1280, v2"), V("v_add_u32 v45, s52, v2"))
    if ST.on and not ST.it:
        A(RAW("s_memtime s[56:57]"), RAW("s_memrealtime s[58:59]"))
    A(RAW("s_waitcnt lgkmcnt(0)"))
    if ST.on:
        A(RAW(f"v_mov_b32 v{vST}, 0"), RAW(f"v_writelane_b32 v{vST}, s{sTM}, 0"), RAW(f"v_writelane_b32 v{vST}, s{sTM+2}, 1"))
        ST.n = 1
        ST.names.append("start")
        if not ST.it:
            A(RAW(f"v_writelane_b32 v{vST}, s56, 2"), RAW(f"v_writelane_b32 v{vST}, s58, 3"))
            ST.n = 2
            ST.names.append("prewait")
            ST.seq(P, "karg")
    A(S(f"s_mul_i32 s3, s{sB}, 307200"), srd(SX, 4, 5, "s3", 307200))
    A(S(f"s_mul_i32 s3, s{sH}, 384"), srd(SW, 30, 31, "s3", 0), S(f"s_sub_u32 s{SW+2}, 7864320, s3"))
    if cfg["pfa"]:
        A(VLOAD(("a", 188), 44, SW, 0, 0, "pfa", "", n=1), VLOAD(("a", 189), 45, SX, 0, 128, "pfa", "", n=1))
    seq_groups(P, grp_X(0, cfg))
    A(V("v_and_b32 v5, 1, v1"), V("v_lshlrev_b32 v5, 2, v5"))
    for j in range(3):
        A(V(f"v_add_u32 v2, {64*j}, v0"), V("v_mul_u32_u24 v3, 2731, v2"), V("v_lshrrev_b32 v3, 16, v3"),
          V("v_mul_u32_u24 v4, 24, v3"), V("v_sub_u32 v2, v2, v4"),
          V("v_and_or_b32 v4, v3, 2, v5"), V(f"v_xor_b32 v{vOV+j}, v2, v4"),
          V(f"v_lshl_add_u32 v{vOK+j}, v1, 3, v3"),
          V(f"v_mul_u32_u24 v7, 12288, v{vOK+j}"), V(f"v_lshl_add_u32 v{vOW+j}, v{vOV+j}, 4, v7"))
        if j:
            A(V(f"v_subrev_u32 v{vOW+j}, {1024*j}, v{vOW+j}"))
    if not cfg["pfa"]:
        seq_groups(P, grp_W(0, cfg))
    stream = grp_W(1, cfg)
    for s in range(1, 10):
        gw = grp_W(2 * s, cfg) + grp_W(2 * s + 1, cfg)
        for g in gw:
            g.earliest = 96 * (s - 4) + 82 if s >= 4 else 0
            if cfg["lazy1"] and s >= 4:
                g.earliest += 8 if s - 4 >= cfg["lazy1"] else 96
            g.deadline = 96 * (min(s, 8) - 1) + 79
        gx = grp_X(s, cfg, after=[("X", s - 2)] if s >= 2 else ())
        for g in gx:
            g.earliest = xread_gap(s - 2, cfg) + (8 * xstep(s - 2, cfg) + 8 if cfg["spread1"] else 12) if s >= 3 else 0
            g.deadline = xread_gap(s, cfg) - 2
        stream += gw + gx
    A(
      S(f"s_lshl_b32 s3, s{sH}, 2"), S(f"s_add_u32 s3, s3, s{sW}"), S("s_mul_i32 s3, s3, 2560"),
      V("v_bfe_u32 v2, v0, 1, 1"), V("v_mul_u32_u24 v2, 1280, v2"), V("v_and_b32 v3, 1, v0"), V("v_lshl_add_u32 v2, v3, 7, v2"),
      V(f"v_add_u32 v{vPF+1}, s3, v2"))
    for i, pos in reversed(list(enumerate(cfg["p1pf"]))):
        if pos is None:
            continue
        g = DmaGroup([S(f"s_mov_b32 s{sAO}, {i*128*12288}")],
                     [VLOAD(("a", 190), vPF + 1, SX, 0, 256 * (i + 1), "pf", "", n=1), VLOAD(("a", 191), vPF, SW, f"s{sAO}", 0, "pf", "", n=1)])
        stream.insert(pos + 1, g)
    A(V("v_and_b32 v1, 15, v0"), V("v_lshrrev_b32 v2, 4, v0"))
    A(V("v_lshrrev_b32 v3, 1, v1"), V("v_xor_b32 v3, v3, v2"), V("v_lshlrev_b32 v3, 4, v3"), V("v_lshl_add_u32 v3, v1, 7, v3"),
      V("v_xor_b32 v4, 64, v3"),
      V(f"v_add_u32 v{vAX}, s{sXB0}, v3"), V(f"v_add_u32 v{vAX+1}, s{sXB0}, v4"),
      V(f"v_add_u32 v{vAX+2}, s{sXB1}, v3"), V(f"v_add_u32 v{vAX+3}, s{sXB1}, v4"))
    A(V("v_lshrrev_b32 v3, 2, v1"), V("v_lshl_add_u32 v4, v2, 3, v3"), V("v_mul_u32_u24 v4, 384, v4"),
      V("v_and_b32 v5, 3, v1"), V("v_lshl_add_u32 v4, v5, 3, v4"),
      V("v_lshrrev_b32 v3, 3, v1"), V("v_and_b32 v5, 1, v2"), V("v_lshl_or_b32 v3, v5, 1, v3"))
    for e in range(4):
        A(V(f"v_xor_b32 v5, {e}, v3"), V(f"v_lshl_add_u32 v{vAW+e}, v5, 5, v4"), V(f"v_add_u32 v{vAV+e}, {VREG}, v{vAW+e}"))
    if cfg["pfa"]:
        seq_groups(P, grp_W(0, cfg))
    seq_groups(P, stream[:cfg["npro"]])
    del stream[:cfg["npro"]]
    stream.append(DmaGroup([], [VSTORE(("a", 184), 2, SF, 0, 0, "sc1", n=1, tag="finit"), VSTORE(("a", 184), 3, SF, 0, 0, "sc1", n=4, tag="finit")]))
    return stream


def background(cfg):
    B_ = []

    def A(*ins):
        for x in ins:
            if isinstance(x, (list, tuple)):
                A(*x)
            else:
                B_.append(x)
    park = {}

    def pk(reg, src):
        park[reg] = True
        A(V(f"v_accvgpr_write_b32 a{240+PARK.index(reg)}, {src}"))
    A(V("v_lshrrev_b32 v3, 1, v2"), V("v_mul_u32_u24 v3, 6144, v3"), V("v_and_b32 v4, 1, v2"), V("v_lshrrev_b32 v5, 2, v1"),
      V("v_lshl_add_u32 v5, v4, 2, v5"), V("v_mul_u32_u24 v5, 320, v5"), V("v_add_u32 v3, v3, v5"), V("v_and_b32 v5, 3, v1"),
      V("v_lshl_add_u32 v3, v5, 3, v3"), V("v_lshl_add_u32 v5, v4, 5, v3"), V("v_xor_b32 v4, 1, v4"), V("v_lshl_add_u32 v4, v4, 5, v3"),
      V(f"v_add_u32 v6, {VREG}, v5"), V(f"v_add_u32 v7, {VREG}, v4"))
    pk(vA3, "v5")
    pk(vA3 + 1, "v4")
    pk(vA3 + 2, "v6")
    pk(vA3 + 3, "v7")
    A(V("v_lshrrev_b32 v3, 2, v1"), V("v_and_b32 v4, 3, v1"), V("v_lshl_add_u32 v4, v3, 3, v4"), V("v_mul_u32_u24 v4, 384, v4"),
      V("v_and_b32 v3, 1, v3"), V("v_and_b32 v5, 2, v1"), V("v_or_b32 v3, v3, v5"), V("v_lshrrev_b32 v5, 3, v1"), V("v_lshl_or_b32 v3, v5, 2, v3"),
      V("v_lshrrev_b32 v5, 1, v2"), V("v_and_b32 v6, 1, v2"), V("v_lshl_or_b32 v5, v6, 1, v5"), V("v_xor_b32 v3, v3, v5"),
      V("v_lshl_add_u32 v6, v3, 4, v4"), V("v_xor_b32 v3, 4, v3"), V("v_lshl_add_u32 v7, v3, 4, v4"))
    A(V(f"v_mov_b32 v1, s{sW}"))
    A(S(f"s_and_b32 s3, s{sW}, 1"), S("s_mul_i32 s3, s3, 5"), S(f"s_lshr_b32 s88, s{sW}, 1"), S("s_lshl_b32 s88, s88, 2"), S("s_xor_b32 s3, s3, s88"))
    for j in range(3):
        A(V(f"v_mul_u32_u24 v3, 384, v{vOK+j}"))
        if j:
            A(V(f"v_subrev_u32 v3, {1024*j}, v3"))
        A(V(f"v_xor_b32 v2, s3, v{vOV+j}"), V(f"v_lshl_add_u32 v{vOK+j}, v2, 4, v3"), V(f"v_lshl_add_u32 v{vOV+j}, v{vOV+j}, 4, v3"))
    A(S(f"s_lshl_b32 s{sCNT}, s{sB}, 5"), S(f"s_add_u32 s{sCNT}, s{sCNT}, s{sH}"), S(f"s_mul_i32 s3, s{sCNT}, 393216"),
      srd(SK, 6, 7, "s3", 393216), srd(SV, 28, 29, "s3", 393216 + SLOT),
      S(f"s_sub_u32 s{SV}, s{SV}, {SLOT}"), S(f"s_subb_u32 s{SV+1}, s{SV+1}, 0"))
    A(srd(SF, 32, 33, FLAG_OFF, 0x60000))
    A(S(f"s_sub_u32 s3, s{sCNT}, s{sHL}"), S("s_mul_i32 s3, s3, 92160"), srd(SO, 32, 33, "s3", 4 * 92160))
    A(S(f"s_mul_i32 s3, s{sG}, {768*1280}"), S(f"s_mul_i32 s52, s{sHL}, 320"), S("s_add_u32 s3, s3, s52"),
      srd(SWO, 96, 97, "s3", 0), S(f"s_sub_u32 s{SWO+2}, 7864320, s3"))
    A(S(f"s_lshl_b32 s3, s{sB}, 2"), S(f"s_add_u32 s3, s3, s{sHL}"), S(f"s_mul_i32 s3, s3, {75*8192}"), S(f"s_add_u32 s3, s3, {PART_OFF}"),
      srd(SP, 32, 33, "s3", 75 * 8192))
    A(S(f"s_mul_i32 s3, s{sB}, 307200"), S("s_add_u32 s3, s3, s52"), srd(SOUT, 98, 99, "s3", 0), S(f"s_sub_u32 s{SOUT+2}, 2457600, s3"))
    A(S(f"s_lshl_b32 s3, s{sB}, 5"), srd(SD, 100, 101, "s3", 4), S(f"s_add_u32 s{sTRIP}, s{sHL}, 1"))
    for p in range(4):
        A(S(f"s_add_u32 s3, s{sHL}, {p}"), S("s_and_b32 s3, s3, 3"), S(f"s_mul_i32 s{sHB+p}, s3, 245760"), S(f"s_mul_i32 s{sOB+p}, s3, 92160"))
    c = math.log2(math.e) / math.sqrt(192.0)
    A(S(f"s_mov_b32 s{sC}, {f32(c)}"), S(f"s_mov_b32 s{sTH}, {f32(cfg['thresh'])}"))
    A(S("s_lshr_b32 s3, s91, 5"), S("s_mul_i32 s3, s3, 160"), S("s_add_u32 s3, s3, s91"),
      V("v_min_u32 v2, 19, v0"), V("v_mul_u32_u24 v3, 6554, v2"), V("v_lshrrev_b32 v3, 16, v3"), V("v_mul_u32_u24 v4, 10, v3"),
      V("v_sub_u32 v2, v2, v4"), V("v_lshl_add_u32 v3, v3, 5, s3"), V("v_mul_u32_u24 v3, 1280, v3"), V("v_lshl_add_u32 v2, v2, 7, v3"),
      V("v_subrev_u32 v2, s52, v2"), V("v_max_i32 v2, 0, v2"))
    pk(5, "v2")
    A(V("v_and_b32 v5, 1, v1"), V("v_lshrrev_b32 v4, 1, v1"), V("v_lshl_or_b32 v5, v5, 1, v4"))
    for j in range(3):
        A(V(f"v_add_u32 v2, {64*j}, v0"), V("v_mul_u32_u24 v3, 3277, v2"), V("v_lshrrev_b32 v3, 16, v3"),
          V("v_mul_u32_u24 v4, 20, v3"), V("v_sub_u32 v2, v2, v4"),
          V("v_lshrrev_b32 v4, 1, v3"), V("v_and_b32 v4, 2, v4"), V("v_xor_b32 v2, v2, v4"),
          V("v_lshl_add_u32 v3, v5, 3, v3"), V("v_mul_u32_u24 v3, 1280, v3"), V("v_lshl_add_u32 v2, v2, 4, v3"))
        if j:
            A(V(f"v_subrev_u32 v2, {1024*j}, v2"))
        if j == 2:
            A(V("v_lshrrev_b32 v3, 5, v0"), V("v_lshl_or_b32 v2, v3, 30, v2"))
        pk(vOWO + j, "v2")
    A(S(f"s_cmp_eq_u32 s{sW}, 3"), S(f"s_cselect_b32 s88, {OOB}, 0"))
    A(V("v_mul_u32_u24 v2, 24576, v1"), V("v_lshl_add_u32 v2, v0, 4, v2"), V("v_add_u32 v3, s88, v2"), V(f"v_add_u32 v3, {3*6144}, v3"))
    pk(vOB, "v2")
    pk(vOB + 3, "v3")
    A(S(f"s_lshl_b32 s3, s{sG}, 10"), V("v_lshlrev_b32 v2, 15, v1"), V("v_lshl_add_u32 v2, v0, 4, v2"),
      V("v_add_u32 v3, s88, v2"), V(f"v_add_u32 v3, {3*8192}, v3"))
    pk(vOP, "v2")
    pk(vOP + 3, "v3")
    A(S(f"s_lshl_b32 s84, s{sB}, 3"), S(f"s_add_u32 s84, s84, s{sG}"), S("s_lshl_b32 s84, s84, 2"), S(f"s_add_u32 s84, s84, s{sW}"),
      S("s_lshl_b32 s84, s84, 9"),
      S(f"s_lshl_b32 s85, s{sB}, 2"), S(f"s_add_u32 s85, s85, s{sHL}"), S("s_lshl_b32 s85, s85, 13"), S("s_add_u32 s85, s85, 0x20000"),
      S(f"s_lshl_b32 s86, s{sHL}, 7"), S("s_add_u32 s86, s86, s84"),
      S("s_add_u32 s3, s3, s85"))
    A(V("v_bfe_u32 v4, v0, 4, 2"), V("v_lshl_add_u32 v4, v4, 7, s84"), V("v_lshrrev_b32 v2, 3, v0"), V("v_max_u32 v5, 1, v2"),
      V("v_lshl_add_u32 v5, v5, 7, s3"),
      V("v_lshl_add_u32 v3, v2, 10, s85"), V(f"v_xor_b32 v2, s{sG}, v2"), V("v_lshl_add_u32 v3, v2, 7, v3"),
      V("v_and_b32 v2, 7, v0"), V("v_lshl_add_u32 v3, v2, 4, v3"), V("v_min_u32 v2, 1, v1"),
      V("v_lshl_or_b32 v3, v2, 30, v3"), V("v_and_b32 v2, 31, v0"), V("v_lshl_add_u32 v2, v2, 2, s86"))
    pk(vFO, "v2")
    pk(vFP, "v3")
    pk(vFOP, "v4")
    pk(vFPP, "v5")
    assert len(park) == len(PARK)
    A([V(f"v_accvgpr_write_b32 a{184+k}, 0") for k in range(4)])
    A(S(f"s_and_b32 s3, s{sW}, 1"), S("s_lshl_b32 s3, s3, 2"), S(f"s_xor_b32 s{sGE}, s3, s{sG}"),
      S(f"s_and_b32 s3, s{sGE}, 3"), S(f"s_lshl_b32 s91, s{sW}, 2"), S("s_add_u32 s3, s3, s91"), S(f"s_lshr_b32 s{sSPIN}, s{sGE}, 2"),
      S(f"s_mul_i32 s{sJ}, s{sSPIN}, 15"), S(f"s_add_u32 s{sJ}, s{sJ}, s3"), S(f"s_lshl_b32 s{sJ}, s{sJ}, 13"),
      S(f"s_mul_i32 s{sJ+3}, s3, 20480"), S(f"s_lshl_b32 s91, s{sSPIN}, 6"), S(f"s_add_u32 s{sJ+3}, s{sJ+3}, s91"),
      S("s_cmp_eq_u32 s3, 15"), S(f"s_cselect_b32 s91, {OOB}, 0"), S(f"s_or_b32 s{sJ}, s{sJ}, s91"), S(f"s_or_b32 s{sJ+3}, s{sJ+3}, s91"),
      S(f"s_add_u32 s{sJ+1}, s{sJ}, {30*8192}"), S(f"s_add_u32 s{sJ+4}, s{sJ+3}, 128"),
      S(f"s_add_u32 s{sJ+2}, s{sJ}, {60*8192}"), S(f"s_add_u32 s{sJ+5}, s{sJ+3}, 256"),
      S(f"s_lshl_b32 s91, s{sSPIN}, 30"), S(f"s_or_b32 s{sJ+2}, s{sJ+2}, s91"), S(f"s_or_b32 s{sJ+5}, s{sJ+5}, s91"),
      S(f"s_lshl_b32 s{sGE}, s{sGE}, 10"))
    NS = len(cfg["skips"])
    if NS:
        per = 24 // NS
        A(S("s_lshr_b32 s3, s2, 3"), S(f"s_add_u32 s3, s3, s{sG}"), S(f"s_mul_i32 s91, s3, {65536//per+1}"), S("s_lshr_b32 s91, s91, 16"),
          S(f"s_mul_i32 s91, s91, {per}"), S("s_sub_u32 s3, s3, s91"),
          S(f"s_lshl_b32 s{sMASK}, {sum(2 << (per*k) for k in range(NS))}, s3"),
          S(f"s_mov_b32 s{sIT}, 0"), S(f"s_mov_b32 s{sSL}, {(cfg['LA'] % 6) * SLOT}"), S(f"s_add_u32 s{sWOFFV}, s{sWOFF}, {VREG}"))
    late = [V(f"v_mov_b32 v{vAK}, v6"), V(f"v_mov_b32 v{vAK+1}, v7"),
            V(f"v_or_b32 v6, s{sW}, v0"), V("v_lshlrev_b32 v6, 8, v6"), V("v_mov_b32 v7, 1")]
    return B_, late


def fill_background(G, ins, lo, hi):
    k = 0
    gi = lo
    while k < len(ins):
        n = 1
        while k + n < len(ins) and ins[k + n].text.startswith(("s_addc", "s_subb", "s_cselect")):
            n += 1
        while G[gi].free() < min(n, 2):
            gi += 1
        assert gi < hi
        G[gi].vec += ins[k:k + n]
        k += n
    return gi


def xread_gap(c, cfg):
    if cfg["spread1"]:
        if c == 9:
            return 96 * 7 + 86
        return 96 * (c - 1) + (82 if c < cfg["xearly"] else 36)
    if c == 9:
        return 96 * 7 + 86
    return 96 * (c - 1) + (84 if c < cfg["xearly"] else 42)


def xstep(c, cfg):
    return 1 if (c == 9 or c < cfg["xearly"]) else 2


def Xr(c, u, qt):
    return Xf(2 if c == 9 else c & 1, u, qt)


def x_read(c, u, qt):
    return Q(qt, DSR128(Xr(c, u, qt), vAX + 2 * (c & 1) + u, 2048 * qt, ("X", c)))


def AL(dt, u):
    return ("a", (192 if dt == 11 else 96 + (dt % 3) * 16) + 4 * u)


def K0f(a, s):
    return ("a", 144 + (a * 6 + s) * 4)


def w_reads(stage, dt):
    gdt = stage * 12 + dt
    out = []
    for u in range(4 if stage == 8 else 2):
        n = 2 * stage + u
        for t in range(2):
            out.append(vtype_read(AL(dt, u) if stage == 8 else FR(2 * (gdt % 3) + u), wslot(n), dt, t, ("W", n)))
    return out


BL1, BL2 = 768 + 13, 768 + 161


def kv_prefill(cfg):
    LA = cfg["LA"]
    out = []
    seq = [("K", 0)]
    for n in range(1, LA):
        seq += [("K", n), ("V", n - 1)]
    free = {("K", 0): 658, ("K", 1): 658, ("K", 2): 754, ("K", 3): 754, ("K", 4): BL2 + 1, ("K", 5): BL2 + 1,
            ("V", 0): BL1 + 1, ("V", 1): BL1 + 1, ("V", 2): BL1 + 1, ("V", 3): BL1 + 1, ("V", 4): BL2 + 1}
    if LA >= 3:
        seq[2], seq[3] = seq[3], seq[2]
    for t in seq:
        g = (grp_K if t[0] == "K" else grp_V)(t[1], cfg)[0]
        g.earliest = free[t] + (8 if cfg["lazy1"] and free[t] < BL1 else 0)
        if t in (("K", 0), ("K", 1)):
            g.deadline = BL2 - 2
        out.append(g)
    return out


def put_at(G, gaps, r):
    gaps = list(gaps)
    assert len(gaps) >= len(r)
    for g, x in zip(gaps, r):
        assert G[g].free() >= 1, g
        G[g].vec.append(x)


def put_reads(G, g, r, step=1):
    for k in range(0, len(r), 2):
        assert G[g].free() >= 2, g
        G[g].vec += r[k:k + 2]
        g += step


def phase1(P, cfg, ST, stream):
    A = P.seq
    ST.seq(P, "issued")
    if cfg["tour"] and not cfg["split3"]:
        A(RAW("s_mov_b64 exec, 0"))
        for w in range(1, 4):
            A(RAW(f"s_cmp_eq_u32 s{sW}, {w}"), RAW(f"s_cbranch_scc1 KF_pg{w}"))
        A(RAW("s_branch KF_pg4"), LABEL("KF_tret"), RAW("s_mov_b64 exec, -1"))
    A(RAW("s_branch KF_go"), RAW(".p2align 12"), LABEL("KF_go"))
    ST.seq(P, "toured")
    seq_groups(P, stream[:cfg["npro2"]])
    stream = stream[cfg["npro2"]:]
    A(WAITV(("X", 0), ("W", 0), ("W", 1)), BARRIER())
    ST.seq(P, "landed")
    for u in range(2):
        for qt in range(4):
            A(x_read(0, u, qt))
    A(w_reads(0, 0), w_reads(0, 1))
    mfs = []
    for st in range(8):
        for dt in range(12):
            gdt = st * 12 + dt
            for qt in range(4):
                for u in range(2):
                    C = 0 if (st == 0 and u == 0) else acc(dt, qt)
                    m = Q(qt, MFMA(acc(dt, qt), FR(2 * (gdt % 3) + u), Xr(st, u, qt), C))
                    if qt == 0 and u == 0:
                        m.rd |= set(regs("v", FR(2 * (gdt % 3) + 1)[1], 4))
                        if dt == 0:
                            m.rd |= set(regs("a", Xr(st, 0, 0)[1], 32))
                    mfs.append(m)
    done = {}
    order = [(dt, qt) for dt in range(10) for qt in range(4)] + [(dt, qt) for qt in range(4) for dt in (10, 11)]
    for dt, qt in order:
        for u in range(4):
            m = Q(qt, MFMA(acc(dt, qt), AL(dt, u), Xr(8 + u // 2, u & 1, qt), acc(dt, qt)))
            if qt == 0 and u == 0:
                m.rd |= set(regs("a", AL(dt, 0)[1], 16))
                if dt == 0 and not cfg["spread1"]:
                    m.rd |= set(regs("a", Xr(9, 0, 0)[1], 32))
            if dt == 0 and u == 0:
                m.rd |= set(regs(*Xr(9, 1, qt), 4))
            mfs.append(m)
        done[(dt, qt)] = len(mfs) - 1
    assert len(mfs) == 960
    for qt in range(4):
        for a in range(2):
            for s in range(6):
                m = Q(qt, MFMA(St(a, qt), K0f(a, s), Qf(qt, s), 0 if s == 0 else St(a, qt)))
                if qt == 0 and s == 0:
                    m.rd |= set(regs("a", K0f(a, 0)[1], 24))
                mfs.append(m)
    G = P.gaps(mfs)
    SP_ = cfg["spread1"]
    for st in range(8):
        b = 96 * st
        for dt in range(2, 12):
            if SP_:
                put_at(G, [b + 8 * (dt - 2) + k * (SP_ if dt < 11 or cfg["lazy1"] else 1) for k in range(4)], w_reads(st, dt))
            else:
                put_reads(G, b + 8 * (dt - 2), w_reads(st, dt))
        if SP_ and st < 7:
            put_at(G, range(b + 82, b + 86), w_reads(st + 1, 0))
        else:
            put_reads(G, b + 82, w_reads(st + 1, 0))
        if st < 7:
            if SP_:
                put_at(G, range(b + 88, b + 96, SP_), w_reads(st + 1, 1))
            else:
                put_reads(G, b + 88, w_reads(st + 1, 1))
        need = [("W", 2 * st + 2), ("W", 2 * st + 3)] if st < 7 else [("W", n) for n in range(16, 20)]
        if cfg.get("p1stamps"):
            ST.gap(G[b + 79], G[b + 81], f"st{st}")
        if cfg.get("p1light"):
            ST.light2(G[b + 55], G[b + 79], f"st{st}")
        G[b + 80].sca.append(WAITV(*need))
        if cfg["lazy1"]:
            G[b + 81].sca.append(BARRIER(frees=[("W", 2 * st - 2), ("W", 2 * st - 1)]))
            if st >= cfg["lazy1"]:
                G[b + 89].sca.append(BARRIER(frees=[("W", 2 * st), ("W", 2 * st + 1)]))
        else:
            G[b + 81].sca.append(BARRIER(frees=[("W", 2 * st), ("W", 2 * st + 1)]))
    for c in range(1, 10):
        g = xread_gap(c, cfg)
        G[g - 1].sca.append(WAITV(("X", c)))
        if SP_:
            put_at(G, range(g, g + 32, 2 if xstep(c, cfg) == 2 else 1), [x_read(c, u, qt) for qt in range(4) for u in range(2)])
        else:
            put_reads(G, g, [x_read(c, u, qt) for u in range(2) for qt in range(4)])
    for dt in range(1, 11):
        if SP_ and cfg["lstep"]:
            continue
        if SP_ and dt < 10:
            put_at(G, range(768 + 16 * (dt - 1), 960), w_reads(8, dt))
        else:
            put_reads(G, 768 + 16 * (dt - 1), w_reads(8, dt))
    if SP_ and cfg["lstep"]:
        put_at(G, list(range(768, 776)) + list(range(776, 920, 2)), sum((w_reads(8, dt) for dt in range(1, 11)), []))
        put_at(G, range(799, 927, 16), w_reads(8, 11))
    else:
        put_reads(G, 768 + 16 * 9 + 4, w_reads(8, 11))
    if cfg.get("p1light"):
        for q in (1, 7):
            ST.light2(G[768 + 16 * q - 9], G[768 + 16 * q], f"L{q}")
    G[BL1].sca.append(BARRIER(frees=[("X", 8), ("X", 9)]))
    G[BL2 - 1].sca.append(WAITV(("K", 0), ("K", 1), "finit"))
    G[BL2].sca.append(BARRIER(frees=[("W", n) for n in range(16, 20)]))
    r = [DSR128(K0f(a, s), vAK + (s & 1), kslot(0) + 1536 * a + 128 * (s >> 1), ("K", 0)) for a in range(2) for s in range(6)]
    if SP_:
        put_at(G, range(BL2 + 1, 960, 2), r)
        put_at(G, range(964, 1000, 3), [k_read(1, 0, s) for s in range(6)])
    else:
        put_reads(G, BL2 + 1, r, 3)
        put_reads(G, 962, [k_read(1, 0, s) for s in range(6)], 3)
    ok = lambda k: k % 8 != 7
    pc = cfg["pace"]

    def pace(k):
        for lim, p in pc:
            if k < lim:
                return p
        return pc[-1][1]
    left = place_stream(P, G, stream, 0, 960, pace, ok)
    assert not left
    last = max(k for k, g in enumerate(G) if g.isdma())
    left = place_stream(P, G, kv_prefill(cfg), last + 1, len(G), lambda k: cfg["kvpace"], ok)
    bg, late = background(cfg)
    for i, g in enumerate(cfg["wopf1"]):
        g = free_gap(G, g, ok)
        x = VLOAD(("a", 189), 5, SWO, "s3", 0, "wopf1", "", n=1)
        x.wr = set()
        G[g].vec.append(x)
        P.flex_scalar(S(f"s_mov_b32 s3, {i*81920}"), list(reversed(G[g - 5:g])))
    if cfg["wopf1"]:
        bg.append(V(f"v_accvgpr_read_b32 v5, a{240+PARK.index(5)}"))
    first_use = min(k for k, g in enumerate(G) for x in g.vec if x.meta.get("tag") in ("finit", ("K", 0), "wopf1"))
    k = fill_background(G, bg, cfg["bgstart"], first_use - 8)
    lastpf = max([k] + [q for q, g in enumerate(G) for x in g.vec if x.meta.get("tag") == "pf"])
    fill_background(G, late, lastpf + 1, 760)
    ops = []
    swaps = []
    LAG = 5

    def muls(dt, qt, dl):
        r = acc(dt, qt)[1]
        return Q(qt, [(done[(dt, qt)] + LAG, dl, V(f"v_mul_f32 v{r+k}, s{sC}, v{r+k}")) for k in range(4)])
    for s in range(6):
        if s < 5:
            for qt in range(4):
                ops += muls(2 * s, qt, 958)
        for qt in range(4):
            dl = 960 + 12 * qt + s - 2
            if s == 5:
                ops += muls(10, qt, dl)
            ops += muls(2 * s + 1, qt, dl)
            ops += swaps
            a_, b_ = acc(2 * s, qt)[1], acc(2 * s + 1, qt)[1]
            e = done[(2 * s + 1, qt)] + LAG
            ops += [(e, dl, V(f"v_cvt_pk_bf16_f32 v{a_}, v{a_}, v{a_+1}")), (e, dl, V(f"v_cvt_pk_bf16_f32 v{a_+1}, v{a_+2}, v{a_+3}")),
                    (e, dl, V(f"v_cvt_pk_bf16_f32 v{a_+2}, v{b_}, v{b_+1}")), (e, dl, V(f"v_cvt_pk_bf16_f32 v{a_+3}, v{b_+2}, v{b_+3}"))]
            swaps = [(e, dl, V(f"v_permlane16_swap_b32 v{a_}, v{a_+2}")), (e, dl, V(f"v_permlane16_swap_b32 v{a_+1}, v{a_+3}"))]
            Q(qt, ops[-4:] + swaps)
            if s == 5:
                ops += swaps
                swaps = []
    INF = 10**9
    rm = rowmax(1)
    for pr in range(2):
        q0, q1 = 2 * pr, 2 * pr + 1
        ops += [(960 + 12 * q0 + 11 + LAG, INF, x) for x in rm[4 * q0:4 * q0 + 4]]
        e = 960 + 12 * q1 + 11 + LAG
        blk = rm[4 * q1:4 * q1 + 4] + xred([1 + q0, 1 + q1], [vE, vE + 1], "v_max_f32")
        if pr == 1 and not cfg["split3"]:
            blk.append(V(f"v_subrev_f32 v4, s{sPAD}, v4"))
        for qt in (q0, q1):
            blk += Q(qt, [V(f"v_sub_f32 v{vNM+4*qt+r}, 0, v{1+qt}") for r in range(4)])
            blk.append(V(f"v_mov_b32 v{vL+qt}, 0") if qt < 3 else V(f"v_sub_f32 v{vL+qt}, 0, s{sPAD}"))
        blk += softmax_seq(0, 1, [q0, q1], not cfg["R"])
        ops += [(e, INF, x) for x in blk if x.kind != "nop"]
    rest = [x for _, _, x in fill_ops(G, ops, 768)]
    if cfg.get("dbgp1"):
        lo_, hi_, st_ = cfg["dbgp1"]
        for k in range(lo_, hi_, st_):
            G[k].post.append(RAW("s_nop 7"))
    ST.seq(P, "qk0end")
    dm = sum((group_seq(g) for g in left), [])
    step = max(1, len(rest) // (len(dm) + 1))
    for k, x in enumerate(rest):
        if dm and k % step == step - 1:
            A(dm.pop(0))
        A(x)
    A(dm)
    A(WAITV(("V", 0)) if cfg["bpos"] else WAITV(("V", 0), ("K", 2)), BARRIER(frees=[("K", 0)]))


def qk_mfmas(first):
    out = []
    for a in range(2):
        for qt in range(4):
            for s in range(6):
                C = (0 if first else NM(qt)) if s == 0 else St(a, qt)
                m = Q(qt, MFMA(St(a, qt), Kf(a, s), Qf(qt, s), C))
                if qt == 0 and s in (0, 3):
                    m.rd |= set(regs("a", Kf(a, s)[1], 12))
                out.append(m)
    return out


def pv_mfmas(j):
    out = []
    for dt in range(12):
        for qt in range(4):
            out.append(Q(qt, MFMA(Oa(dt, qt), FR(dt), Pf(j & 1, qt), 0 if j == 0 else Oa(dt, qt))))
    return out


def xred(x, t, op):
    out = []
    for sw in ("v_permlane32_swap_b32", "v_permlane16_swap_b32"):
        for a, b in zip(x, t):
            out.append(V(f"v_mov_b32 v{b}, v{a}"))
        out.append(NOP(0))
        for a, b in zip(x, t):
            out.append(V(f"{sw} v{b}, v{a}"))
        for a, b in zip(x, t):
            out.append(V(f"{op} v{a}, v{a}, v{b}"))
    for y in out:
        if op == "v_max_f32" and "v4" in (y.rd | y.wr):
            Q(3, y)
    return out


def rowmax(dst):
    out = []
    for qt in range(4):
        s0, s1 = St(0, qt)[1], St(1, qt)[1]
        d = dst + qt
        out += [V(f"v_max3_f32 v{d}, v{s0}, v{s0+1}, v{s0+2}"), V(f"v_max3_f32 v{d}, v{d}, v{s0+3}, v{s1}"),
                V(f"v_max3_f32 v{d}, v{d}, v{s1+1}, v{s1+2}"), V(f"v_max_f32 v{d}, v{d}, v{s1+3}")]
        Q(qt, out[-4:])
    return out


def softmax_seq(par, delta, qts=range(4), adds=True):
    out = []
    for qt in qts:
        n0 = len(out)
        for a in range(2):
            s = St(a, qt)[1]
            for r in range(4):
                out.append(V(f"v_sub_f32 v{vE+4*a+r}, v{s+r}, v{delta+qt}"))
        for k in range(8):
            out.append(V(f"v_exp_f32 v{vE+k}, v{vE+k}"))
        p = Pf(par, qt)[1]
        if adds:
            out.append(V(f"v_add_f32 v{vTS+qt}, v{vE}, v{vE+1}"))
            for k in range(2, 8):
                out.append(V(f"v_add_f32 v{vTS+qt}, v{vTS+qt}, v{vE+k}"))
        for k in range(4):
            out.append(V(f"v_cvt_pk_bf16_f32 v{p+k}, v{vE+2*k}, v{vE+2*k+1}"))
        Q(qt, out[n0:])
    return out


def unpark():
    un = [V(f"v_accvgpr_read_b32 v{r}, a{240+k}") for k, r in enumerate(PARK)]
    un += [V(f"v_add_u32 v{vOB+1}, 6144, v{vOB}"), V(f"v_add_u32 v{vOB+2}, 12288, v{vOB}"),
           V(f"v_add_u32 v{vOP+1}, 8192, v{vOP}"), V(f"v_add_u32 v{vOP+2}, 16384, v{vOP}")]
    return un


def asel_setup():
    out = [V("v_and_b32 v2, 3, v0"), V("v_mov_b32 v3, 0x3f803f80")]
    for qt in range(4):
        out += [V(f"v_cmp_eq_u32 vcc, {qt}, v2"), V("v_cndmask_b32 v4, 0, v3, vcc")]
        out += [V(f"v_accvgpr_write_b32 a{240+4*qt+k}, v4") for k in range(4)]
        Q(qt, out[-6:])
    return out


def fallback(par, cfg):
    out = [LABEL(f"KF_fix{par}"), RAW("s_waitcnt vmcnt(0)"), NOP(7)]
    out += rowmax(1)
    out += xred([1, 2, 3, 4], [vE, vE + 1, vE + 2, vE + 3], "v_max_f32")
    for qt in range(4):
        out.append(Q(qt, V(f"v_max_f32 v{1+qt}, 0, v{1+qt}")))
    out += softmax_seq(par, 1, range(4), not cfg["R"])
    for qt in range(4):
        for r in range(4):
            out.append(Q(qt, V(f"v_sub_f32 v{vNM+4*qt+r}, v{vNM+4*qt+r}, v{1+qt}")))
    for qt in range(4):
        out.append(Q(qt, V(f"v_exp_f32 v{1+qt}, -v{1+qt}")))
    out.append(NOP(0))
    for qt in range(4):
        lo = Lb(par ^ 1)[1] if cfg["R"] else vL
        out.append(Q(qt, V(f"v_mul_f32 v{lo+qt}, v{lo+qt}, v{1+qt}")))
    if cfg["R"]:
        out += [NOP(1)] + rowsum_mfmas(par)
    for dt in range(12):
        for qt in range(4):
            a = Oa(dt, qt)[1]
            e = vE + 4 * (qt & 1)
            for r in range(4):
                out.append(V(f"v_accvgpr_read_b32 v{e+r}, a{a+r}"))
            for r in range(4):
                out.append(V(f"v_mul_f32 v{e+r}, v{e+r}, v{1+qt}"))
            for r in range(4):
                out.append(V(f"v_accvgpr_write_b32 a{a+r}, v{e+r}"))
            Q(qt, out[-12:])
    out += [NOP(1), I(f"s_setpc_b64 s[{sRET}:{sRET+1}]", "branch")]
    return out


def iteration(P, cfg, j, lab, groups, extra_vm=None, opre=(), extra_valu=(), forcevm=None):
    par = (j + 1) & 1
    R = cfg["R"]
    mf = qk_mfmas(False) + pv_mfmas(j)
    RP = cfg["rpos"]
    rs = ((rowsum_mfmas(0) if j == 0 else []) + rowsum_mfmas(par)) if R else []
    G = P.gaps(mf[:RP] + rs + mf[RP:])
    pos = lambda n: n if n < RP else n + len(rs)
    E = len(G) - 1
    exp_gaps = cfg["expgaps"] if R else [11 + 5 * k + o for k in range(16) for o in (0, 2)]
    slots = cfg["dmagaps"][len(groups)]
    lo = 0
    for g, idx in zip(groups, slots):
        for s_ in g.pre:
            P.flex_scalar(s_, G[lo:idx[0]])
        for k, d in zip(idx, g.dmas):
            assert k not in exp_gaps
            G[k].vec.append(d)
        lo = idx[-1] + 1
    if extra_vm is not None:
        G[E - 1].vec.append(extra_vm)
    for k, sc, x in opre:
        assert not G[k].vec and k not in exp_gaps
        G[k].vec.append(x)
        P.flex_scalar(sc, list(reversed(G[k - 6:k])))
    valu = []
    if not R:
        for qt in range(4):
            valu.append((0, V(f"v_add_f32 v{vL+qt}, v{vL+qt}, v{vTS+qt}")))
    n = 0
    for T in range(8):
        a, qt = divmod(T, 4)
        s = St(a, qt)[1]
        p = Pf(par, qt)[1] + 2 * a
        for r in range(4):
            g = exp_gaps[n]
            e = vE + n % 8
            assert not G[g].vec and g >= 6 * T + 9
            G[g].vec.append(Q(qt, V(f"v_exp_f32 v{e}, v{s+r}")))
            if R or (a == 0 and r == 0):
                pass
            elif a == 0 and r == 1:
                valu.append((g + 1, V(f"v_add_f32 v{vTS+qt}, v{e-1}, v{e}")))
            else:
                valu.append((g + 1, V(f"v_add_f32 v{vTS+qt}, v{vTS+qt}, v{e}")))
            if r & 1:
                valu.append((g + 1, Q(qt, V(f"v_cvt_pk_bf16_f32 v{p+(r>>1)}, v{e-1}, v{e}"))))
            n += 1
        if T == 6 and not R:
            valu.append((g + 1, V(f"v_max3_f32 v1, v{vTS}, v{vTS+1}, v{vTS+2}")))
    if R:
        l = Lb(par)[1]
        G[E - 3].vec += [V(f"v_max3_f32 v1, v{l}, v{l+1}, v{l+2}"), V(f"v_max_f32 v1, v1, v{l+3}")]
        G[E - 2].vec.append(V(f"v_cmp_nge_f32 vcc, s{sTH}, v1"))
    else:
        valu.append((g + 1, V(f"v_max_f32 v1, v1, v{vTS+3}")))
        valu.append((g + 1, V(f"v_cmp_lt_f32 vcc, s{sTH}, v1")))
    lds = []
    for s in range(6):
        lds.append((s, 14, k_read(j + 1, 1, s)))
    t0 = 6
    for dt in range(6):
        for t in range(2):
            lds.append((t0 + 3 * (2 * dt + t), 48 + 4 * dt - 8, vtype_read(FR(dt), vslot(j), dt, t, ("V", j))))
    BP = cfg["bpos"]
    if BP and j == 0:
        BP += 4
    if j + 2 < 32:
        for s in range(6):
            lds.append(((27, 33, 38, 43, 47, 50)[s], 70, k_read(j + 2, 0, s)) if not BP else (BP + 1 + int(s * cfg["kstep"]), BP + 12, k_read(j + 2, 0, s)))
    for dt in range(6, 12):
        for t in range(2):
            lds.append((pos(48 + 4 * (dt - 6) + 3), pos(48 + 4 * dt) - 8, vtype_read(FR(dt), vslot(j), dt, t, ("V", j))))
    if j == 30 and BP and cfg["vpre"]:
        for dt in range(4):
            for t in range(2):
                lds.append((max(BP + 1 + 2 * (2 * dt + t) - (dt > 1), pos(48 + 4 * (dt + 6) + 3)), E - 1, vtype_read(FR(dt), vslot(31), dt, t, ("V", 31))))
        k = 82
        G[k].vec.append(poll_cmp(32))
        G[k + 4].sca += [I("s_cbranch_vccnz KF_slc", "branch", rd=["vcc"]), LABEL("KF_rtc")]
        P.slow += slow_path("c", "c", 32)
    for gi, g in enumerate(G):
        while g.free() > 0:
            cand = []
            if valu and valu[0][0] <= gi:
                cand.append((min(valu[0][0] + cfg["vslack"], (RP - 2) if R else 93), 0, None))
            av = [x for x in lds if x[0] <= gi]
            if av:
                b = min(av, key=lambda x: x[1])
                nl = len([y for y in g.vec if y.kind == "lds"])
                cand.append((b[1] - (100 if nl == 0 and len([v for v in valu if v[0] <= gi]) < 3 else 0), 1, b))
            if not cand:
                break
            c = min(cand, key=lambda x: x[:2])
            if c[1] == 0:
                assert valu[0][0] + 16 >= gi and (not R or gi < RP)
                g.vec.append(valu.pop(0)[1])
            else:
                assert c[2][1] >= gi, (gi, c[2])
                lds.remove(c[2])
                g.vec.append(c[2][2])
    assert not valu and not lds, (valu, lds)
    if extra_valu:
        assert not fill_ops(G[:RP], [(0, RP - 2, x) for x in extra_valu])
    if cfg.get("dbgnop"):
        for k in range(cfg["dbgnop"]):
            G[exp_gaps[(k * 32) // cfg["dbgnop"]]].post.append(NOP(3))
    kn = j + 2 if BP else j + 3
    need = [("V", j + 1)] + ([("K", kn)] if kn < 32 else [])
    w = WAITV(*need)
    if forcevm is not None:
        w.meta["vm"] = forcevm
    P.itwait[j] = w
    G[BP - 1 if BP else E - 3].sca.append(w)
    G[BP if BP else E - 2].sca.append(BARRIER(frees=[("V", j - 1 if cfg["lazy2"] and j < 25 else j), ("K", j + 1)]))
    G[E].sca.append(I(f"s_cbranch_vccnz KF_fx{lab}", "branch", rd=["vcc"]))
    assert not G[E].vec
    G[E].post.append(LABEL(f"KF_bk{lab}"))
    return G


KORD = [(0, s) for s in range(6)] + [(p, s) for s in range(6) for p in (1, 2, 3)]


def acc3(nt, qt):
    if nt < 4:
        return ("a", 192 + (nt * 4 + qt) * 4)
    return ("v", 64 + ((nt - 4) * 4 + qt) * 4)


def Bf(ks, qt):
    if ks < 6 or ks >= 18:
        return ("v", 160 + ((ks % 6) * 4 + qt) * 4)
    return ("a", ((ks - 6) * 4 + qt) * 4)


def wo_read(dst, ks, nt, tt):
    sl = woslot(ks)
    a, off = (vA3 + 2, sl - VREG) if sl >= VREG else (vA3, sl)
    return DSTR((dst[0], dst[1] + 2 * tt), a + (nt & 1), off + 3072 * tt + 64 * (nt >> 1), ("WO", ks))


def grp_B(ks, cfg):
    p, s = KORD[ks]
    so, pre = (f"s{sOB+p}", []) if s < 4 else (f"s{sOKV}", [S(f"s_add_u32 s{sOKV}, s{sOB+p}, 4096")])
    return [DmaGroup(pre, [Q(qt, VLOAD(Bf(ks, qt), vOB + qt, SO, so, 1024 * (s & 3), ("B", ks), cfg["bflags"])) for qt in range(4)])]


def poll_load(kind):
    off, srd_ = {"c": (6, SD), "o": (vFOP, SF), "p": (vFPP, SF)}[kind]
    return VLOAD(("v", 5), off, srd_, 0, 0 if kind == "c" else 4, None, "sc1", n=1)


def poll_cmp(need):
    return V(f"v_cmp_gt_u32 vcc, {need}, v5")


def slow_path(name, kind, need):
    return [f"KF_sl{name}:", f"s_mov_b32 s{sSPIN}, 0", f"KF_sp{name}:", poll_load(kind).text, "s_waitcnt vmcnt(0)", poll_cmp(need).text,
            f"s_add_u32 s{sSPIN}, s{sSPIN}, 1", f"s_cmp_gt_u32 s{sSPIN}, 0x40000", f"s_cbranch_scc1 KF_rt{name}",
            f"s_cbranch_vccnz KF_sp{name}", f"s_branch KF_rt{name}"]


def check_seq(P, name, kind, need):
    P.slow += slow_path(name, kind, need)
    return [poll_cmp(need), NOP(0), I(f"s_cbranch_vccnz KF_sl{name}", "branch", rd=["vcc"]), LABEL(f"KF_rt{name}")]


def free_gap(G, k, ok=lambda k: True):
    while G[k].vec or G[k].sca or G[k].post or not ok(k):
        k += 1
    return k


def check_gaps(P, G, name, kind, need, g_load, g_chk, ok):
    k = free_gap(G, g_load, ok)
    G[k].vec.append(poll_load(kind))
    k = free_gap(G, max(g_chk, k + 1), ok)
    G[k].vec.append(poll_cmp(need))
    k = free_gap(G, k + 1, ok)
    G[k].sca.append(I(f"s_cbranch_vccnz KF_sl{name}", "branch", rd=["vcc"]))
    G[k].sca.append(LABEL(f"KF_rt{name}"))
    P.slow += slow_path(name, kind, need)
    return k + 1


def flag_gaps(G, tags, val, off, g, ok, wb=None):
    if wb:
        k = free_gap(G, g - wb, ok)
        G[k].sca.append(WAITV(*tags))
        k = free_gap(G, k + 1, ok)
        G[k].vec.append(I("buffer_wbl2 sc1", "vstore", [], [], data=set(), n=1, tag=("wb", val)))
        tags = [("wb", val)]
    k = free_gap(G, g, ok)
    G[k].sca.append(WAITV(*tags))
    G[k].vec.append(V(f"v_mov_b32 v7, {val}"))
    k = free_gap(G, k + 1, ok)
    G[k].vec.append(VSTORE(("v", 7), off, SF, 0, 0, "sc1", n=1))
    return k


def otouch(s, cfg):
    x = VLOAD(("v", 4), 1, SO, f"s{sOB}" if s < 4 else f"s{sOX}", 1024 * (s & 3), None, cfg["otflags"], n=1)
    if s < 5:
        x.wr = set()
    return x


RCP = [2, 3, 8, 9]
F0 = 48


def pack_muls(G):
    for g in G:
        if g.cost() < 8:
            continue
        out = []
        k = 0
        v = g.vec
        while k < len(v):
            x = v[k]
            y = v[k + 1] if k + 1 < len(v) else None
            if k >= 3 and y is not None and "omul" in x.meta and "omul" in y.meta and x.meta["omul"][0] % 2 == 0 \
                    and y.meta["omul"] == (x.meta["omul"][0] + 1, x.meta["omul"][1]):
                r, f = x.meta["omul"]
                sel = "op_sel_hi:[1,0]" if f % 2 == 0 else "op_sel:[0,1] op_sel_hi:[1,1]"
                z = V(f"v_pk_mul_f32 v[{r}:{r+1}], v[{r}:{r+1}], v[{f&~1}:{(f&~1)+1}] {sel}")
                out.append(Q(x.meta["q"], z))
                k += 2
            else:
                out.append(x)
                k += 1
        g.vec = out


def unified_schedule(P, G, cfg, ost, wo_left, base, bar, stage_of, ok):
    c_st, c_miss, c_hit, lead = cfg["p3sched"]
    chunk_of = cfg["chunks"]
    ready = cfg["oready"]
    for g in wo_left:
        t = g.dmas[0].meta["tag"][1]
        g.earliest = bar[stage_of[t - 12] + (1 if cfg["lazy3"] else 0)] + 1 if t >= 12 else (34 if t == 11 else 0)
        g.deadline = bar[stage_of[t] - 1] - 2
        g.cost = c_hit
    bs = [grp_B(ks, cfg)[0] for ks in range(6, 24)]
    for g in bs:
        ks = g.dmas[0].meta["tag"][1]
        g.deadline = base[stage_of[ks]] - 2 + 0.01 * ks
        g.earliest = None
        g.cost = c_miss if KORD[ks][0] == 1 else c_hit
    need = {}
    for g in bs:
        need.setdefault(chunk_of[KORD[g.dmas[0].meta["tag"][1]][1]], g.deadline)
    sts = []
    for n, x in enumerate(ost):
        g = DmaGroup([], [x], ready(n))
        c = chunk_of[n // 4]
        left = len([m for m in range(n + 1, 24) if chunk_of[m // 4] == c])
        g.deadline = need[c] - lead - sum(cfg["lags"][c]) - left * c_st
        g.cost = c_st
        sts.append(g)
    opos, ee = [], []
    groups = list(wo_left) + bs
    t = float(cfg["wstart"])
    pos = 0
    while groups or sts:
        cand = [g for g in groups if g.earliest is not None] + sts[:1]
        av = [g for g in cand if g.earliest <= t + 2]
        g = min(av, key=lambda x: x.deadline) if av else min(cand, key=lambda x: x.earliest)
        t = max(t, g.earliest + len(g.pre))
        k = pos + len(g.pre) + (1 if g.pre else 0)
        idx = []
        for d in g.dmas:
            k = free_gap(G, max(k, int(t)), ok)
            G[k].vec.append(d)
            idx.append(k)
            t = max(t + g.cost, k - 6)
            k += 1
        for s_ in g.pre:
            P.flex_scalar(s_, list(reversed(G[pos:idx[0]])))
        pos = idx[-1] + 1
        if sts and g is sts[0]:
            sts.pop(0)
            opos.append(idx[0])
            n = len(opos) - 1
            c = chunk_of[n // 4]
            if n == 23 or chunk_of[(n + 1) // 4] != c:
                k = flag_gaps(G, [("O", c)], c + 1, vFO, idx[0] + cfg["lags"][c][0], ok)
                k = max(k + cfg["lags"][c][1], (ee[-1] if ee else 0))
                ee.append(check_gaps(P, G, f"o{c}", "o", c + 1, k, k + cfg["lags"][c][2], ok))
                for h in bs:
                    ks = h.dmas[0].meta["tag"][1]
                    if chunk_of[KORD[ks][1]] == c:
                        h.earliest = ee[-1]
                        if ks >= 18:
                            assert n >= 4 * (ks - 18) + 3
                            h.earliest = max(h.earliest, base[stage_of[ks - 18] + 1])
        else:
            groups.remove(g)
            assert idx[-1] <= g.deadline, (g.dmas[0].meta["tag"], idx, g.deadline)
            P.slack.append((g.dmas[0].meta["tag"], idx[0], idx[-1], int(g.deadline)))
    P.slack.append(("stores", opos, "checks", ee))
    return opos


def phase3(P, cfg, ST, wo_left):
    A = P.seq
    stages = cfg["stages"]
    j = 31
    VP = cfg["vpre"] and cfg["bpos"]
    if not VP:
        for dt in range(4):
            for t in range(2):
                A(vtype_read(FR(dt), vslot(j), dt, t, ("V", j)))
        A(check_seq(P, "c", "c", 32))
        A(S(f"s_add_u32 s{sOX}, s{sOB}, 4096"))
    if cfg["otouch"]:
        A(V("v_lshrrev_b32 v1, 4, v0"), V("v_mul_u32_u24 v1, 6144, v1"), V("v_bfe_u32 v4, v0, 1, 3"), V("v_lshl_add_u32 v1, v4, 7, v1"),
          V(f"v_lshl_add_u32 v1, s{sWOFF}, 3, v1"))
    pre = []
    if not cfg["R"]:
        A([V(f"v_add_f32 v{vL+qt}, v{vL+qt}, v{vTS+qt}") for qt in range(4)])
        pre = xred([vL + q for q in range(4)], [vE + q for q in range(4)], "v_add_f32")
    pre += [Q(qt, V(f"v_rcp_f32 v{RCP[qt]}, v{vL+qt}")) for qt in range(4)]
    pre = [x for x in pre if x.kind != "nop"]
    npre = 0 if VP else 12
    A(pre[:npre])

    def abuf(si, nt):
        L = len(stages[si])
        if L == 2:
            g = 10 * si + nt
            return [FR(2 * (g % 3) + u) for u in range(2)]
        return [("a", (nt % 4) * 24 + u * 4) for u in range(L)]

    def areads(si, nt):
        return [wo_read(d, ks, nt, tt) for d, ks in zip(abuf(si, nt), stages[si]) for tt in range(2)]

    secs = [pv_mfmas(j)]
    fin = {}
    for si, kss in enumerate(stages):
        mfs = []
        order = [(nt, qt) for nt in range(10) for qt in range(4)]
        if len(kss) > 2 and cfg["pairmaj"]:
            order = order[:8] + [(2 * p + h, qt) for p in range(1, 5) for qt in range(4) for h in range(2)]
        for nt, qt in order:
            ab = abuf(si, nt)
            if True:
                fin[(nt, qt)] = len(mfs) + len(kss) - 1
                for u, ks in enumerate(kss):
                    C = 0 if ks == 0 else acc3(nt, qt)
                    m = Q(qt, MFMA(acc3(nt, qt), ab[u], Bf(ks, qt), C))
                    if qt == 0 and u % 2 == 0:
                        m.rd |= set(regs(ab[u + 1][0], ab[u + 1][1], 4))
                    if nt == 0 and u == 0 and qt == 0 and kss[0] >= 6:
                        for k2 in kss:
                            m.rd |= set(regs(*Bf(k2, 0), 16))
                    mfs.append(m)
        secs.append(mfs)
    G = P.gaps(sum(secs, []))
    base = [F0 + sum(len(x) for x in secs[1:i + 1]) for i in range(len(stages) + 1)]
    ok = lambda k: (k % 4 != 3) if k < F0 else (k % 8 != 7)
    for k, g in enumerate(G):
        g.nomem = not ok(k)
    for dt in range(4, 12):
        g = 0 + 2 * (dt - 4) if dt < 6 else 4 * (dt - 6) + 3
        G[g].vec += [vtype_read(FR(dt), vslot(j), dt, t, ("V", j)) for t in range(2)]
    G[32].sca.append(WAITV(("WO", 0), ("WO", 1)))
    G[33].sca.append(BARRIER(frees=[("V", 31)]))
    put_reads(G, 34, areads(0, 0))
    put_reads(G, 40, areads(0, 1))
    bar = {-1: 33}
    SP_ = cfg["spread3"]
    for si, kss in enumerate(stages):
        L = len(kss)
        per = 4 * L
        b = base[si]
        nxtL = len(stages[si + 1]) if si + 1 < len(stages) else 0
        ahead = 2 if L == 2 else 1
        for nt in range(ahead, 10):
            if L > 2 and cfg["pairmaj"]:
                if nt == 1:
                    put_at(G, [b + (k * 5) // 4 for k in range(6 * L)], areads(si, 1) + areads(si, 2) + areads(si, 3))
                elif nt >= 4 and nt % 2 == 0:
                    put_at(G, [b + per * (nt - 2) + (k * 15) // 8 for k in range(4 * L)], areads(si, nt) + areads(si, nt + 1))
            elif SP_ and L > 2 and nt > 1 and cfg["lstep"]:
                put_at(G, range(b + per * (nt - 1) - per // 2, len(G), 2), areads(si, nt))
            elif SP_:
                put_at(G, range(b + per * (nt - ahead), len(G), SP_ if (L == 2 and (nt < 9 or cfg["lazy3"])) else 1), areads(si, nt))
            else:
                put_reads(G, b + per * (nt - ahead), areads(si, nt), 1 if L == 2 else 2)
        if nxtL:
            gb = b + per * 8
            if cfg.get("p3stamps"):
                ST.gap(G[gb - 1], G[gb + 1], f"s{si}")
            if cfg.get("p3light"):
                ST.light(G[gb - 9], f"s{si}")
            G[gb].sca.append(WAITV(*[("WO", ks) for ks in stages[si + 1]]))
            G[gb + 1].sca.append(BARRIER(frees=[("WO", ks) for ks in (kss if not cfg["lazy3"] else (stages[si - 1] if si else []))]))
            bar[si] = gb + 1
            if SP_ and nxtL == 2:
                put_at(G, range(gb + 2, gb + 6), areads(si + 1, 0))
            else:
                put_reads(G, gb + 2, areads(si + 1, 0))
            if nxtL == 2:
                if SP_:
                    put_at(G, range(b + per * 9, b + per * 10, SP_), areads(si + 1, 1))
                else:
                    put_reads(G, b + per * 9, areads(si + 1, 1))
    stage_of = {ks: si for si, kss in enumerate(stages) for ks in kss}
    for s, g in enumerate(cfg["otouch"]):
        if g >= 0:
            G[free_gap(G, g, ok)].vec.append(otouch(s, cfg))
    chunk_of = cfg["chunks"]
    ost = [Q(qt, VSTORE(Bf(s, qt), vOB + qt, SO, f"s{sOB}" if s < 4 else f"s{sOX}", 1024 * (s & 3), cfg["oflags"], tag=("O", chunk_of[s])))
           for s in range(6) for qt in range(4)]
    if cfg["p3sched"]:
        opos = unified_schedule(P, G, cfg, ost, wo_left, base, bar, stage_of, ok)
    else:
        opos = []
        t = cfg["ostart"]
        for n, x in enumerate(ost):
            k = free_gap(G, max(int(t), (opos[-1] + 1) if opos else 0), ok)
            G[k].vec.append(x)
            opos.append(k)
            t += cfg["opace"](n)
        ee = []
        for c in range(max(chunk_of) + 1):
            lc = max(k for k, x in zip(opos, ost) if x.meta["tag"] == ("O", c))
            k = flag_gaps(G, [("O", c)], c + 1, vFO, lc + cfg["lags"][c][0], ok, cfg["owb"])
            if cfg.get("ostamps"):
                ST.gap(G[k - 3], G[k - 3], f"preF{c}")
                ST.gap(G[k], G[k], f"F{c}")
            k = max(k + cfg["lags"][c][1], (ee[-1] if ee else 0))
            ee.append(check_gaps(P, G, f"o{c}", "o", c + 1, k, k + cfg["lags"][c][2], ok))
            if cfg.get("ostamps"):
                ST.gap(G[ee[-1] - 5], G[ee[-1] - 5], f"preC{c}")
                ST.gap(G[ee[-1] - 2], G[ee[-1] - 2], f"cmp{c}")
                ST.gap(G[ee[-1] - 1], G[ee[-1] - 1], f"C{c}")
        P.slack.append(("stores", opos, "checks", ee, "base", base))
        e0 = ee[0]
        for g in wo_left:
            t = g.dmas[0].meta["tag"][1]
            g.earliest = bar[stage_of[t - 12] + (1 if cfg["lazy3"] else 0)] + 1 if t >= 12 else (34 if t == 11 else 0)
            g.deadline = bar[stage_of[t] - 1] - 2
        wo_left = place_stream(P, G, wo_left, cfg["wstart"], e0 - 4, lambda k: cfg["wpace"], ok)
        bs = [grp_B(ks, cfg)[0] for ks in range(6, 24)]
        for g in bs:
            ks = g.dmas[0].meta["tag"][1]
            g.deadline = base[stage_of[ks]] - 2 + 0.01 * ks
            g.earliest = ee[chunk_of[KORD[ks][1]]]
            if ks >= 18:
                g.earliest = max(g.earliest, base[stage_of[ks - 18] + 1], opos[4 * (ks - 18) + 3] + 3)
        items = sorted(wo_left + bs, key=lambda g: g.deadline)
        left = place_stream(P, G, items, e0, len(G), lambda k: cfg["p3pace"], ok, True)
        assert not left
    bpos = {x.meta["tag"][1]: k for k, g in reversed(list(enumerate(G))) for x in g.vec if x.kind == "vload" and x.meta["tag"]}
    ops = [(0, 14, x) for x in pre[npre:]]
    if VP:
        P.flex_scalar(S(f"s_add_u32 s{sOX}, s{sOB}, 4096"), G[36:48])
    n = 0
    for s in range(6):
        for qt in range(4):
            o = Bf(s, qt)[1]
            t = vOK + 2 * (n % 3)
            dl = min(base[s // 2] + 2 * qt + (s & 1) - 2, opos[n] - 1, bpos[6 + 2 * s] - 1, bpos[7 + 2 * s] - 1)
            n += 1
            for u, dst in enumerate(([o, o + 1, o + 2, o + 3], [o + 2, o + 3, t, t + 1])):
                a = Oa(2 * s + u, qt)[1]
                e = 4 * (2 * s + u) + qt + 5
                ops += [(e, dl, V(f"v_accvgpr_read_b32 v{dst[r]}, a{a+r}")) for r in range(4)]
                ops += [(e, dl, V(f"v_mul_f32 v{dst[r]}, v{RCP[qt]}, v{dst[r]}", omul=(dst[r], RCP[qt]))) for r in range(4)]
                ops += [(e, dl, V(f"v_cvt_pk_bf16_f32 v{o+2*u+r}, v{dst[2*r]}, v{dst[2*r+1]}")) for r in range(2)]
                Q(qt, ops[-10:])
    assert not fill_ops(G, ops)
    pack_muls(G)
    si = len(stages) - 1
    per = 4 * len(stages[si])
    b = base[si]
    tmpbase = 160 if per == 8 else vFR
    vOPx = lambda t: (vAV if t & 4 else vOP) + (t & 3)
    own = lambda t, dst, src: [V(f"v_cndmask_b32 v{dst+r}, v{dst+r}, v{src+r}, s[{sOWN+2*(t&7)}:{sOWN+2*(t&7)+1}]") for r in range(4)]
    bg = []
    for t in range(7, -1, -1):
        bg += [S(f"s_xor_b32 s3, s{sGE}, {t << 10}"), S(f"s_cselect_b64 s[{sOWN+2*t}:{sOWN+2*t+1}], 0, -1"), S(f"s_cselect_b32 s3, s3, {OOB}"),
               V(f"v_add_u32 v{vOPx(t)}, s3, v{vOP+(t&3)}")]
    fill_background(G, bg, base[6], b)
    KEEP = [vFR + 16, 192, 224]
    late_own = []
    work = []
    tmp = 0
    for np_ in range(5):
        e = b + fin[(2 * np_, 0)]
        work.append((e, S(f"s_mov_b32 s{sOW}, {np_*15*8192}")))
        for qt in range(4):
            e = b + fin[(2 * np_ + 1, qt)] + (5 if np_ < 4 else 8)
            e1 = max(b + fin[(2 * np_, qt)] + (5 if np_ < 4 else 8), e - per // 2)
            n0 = len(work)
            x, y = acc3(2 * np_, qt), acc3(2 * np_ + 1, qt)
            if x[0] == "a":
                t = tmpbase + (tmp % 2) * 8
                tmp += 1
                for u, z in enumerate((x, y)):
                    for r in range(4):
                        work.append((e1 if u == 0 else e, V(f"v_accvgpr_read_b32 v{t+4*u+r}, a{z[1]+r}")))
                src = [t + r for r in range(8)]
                o = t
            else:
                src = [x[1] + r for r in range(4)] + [y[1] + r for r in range(4)]
                o = x[1]
            for r in range(4):
                work.append((e1 if r < 2 and x[0] == "v" else e, V(f"v_cvt_pk_bf16_f32 v{o+r}, v{src[2*r]}, v{src[2*r+1]}")))
            work.append((e, VSTORE(("v", o), vOPx(4 * np_ + qt), SP, f"s{sOW}", 0, cfg["pflags"], tag=("P", np_))))
            if x[0] == "a":
                work += [(e, z) for z in own(4 * np_ + qt, KEEP[0], o)]
            else:
                late_own += Q(qt, own(4 * np_ + qt, KEEP[np_ // 2], o))
            Q(qt, work[n0:])
    gi = b
    stpos = {}
    while work and gi < len(G):
        g = G[gi]
        while work and work[0][0] <= gi:
            x = work[0][1]
            if x.kind == "salu":
                P.flex_scalar(x, [g, G[min(gi + 1, len(G) - 1)]])
                work.pop(0)
            elif x.kind == "vstore":
                if not g.vec and not g.sca and ok(gi):
                    g.vec.append(x)
                    stpos[x.meta["tag"][1]] = gi
                    work.pop(0)
                break
            elif g.free() > 0:
                g.vec.append(x)
                work.pop(0)
            else:
                break
        gi += 1
    rest = [x for _, x in work]
    pending = {n for x in rest if x.kind == "vstore" for n in [x.meta["tag"][1]]}
    addr = [V("v_and_b32 v2, 15, v0"), V("v_mul_u32_u24 v2, 1280, v2"), V("v_lshrrev_b32 v3, 5, v0"), V("v_bfe_u32 v4, v0, 4, 1"),
            V("v_lshl_or_b32 v3, v4, 1, v3"), V("v_lshl_add_u32 v2, v3, 4, v2"), V("v_lshlrev_b32 v1, 4, v0"), V("v_add_u32 v3, 4096, v1")]
    assert not fill_ops(G, [(b, len(G) - 1, x) for x in addr], b)
    if cfg["ptail"] == 2:
        k = free_gap(G, stpos[1] + cfg["plagA"][0], ok)
        G[k].sca.append(WAITV(("P", 1)))
        G[k].vec.append(V("v_mov_b32 v7, 1"))
        k += 1
        while G[k].sca or G[k].isdma() or not ok(k):
            k += 1
        G[k].sca.append(BARRIER())
        k = free_gap(G, k + 1, ok)
        G[k].vec.append(VSTORE(("v", 6), vFP, SF, 0, 0, "sc1", n=4))
        k = free_gap(G, k + cfg["plagA"][1], ok)
        G[k].vec.append(poll_load("p"))
        P.slack.append(("pollA", k, stpos))
    ST.seq(P, "mfend")
    A(rest)

    def loads(r):
        return [VLOAD(("a", r * 32 + g * 4) if False else ("v", 160 + r * 32 + g * 4), 1 if g < 4 else 3, SP, f"s{sJ+r}", 1024 * (g & 3), None, cfg["rflags"])
                for g in range(1, 8)]

    def reduce(r):
        out = []
        o = 64 + r * 16
        for g in range(8):
            src = 160 + r * 32 + g * 4 if g else KEEP[r]
            t = o if g == 0 else 112 + (g & 1) * 8
            for q in range(4):
                out += [V(f"v_lshlrev_b32 v{t+2*q}, 16, v{src+q}"), V(f"v_and_b32 v{t+2*q+1}, 0xffff0000, v{src+q}")]
            if g:
                for q in range(4):
                    out.append(V(f"v_pk_add_f32 v[{o+2*q}:{o+2*q+1}], v[{o+2*q}:{o+2*q+1}], v[{t+2*q}:{t+2*q+1}]"))
        for q in range(4):
            out.append(V(f"v_cvt_pk_bf16_f32 v{o+8+q}, v{o+2*q}, v{o+2*q+1}"))
        out += [NOP(0), V(f"v_permlane16_swap_b32 v{o+8}, v{o+10}"), V(f"v_permlane16_swap_b32 v{o+9}, v{o+11}"),
                VSTORE(("v", o + 8), 2, SOUT, f"s{sJ+3+r}", 0, cfg["outflags"])]
        return out

    def flag(val, tags):
        return [V(f"v_mov_b32 v7, {val}"), WAITV(*tags), BARRIER(), VSTORE(("v", 6), vFP, SF, 0, 0, "sc1", n=4)]

    fl = flag(2, [("P", 4)])
    txt = lambda L: [text_of(x) for x in L]
    A(fl[0])
    if cfg["pfirst"]:
        n0 = cfg["pfirst"] - 1
        A(late_own)
        late_own = []
        A(fl[1], fl[2], fl[3], check_seq(P, "pA", "p", 1), loads(0))
    else:
        A(poll_cmp(1), NOP(0), I("s_cbranch_vccnz KF_lateA", "branch", rd=["vcc"]))
        A(loads(0), fl[1], fl[2], RAW(fl[3].text), LABEL("KF_joinA"))
        sp = slow_path("pA", "p", 1)
        P.slow += ["KF_lateA:", "s_waitcnt vmcnt(0)", "s_barrier", fl[3].text] + sp[:-1] + ["KF_rtpA:"] + txt(loads(0)) + ["s_branch KF_joinA"]
    ST.seq(P, "pdrain")
    if cfg["pfast"]:
        A(poll_cmp(2), NOP(0), I("s_cbranch_vccz KF_rtp2", "branch", rd=["vcc"]))
        A(RAW(f"s_waitcnt vmcnt({8-cfg['pcut']})"), RAW(poll_load("p").text), RAW("s_waitcnt vmcnt(0)"), check_seq(P, "p2", "p", 2))
        ST.seq(P, "ppoll")
        A(loads(1), loads(2), late_own, reduce(0), reduce(1), reduce(2))
    else:
        r0 = reduce(0)
        cut = 8 + 12 * (cfg["pcut"] - 1)
        A(late_own, r0[:cut], poll_load("p"), r0[cut:-1], check_seq(P, "p2", "p", 2))
        ST.seq(P, "ppoll")
        A(loads(1), loads(2), r0[-1], reduce(1), reduce(2))


def build(cfg):
    P = Prog()
    P.slack = []
    P.slow = []
    P.itwait = {}
    ST = Stamper(cfg)
    LA = cfg["LA"]
    stream = prologue(P, cfg, ST)
    phase1(P, cfg, ST, stream)
    ST.seq(P, "attn0")
    if ST.it:
        P.seq(RAW("s_mov_b32 s53, 2"))
    labs = []
    wo = [grp_WO(t, cfg)[0] for t in range(24)]
    NT = cfg["trips"]
    NS = len(cfg["skips"])
    for j in range(0, 31):
        inloop = 1 <= j <= 6 * NT
        if j == 1:
            P.seq(I(f"s_mov_b32 s{sCNT}, {NT}", "raw"))
        if inloop and (j - 1) % 6 == 0:
            P.el.append(I("", "raw", mark=(j - 1) // 6))
        if j == 6 * NT + 1:
            P.el.append(I("", "raw", mark=NT))
        groups = []
        if inloop and NS:
            if j in cfg["skips"]:
                LA -= 1
                groups += grp_dyn("K", None, cfg) + grp_dyn("V", None, cfg)
            else:
                groups += grp_dyn("K", j + LA, cfg) + grp_dyn("V", j + LA - 1, cfg)
        else:
            if j + LA < 32:
                groups += grp_K(j + LA, cfg, inloop or j == 0)
            if j + LA - 1 < 32:
                groups += grp_V(j + LA - 1, cfg, j + LA < 32)
        while len(groups) < cfg["tailgroups"] and j >= cfg["wostart"] and wo and 26 + (wo[0].dmas[0].meta["tag"][1] + 1) // 2 <= j:
            groups.append(wo.pop(0))
        lab = str((j - 1) % 6) if inloop else f"p{j}"
        if not inloop or j <= 6:
            labs.append((lab, (j + 1) & 1))
        xv = None
        if j == 29:
            xv = poll_load("c")
        if inloop and (j - 1) % 6 == 1:
            xv = I(f"buffer_atomic_add v7, v6, s[{SD}:{SD+3}], s{sAO} offen sc1", "vstore", ["v6", "v7"], [], data=set(), n=1, tag=None)
        pieces = [(g, S(f"s_mov_b32 s{sAO}, {i*81920}"), VLOAD(("v", 4), 5 if jj < 29 else vOK + 1, SWO, f"s{sAO}", 0, None, "", n=1))
                  for i, (jj, g) in enumerate(cfg["wopf"]) if jj == j]
        ev = []
        if j == (0 if cfg["R"] else 25):
            ev = unpark() + (asel_setup() if cfg["R"] else [])
        if j == 28:
            ev = [V("v_mov_b32 v6, 0")]
        if j == 29:
            assert j + LA >= 32
            ev = ev + [V(f"v_mov_b32 v{vOK+1}, v5")]
        G = iteration(P, cfg, j, lab, groups, xv, pieces, ev, 6 * (cfg["LA"] - NS - 2) if inloop and NS else cfg.get("vmforce", {}).get(j))
        if NS and j <= 6 * NT:
            P.flex_chain(dyn_prepare(), G[cfg["dmagaps"][2][1][-1] + 1:cfg["bpos"] - 2])
        if inloop and (j - 1) % 6 == 1:
            G[-8].sca.append(S(f"s_cmp_eq_u32 s{sCNT}, s{sTRIP}"))
            G[-7].sca.append(S(f"s_cselect_b32 s{sAO}, 0, {OOB}"))
        if ST.it:
            G[-6].post += [RAW(f"s_memtime s[{sTM}:{sTM+1}]"), RAW(f"s_memrealtime s[{sTM+2}:{sTM+3}]")]
            G[-3].post += [RAW("s_mov_b32 m0, s53"), RAW("s_addk_i32 s53, 1"), RAW(f"v_writelane_b32 v{vST}, s{sTM}, m0"), RAW("s_mov_b32 m0, s53"),
                           RAW("s_addk_i32 s53, 1"), RAW(f"v_writelane_b32 v{vST}, s{sTM+2}, m0")]
            ST.names.append(f"i{j}")
        if inloop and (j - 1) % 6 == 5:
            P.flex_scalar(S(f"s_sub_u32 s{sCNT}, s{sCNT}, 1"), G[80:90])
            G[-2].sca.append(S(f"s_cmp_lg_u32 s{sCNT}, 0"))
            G[-1].post.append(I("s_cbranch_scc1 KF_loop", "branch"))
    ST.seq(P, "attnend")
    phase3(P, cfg, ST, wo)
    if ST.on:
        P.seq(WAIT(vm=0))
        ST.seq(P, "end")
        ST.flush(P)
        if cfg.get("diag"):
            P.seq(RAW("s_getreg_b32 s3, hwreg(HW_REG_XCC_ID, 0, 4)"), RAW(f"v_writelane_b32 v{vST}, s3, 63"))
        P.seq(srd(8, 32, 33, STAMP_OFF, 0x100000), S("s_lshl_b32 s3, s2, 2"), S(f"s_add_u32 s3, s3, s{sW}"), S("s_lshl_b32 s3, s3, 8"),
              V("v_lshlrev_b32 v2, 2, v0"), RAW(f"buffer_store_dword v{vST}, v2, s[8:11], s3 offen"))
    if cfg.get("w3"):
        P.prune(lambda x: x.meta.get("q") == 3, "KF_go:")
    P.insert_waits()
    P.place_flex()
    lin = P.linear()
    lin, notes = fix_hazards(lin)
    P.notes = notes
    probs = check_hazards(lin) + check_lds_protocol(lin, private=lambda t: t[0] == "X")
    trips = {}
    pre, post, cur = [], [], None
    for x in lin:
        if x.kind == "raw" and "mark" in x.meta:
            cur = x.meta["mark"]
            continue
        if cur is None:
            pre.append(x)
        elif cur == NT:
            post.append(x)
        else:
            trips.setdefault(cur, []).append(x)
    t0 = [text_of(x) for x in trips[0]]
    for k in range(1, NT):
        tk = [text_of(x) for x in trips[k]]
        assert tk == t0, [(a, b) for a, b in zip(t0, tk) if a != b][:5]
    out = [text_of(x) for x in pre] + ["KF_loop:"] + t0 + [text_of(x) for x in post]
    out += ["KF_done:", "s_endpgm"]
    out += P.slow
    for lab, par in labs:
        out += [f"KF_fx{lab}:", f"s_call_b64 s[{sRET}:{sRET+1}], KF_fix{par}", f"s_branch KF_bk{lab}"]
    for par in range(2):
        fb = fallback(par, cfg)
        if cfg.get("w3"):
            fb = fix_hazards([x for x in fb if x.meta.get("q") != 3])[0]
        probs += check_hazards(fb)
        out += [text_of(x) for x in fb]
    out += ["KF_end:"]
    return out, probs, P, ST


DEFAULT = dict(map="hg4", wflags="", xflags="", kvflags="nt", woflags="", oflags="sc1", bflags="sc1", pflags="sc1", rflags="sc1",
               outflags="", thresh=16384.0, LA=5, trips=4, npro=1, npro2=3, bgstart=100, pace=[(960, 5.2)], xearly=4, kvpace=14, tailgroups=3,
               dmagaps={0: [], 1: [[4, 7, 9]], 2: [[4, 7, 9], [34, 44, 54]], 3: [[4, 7, 9], [34, 44, 54], [64, 79, 84]]},
               vslack=8, stages=[[2 * k, 2 * k + 1] for k in range(9)] + [list(range(18, 24))], p3pace=4.2, wstart=0, wpace=9, codepf=5,
               chunks=[0, 1, 1, 2, 2, 2], ostart=44, opace=lambda n: 4 if n < 3 else 14, lags=[(45, 65, 45), (55, 40, 60), (70, 60, 70)],
               p1pf=[0, 6, 14, 22], wopf=[(25, 82), (26, 82), (27, 82)], pfa=0, tour3=0, otouch=[], otflags='', p3sched=None,
               oready=lambda n: [26, 38, 48, 49, 50, 52, 54, 56, 74, 92, 110, 128, 130, 132, 134, 136, 154, 172, 190, 208, 210, 212, 214, 216][n], tour=1, R=1, rpos=84, bpos=84, split3=0, nskip=2, ptail=2, lazy1=0, lazy2=0, lazy3=0, spread1=2, spread3=2, kstep=1, lstep=1.8, pfast=1, pfirst=1, pairmaj=1, owb=None, vpre=1, wopf1=[], plagA=(45, 40), pcut=4, wostart=27, stamps=False)


RCFG = dict(thresh=16777216.0, expgaps=[11 + 9 * (k // 4) + 2 * (k % 4) for k in range(32)],
            dmagaps={0: [], 1: [[4, 7, 9]], 2: [[4, 7, 9], [37, 46, 54]], 3: [[4, 7, 9], [37, 46, 54], [64, 73, 92]], 4: [[4, 7, 9], [19, 28, 37], [46, 54, 64], [73, 90, 92]]})


def line_sizes(body):
    import subprocess, tempfile, re
    ins = [l for l in body if l and not l.endswith(":")]
    d = tempfile.mkdtemp()
    src = '.amdgcn_target "amdgcn-amd-amdhsa--gfx950"\n.text\nL0:\n' + "\n".join(re.sub(r"K[FX]_\w+", "L0", re.sub(r"K[FX]_\w+-[\w-]+", "0x12345", l)) for l in ins) + "\n"
    open(d + "/a.s", "w").write(src)
    subprocess.run(["clang", "-x", "assembler", "-target", "amdgcn-amd-amdhsa", "-mcpu=gfx950", "-c", d + "/a.s", "-o", d + "/a.o"], check=True)
    dis = subprocess.run(["llvm-objdump", "-d", "--mcpu=gfx950", d + "/a.o"], capture_output=True, text=True).stdout
    sizes = [4 * len(re.findall(r"\b[0-9A-F]{8}\b", l.split("//")[1].split(":", 1)[1].split("<")[0])) for l in dis.splitlines() if "//" in l]
    assert len(sizes) == len(ins), (len(sizes), len(ins))
    it = iter(sizes)
    return [0 if (not l or l.endswith(":")) else next(it) for l in body]


def merge_streams(o, o3, tour3):
    import re
    go = o.index("KF_go:")
    assert o[:go] == o3[:go]
    call = lambda t: f"s_call_b64 s[{sRET}:{sRET+1}], {t}"
    lp, le = o3.index("KF_loop:"), o3.index("s_cbranch_scc1 KF_loop")
    head = []
    nb = 0
    for l in o3[:lp]:
        if l == "s_barrier":
            nb += 1
            if tour3 and 2 <= nb <= 11:
                head += ["s_mov_b64 exec, 0", call(f"KF_EAR{nb-2}"), "s_mov_b64 exec, -1"]
        head.append(l)
    out = head + ["s_getpc_b64 s[52:53]", "KF_pc2:", "s_sub_u32 s52, s52, KF_pc2-KX_go", "s_subb_u32 s53, s53, 0", "v_lshlrev_b32 v92, 12, v0",
                     "v_min_u32 v92, KX_end-KX_go-4, v92", "v_mov_b32 v93, s53", "v_add_co_u32 v92, vcc, s52, v92", "s_nop 1",
                     "v_addc_co_u32 v93, vcc, 0, v93, vcc"]
    site = 0
    for l in o3[lp:le]:
        if l == "s_barrier":
            for t in range(3):
                out += [f"s_cmp_eq_u32 s{sCNT}, {3-t}", f"s_cbranch_scc0 KF_h{site}_{t}", "s_mov_b64 exec, 0", call(f"KF_HOP{6*t+site}"),
                        "s_mov_b64 exec, -1", f"KF_h{site}_{t}:"]
            site += 1
        out.append(l)
        if l == "s_barrier" and site == 5:
            out.append("global_load_dword v94, v[92:93], off")
    assert site == 6
    out += o3[le:]
    o3 = insert_stubs(out)
    o = insert_stubs(o)
    off_ = False
    for l in o3:
        off_ = l == "s_mov_b64 exec, 0" or (off_ and l != "s_mov_b64 exec, -1")
        assert not (off_ and "execz" in l)
    early, late = [], []
    for pre, t in (("KX", o), ("KF", o3)):
        e = t.index("s_cbranch_scc1 KF_loop")
        for k, l in enumerate(t):
            m = re.match(r"KF_(pg\d+):", l)
            if m:
                (early if k < e else late).append((int(m.group(1)[2:]), f"{pre}_{m.group(1)}"))
    early = [x for _, x in sorted(early)]
    late = [x for _, x in sorted(late)]
    assert len(late) <= 18
    if tour3:
        early = [x for x in early if x not in ("KF_pg1", "KF_pg2", "KF_pg3")]
        assert len(early) <= 10
        o3 = [re.sub(r"KF_EAR(\d+)", lambda m: early[int(m.group(1))] if int(m.group(1)) < len(early) else "KX_tramp", l) for l in o3]
        early = []
    o3 = [re.sub(r"KF_HOP(\d+)", lambda m: late[int(m.group(1))] if int(m.group(1)) < len(late) else "KX_tramp", l) for l in o3]
    o3 = [re.sub(r"execz KF_\w+", "execz KX_tramp", l) for l in o3]
    o = [re.sub(r"execz KF_\w+", "execz KF_tramp", l) for l in o]
    ren = lambda l: l.replace("KF_", "KG_").replace("KX_", "KF_")
    tour = ["s_mov_b64 exec, 0"]
    for w in range(4):
        if w < 3:
            tour += [f"s_cmp_eq_u32 s{sW}, {w}", f"s_cbranch_scc0 KF_tw{w}"]
        tour += [call(ren(x)) for x in early[w::4]]
        tour += ["s_mov_b64 exec, -1", "s_branch KF_go" if w < 3 else "s_branch KG_go"]
        if w < 3:
            tour += [f"KF_tw{w}:"]
    if tour3:
        tour = [f"s_cmp_eq_u32 s{sW}, 3", "s_cbranch_scc1 KG_go", "s_branch KF_go"]
    k = o.index("s_branch KF_go")
    o = o[:k] + tour + ["KF_tramp:", f"s_setpc_b64 s[{sRET}:{sRET+1}]"] + o[k + 1:]
    return o[:-1] + [".p2align 12"] + [ren(l) for l in o3[go:-1]] + ["KF_end:"]


def insert_stubs(lines):
    import re
    go = lines.index("KF_go:")
    end = lines.index("KF_done:")
    body = lines[go + 1:end]
    sz = line_sizes(body)
    out = []
    off = 0
    page = 1
    k = 0
    while k < len(body):
        if off >= page * 4096:
            best = k
            o, j = off, k
            while j < len(body) and o <= page * 4096 + 56:
                prev = body[j - 1]
                if prev.startswith("v_mfma") and body[j].startswith(("v_", "ds_")):
                    best = j
                    break
                o += sz[j]
                j += 1
            while k < best:
                out.append(body[k])
                off += sz[k]
                k += 1
            out += [f"KF_pg{page}:", f"s_cbranch_execz KF_pg{page+4}"]
            off += 4
            page += 1
        out.append(body[k])
        off += sz[k]
        k += 1
    out = [re.sub(r"execz KF_pg(\d+)", lambda m: m.group(0) if int(m.group(1)) < page else "execz KF_tret", l) for l in out]
    return lines[:go + 1] + out + lines[end:]


HDR = open("standalone__mha_block_cached__near_ridge.s.ref").read().split("; Override launch")[0]
NAME = "standalone__mha_block_cached__near_ridge_kernel"


def generate(over=None):
    cfg = dict(DEFAULT)
    if (over or {}).get("R", 1):
        cfg.update(RCFG)
    cfg.update(over or {})
    NS = cfg["nskip"]
    cfg["skips"] = [1 + (24 // NS) * k for k in range(NS)]
    o, p, P, ST = build(cfg)
    assert not p, p[:10]
    if NS:
        for off in range(1, 24 // NS + 1):
            c2 = dict(cfg, skips=[off + (24 // NS) * k for k in range(NS)], vmforce={j: w.meta["vm"] for j, w in P.itwait.items()})
            o2, p2, _, _ = build(c2)
            assert not p2 and o2 == o, (off, p2[:5], [(a, b) for a, b in zip(o, o2) if a != b][:5])
    if cfg["split3"]:
        o3, p3, P3, _ = build(dict(cfg, w3=True))
        assert not p3, p3[:10]
        for off in range(2, 24 // NS + 1 if NS else 0):
            o2, p2, _, _ = build(dict(cfg, w3=True, skips=[off + (24 // NS) * k for k in range(NS)], vmforce={j: w.meta["vm"] for j, w in P3.itwait.items()}))
            assert not p2 and o2 == o3
        o = merge_streams(o, o3, cfg["tour3"])
    elif cfg["tour"]:
        o = insert_stubs(o)
    if cfg.get("verbose"):
        print(P.slack, file=sys.stderr)
        print(len(P.notes), "nops inserted:", P.notes, file=sys.stderr)
    if P.warn or P.overfull():
        print("warn", len(P.warn), P.warn[:6], "overfull", P.overfull(), file=sys.stderr)
    dg = cfg.get("diag")
    if dg:
        s = HDR + f"; @launch kernel={NAME} grid=(256,1,1) block=(256,1,1) lds={LDS_BYTES}\n; @launch kernel=diag_kernel grid=(1,1,1) block=(64,1,1) lds=0\n"
    else:
        s = HDR + f"; @launch grid=(256,1,1) block=(256,1,1) lds={LDS_BYTES}\n"
    if ST.on:
        s += "; STAMPS " + " ".join(ST.names) + "\n"
    s += '.amdgcn_target "amdgcn-amd-amdhsa--gfx950"\n.text\n'
    s += f".globl {NAME}\n.p2align 8\n.type {NAME},@function\n{NAME}:\n" + "\n".join(l for l in o if l) + "\n"
    if dg:
        import gen
        def addr(x):
            wg, nm = x
            return STAMP_OFF + wg * 1024 + (252 if nm == "xcc" else 8 * ST.names.index(nm) + 4)
        s += ".globl diag_kernel\n.p2align 8\n.type diag_kernel,@function\ndiag_kernel:\n" + "\n".join(gen.diag_kernel(addr(dg[0]), addr(dg[1]), dg[2])) + "\n"
    s += f""".section .rodata,"a"
.p2align 6
.amdhsa_kernel {NAME}
  .amdhsa_next_free_vgpr 512
  .amdhsa_next_free_sgpr 102
  .amdhsa_accum_offset 256
  .amdhsa_group_segment_fixed_size 0
  .amdhsa_kernarg_size 64
  .amdhsa_user_sgpr_count 2
  .amdhsa_user_sgpr_kernarg_segment_ptr 1
  .amdhsa_system_sgpr_workgroup_id_x 1
.end_amdhsa_kernel
"""
    if dg:
        s += ".p2align 6\n" + gen.kd("diag_kernel", 8, 8) + "\n"
    return s


if __name__ == "__main__":
    over = eval(sys.argv[2]) if len(sys.argv) > 2 else None
    open(sys.argv[1], "w").write(generate(over))
```

```python
import math, struct, sys
from asmlib import *

SLOT = 12288
KREG = 0
VREG = 6 * SLOT
EREG = 12 * SLOT
LDS_BYTES = 163840
OOB = 0x40000000

O_OFF = 0
PART_OFF = 0x2000000
FLAG_OFF = 0x4000000
STAMP_OFF = 0x10000000

SX, SW, SK, SV, SO = 8, 12, 16, 20, 24
SF, SD = 56, 60
SWO, SP, SOUT = 64, 68, 72
sW, sB, sH, sWOFF, sXB0, sXB1 = 34, 35, 36, 37, 38, 39
sOW, sOX, sOKV, sCNT, sTH = 40, 41, 42, 43, 44
sG = 45
sC = 46
sRET = 48
sPAD, sHL = 50, 51
sHB, sOB = 76, 80
sJ = 84
sSPIN = 90
sTRIP, sAO = 54, 55
sGE = 47
sRX, sRW = 48, 49
sPFO, sPFN = 96, 97
sOWN = 8
sIT, sMASK, sSL, sMK, sMV, sSO, sSTEP, sWOFFV = 4, 5, 6, 7, 28, 29, 30, 31
sTM = 92
vAK, vAV, vAW, vAX = 8, 10, 14, 18
vOK, vOV, vOW, vOX = 22, 25, 28, 31
vST = 39
vPF = 8
vFR = 40
vS, vP, vNM, vTS, vL, vE = 64, 96, 128, 144, 148, 152
vA3 = 14
vOB = 18
vOWO = 28
vOP = 31
vFL = 35
PARK = [vA3, vA3 + 1, vA3 + 2, vA3 + 3, vOB, vOB + 3, vOWO, vOWO + 1, vOWO + 2, vOP, vOP + 3, vFL, vFL + 1, vFL + 2, vFL + 3, 5]
vFO, vFOP, vFP, vFPP = vFL, vFL + 1, vFL + 2, vFL + 3


def f32(x):
    return "0x%08x" % struct.unpack("<I", struct.pack("<f", x))[0]


def Q(qt, x):
    for y in (x if isinstance(x, list) else [x]):
        (y[-1] if isinstance(y, tuple) else y).meta["q"] = qt
    return x


def acc(dt, qt):
    return ("v", (160 if dt % 2 == 0 else 64) + ((dt >> 1) * 4 + qt) * 4)


def Qf(qt, s):
    return acc(2 * s, qt)


def Oa(dt, qt):
    return ("a", (dt * 4 + qt) * 4)


def Kf(a, s):
    return ("a", 192 + (a * 6 + s) * 4)


def Xf(beta, u, qt):
    return ("a", beta * 32 + (u * 4 + qt) * 4)


def St(a, qt):
    return ("v", vS + (a * 4 + qt) * 4)


def Pf(par, qt):
    return ("v", vP + par * 16 + qt * 4)


def NM(qt):
    return ("v", vNM + qt * 4)


def Lb(par):
    return ("v", vTS + 4 * par)


def rowsum_mfmas(par):
    return [Q(qt, MFMA(Lb(par), ("a", 240 + 4 * qt), Pf(par, qt), Lb(par ^ 1) if qt == 0 else Lb(par))) for qt in range(4)]


def FR(i):
    return ("v", vFR + (i % 6) * 4)


W3BUF = [False]


def wslot(n):
    buf = (n // 2) % 4
    if W3BUF[0]:
        buf = (1, 3, 0)[(n // 2) % 3]
    base = {2: KREG, 3: KREG + 2 * SLOT, 0: KREG + 4 * SLOT, 1: VREG + 4 * SLOT}[buf]
    return base + (n % 2) * SLOT


def kslot(n):
    return KREG + (n % 6) * SLOT


def vslot(n):
    return VREG + (n % 6) * SLOT


def woslot(t):
    t %= 12
    return (kslot if t % 2 == 0 else vslot)(26 + t // 2)


def xregion(beta):
    return [(VREG + 2 * beta * SLOT, VREG + 2 * beta * SLOT + 3 * 8192), (EREG + beta * 8192, EREG + beta * 8192 + 8192)]


def vtype_read(dst, slot, dt, t, tag):
    if slot >= VREG:
        a, off = vAV, slot - VREG
    else:
        a, off = vAW, slot
    return DSTR((dst[0], dst[1] + 2 * t), a + (dt & 3), off + 1536 * t + 128 * (dt >> 2), tag)


def k_read(n, a, s):
    return DSR128(Kf(a, s), vAK + (s & 1), kslot(n) + 1536 * a + 128 * (s >> 1), ("K", n))


class DmaGroup:
    def __init__(self, pre, dmas, earliest=0):
        self.pre = pre
        self.dmas = dmas
        self.earliest = earliest
        self.deadline = 10**9


def grp_W(n, cfg):
    sl = wslot(n)
    so = S(f"s_mov_b32 s{sOW}, {n*393216}")
    if n < 4 * cfg["rot"]:
        so = S(f"s_{'sub' if n & 2 else 'add'}_u32 s{sOW}, {n*393216}, s{sRW}")
    return [DmaGroup([S(f"s_add_u32 m0, s{sWOFF}, {sl}"), so],
                     [DMA(vOW + j, SW, f"s{sOW}", 1024 * j, ("W", n), cfg["wflags"], region=[(sl, sl + SLOT)]) for j in range(3)])]


def grp_X(c, cfg, after=()):
    beta = c & 1
    sb = sXB0 + beta
    so = S(f"s_xor_b32 s{sOX}, {128*c}, s{sRX}") if c < 2 * cfg["rot"] else S(f"s_mov_b32 s{sOX}, {128*c}")
    g0 = DmaGroup([S(f"s_mov_b32 m0, s{sb}"), so],
                  [DMA(vOX + j, SX, f"s{sOX}", 1024 * j, ("X", c), cfg["xflags"], after=after, region=xregion(beta)) for j in range(4)])
    g1 = DmaGroup([S(f"s_add_u32 m0, s{sb}, 4096")],
                  [Q(2 + j // 2, DMA(vOX + 4 + j, SX, f"s{sOX}", 1024 * j, ("X", c), cfg["xflags"], region=xregion(beta))) for j in range(4)])
    return [g0, g1]


def grp_K(n, cfg, loop=False):
    sl = kslot(n)
    so = S(f"s_add_u32 s{sOKV}, s{sOKV}, {SLOT}") if loop else S(f"s_mov_b32 s{sOKV}, {n*SLOT}")
    return [DmaGroup([S(f"s_add_u32 m0, s{sWOFF}, {sl}"), so],
                     [DMA(vOK + j, SK, f"s{sOKV}", 1024 * j, ("K", n), cfg["kvflags"], region=[(sl, sl + SLOT)]) for j in range(3)])]


def grp_V(n, cfg, loop=False):
    sl = vslot(n)
    pre = [S(f"s_add_u32 m0, s{sWOFF}, {sl}")]
    if not loop:
        pre.append(S(f"s_mov_b32 s{sOKV}, {(n+1)*SLOT}"))
    return [DmaGroup(pre,
                     [DMA(vOV + j, SV, f"s{sOKV}", 1024 * j, ("V", n), cfg["kvflags"], region=[(sl, sl + SLOT)]) for j in range(3)])]


def grp_dyn(kind, n, cfg):
    sl = EREG if n is None else (kslot if kind == "K" else vslot)(n)
    tag = ("D", kind) if n is None else (kind, n)
    pre = [S(f"s_add_u32 m0, s{sWOFF}, s{sMK}") if kind == "K" else S(f"s_add_u32 m0, s{sWOFFV}, s{sMV}")]
    vo, sr = (vOK, SK) if kind == "K" else (vOV, SV)
    return [DmaGroup(pre, [DMA(vo + j, sr, f"s{sSO}", 1024 * j, tag, cfg["kvflags"], region=[(sl, sl + SLOT)]) for j in range(3)])]


def dyn_prepare(cfg):
    wo = [S(f"s_cselect_b32 s{sPFO}, s{sPFN}, {OOB}"), S(f"s_cselect_b32 s{sPFN}, 122880, s{sPFN}")] if cfg["wodyn"] else []
    return [S(f"s_add_u32 s{sIT}, s{sIT}, 1"), S(f"s_bitcmp1_b32 s{sMASK}, s{sIT}")] + wo + [
            S(f"s_cselect_b32 s{sMV}, {EREG-VREG}, s{sSL}"), S(f"s_cselect_b32 s{sSTEP}, 0, {SLOT}"), S(f"s_cselect_b32 s{sSO}, {OOB}, 0"),
            S(f"s_add_u32 s{sOKV}, s{sOKV}, s{sSTEP}"), S(f"s_or_b32 s{sSO}, s{sSO}, s{sOKV}"),
            S(f"s_add_u32 s{sSL}, s{sSL}, s{sSTEP}"), S(f"s_cmp_eq_u32 s{sSL}, {6*SLOT}"), S(f"s_cselect_b32 s{sSL}, 0, s{sSL}"),
            S(f"s_cmp_eq_u32 s{sSTEP}, 0"), S(f"s_cselect_b32 s{sMK}, {EREG}, s{sSL}")]


def grp_WO(t, cfg):
    sl = woslot(t)
    return [DmaGroup([S(f"s_add_u32 m0, s{sWOFF}, {sl}"), S(f"s_add_u32 s{sOW}, s{sHB + KORD[t][0]}, {40960*KORD[t][1]}")],
                     [DMA(vOWO + j, SWO, f"s{sOW}", 1024 * j, ("WO", t), cfg["woflags"], region=[(sl, sl + SLOT)]) for j in range(3)])]


def group_seq(g):
    out = list(g.pre)
    if g.pre and g.pre[-1].text.split()[1].startswith("m0"):
        out.append(NOP(0))
    return out + list(g.dmas)


def seq_groups(P, groups):
    for g in groups:
        P.seq(group_seq(g))


def place_stream(P, G, groups, lo, hi, pace, ok, edf=False):
    pos = lo
    tgt = float(lo)
    groups = list(groups)
    while groups:
        if edf:
            av = [x for x in groups if x.earliest <= tgt + 2]
            g = min(av, key=lambda x: x.deadline) if av else min(groups, key=lambda x: x.earliest)
            groups.remove(g)
            groups.insert(0, g)
        g = groups[0]
        idx = []
        t = max(tgt, g.earliest + len(g.pre))
        k = pos + len(g.pre) + (1 if g.pre else 0)
        fail = False
        for d in g.dmas:
            k = max(k, int(t))
            while k < hi and not (ok(k) and not G[k].vec and not G[k].sca and not G[k].post):
                k += 1
            if k >= hi:
                fail = True
                break
            idx.append(k)
            t0 = t
            t = max(t + pace(k), k - 6)
            if edf:
                t += pace(k) * len([1 for q in range(int(t0) + 1, min(int(t) + 1, hi)) if G[q].isdma() and q != k and q not in idx])
            k += 1
        if fail:
            break
        assert idx[-1] <= g.deadline, (g.dmas[0].meta["tag"], idx, g.deadline)
        P.slack.append((g.dmas[0].meta["tag"], idx[0], idx[-1], g.deadline))
        for s_ in g.pre:
            P.flex_scalar(s_, list(reversed(G[pos:idx[0]])))
        for kk, d in zip(idx, g.dmas):
            G[kk].vec.append(d)
        pos = idx[-1] + 1
        tgt = t
        groups.pop(0)
    return groups


class Stamper:
    def __init__(self, cfg):
        self.on = cfg.get("stamps")
        self.it = cfg.get("itstamps")
        self.n = 0
        self.names = []
        self.pool = [4, 6, 28, 30, 96, 98, 100, 0, 38, 52]
        self.pending = []

    def seq(self, P, name):
        if self.on and not self.it:
            k = self.n
            P.seq(RAW(f"s_memtime s[{sTM}:{sTM+1}]"), RAW(f"s_memrealtime s[{sTM+2}:{sTM+3}]"), WAIT(lg=0),
                  RAW(f"v_writelane_b32 v{vST}, s{sTM}, {2*k}"), RAW(f"v_writelane_b32 v{vST}, s{sTM+2}, {2*k+1}"))
            self.n += 1
            self.names.append(name)

    def light(self, g0, name):
        if self.on:
            r = self.pool.pop(0)
            g0.post.append(RAW(f"s_memtime s[{r}:{r+1}]"))
            self.pending.append((r, self.n))
            self.n += 1
            self.names.append(name)

    def light2(self, g0, g1, name):
        if self.on:
            g0.post.append(RAW(f"s_memtime s[{sTM}:{sTM+1}]"))
            g1.post.append(RAW(f"v_writelane_b32 v{vST}, s{sTM}, {2*self.n}"))
            self.n += 1
            self.names.append(name)

    def flush(self, P):
        for r, k in self.pending:
            P.seq(RAW(f"v_writelane_b32 v{vST}, s{r}, {2*k}"), RAW(f"v_writelane_b32 v{vST}, s{sTM+2}, {2*k+1}"))
        self.pending = []

    def gap(self, g0, g1, name):
        if self.on:
            k = self.n
            g0.post += [RAW(f"s_memtime s[{sTM}:{sTM+1}]"), RAW(f"s_memrealtime s[{sTM+2}:{sTM+3}]")]
            g1.post += [RAW("s_waitcnt lgkmcnt(0)"), RAW(f"v_writelane_b32 v{vST}, s{sTM}, {2*k}"), RAW(f"v_writelane_b32 v{vST}, s{sTM+2}, {2*k+1}")]
            self.n += 1
            self.names.append(name)


def srd(base, lo, hi, off, size):
    return [S(f"s_add_u32 s{base}, s{lo}, {off}"), S(f"s_addc_u32 s{base+1}, s{hi}, 0"),
            S(f"s_mov_b32 s{base+2}, {size}"), S(f"s_mov_b32 s{base+3}, 0x20000")]


def prologue(P, cfg, ST):
    A = P.seq
    A(S("s_cmp_ge_u32 s2, 256"), I("s_cbranch_scc1 KF_done", "branch"))
    A(RAW("s_load_dwordx4 s[4:7], s[0:1], 0"), RAW("s_load_dwordx4 s[28:31], s[0:1], 16"), RAW("s_load_dwordx4 s[96:99], s[0:1], 32"),
      RAW("s_load_dwordx2 s[100:101], s[0:1], 48"), RAW("s_load_dwordx2 s[32:33], s[0:1], 56"))
    if ST.on:
        A(RAW(f"s_memtime s[{sTM}:{sTM+1}]"), RAW(f"s_memrealtime s[{sTM+2}:{sTM+3}]"))
    A(V("v_lshrrev_b32 v1, 6, v0"), V("v_and_b32 v0, 63, v0"))
    A(V(f"v_readfirstlane_b32 s{sW}, v1"))
    if cfg["codepf"]:
        n = cfg["codepf"] + (4 if cfg["split3"] else 0)
        A(RAW("s_getpc_b64 s[52:53]"), LABEL("KF_pc"), S("s_lshr_b32 s3, s2, 3"), S(f"s_lshl_b32 s3, s3, 2"), S(f"s_add_u32 s3, s3, s{sW}"),
          S(f"s_mul_i32 s3, s3, {n*128}"), V(f"v_min_u32 v2, {n-1}, v0"), V("v_lshl_add_u32 v2, v2, 7, s3"),
          RAW("v_min_u32 v2, KF_end-KF_pc-4, v2"), V("v_mov_b32 v3, s53"), V("v_add_co_u32 v2, vcc, s52, v2"), NOP(1),
          RAW("v_addc_co_u32 v3, vcc, 0, v3, vcc"), RAW("global_load_dword v42, v[2:3], off"))
    m = cfg["map"]
    if m == "hg4":
        A(S(f"s_and_b32 s{sG}, s2, 7"), S(f"s_lshr_b32 s{sB}, s2, 5"), S(f"s_bfe_u32 s{sHL}, s2, 0x20003"))
    elif m == "4x8":
        A(S(f"s_bfe_u32 s{sHL}, s2, 0x20003"), S(f"s_and_b32 s{sG}, s2, 6"), S("s_bfe_u32 s3, s2, 0x10005"), S(f"s_add_u32 s{sG}, s{sG}, s3"),
          S(f"s_and_b32 s{sB}, s2, 1"), S(f"s_lshl_b32 s{sB}, s{sB}, 2"), S("s_lshr_b32 s3, s2, 6"), S(f"s_add_u32 s{sB}, s{sB}, s3"))
    elif m == "batch":
        A(S(f"s_and_b32 s{sB}, s2, 7"), S(f"s_lshr_b32 s{sG}, s2, 5"), S(f"s_bfe_u32 s{sHL}, s2, 0x20003"))
    A(S(f"s_lshl_b32 s{sH}, s{sG}, 2"), S(f"s_add_u32 s{sH}, s{sH}, s{sHL}"))
    if cfg["rot"]:
        assert not cfg["split3"]
        A(S(f"s_xor_b32 s3, s{sB}, s{sHL}"), S("s_and_b32 s3, s3, 1"), S(f"s_lshl_b32 s{sRX}, s3, 7"), S(f"s_mul_i32 s{sRW}, s3, 786432"))
    A(V("v_lshrrev_b32 v2, 3, v0"), V("v_lshl_add_u32 v2, v1, 6, v2"), V("v_mul_u32_u24 v2, 1280, v2"),
      V("v_lshrrev_b32 v3, 4, v0"), V("v_and_b32 v4, 7, v0"), V("v_xor_b32 v3, v3, v4"),
      V(f"v_lshl_add_u32 v{vOX}, v3, 4, v2"), V("v_xor_b32 v3, 4, v3"), V("v_lshl_add_u32 v4, v3, 4, v2"))
    for j in range(1, 8):
        src = f"v{vOX}" if j % 2 == 0 else "v4"
        A(V(f"v_add_u32 v{vOX+j}, {10240*j - 1024*(j&3)}, {src}"))
    A(S(f"s_mul_i32 s{sWOFF}, s{sW}, 3072"), S(f"s_lshl_b32 s{sXB0}, s{sW}, 13"),
      S(f"s_add_u32 s{sXB1}, s{sXB0}, {VREG+2*SLOT}"), S(f"s_add_u32 s{sXB0}, s{sXB0}, {VREG}"),
      S(f"s_cmp_eq_u32 s{sW}, 3"), S(f"s_cselect_b32 s{sXB0}, {EREG}, s{sXB0}"), S(f"s_cselect_b32 s{sXB1}, {EREG+8192}, s{sXB1}"),
      S(f"s_cselect_b32 s{sPAD}, {f32(-1000.0)}, 0"))
    A(S(f"s_lshl_b32 s52, s{sHL}, 2"), S(f"s_add_u32 s52, s52, s{sW}"), S(f"s_lshl_b32 s91, s{sB}, 4"), S("s_add_u32 s91, s91, s52"))
    A(S("s_mul_i32 s3, s91, 12288"), S(f"s_mul_i32 s88, s{sHL}, 384"), S("s_sub_u32 s3, s3, s88"), S("s_mul_i32 s52, s52, 19200"),
      V("v_min_u32 v2, 11, v0"), V("v_lshl_add_u32 v44, v2, 7, s3"), V(f"v_add_u32 v{vPF}, {128*12288}, v44"),
      V("v_min_u32 v2, 14, v0"), V("v_mul_u32_u24 v2, 1280, v2"), V("v_add_u32 v45, s52, v2"))
    if ST.on and not ST.it:
        A(RAW("s_memtime s[56:57]"), RAW("s_memrealtime s[58:59]"))
    A(RAW("s_waitcnt lgkmcnt(0)"))
    if ST.on:
        A(RAW(f"v_mov_b32 v{vST}, 0"), RAW(f"v_writelane_b32 v{vST}, s{sTM}, 0"), RAW(f"v_writelane_b32 v{vST}, s{sTM+2}, 1"))
        ST.n = 1
        ST.names.append("start")
        if not ST.it:
            A(RAW(f"v_writelane_b32 v{vST}, s56, 2"), RAW(f"v_writelane_b32 v{vST}, s58, 3"))
            ST.n = 2
            ST.names.append("prewait")
            ST.seq(P, "karg")
    A(S(f"s_mul_i32 s3, s{sB}, 307200"), srd(SX, 4, 5, "s3", 307200))
    A(S(f"s_mul_i32 s3, s{sH}, 384"), srd(SW, 30, 31, "s3", 0), S(f"s_sub_u32 s{SW+2}, 7864320, s3"))
    if cfg["pfa"]:
        A(VLOAD(("a", 188), 44, SW, 0, 0, "pfa", "", n=1), VLOAD(("a", 189), 45, SX, 0, 128, "pfa", "", n=1))
    seq_groups(P, grp_X(0, cfg))
    A(V("v_and_b32 v5, 1, v1"), V("v_lshlrev_b32 v5, 2, v5"))
    for j in range(3):
        A(V(f"v_add_u32 v2, {64*j}, v0"), V("v_mul_u32_u24 v3, 2731, v2"), V("v_lshrrev_b32 v3, 16, v3"),
          V("v_mul_u32_u24 v4, 24, v3"), V("v_sub_u32 v2, v2, v4"),
          V("v_and_or_b32 v4, v3, 2, v5"), V(f"v_xor_b32 v{vOV+j}, v2, v4"),
          V(f"v_lshl_add_u32 v{vOK+j}, v1, 3, v3"),
          V(f"v_mul_u32_u24 v7, 12288, v{vOK+j}"), V(f"v_lshl_add_u32 v{vOW+j}, v{vOV+j}, 4, v7"))
        if j:
            A(V(f"v_subrev_u32 v{vOW+j}, {1024*j}, v{vOW+j}"))
    if not cfg["pfa"]:
        seq_groups(P, grp_W(0, cfg))
    stream = grp_W(1, cfg)
    for s in range(1, 10):
        gw = grp_W(2 * s, cfg) + grp_W(2 * s + 1, cfg)
        for g in gw:
            g.earliest = 96 * (s - 4) + 82 if s >= 4 else 0
            if cfg["w3buf"]:
                g.earliest = 96 * (s - 3) + 82 if s >= 3 else 0
            if cfg["lazy1"] and s >= 4:
                g.earliest += 8 if s - 4 >= cfg["lazy1"] else 96
            g.deadline = 96 * (min(s, 8) - 1) + 79
        gx = grp_X(s, cfg, after=[("X", s - 2)] if s >= 2 else ())
        for g in gx:
            g.earliest = xread_gap(s - 2, cfg) + (8 * xstep(s - 2, cfg) + 8 if cfg["spread1"] else 12) if s >= 3 else 0
            g.deadline = xread_gap(s, cfg) - 2
        stream += gw + gx
    A(
      S(f"s_lshl_b32 s3, s{sH}, 2"), S(f"s_add_u32 s3, s3, s{sW}"), S("s_mul_i32 s3, s3, 2560"),
      V("v_bfe_u32 v2, v0, 1, 1"), V("v_mul_u32_u24 v2, 1280, v2"), V("v_and_b32 v3, 1, v0"), V("v_lshl_add_u32 v2, v3, 7, v2"),
      V(f"v_add_u32 v{vPF+1}, s3, v2"))
    for i, pos in reversed(list(enumerate(cfg["p1pf"]))):
        if pos is None:
            continue
        g = DmaGroup([S(f"s_mov_b32 s{sAO}, {i*128*12288}")],
                     [VLOAD(("a", 190), vPF + 1, SX, 0, 256 * (i + 1), "pf", "", n=1), VLOAD(("a", 191), vPF, SW, f"s{sAO}", 0, "pf", "", n=1)])
        stream.insert(pos + 1, g)
        for q in reversed([q for q, c in enumerate(cfg["wopf0"]) if c == i]):
            x = VLOAD(("a", 189), 7, SWO, f"s{sAO}", 0, "wopf0", "", n=1)
            x.wr = set()
            stream.insert(pos + 2, DmaGroup([S(f"s_mov_b32 s{sAO}, {q*81920}")], [x]))
    if cfg["wopf0"]:
        A(wo_srd(), wo_touch_offsets(7))
    A(V("v_and_b32 v1, 15, v0"), V("v_lshrrev_b32 v2, 4, v0"))
    A(V("v_lshrrev_b32 v3, 1, v1"), V("v_xor_b32 v3, v3, v2"), V("v_lshlrev_b32 v3, 4, v3"), V("v_lshl_add_u32 v3, v1, 7, v3"),
      V("v_xor_b32 v4, 64, v3"),
      V(f"v_add_u32 v{vAX}, s{sXB0}, v3"), V(f"v_add_u32 v{vAX+1}, s{sXB0}, v4"),
      V(f"v_add_u32 v{vAX+2}, s{sXB1}, v3"), V(f"v_add_u32 v{vAX+3}, s{sXB1}, v4"))
    A(V("v_lshrrev_b32 v3, 2, v1"), V("v_lshl_add_u32 v4, v2, 3, v3"), V("v_mul_u32_u24 v4, 384, v4"),
      V("v_and_b32 v5, 3, v1"), V("v_lshl_add_u32 v4, v5, 3, v4"),
      V("v_lshrrev_b32 v3, 3, v1"), V("v_and_b32 v5, 1, v2"), V("v_lshl_or_b32 v3, v5, 1, v3"))
    for e in range(4):
        A(V(f"v_xor_b32 v5, {e}, v3"), V(f"v_lshl_add_u32 v{vAW+e}, v5, 5, v4"), V(f"v_add_u32 v{vAV+e}, {VREG}, v{vAW+e}"))
    if cfg["pfa"]:
        seq_groups(P, grp_W(0, cfg))
    seq_groups(P, stream[:cfg["npro"]])
    del stream[:cfg["npro"]]
    stream.append(DmaGroup([], [VSTORE(("a", 184), 2, SF, 0, 0, "sc1", n=1, tag="finit"), VSTORE(("a", 184), 3, SF, 0, 0, "sc1", n=4, tag="finit")]))
    return stream


def wo_srd():
    return [S(f"s_mul_i32 s3, s{sG}, {768*1280}"), S(f"s_mul_i32 s52, s{sHL}, 320"), S("s_add_u32 s3, s3, s52")] + \
        srd(SWO, 96, 97, "s3", 0) + [S(f"s_sub_u32 s{SWO+2}, 7864320, s3")]


def wo_touch_offsets(dst, n=19):
    return [S("s_lshr_b32 s3, s91, 5"), S("s_mul_i32 s3, s3, 160"), S("s_add_u32 s3, s3, s91"),
            V(f"v_min_u32 v2, {n}, v0"), V("v_mul_u32_u24 v3, 6554, v2"), V("v_lshrrev_b32 v3, 16, v3"), V("v_mul_u32_u24 v4, 10, v3"),
            V("v_sub_u32 v2, v2, v4"), V("v_lshl_add_u32 v3, v3, 5, s3"), V("v_mul_u32_u24 v3, 1280, v3"), V("v_lshl_add_u32 v2, v2, 7, v3"),
            V("v_subrev_u32 v2, s52, v2"), V(f"v_max_i32 v{dst}, 0, v2")]


def background(cfg):
    B_ = []

    def A(*ins):
        for x in ins:
            if isinstance(x, (list, tuple)):
                A(*x)
            else:
                B_.append(x)
    park = {}

    def pk(reg, src):
        park[reg] = True
        A(V(f"v_accvgpr_write_b32 a{240+PARK.index(reg)}, {src}"))
    A(V(f"v_mov_b32 v1, s{sW}"))
    A(S(f"s_and_b32 s3, s{sW}, 1"), S("s_mul_i32 s3, s3, 5"), S(f"s_lshr_b32 s88, s{sW}, 1"), S("s_lshl_b32 s88, s88, 2"), S("s_xor_b32 s3, s3, s88"))
    for j in range(3):
        A(V(f"v_mul_u32_u24 v3, 384, v{vOK+j}"))
        if j:
            A(V(f"v_subrev_u32 v3, {1024*j}, v3"))
        A(V(f"v_xor_b32 v2, s3, v{vOV+j}"), V(f"v_lshl_add_u32 v{vOK+j}, v2, 4, v3"), V(f"v_lshl_add_u32 v{vOV+j}, v{vOV+j}, 4, v3"))
    A(S(f"s_lshl_b32 s{sCNT}, s{sB}, 5"), S(f"s_add_u32 s{sCNT}, s{sCNT}, s{sH}"), S(f"s_mul_i32 s3, s{sCNT}, 393216"),
      srd(SK, 6, 7, "s3", 393216), srd(SV, 28, 29, "s3", 393216 + SLOT),
      S(f"s_sub_u32 s{SV}, s{SV}, {SLOT}"), S(f"s_subb_u32 s{SV+1}, s{SV+1}, 0"))
    A(srd(SF, 32, 33, FLAG_OFF, 0x60000))
    A(S(f"s_sub_u32 s3, s{sCNT}, s{sHL}"), S("s_mul_i32 s3, s3, 92160"), srd(SO, 32, 33, "s3", 4 * 92160))
    if not cfg["wopf0"]:
        A(wo_srd())
    A(S(f"s_lshl_b32 s3, s{sB}, 2"), S(f"s_add_u32 s3, s3, s{sHL}"), S(f"s_mul_i32 s3, s3, {75*8192}"), S(f"s_add_u32 s3, s3, {PART_OFF}"),
      srd(SP, 32, 33, "s3", 75 * 8192))
    A(S(f"s_mul_i32 s3, s{sB}, 307200"), S("s_add_u32 s3, s3, s52"), srd(SOUT, 98, 99, "s3", 0), S(f"s_sub_u32 s{SOUT+2}, 2457600, s3"))
    A(S(f"s_lshl_b32 s3, s{sB}, 5"), srd(SD, 100, 101, "s3", 4), S(f"s_add_u32 s{sTRIP}, s{sHL}, 1"))
    for p in range(4):
        A(S(f"s_add_u32 s3, s{sHL}, {p}"), S("s_and_b32 s3, s3, 3"), S(f"s_mul_i32 s{sHB+p}, s3, 245760"), S(f"s_mul_i32 s{sOB+p}, s3, 92160"))
    c = math.log2(math.e) / math.sqrt(192.0)
    A(S(f"s_mov_b32 s{sC}, {f32(c)}"), S(f"s_mov_b32 s{sTH}, {f32(cfg['thresh'])}"))
    A(wo_touch_offsets(2, 29 if cfg["wodyn"] else 19))
    pk(5, "v2")
    A(V("v_and_b32 v5, 1, v1"), V("v_lshrrev_b32 v4, 1, v1"), V("v_lshl_or_b32 v5, v5, 1, v4"))
    for j in range(3):
        A(V(f"v_add_u32 v2, {64*j}, v0"), V("v_mul_u32_u24 v3, 3277, v2"), V("v_lshrrev_b32 v3, 16, v3"),
          V("v_mul_u32_u24 v4, 20, v3"), V("v_sub_u32 v2, v2, v4"),
          V("v_lshrrev_b32 v4, 1, v3"), V("v_and_b32 v4, 2, v4"), V("v_xor_b32 v2, v2, v4"),
          V("v_lshl_add_u32 v3, v5, 3, v3"), V("v_mul_u32_u24 v3, 1280, v3"), V("v_lshl_add_u32 v2, v2, 4, v3"))
        if j:
            A(V(f"v_subrev_u32 v2, {1024*j}, v2"))
        if j == 2:
            A(V("v_lshrrev_b32 v3, 5, v0"), V("v_lshl_or_b32 v2, v3, 30, v2"))
        pk(vOWO + j, "v2")
    A(S(f"s_cmp_eq_u32 s{sW}, 3"), S(f"s_cselect_b32 s88, {OOB}, 0"))
    A(V("v_mul_u32_u24 v2, 24576, v1"), V("v_lshl_add_u32 v2, v0, 4, v2"), V("v_add_u32 v3, s88, v2"), V(f"v_add_u32 v3, {3*6144}, v3"))
    pk(vOB, "v2")
    pk(vOB + 3, "v3")
    A(S(f"s_lshl_b32 s3, s{sG}, 10"), V("v_lshlrev_b32 v2, 15, v1"), V("v_lshl_add_u32 v2, v0, 4, v2"),
      V("v_add_u32 v3, s88, v2"), V(f"v_add_u32 v3, {3*8192}, v3"))
    pk(vOP, "v2")
    pk(vOP + 3, "v3")
    mark = len(B_)
    A(V("v_and_b32 v1, 15, v0"), V("v_lshrrev_b32 v2, 4, v0"))
    A(V("v_lshrrev_b32 v3, 1, v2"), V("v_mul_u32_u24 v3, 6144, v3"), V("v_and_b32 v4, 1, v2"), V("v_lshrrev_b32 v5, 2, v1"),
      V("v_lshl_add_u32 v5, v4, 2, v5"), V("v_mul_u32_u24 v5, 320, v5"), V("v_add_u32 v3, v3, v5"), V("v_and_b32 v5, 3, v1"),
      V("v_lshl_add_u32 v3, v5, 3, v3"), V("v_lshl_add_u32 v5, v4, 5, v3"), V("v_xor_b32 v4, 1, v4"), V("v_lshl_add_u32 v4, v4, 5, v3"),
      V(f"v_add_u32 v6, {VREG}, v5"), V(f"v_add_u32 v7, {VREG}, v4"))
    pk(vA3, "v5")
    pk(vA3 + 1, "v4")
    pk(vA3 + 2, "v6")
    pk(vA3 + 3, "v7")
    A(V("v_lshrrev_b32 v3, 2, v1"), V("v_and_b32 v4, 3, v1"), V("v_lshl_add_u32 v4, v3, 3, v4"), V("v_mul_u32_u24 v4, 384, v4"),
      V("v_and_b32 v3, 1, v3"), V("v_and_b32 v5, 2, v1"), V("v_or_b32 v3, v3, v5"), V("v_lshrrev_b32 v5, 3, v1"), V("v_lshl_or_b32 v3, v5, 2, v3"),
      V("v_lshrrev_b32 v5, 1, v2"), V("v_and_b32 v6, 1, v2"), V("v_lshl_or_b32 v5, v6, 1, v5"), V("v_xor_b32 v3, v3, v5"),
      V("v_lshl_add_u32 v6, v3, 4, v4"), V("v_xor_b32 v3, 4, v3"), V("v_lshl_add_u32 v7, v3, 4, v4"))
    A(V(f"v_mov_b32 v1, s{sW}"))
    A(S(f"s_lshl_b32 s84, s{sB}, 3"), S(f"s_add_u32 s84, s84, s{sG}"), S("s_lshl_b32 s84, s84, 2"), S(f"s_add_u32 s84, s84, s{sW}"),
      S("s_lshl_b32 s84, s84, 9"),
      S(f"s_lshl_b32 s85, s{sB}, 2"), S(f"s_add_u32 s85, s85, s{sHL}"), S("s_lshl_b32 s85, s85, 13"), S("s_add_u32 s85, s85, 0x20000"),
      S(f"s_lshl_b32 s86, s{sHL}, 7"), S("s_add_u32 s86, s86, s84"),
      S("s_add_u32 s3, s3, s85"))
    A(V("v_bfe_u32 v4, v0, 4, 2"), V("v_lshl_add_u32 v4, v4, 7, s84"), V("v_lshrrev_b32 v2, 3, v0"), V("v_max_u32 v5, 1, v2"),
      V("v_lshl_add_u32 v5, v5, 7, s3"),
      V("v_lshl_add_u32 v3, v2, 10, s85"), V(f"v_xor_b32 v2, s{sG}, v2"), V("v_lshl_add_u32 v3, v2, 7, v3"),
      V("v_and_b32 v2, 7, v0"), V("v_lshl_add_u32 v3, v2, 4, v3"), V("v_min_u32 v2, 1, v1"),
      V("v_lshl_or_b32 v3, v2, 30, v3"), V("v_and_b32 v2, 31, v0"), V("v_lshl_add_u32 v2, v2, 2, s86"))
    pk(vFO, "v2")
    pk(vFP, "v3")
    pk(vFOP, "v4")
    pk(vFPP, "v5")
    assert len(park) == len(PARK)
    A([V(f"v_accvgpr_write_b32 a{184+k}, 0") for k in range(4)])
    A(S(f"s_and_b32 s3, s{sW}, 1"), S("s_lshl_b32 s3, s3, 2"), S(f"s_xor_b32 s{sGE}, s3, s{sG}"),
      S(f"s_and_b32 s3, s{sGE}, 3"), S(f"s_lshl_b32 s91, s{sW}, 2"), S("s_add_u32 s3, s3, s91"), S(f"s_lshr_b32 s{sSPIN}, s{sGE}, 2"),
      S(f"s_mul_i32 s{sJ}, s{sSPIN}, 15"), S(f"s_add_u32 s{sJ}, s{sJ}, s3"), S(f"s_lshl_b32 s{sJ}, s{sJ}, 13"),
      S(f"s_mul_i32 s{sJ+3}, s3, 20480"), S(f"s_lshl_b32 s91, s{sSPIN}, 6"), S(f"s_add_u32 s{sJ+3}, s{sJ+3}, s91"),
      S("s_cmp_eq_u32 s3, 15"), S(f"s_cselect_b32 s91, {OOB}, 0"), S(f"s_or_b32 s{sJ}, s{sJ}, s91"), S(f"s_or_b32 s{sJ+3}, s{sJ+3}, s91"),
      S(f"s_add_u32 s{sJ+1}, s{sJ}, {30*8192}"), S(f"s_add_u32 s{sJ+4}, s{sJ+3}, 128"),
      S(f"s_add_u32 s{sJ+2}, s{sJ}, {60*8192}"), S(f"s_add_u32 s{sJ+5}, s{sJ+3}, 256"),
      S(f"s_lshl_b32 s91, s{sSPIN}, 30"), S(f"s_or_b32 s{sJ+2}, s{sJ+2}, s91"), S(f"s_or_b32 s{sJ+5}, s{sJ+5}, s91"),
      S(f"s_lshl_b32 s{sGE}, s{sGE}, 10"))
    NS = len(cfg["skips"])
    if NS:
        A(S("s_lshr_b32 s3, s2, 3"), S(f"s_add_u32 s3, s3, s{sG}"), S(f"s_mov_b32 s{sMASK}, 0"))
        for lo, per in cfg["skipwin"]:
            A(S(f"s_mul_i32 s91, s3, {65536//per+1}"), S("s_lshr_b32 s91, s91, 16"), S(f"s_mul_i32 s91, s91, {per}"), S("s_sub_u32 s91, s3, s91"),
              S(f"s_lshl_b32 s91, {1 << lo}, s91"), S(f"s_or_b32 s{sMASK}, s{sMASK}, s91"))
        A(
          S(f"s_mov_b32 s{sIT}, 0"), S(f"s_mov_b32 s{sPFN}, 0"), S(f"s_mov_b32 s{sSL}, {(cfg['LA'] % 6) * SLOT}"), S(f"s_add_u32 s{sWOFFV}, s{sWOFF}, {VREG}"))
    late = [V(f"v_mov_b32 v{vAK}, v6"), V(f"v_mov_b32 v{vAK+1}, v7"),
            V(f"v_or_b32 v6, s{sW}, v0"), V("v_lshlrev_b32 v6, 8, v6"), V("v_mov_b32 v7, 1")]
    return B_, late, mark


def fill_background(G, ins, lo, hi):
    k = 0
    gi = lo
    while k < len(ins):
        n = 1
        while k + n < len(ins) and ins[k + n].text.startswith(("s_addc", "s_subb", "s_cselect")):
            n += 1
        while G[gi].free() < min(n, 2):
            gi += 1
        assert gi < hi
        G[gi].vec += ins[k:k + n]
        k += n
    return gi


def xread_gap(c, cfg):
    if cfg["w3buf"] and c == 8:
        return 96 * 6 + 56
    if cfg["spread1"]:
        if c == 9:
            return 96 * 7 + 86
        return 96 * (c - 1) + (82 if c < cfg["xearly"] else (36 if c < 5 else cfg["xoff"]))
    if c == 9:
        return 96 * 7 + 86
    return 96 * (c - 1) + (84 if c < cfg["xearly"] else 42)


def xstep(c, cfg):
    return 1 if (c == 9 or c < cfg["xearly"]) else 2


def Xr(c, u, qt):
    if W3BUF[0] and c == 8:
        return ("a", 208 + (u * 4 + qt) * 4)
    return Xf(2 if c == 9 else c & 1, u, qt)


def x_read(c, u, qt):
    return Q(qt, DSR128(Xr(c, u, qt), vAX + 2 * (c & 1) + u, 2048 * qt, ("X", c)))


def AL(dt, u):
    return ("a", (192 if dt == 11 else 96 + (dt % 3) * 16) + 4 * u)


def K0f(a, s):
    return ("a", 144 + (a * 6 + s) * 4)


def w_reads(stage, dt):
    gdt = stage * 12 + dt
    out = []
    for u in range(4 if stage == 8 else 2):
        n = 2 * stage + u
        for t in range(2):
            out.append(vtype_read(AL(dt, u) if stage == 8 else FR(2 * (gdt % 3) + u), wslot(n), dt, t, ("W", n)))
    return out


BL1, BL2 = 768 + 13, 768 + 161


def kv_prefill(cfg):
    LA = cfg["LA"]
    out = []
    seq = [("K", 0)]
    for n in range(1, LA):
        seq += [("K", n), ("V", n - 1)]
    free = {("K", 0): 658, ("K", 1): 658, ("K", 2): 754, ("K", 3): 754, ("K", 4): BL2 + 1, ("K", 5): BL2 + 1,
            ("V", 0): BL1 + 1, ("V", 1): BL1 + 1, ("V", 2): BL1 + 1, ("V", 3): BL1 + 1, ("V", 4): BL2 + 1}
    if cfg["w3buf"]:
        free.update({("K", 0): 0, ("K", 1): 0, ("V", 0): 658, ("V", 1): 658})
        if LA >= 4:
            seq[3], seq[4] = seq[4], seq[3]
        if LA >= 6:
            seq[7], seq[8] = seq[8], seq[7]
    elif LA >= 3:
        seq[2], seq[3] = seq[3], seq[2]
    for t in seq:
        g = (grp_K if t[0] == "K" else grp_V)(t[1], cfg)[0]
        g.earliest = free[t] + (8 if cfg["lazy1"] and free[t] < BL1 else 0)
        if t in (("K", 0), ("K", 1)):
            g.deadline = BL2 - 2
        out.append(g)
    return out


def put_at(G, gaps, r):
    gaps = list(gaps)
    assert len(gaps) >= len(r)
    for g, x in zip(gaps, r):
        assert G[g].free() >= 1, g
        G[g].vec.append(x)


def put_reads(G, g, r, step=1):
    for k in range(0, len(r), 2):
        assert G[g].free() >= 2, g
        G[g].vec += r[k:k + 2]
        g += step


def phase1(P, cfg, ST, stream):
    A = P.seq
    ST.seq(P, "issued")
    if cfg["tour"] and not cfg["split3"]:
        A(RAW("s_mov_b64 exec, 0"))
        for w in range(1, 4):
            A(RAW(f"s_cmp_eq_u32 s{sW}, {w}"), RAW(f"s_cbranch_scc1 KF_pg{w}"))
        A(RAW("s_branch KF_pg4"), LABEL("KF_tret"), RAW("s_mov_b64 exec, -1"))
    A(RAW("s_branch KF_go"), RAW(".p2align 12"), LABEL("KF_go"))
    ST.seq(P, "toured")
    seq_groups(P, stream[:cfg["npro2"]])
    stream = stream[cfg["npro2"]:]
    A(WAITV(("X", 0), ("W", 0), ("W", 1)), BARRIER())
    ST.seq(P, "landed")
    for u in range(2):
        for qt in range(4):
            A(x_read(0, u, qt))
    A(w_reads(0, 0), w_reads(0, 1))
    mfs = []
    for st in range(8):
        for dt in range(12):
            gdt = st * 12 + dt
            for qt in range(4):
                for u in range(2):
                    C = 0 if (st == 0 and u == 0) else acc(dt, qt)
                    m = Q(qt, MFMA(acc(dt, qt), FR(2 * (gdt % 3) + u), Xr(st, u, qt), C))
                    if qt == 0 and u == 0:
                        m.rd |= set(regs("v", FR(2 * (gdt % 3) + 1)[1], 4))
                        if dt == 0:
                            m.rd |= set(regs("a", Xr(st, 0, 0)[1], 32))
                    mfs.append(m)
    done = {}
    order = [(dt, qt) for dt in range(10) for qt in range(4)] + [(dt, qt) for qt in range(4) for dt in (10, 11)]
    for dt, qt in order:
        for u in range(4):
            m = Q(qt, MFMA(acc(dt, qt), AL(dt, u), Xr(8 + u // 2, u & 1, qt), acc(dt, qt)))
            if qt == 0 and u == 0:
                m.rd |= set(regs("a", AL(dt, 0)[1], 16))
                if dt == 0 and not cfg["spread1"]:
                    m.rd |= set(regs("a", Xr(9, 0, 0)[1], 32))
            if dt == 0 and u == 0:
                m.rd |= set(regs(*Xr(9, 1, qt), 4))
            mfs.append(m)
        done[(dt, qt)] = len(mfs) - 1
    assert len(mfs) == 960
    for qt in range(4):
        for a in range(2):
            for s in range(6):
                m = Q(qt, MFMA(St(a, qt), K0f(a, s), Qf(qt, s), 0 if s == 0 else St(a, qt)))
                if qt == 0 and s == 0:
                    m.rd |= set(regs("a", K0f(a, 0)[1], 24))
                mfs.append(m)
    G = P.gaps(mfs)
    SP_ = cfg["spread1"]
    for st in range(8):
        b = 96 * st
        for dt in range(2, 12):
            if SP_:
                put_at(G, [b + 8 * (dt - 2) + k * (SP_ if dt < 11 or cfg["lazy1"] else 1) for k in range(4)], w_reads(st, dt))
            else:
                put_reads(G, b + 8 * (dt - 2), w_reads(st, dt))
        if SP_ and st < 7:
            put_at(G, range(b + 82, b + 86), w_reads(st + 1, 0))
        else:
            put_reads(G, b + 82, w_reads(st + 1, 0))
        if st < 7:
            if SP_:
                put_at(G, range(b + 88, b + 96, SP_), w_reads(st + 1, 1))
            else:
                put_reads(G, b + 88, w_reads(st + 1, 1))
        need = [("W", 2 * st + 2), ("W", 2 * st + 3)] if st < 7 else [("W", n) for n in range(16, 20)]
        if cfg.get("p1stamps"):
            ST.gap(G[b + 79], G[b + 81], f"st{st}")
        if cfg.get("p1light"):
            ST.light2(G[b + 55], G[b + 79], f"st{st}")
        G[b + 80].sca.append(WAITV(*need))
        if cfg["lazy1"]:
            G[b + 81].sca.append(BARRIER(frees=[("W", 2 * st - 2), ("W", 2 * st - 1)]))
            if st >= cfg["lazy1"]:
                G[b + 89].sca.append(BARRIER(frees=[("W", 2 * st), ("W", 2 * st + 1)]))
        else:
            G[b + 81].sca.append(BARRIER(frees=[("W", 2 * st), ("W", 2 * st + 1)] + ([("X", 8)] if cfg["w3buf"] and st == 6 else [])))
    for c in range(1, 10):
        g = xread_gap(c, cfg)
        G[g - 1].sca.append(WAITV(("X", c)))
        if SP_:
            put_at(G, range(g, g + 32, 2 if xstep(c, cfg) == 2 else 1), [x_read(c, u, qt) for qt in range(4) for u in range(2)])
        else:
            put_reads(G, g, [x_read(c, u, qt) for u in range(2) for qt in range(4)])
    for dt in range(1, 11):
        if SP_ and cfg["lstep"]:
            continue
        if SP_ and dt < 10:
            put_at(G, range(768 + 16 * (dt - 1), 960), w_reads(8, dt))
        else:
            put_reads(G, 768 + 16 * (dt - 1), w_reads(8, dt))
    if SP_ and cfg["lstep"]:
        put_at(G, list(range(768, 776)) + list(range(776, 920, 2)), sum((w_reads(8, dt) for dt in range(1, 11)), []))
        put_at(G, range(799, 927, 16), w_reads(8, 11))
    else:
        put_reads(G, 768 + 16 * 9 + 4, w_reads(8, 11))
    if cfg.get("p1light"):
        for q in (1, 7):
            ST.light2(G[768 + 16 * q - 9], G[768 + 16 * q], f"L{q}")
    G[BL1].sca.append(BARRIER(frees=[("X", 8), ("X", 9)]))
    G[BL2 - 1].sca.append(WAITV(("K", 0), ("K", 1), "finit"))
    G[BL2].sca.append(BARRIER(frees=[("W", n) for n in range(16, 20)]))
    r = [DSR128(K0f(a, s), vAK + (s & 1), kslot(0) + 1536 * a + 128 * (s >> 1), ("K", 0)) for a in range(2) for s in range(6)]
    if SP_:
        put_at(G, range(BL2 + 1, 960, 2), r)
        put_at(G, range(964, 1000, 3), [k_read(1, 0, s) for s in range(6)])
    else:
        put_reads(G, BL2 + 1, r, 3)
        put_reads(G, 962, [k_read(1, 0, s) for s in range(6)], 3)
    ok = lambda k: k % 8 != 7
    pc = cfg["pace"]

    def pace(k):
        for lim, p in pc:
            if k < lim:
                return p
        return pc[-1][1]
    kv = kv_prefill(cfg)
    if cfg["w3buf"]:
        tagpos = lambda t: max(k for k, g in enumerate(stream) if g.dmas[0].meta["tag"] == t)
        for c in cfg["xfirst"]:
            k = tagpos(("X", c))
            xs = [stream.pop(k - 1), stream.pop(k - 1)]
            k = tagpos(("W", 2 * c))
            stream[k:k] = xs
        if cfg["fpos"]:
            g = stream.pop()
            stream.insert(tagpos(cfg["fpos"]) + 1, g)
        for t in cfg["kearly"]:
            k = tagpos(t) + 1
            while k < len(stream) and stream[k].dmas[0].meta["tag"] in ("pf", "wopf0"):
                k += 1
            stream.insert(k, kv.pop(0))
    left = place_stream(P, G, stream, 0, 960, pace, ok)
    assert not left
    last = max(k for k, g in enumerate(G) if g.isdma())
    left = place_stream(P, G, kv, last + 1, len(G), lambda k: cfg["kvpace"], ok)
    bg, late, mark = background(cfg)
    for i, g in enumerate(cfg["wopf1"]):
        g = free_gap(G, g, ok)
        x = VLOAD(("a", 189), 5, SWO, "s3", 0, "wopf1", "", n=1)
        x.wr = set()
        G[g].vec.append(x)
        P.flex_scalar(S(f"s_mov_b32 s3, {i*81920}"), list(reversed(G[g - 5:g])))
    if cfg["wopf1"]:
        bg.append(V(f"v_accvgpr_read_b32 v5, a{240+PARK.index(5)}"))
    first_use = min(k for k, g in enumerate(G) for x in g.vec if x.meta.get("tag") in ("finit", ("K", 0), "wopf1"))
    pos_of = lambda t: [q for q, g in enumerate(G) for x in g.vec if x.meta.get("tag") == t]
    k = fill_background(G, bg[:mark], cfg["bgstart"], min(pos_of(("K", 0))) + 200)
    kvready = max(q for q, g in enumerate(G) for x in g.vec if x.text.startswith("s_subb_u32"))
    assert kvready + 4 < min(pos_of(("K", 0))), kvready
    k = fill_background(G, bg[mark:], max([k] + [q + 1 for q in pos_of("wopf0")]), min(pos_of("finit") + pos_of("wopf1")) - 8)
    lastpf = max([k] + [q for q, g in enumerate(G) for x in g.vec if x.meta.get("tag") == "pf"])
    fill_background(G, late, lastpf + 1, 760)
    ops = []
    swaps = []
    LAG = 5

    def muls(dt, qt, dl):
        r = acc(dt, qt)[1]
        return Q(qt, [(done[(dt, qt)] + LAG, dl, V(f"v_mul_f32 v{r+k}, s{sC}, v{r+k}")) for k in range(4)])
    for s in range(6):
        if s < 5:
            for qt in range(4):
                ops += muls(2 * s, qt, 958)
        for qt in range(4):
            dl = 960 + 12 * qt + s - 2
            if s == 5:
                ops += muls(10, qt, dl)
            ops += muls(2 * s + 1, qt, dl)
            ops += swaps
            a_, b_ = acc(2 * s, qt)[1], acc(2 * s + 1, qt)[1]
            e = done[(2 * s + 1, qt)] + LAG
            ops += [(e, dl, V(f"v_cvt_pk_bf16_f32 v{a_}, v{a_}, v{a_+1}")), (e, dl, V(f"v_cvt_pk_bf16_f32 v{a_+1}, v{a_+2}, v{a_+3}")),
                    (e, dl, V(f"v_cvt_pk_bf16_f32 v{a_+2}, v{b_}, v{b_+1}")), (e, dl, V(f"v_cvt_pk_bf16_f32 v{a_+3}, v{b_+2}, v{b_+3}"))]
            swaps = [(e, dl, V(f"v_permlane16_swap_b32 v{a_}, v{a_+2}")), (e, dl, V(f"v_permlane16_swap_b32 v{a_+1}, v{a_+3}"))]
            Q(qt, ops[-4:] + swaps)
            if s == 5:
                ops += swaps
                swaps = []
    INF = 10**9
    rm = rowmax(1)
    for pr in range(2):
        q0, q1 = 2 * pr, 2 * pr + 1
        ops += [(960 + 12 * q0 + 11 + LAG, INF, x) for x in rm[4 * q0:4 * q0 + 4]]
        e = 960 + 12 * q1 + 11 + LAG
        blk = rm[4 * q1:4 * q1 + 4] + xred([1 + q0, 1 + q1], [vE, vE + 1], "v_max_f32")
        if pr == 1 and not cfg["split3"]:
            blk.append(V(f"v_subrev_f32 v4, s{sPAD}, v4"))
        for qt in (q0, q1):
            blk += Q(qt, [V(f"v_sub_f32 v{vNM+4*qt+r}, 0, v{1+qt}") for r in range(4)])
            blk.append(V(f"v_mov_b32 v{vL+qt}, 0") if qt < 3 else V(f"v_sub_f32 v{vL+qt}, 0, s{sPAD}"))
        blk += softmax_seq(0, 1, [q0, q1], not cfg["R"])
        ops += [(e, INF, x) for x in blk if x.kind != "nop"]
    rest = [x for _, _, x in fill_ops(G, ops, 768)]
    if cfg.get("dbgp1"):
        lo_, hi_, st_ = cfg["dbgp1"]
        for k in range(lo_, hi_, st_):
            G[k].post.append(RAW("s_nop 7"))
    ST.seq(P, "qk0end")
    dm = sum((group_seq(g) for g in left), [])
    step = max(1, len(rest) // (len(dm) + 1))
    for k, x in enumerate(rest):
        if dm and k % step == step - 1:
            A(dm.pop(0))
        A(x)
    A(dm)
    A(WAITV(("V", 0)) if cfg["bpos"] else WAITV(("V", 0), ("K", 2)), BARRIER(frees=[("K", 0)]))


def qk_mfmas(first):
    out = []
    for a in range(2):
        for qt in range(4):
            for s in range(6):
                C = (0 if first else NM(qt)) if s == 0 else St(a, qt)
                m = Q(qt, MFMA(St(a, qt), Kf(a, s), Qf(qt, s), C))
                if qt == 0 and s in (0, 3):
                    m.rd |= set(regs("a", Kf(a, s)[1], 12))
                out.append(m)
    return out


def pv_mfmas(j):
    out = []
    for dt in range(12):
        for qt in range(4):
            out.append(Q(qt, MFMA(Oa(dt, qt), FR(dt), Pf(j & 1, qt), 0 if j == 0 else Oa(dt, qt))))
    return out


def xred(x, t, op):
    out = []
    for sw in ("v_permlane32_swap_b32", "v_permlane16_swap_b32"):
        for a, b in zip(x, t):
            out.append(V(f"v_mov_b32 v{b}, v{a}"))
        out.append(NOP(0))
        for a, b in zip(x, t):
            out.append(V(f"{sw} v{b}, v{a}"))
        for a, b in zip(x, t):
            out.append(V(f"{op} v{a}, v{a}, v{b}"))
    for y in out:
        if op == "v_max_f32" and "v4" in (y.rd | y.wr):
            Q(3, y)
    return out


def rowmax(dst):
    out = []
    for qt in range(4):
        s0, s1 = St(0, qt)[1], St(1, qt)[1]
        d = dst + qt
        out += [V(f"v_max3_f32 v{d}, v{s0}, v{s0+1}, v{s0+2}"), V(f"v_max3_f32 v{d}, v{d}, v{s0+3}, v{s1}"),
                V(f"v_max3_f32 v{d}, v{d}, v{s1+1}, v{s1+2}"), V(f"v_max_f32 v{d}, v{d}, v{s1+3}")]
        Q(qt, out[-4:])
    return out


def softmax_seq(par, delta, qts=range(4), adds=True):
    out = []
    for qt in qts:
        n0 = len(out)
        for a in range(2):
            s = St(a, qt)[1]
            for r in range(4):
                out.append(V(f"v_sub_f32 v{vE+4*a+r}, v{s+r}, v{delta+qt}"))
        for k in range(8):
            out.append(V(f"v_exp_f32 v{vE+k}, v{vE+k}"))
        p = Pf(par, qt)[1]
        if adds:
            out.append(V(f"v_add_f32 v{vTS+qt}, v{vE}, v{vE+1}"))
            for k in range(2, 8):
                out.append(V(f"v_add_f32 v{vTS+qt}, v{vTS+qt}, v{vE+k}"))
        for k in range(4):
            out.append(V(f"v_cvt_pk_bf16_f32 v{p+k}, v{vE+2*k}, v{vE+2*k+1}"))
        Q(qt, out[n0:])
    return out


def unpark():
    un = [V(f"v_accvgpr_read_b32 v{r}, a{240+k}") for k, r in enumerate(PARK)]
    un += [V(f"v_add_u32 v{vOB+1}, 6144, v{vOB}"), V(f"v_add_u32 v{vOB+2}, 12288, v{vOB}"),
           V(f"v_add_u32 v{vOP+1}, 8192, v{vOP}"), V(f"v_add_u32 v{vOP+2}, 16384, v{vOP}")]
    return un


def asel_setup():
    out = [V("v_and_b32 v2, 3, v0"), V("v_mov_b32 v3, 0x3f803f80")]
    for qt in range(4):
        out += [V(f"v_cmp_eq_u32 vcc, {qt}, v2"), V("v_cndmask_b32 v4, 0, v3, vcc")]
        out += [V(f"v_accvgpr_write_b32 a{240+4*qt+k}, v4") for k in range(4)]
        Q(qt, out[-6:])
    return out


def fallback(par, cfg):
    out = [LABEL(f"KF_fix{par}"), RAW("s_waitcnt vmcnt(0)"), NOP(7)]
    out += rowmax(1)
    out += xred([1, 2, 3, 4], [vE, vE + 1, vE + 2, vE + 3], "v_max_f32")
    for qt in range(4):
        out.append(Q(qt, V(f"v_max_f32 v{1+qt}, 0, v{1+qt}")))
    out += softmax_seq(par, 1, range(4), not cfg["R"])
    for qt in range(4):
        for r in range(4):
            out.append(Q(qt, V(f"v_sub_f32 v{vNM+4*qt+r}, v{vNM+4*qt+r}, v{1+qt}")))
    for qt in range(4):
        out.append(Q(qt, V(f"v_exp_f32 v{1+qt}, -v{1+qt}")))
    out.append(NOP(0))
    for qt in range(4):
        lo = Lb(par ^ 1)[1] if cfg["R"] else vL
        out.append(Q(qt, V(f"v_mul_f32 v{lo+qt}, v{lo+qt}, v{1+qt}")))
    if cfg["R"]:
        out += [NOP(1)] + rowsum_mfmas(par)
    for dt in range(12):
        for qt in range(4):
            a = Oa(dt, qt)[1]
            e = vE + 4 * (qt & 1)
            for r in range(4):
                out.append(V(f"v_accvgpr_read_b32 v{e+r}, a{a+r}"))
            for r in range(4):
                out.append(V(f"v_mul_f32 v{e+r}, v{e+r}, v{1+qt}"))
            for r in range(4):
                out.append(V(f"v_accvgpr_write_b32 a{a+r}, v{e+r}"))
            Q(qt, out[-12:])
    out += [NOP(1), I(f"s_setpc_b64 s[{sRET}:{sRET+1}]", "branch")]
    return out


def iteration(P, cfg, j, lab, groups, extra_vm=None, opre=(), extra_valu=(), forcevm=None):
    par = (j + 1) & 1
    R = cfg["R"]
    mf = qk_mfmas(False) + pv_mfmas(j)
    RP = cfg["rpos"]
    rs = ((rowsum_mfmas(0) if j == 0 else []) + rowsum_mfmas(par)) if R else []
    G = P.gaps(mf[:RP] + rs + mf[RP:])
    pos = lambda n: n if n < RP else n + len(rs)
    E = len(G) - 1
    exp_gaps = cfg["expgaps"] if R else [11 + 5 * k + o for k in range(16) for o in (0, 2)]
    slots = cfg["dmagaps"][len(groups)]
    lo = 0
    for g, idx in zip(groups, slots):
        for s_ in g.pre:
            P.flex_scalar(s_, G[lo:idx[0]])
        for k, d in zip(idx, g.dmas):
            assert k not in exp_gaps
            G[k].vec.append(d)
        lo = idx[-1] + 1
    if extra_vm is not None:
        G[E - 1].vec.append(extra_vm)
    for k, sc, x in opre:
        assert not G[k].vec and k not in exp_gaps
        G[k].vec.append(x)
        if sc:
            P.flex_scalar(sc, list(reversed(G[k - 6:k])))
    valu = []
    if not R:
        for qt in range(4):
            valu.append((0, V(f"v_add_f32 v{vL+qt}, v{vL+qt}, v{vTS+qt}")))
    n = 0
    for T in range(8):
        a, qt = divmod(T, 4)
        s = St(a, qt)[1]
        p = Pf(par, qt)[1] + 2 * a
        for r in range(4):
            g = exp_gaps[n]
            e = vE + n % 8
            assert not G[g].vec and g >= 6 * T + 9
            G[g].vec.append(Q(qt, V(f"v_exp_f32 v{e}, v{s+r}")))
            if R or (a == 0 and r == 0):
                pass
            elif a == 0 and r == 1:
                valu.append((g + 1, V(f"v_add_f32 v{vTS+qt}, v{e-1}, v{e}")))
            else:
                valu.append((g + 1, V(f"v_add_f32 v{vTS+qt}, v{vTS+qt}, v{e}")))
            if r & 1:
                valu.append((g + 1, Q(qt, V(f"v_cvt_pk_bf16_f32 v{p+(r>>1)}, v{e-1}, v{e}"))))
            n += 1
        if T == 6 and not R:
            valu.append((g + 1, V(f"v_max3_f32 v1, v{vTS}, v{vTS+1}, v{vTS+2}")))
    if R:
        l = Lb(par)[1]
        G[E - 3].vec += [V(f"v_max3_f32 v1, v{l}, v{l+1}, v{l+2}"), V(f"v_max_f32 v1, v1, v{l+3}")]
        G[E - 2].vec.append(V(f"v_cmp_nge_f32 vcc, s{sTH}, v1"))
    else:
        valu.append((g + 1, V(f"v_max_f32 v1, v1, v{vTS+3}")))
        valu.append((g + 1, V(f"v_cmp_lt_f32 vcc, s{sTH}, v1")))
    lds = []
    for s in range(6):
        lds.append((s, 14, k_read(j + 1, 1, s)))
    t0 = 6
    for dt in range(6):
        for t in range(2):
            lds.append((t0 + 3 * (2 * dt + t), 48 + 4 * dt - 8, vtype_read(FR(dt), vslot(j), dt, t, ("V", j))))
    BP = cfg["bpos"]
    if BP and j == 0:
        BP += 4
    if j + 2 < 32:
        for s in range(6):
            lds.append(((27, 33, 38, 43, 47, 50)[s], 70, k_read(j + 2, 0, s)) if not BP else (BP + 1 + int(s * cfg["kstep"]), BP + 12, k_read(j + 2, 0, s)))
    for dt in range(6, 12):
        for t in range(2):
            lds.append((pos(48 + 4 * (dt - 6) + 3), pos(48 + 4 * dt) - 8, vtype_read(FR(dt), vslot(j), dt, t, ("V", j))))
    if j == 30 and BP and cfg["vpre"]:
        for dt in range(4):
            for t in range(2):
                lds.append((max(BP + 1 + 2 * (2 * dt + t) - (dt > 1), pos(48 + 4 * (dt + 6) + 3)), E - 1, vtype_read(FR(dt), vslot(31), dt, t, ("V", 31))))
        k = 82
        G[k].vec.append(poll_cmp(32))
        G[k + 4].sca += [I("s_cbranch_vccnz KF_slc", "branch", rd=["vcc"]), LABEL("KF_rtc")]
        P.slow += slow_path("c", "c", 32)
    for gi, g in enumerate(G):
        while g.free() > 0:
            cand = []
            if valu and valu[0][0] <= gi:
                cand.append((min(valu[0][0] + cfg["vslack"], (RP - 2) if R else 93), 0, None))
            av = [x for x in lds if x[0] <= gi]
            if av:
                b = min(av, key=lambda x: x[1])
                nl = len([y for y in g.vec if y.kind == "lds"])
                cand.append((b[1] - (100 if nl == 0 and len([v for v in valu if v[0] <= gi]) < 3 else 0), 1, b))
            if not cand:
                break
            c = min(cand, key=lambda x: x[:2])
            if c[1] == 0:
                assert valu[0][0] + 16 >= gi and (not R or gi < RP)
                g.vec.append(valu.pop(0)[1])
            else:
                assert c[2][1] >= gi, (gi, c[2])
                lds.remove(c[2])
                g.vec.append(c[2][2])
    assert not valu and not lds, (valu, lds)
    if extra_valu:
        assert not fill_ops(G[:RP], [(0, RP - 2, x) for x in extra_valu])
    if cfg.get("dbgnop"):
        for k in range(cfg["dbgnop"]):
            G[exp_gaps[(k * 32) // cfg["dbgnop"]]].post.append(NOP(3))
    kn = j + 2 if BP else j + 3
    need = [("V", j + 1)] + ([("K", kn)] if kn < 32 else [])
    w = WAITV(*need)
    if forcevm is not None:
        w.meta["vm"] = forcevm
    P.itwait[j] = w
    G[BP - 1 if BP else E - 3].sca.append(w)
    G[BP if BP else E - 2].sca.append(BARRIER(frees=[("V", j - 1 if cfg["lazy2"] and j < 25 else j), ("K", j + 1)]))
    G[E].sca.append(I(f"s_cbranch_vccnz KF_fx{lab}", "branch", rd=["vcc"]))
    assert not G[E].vec
    G[E].post.append(LABEL(f"KF_bk{lab}"))
    return G


KORD = [(0, s) for s in range(6)] + [(p, s) for s in range(6) for p in (1, 2, 3)]


def acc3(nt, qt):
    if nt < 4:
        return ("a", 192 + (nt * 4 + qt) * 4)
    return ("v", 64 + ((nt - 4) * 4 + qt) * 4)


def Bf(ks, qt):
    if ks < 6 or ks >= 18:
        return ("v", 160 + ((ks % 6) * 4 + qt) * 4)
    return ("a", ((ks - 6) * 4 + qt) * 4)


def wo_read(dst, ks, nt, tt):
    sl = woslot(ks)
    a, off = (vA3 + 2, sl - VREG) if sl >= VREG else (vA3, sl)
    return DSTR((dst[0], dst[1] + 2 * tt), a + (nt & 1), off + 3072 * tt + 64 * (nt >> 1), ("WO", ks))


def grp_B(ks, cfg):
    p, s = KORD[ks]
    so, pre = (f"s{sOB+p}", []) if s < 4 else (f"s{sOKV}", [S(f"s_add_u32 s{sOKV}, s{sOB+p}, 4096")])
    return [DmaGroup(pre, [Q(qt, VLOAD(Bf(ks, qt), vOB + qt, SO, so, 1024 * (s & 3), ("B", ks), cfg["bflags"])) for qt in range(4)])]


def poll_load(kind):
    off, srd_ = {"c": (6, SD), "o": (vFOP, SF), "p": (vFPP, SF)}[kind]
    return VLOAD(("v", 5), off, srd_, 0, 0 if kind == "c" else 4, None, "sc1", n=1)


def poll_cmp(need):
    return V(f"v_cmp_gt_u32 vcc, {need}, v5")


def slow_path(name, kind, need):
    return [f"KF_sl{name}:", f"s_mov_b32 s{sSPIN}, 0", f"KF_sp{name}:", poll_load(kind).text, "s_waitcnt vmcnt(0)", poll_cmp(need).text,
            f"s_add_u32 s{sSPIN}, s{sSPIN}, 1", f"s_cmp_gt_u32 s{sSPIN}, 0x40000", f"s_cbranch_scc1 KF_rt{name}",
            f"s_cbranch_vccnz KF_sp{name}", f"s_branch KF_rt{name}"]


def check_seq(P, name, kind, need):
    P.slow += slow_path(name, kind, need)
    return [poll_cmp(need), NOP(0), I(f"s_cbranch_vccnz KF_sl{name}", "branch", rd=["vcc"]), LABEL(f"KF_rt{name}")]


def free_gap(G, k, ok=lambda k: True):
    while G[k].vec or G[k].sca or G[k].post or not ok(k):
        k += 1
    return k


def check_gaps(P, G, name, kind, need, g_load, g_chk, ok):
    k = free_gap(G, g_load, ok)
    G[k].vec.append(poll_load(kind))
    k = free_gap(G, max(g_chk, k + 1), ok)
    G[k].vec.append(poll_cmp(need))
    k = free_gap(G, k + 1, ok)
    G[k].sca.append(I(f"s_cbranch_vccnz KF_sl{name}", "branch", rd=["vcc"]))
    G[k].sca.append(LABEL(f"KF_rt{name}"))
    P.slow += slow_path(name, kind, need)
    return k + 1


def flag_gaps(G, tags, val, off, g, ok, wb=None):
    if wb:
        k = free_gap(G, g - wb, ok)
        G[k].sca.append(WAITV(*tags))
        k = free_gap(G, k + 1, ok)
        G[k].vec.append(I("buffer_wbl2 sc1", "vstore", [], [], data=set(), n=1, tag=("wb", val)))
        tags = [("wb", val)]
    k = free_gap(G, g, ok)
    G[k].sca.append(WAITV(*tags))
    G[k].vec.append(V(f"v_mov_b32 v7, {val}"))
    k = free_gap(G, k + 1, ok)
    G[k].vec.append(VSTORE(("v", 7), off, SF, 0, 0, "sc1", n=1))
    return k


def otouch(s, cfg):
    x = VLOAD(("v", 4), 1, SO, f"s{sOB}" if s < 4 else f"s{sOX}", 1024 * (s & 3), None, cfg["otflags"], n=1)
    if s < 5:
        x.wr = set()
    return x


RCP = [2, 3, 8, 9]
F0 = 48


def pack_muls(G):
    for g in G:
        if g.cost() < 8:
            continue
        out = []
        k = 0
        v = g.vec
        while k < len(v):
            x = v[k]
            y = v[k + 1] if k + 1 < len(v) else None
            if k >= 3 and y is not None and "omul" in x.meta and "omul" in y.meta and x.meta["omul"][0] % 2 == 0 \
                    and y.meta["omul"] == (x.meta["omul"][0] + 1, x.meta["omul"][1]):
                r, f = x.meta["omul"]
                sel = "op_sel_hi:[1,0]" if f % 2 == 0 else "op_sel:[0,1] op_sel_hi:[1,1]"
                z = V(f"v_pk_mul_f32 v[{r}:{r+1}], v[{r}:{r+1}], v[{f&~1}:{(f&~1)+1}] {sel}")
                out.append(Q(x.meta["q"], z))
                k += 2
            else:
                out.append(x)
                k += 1
        g.vec = out


def unified_schedule(P, G, cfg, ost, wo_left, base, bar, stage_of, ok):
    c_st, c_miss, c_hit, lead = cfg["p3sched"]
    chunk_of = cfg["chunks"]
    ready = cfg["oready"]
    for g in wo_left:
        t = g.dmas[0].meta["tag"][1]
        g.earliest = bar[stage_of[t - 12] + (1 if cfg["lazy3"] else 0)] + 1 if t >= 12 else (34 if t == 11 else 0)
        g.deadline = bar[stage_of[t] - 1] - 2
        g.cost = c_hit
    bs = [grp_B(ks, cfg)[0] for ks in range(6, 24)]
    for g in bs:
        ks = g.dmas[0].meta["tag"][1]
        g.deadline = base[stage_of[ks]] - 2 + 0.01 * ks
        g.earliest = None
        g.cost = c_miss if KORD[ks][0] == 1 else c_hit
    need = {}
    for g in bs:
        need.setdefault(chunk_of[KORD[g.dmas[0].meta["tag"][1]][1]], g.deadline)
    sts = []
    for n, x in enumerate(ost):
        g = DmaGroup([], [x], ready(n))
        c = chunk_of[n // 4]
        left = len([m for m in range(n + 1, 24) if chunk_of[m // 4] == c])
        g.deadline = need[c] - lead - sum(cfg["lags"][c]) - left * c_st
        g.cost = c_st
        sts.append(g)
    opos, ee = [], []
    groups = list(wo_left) + bs
    t = float(cfg["wstart"])
    pos = 0
    while groups or sts:
        cand = [g for g in groups if g.earliest is not None] + sts[:1]
        av = [g for g in cand if g.earliest <= t + 2]
        g = min(av, key=lambda x: x.deadline) if av else min(cand, key=lambda x: x.earliest)
        t = max(t, g.earliest + len(g.pre))
        k = pos + len(g.pre) + (1 if g.pre else 0)
        idx = []
        for d in g.dmas:
            k = free_gap(G, max(k, int(t)), ok)
            G[k].vec.append(d)
            idx.append(k)
            t = max(t + g.cost, k - 6)
            k += 1
        for s_ in g.pre:
            P.flex_scalar(s_, list(reversed(G[pos:idx[0]])))
        pos = idx[-1] + 1
        if sts and g is sts[0]:
            sts.pop(0)
            opos.append(idx[0])
            n = len(opos) - 1
            c = chunk_of[n // 4]
            if n == 23 or chunk_of[(n + 1) // 4] != c:
                k = flag_gaps(G, [("O", c)], c + 1, vFO, idx[0] + cfg["lags"][c][0], ok)
                k = max(k + cfg["lags"][c][1], (ee[-1] if ee else 0))
                ee.append(check_gaps(P, G, f"o{c}", "o", c + 1, k, k + cfg["lags"][c][2], ok))
                for h in bs:
                    ks = h.dmas[0].meta["tag"][1]
                    if chunk_of[KORD[ks][1]] == c:
                        h.earliest = ee[-1]
                        if ks >= 18:
                            assert n >= 4 * (ks - 18) + 3
                            h.earliest = max(h.earliest, base[stage_of[ks - 18] + 1])
        else:
            groups.remove(g)
            assert idx[-1] <= g.deadline, (g.dmas[0].meta["tag"], idx, g.deadline)
            P.slack.append((g.dmas[0].meta["tag"], idx[0], idx[-1], int(g.deadline)))
    P.slack.append(("stores", opos, "checks", ee))
    return opos


def phase3(P, cfg, ST, wo_left):
    A = P.seq
    stages = cfg["stages"]
    j = 31
    VP = cfg["vpre"] and cfg["bpos"]
    if not VP:
        for dt in range(4):
            for t in range(2):
                A(vtype_read(FR(dt), vslot(j), dt, t, ("V", j)))
        A(check_seq(P, "c", "c", 32))
        A(S(f"s_add_u32 s{sOX}, s{sOB}, 4096"))
    if cfg["otouch"]:
        A(V("v_lshrrev_b32 v1, 4, v0"), V("v_mul_u32_u24 v1, 6144, v1"), V("v_bfe_u32 v4, v0, 1, 3"), V("v_lshl_add_u32 v1, v4, 7, v1"),
          V(f"v_lshl_add_u32 v1, s{sWOFF}, 3, v1"))
    pre = []
    if not cfg["R"]:
        A([V(f"v_add_f32 v{vL+qt}, v{vL+qt}, v{vTS+qt}") for qt in range(4)])
        pre = xred([vL + q for q in range(4)], [vE + q for q in range(4)], "v_add_f32")
    pre += [Q(qt, V(f"v_rcp_f32 v{RCP[qt]}, v{vL+qt}")) for qt in range(4)]
    pre = [x for x in pre if x.kind != "nop"]
    npre = 0 if VP else 12
    A(pre[:npre])

    def abuf(si, nt):
        L = len(stages[si])
        if L == 2:
            g = 10 * si + nt
            return [FR(2 * (g % 3) + u) for u in range(2)]
        return [("a", (nt % 4) * 24 + u * 4) for u in range(L)]

    def areads(si, nt):
        return [wo_read(d, ks, nt, tt) for d, ks in zip(abuf(si, nt), stages[si]) for tt in range(2)]

    secs = [pv_mfmas(j)]
    fin = {}
    for si, kss in enumerate(stages):
        mfs = []
        order = [(nt, qt) for nt in range(10) for qt in range(4)]
        if len(kss) > 2 and cfg["pairmaj"]:
            order = order[:8] + [(2 * p + h, qt) for p in range(1, 5) for qt in range(4) for h in range(2)]
        for nt, qt in order:
            ab = abuf(si, nt)
            if True:
                fin[(nt, qt)] = len(mfs) + len(kss) - 1
                for u, ks in enumerate(kss):
                    C = 0 if ks == 0 else acc3(nt, qt)
                    m = Q(qt, MFMA(acc3(nt, qt), ab[u], Bf(ks, qt), C))
                    if qt == 0 and u % 2 == 0:
                        m.rd |= set(regs(ab[u + 1][0], ab[u + 1][1], 4))
                    if nt == 0 and u == 0 and qt == 0 and kss[0] >= 6:
                        for k2 in kss:
                            m.rd |= set(regs(*Bf(k2, 0), 16))
                    mfs.append(m)
        secs.append(mfs)
    G = P.gaps(sum(secs, []))
    base = [F0 + sum(len(x) for x in secs[1:i + 1]) for i in range(len(stages) + 1)]
    ok = lambda k: (k % 4 != 3) if k < F0 else (k % 8 != 7)
    for k, g in enumerate(G):
        g.nomem = not ok(k)
    for dt in range(4, 12):
        g = 0 + 2 * (dt - 4) if dt < 6 else 4 * (dt - 6) + 3
        G[g].vec += [vtype_read(FR(dt), vslot(j), dt, t, ("V", j)) for t in range(2)]
    G[32].sca.append(WAITV(("WO", 0), ("WO", 1)))
    G[33].sca.append(BARRIER(frees=[("V", 31)]))
    put_reads(G, 34, areads(0, 0))
    put_reads(G, 40, areads(0, 1))
    bar = {-1: 33}
    SP_ = cfg["spread3"]
    for si, kss in enumerate(stages):
        L = len(kss)
        per = 4 * L
        b = base[si]
        nxtL = len(stages[si + 1]) if si + 1 < len(stages) else 0
        ahead = 2 if L == 2 else 1
        for nt in range(ahead, 10):
            if L > 2 and cfg["pairmaj"]:
                if nt == 1:
                    put_at(G, [b + (k * 5) // 4 for k in range(6 * L)], areads(si, 1) + areads(si, 2) + areads(si, 3))
                elif nt >= 4 and nt % 2 == 0:
                    put_at(G, [b + per * (nt - 2) + (k * 15) // 8 for k in range(4 * L)], areads(si, nt) + areads(si, nt + 1))
            elif SP_ and L > 2 and nt > 1 and cfg["lstep"]:
                put_at(G, range(b + per * (nt - 1) - per // 2, len(G), 2), areads(si, nt))
            elif SP_:
                put_at(G, range(b + per * (nt - ahead), len(G), SP_ if (L == 2 and (nt < 9 or cfg["lazy3"])) else 1), areads(si, nt))
            else:
                put_reads(G, b + per * (nt - ahead), areads(si, nt), 1 if L == 2 else 2)
        if nxtL:
            gb = b + per * 8
            if cfg.get("p3stamps"):
                ST.gap(G[gb - 1], G[gb + 1], f"s{si}")
            if cfg.get("p3light"):
                ST.light(G[gb - 9], f"s{si}")
            G[gb].sca.append(WAITV(*[("WO", ks) for ks in stages[si + 1]]))
            G[gb + 1].sca.append(BARRIER(frees=[("WO", ks) for ks in (kss if not cfg["lazy3"] else (stages[si - 1] if si else []))]))
            bar[si] = gb + 1
            if SP_ and nxtL == 2:
                put_at(G, range(gb + 2, gb + 6), areads(si + 1, 0))
            else:
                put_reads(G, gb + 2, areads(si + 1, 0))
            if nxtL == 2:
                if SP_:
                    put_at(G, range(b + per * 9, b + per * 10, SP_), areads(si + 1, 1))
                else:
                    put_reads(G, b + per * 9, areads(si + 1, 1))
    stage_of = {ks: si for si, kss in enumerate(stages) for ks in kss}
    for s, g in enumerate(cfg["otouch"]):
        if g >= 0:
            G[free_gap(G, g, ok)].vec.append(otouch(s, cfg))
    chunk_of = cfg["chunks"]
    ost = [Q(qt, VSTORE(Bf(s, qt), vOB + qt, SO, f"s{sOB}" if s < 4 else f"s{sOX}", 1024 * (s & 3), cfg["oflags"], tag=("O", chunk_of[s])))
           for s in range(6) for qt in range(4)]
    if cfg["p3sched"]:
        opos = unified_schedule(P, G, cfg, ost, wo_left, base, bar, stage_of, ok)
    else:
        opos = []
        t = cfg["ostart"]
        for n, x in enumerate(ost):
            k = free_gap(G, max(int(t), (opos[-1] + 1) if opos else 0), ok)
            G[k].vec.append(x)
            opos.append(k)
            t += cfg["opace"](n)
        ee = []
        for c in range(max(chunk_of) + 1):
            lc = max(k for k, x in zip(opos, ost) if x.meta["tag"] == ("O", c))
            k = flag_gaps(G, [("O", c)], c + 1, vFO, lc + cfg["lags"][c][0], ok, cfg["owb"])
            if cfg.get("ostamps"):
                ST.gap(G[k - 3], G[k - 3], f"preF{c}")
                ST.gap(G[k], G[k], f"F{c}")
            k = max(k + cfg["lags"][c][1], (ee[-1] if ee else 0))
            ee.append(check_gaps(P, G, f"o{c}", "o", c + 1, k, k + cfg["lags"][c][2], ok))
            if cfg.get("ostamps"):
                ST.gap(G[ee[-1] - 5], G[ee[-1] - 5], f"preC{c}")
                ST.gap(G[ee[-1] - 2], G[ee[-1] - 2], f"cmp{c}")
                ST.gap(G[ee[-1] - 1], G[ee[-1] - 1], f"C{c}")
        P.slack.append(("stores", opos, "checks", ee, "base", base))
        e0 = ee[0]
        for g in wo_left:
            t = g.dmas[0].meta["tag"][1]
            g.earliest = bar[stage_of[t - 12] + (1 if cfg["lazy3"] else 0)] + 1 if t >= 12 else (34 if t == 11 else 0)
            g.deadline = bar[stage_of[t] - 1] - 2
        wo_left = place_stream(P, G, wo_left, cfg["wstart"], e0 - 4, lambda k: cfg["wpace"], ok)
        bs = [grp_B(ks, cfg)[0] for ks in range(6, 24)]
        for g in bs:
            ks = g.dmas[0].meta["tag"][1]
            g.deadline = base[stage_of[ks]] - 2 + 0.01 * ks
            g.earliest = ee[chunk_of[KORD[ks][1]]]
            if ks >= 18:
                g.earliest = max(g.earliest, base[stage_of[ks - 18] + 1], opos[4 * (ks - 18) + 3] + 3)
        items = sorted(wo_left + bs, key=lambda g: g.deadline)
        left = place_stream(P, G, items, e0, len(G), lambda k: cfg["p3pace"], ok, True)
        assert not left
    bpos = {x.meta["tag"][1]: k for k, g in reversed(list(enumerate(G))) for x in g.vec if x.kind == "vload" and x.meta["tag"]}
    ops = [(0, 14, x) for x in pre[npre:]]
    if VP:
        P.flex_scalar(S(f"s_add_u32 s{sOX}, s{sOB}, 4096"), G[36:48])
    n = 0
    for s in range(6):
        for qt in range(4):
            o = Bf(s, qt)[1]
            t = vOK + 2 * (n % 3)
            dl = min(base[s // 2] + 2 * qt + (s & 1) - 2, opos[n] - 1, bpos[6 + 2 * s] - 1, bpos[7 + 2 * s] - 1)
            n += 1
            for u, dst in enumerate(([o, o + 1, o + 2, o + 3], [o + 2, o + 3, t, t + 1])):
                a = Oa(2 * s + u, qt)[1]
                e = 4 * (2 * s + u) + qt + 5
                ops += [(e, dl, V(f"v_accvgpr_read_b32 v{dst[r]}, a{a+r}")) for r in range(4)]
                ops += [(e, dl, V(f"v_mul_f32 v{dst[r]}, v{RCP[qt]}, v{dst[r]}", omul=(dst[r], RCP[qt]))) for r in range(4)]
                ops += [(e, dl, V(f"v_cvt_pk_bf16_f32 v{o+2*u+r}, v{dst[2*r]}, v{dst[2*r+1]}")) for r in range(2)]
                Q(qt, ops[-10:])
    assert not fill_ops(G, ops)
    pack_muls(G)
    si = len(stages) - 1
    per = 4 * len(stages[si])
    b = base[si]
    tmpbase = 160 if per == 8 else vFR
    vOPx = lambda t: (vAV if t & 4 else vOP) + (t & 3)
    own = lambda t, dst, src: [V(f"v_cndmask_b32 v{dst+r}, v{dst+r}, v{src+r}, s[{sOWN+2*(t&7)}:{sOWN+2*(t&7)+1}]") for r in range(4)]
    bg = []
    for t in range(7, -1, -1):
        bg += [S(f"s_xor_b32 s3, s{sGE}, {t << 10}"), S(f"s_cselect_b64 s[{sOWN+2*t}:{sOWN+2*t+1}], 0, -1"), S(f"s_cselect_b32 s3, s3, {OOB}"),
               V(f"v_add_u32 v{vOPx(t)}, s3, v{vOP+(t&3)}")]
    fill_background(G, bg, base[6], b)
    KEEP = [vFR + 16, 192, 224]
    late_own = []
    work = []
    tmp = 0
    for np_ in range(5):
        e = b + fin[(2 * np_, 0)]
        work.append((e, S(f"s_mov_b32 s{sOW}, {np_*15*8192}")))
        for qt in range(4):
            e = b + fin[(2 * np_ + 1, qt)] + (5 if np_ < 4 else 8)
            e1 = max(b + fin[(2 * np_, qt)] + (5 if np_ < 4 else 8), e - per // 2)
            n0 = len(work)
            x, y = acc3(2 * np_, qt), acc3(2 * np_ + 1, qt)
            if x[0] == "a":
                t = tmpbase + (tmp % 2) * 8
                tmp += 1
                for u, z in enumerate((x, y)):
                    for r in range(4):
                        work.append((e1 if u == 0 else e, V(f"v_accvgpr_read_b32 v{t+4*u+r}, a{z[1]+r}")))
                src = [t + r for r in range(8)]
                o = t
            else:
                src = [x[1] + r for r in range(4)] + [y[1] + r for r in range(4)]
                o = x[1]
            for r in range(4):
                work.append((e1 if r < 2 and x[0] == "v" else e, V(f"v_cvt_pk_bf16_f32 v{o+r}, v{src[2*r]}, v{src[2*r+1]}")))
            work.append((e, VSTORE(("v", o), vOPx(4 * np_ + qt), SP, f"s{sOW}", 0, cfg["pflags"], tag=("P", np_))))
            if x[0] == "a":
                work += [(e, z) for z in own(4 * np_ + qt, KEEP[0], o)]
            else:
                late_own += Q(qt, own(4 * np_ + qt, KEEP[np_ // 2], o))
            Q(qt, work[n0:])
    gi = b
    stpos = {}
    while work and gi < len(G):
        g = G[gi]
        while work and work[0][0] <= gi:
            x = work[0][1]
            if x.kind == "salu":
                P.flex_scalar(x, [g, G[min(gi + 1, len(G) - 1)]])
                work.pop(0)
            elif x.kind == "vstore":
                if not g.vec and not g.sca and ok(gi):
                    g.vec.append(x)
                    stpos[x.meta["tag"][1]] = gi
                    work.pop(0)
                break
            elif g.free() > 0:
                g.vec.append(x)
                work.pop(0)
            else:
                break
        gi += 1
    rest = [x for _, x in work]
    pending = {n for x in rest if x.kind == "vstore" for n in [x.meta["tag"][1]]}
    addr = [V("v_and_b32 v2, 15, v0"), V("v_mul_u32_u24 v2, 1280, v2"), V("v_lshrrev_b32 v3, 5, v0"), V("v_bfe_u32 v4, v0, 4, 1"),
            V("v_lshl_or_b32 v3, v4, 1, v3"), V("v_lshl_add_u32 v2, v3, 4, v2"), V("v_lshlrev_b32 v1, 4, v0"), V("v_add_u32 v3, 4096, v1")]
    assert not fill_ops(G, [(b, len(G) - 1, x) for x in addr], b)
    if cfg["ptail"] == 2:
        k = free_gap(G, stpos[1] + cfg["plagA"][0], ok)
        G[k].sca.append(WAITV(("P", 1)))
        G[k].vec.append(V("v_mov_b32 v7, 1"))
        k += 1
        while G[k].sca or G[k].isdma() or not ok(k):
            k += 1
        G[k].sca.append(BARRIER())
        k = free_gap(G, k + 1, ok)
        G[k].vec.append(VSTORE(("v", 6), vFP, SF, 0, 0, "sc1", n=4))
        k = free_gap(G, k + cfg["plagA"][1], ok)
        G[k].vec.append(poll_load("p"))
        P.slack.append(("pollA", k, stpos))
    ST.seq(P, "mfend")
    A(rest)

    def loads(r):
        return [VLOAD(("a", r * 32 + g * 4) if False else ("v", 160 + r * 32 + g * 4), 1 if g < 4 else 3, SP, f"s{sJ+r}", 1024 * (g & 3), None, cfg["rflags"])
                for g in range(1, 8)]

    def reduce(r):
        out = []
        o = 64 + r * 16
        for g in range(8):
            src = 160 + r * 32 + g * 4 if g else KEEP[r]
            t = o if g == 0 else 112 + (g & 1) * 8
            for q in range(4):
                out += [V(f"v_lshlrev_b32 v{t+2*q}, 16, v{src+q}"), V(f"v_and_b32 v{t+2*q+1}, 0xffff0000, v{src+q}")]
            if g:
                for q in range(4):
                    out.append(V(f"v_pk_add_f32 v[{o+2*q}:{o+2*q+1}], v[{o+2*q}:{o+2*q+1}], v[{t+2*q}:{t+2*q+1}]"))
        for q in range(4):
            out.append(V(f"v_cvt_pk_bf16_f32 v{o+8+q}, v{o+2*q}, v{o+2*q+1}"))
        out += [NOP(0), V(f"v_permlane16_swap_b32 v{o+8}, v{o+10}"), V(f"v_permlane16_swap_b32 v{o+9}, v{o+11}"),
                VSTORE(("v", o + 8), 2, SOUT, f"s{sJ+3+r}", 0, cfg["outflags"])]
        return out

    def flag(val, tags):
        return [V(f"v_mov_b32 v7, {val}"), WAITV(*tags), BARRIER(), VSTORE(("v", 6), vFP, SF, 0, 0, "sc1", n=4)]

    fl = flag(2, [("P", 4)])
    txt = lambda L: [text_of(x) for x in L]
    A(fl[0])
    if cfg["pfirst"]:
        n0 = cfg["pfirst"] - 1
        A(late_own)
        late_own = []
        A(fl[1], fl[2], fl[3], check_seq(P, "pA", "p", 1), loads(0))
    else:
        A(poll_cmp(1), NOP(0), I("s_cbranch_vccnz KF_lateA", "branch", rd=["vcc"]))
        A(loads(0), fl[1], fl[2], RAW(fl[3].text), LABEL("KF_joinA"))
        sp = slow_path("pA", "p", 1)
        P.slow += ["KF_lateA:", "s_waitcnt vmcnt(0)", "s_barrier", fl[3].text] + sp[:-1] + ["KF_rtpA:"] + txt(loads(0)) + ["s_branch KF_joinA"]
    ST.seq(P, "pdrain")
    if cfg["pfast"]:
        A(poll_cmp(2), NOP(0), I("s_cbranch_vccz KF_rtp2", "branch", rd=["vcc"]))
        A(RAW(f"s_waitcnt vmcnt({8-cfg['pcut']})"), RAW(poll_load("p").text), RAW("s_waitcnt vmcnt(0)"), check_seq(P, "p2", "p", 2))
        ST.seq(P, "ppoll")
        A(loads(1), loads(2), late_own, reduce(0), reduce(1), reduce(2))
    else:
        r0 = reduce(0)
        cut = 8 + 12 * (cfg["pcut"] - 1)
        A(late_own, r0[:cut], poll_load("p"), r0[cut:-1], check_seq(P, "p2", "p", 2))
        ST.seq(P, "ppoll")
        A(loads(1), loads(2), r0[-1], reduce(1), reduce(2))


def build(cfg):
    W3BUF[0] = bool(cfg["w3buf"])
    P = Prog()
    P.slack = []
    P.slow = []
    P.itwait = {}
    ST = Stamper(cfg)
    LA = cfg["LA"]
    stream = prologue(P, cfg, ST)
    phase1(P, cfg, ST, stream)
    ST.seq(P, "attn0")
    if ST.it:
        P.seq(RAW("s_mov_b32 s53, 2"))
    labs = []
    wo = [grp_WO(t, cfg)[0] for t in range(24)]
    NT = cfg["trips"]
    NS = len(cfg["skips"])
    for j in range(0, 31):
        inloop = 1 <= j <= 6 * NT
        if j == 1:
            P.seq(I(f"s_mov_b32 s{sCNT}, {NT}", "raw"))
        if inloop and (j - 1) % 6 == 0:
            P.el.append(I("", "raw", mark=(j - 1) // 6))
        if j == 6 * NT + 1:
            P.el.append(I("", "raw", mark=NT))
        groups = []
        if inloop and NS:
            if j in cfg["skips"]:
                LA -= 1
                groups += grp_dyn("K", None, cfg) + grp_dyn("V", None, cfg)
            else:
                groups += grp_dyn("K", j + LA, cfg) + grp_dyn("V", j + LA - 1, cfg)
        else:
            if j + LA < 32:
                groups += grp_K(j + LA, cfg, inloop or j == 0)
            if j + LA - 1 < 32:
                groups += grp_V(j + LA - 1, cfg, j + LA < 32)
        while len(groups) < cfg["tailgroups"] and j >= cfg["wostart"] and wo and 26 + (wo[0].dmas[0].meta["tag"][1] + 1) // 2 <= j:
            groups.append(wo.pop(0))
        lab = str((j - 1) % 6) if inloop else f"p{j}"
        if not inloop or j <= 6:
            labs.append((lab, (j + 1) & 1))
        xv = None
        if j == 29:
            xv = poll_load("c")
        if inloop and (j - 1) % 6 == 1:
            xv = I(f"buffer_atomic_add v7, v6, s[{SD}:{SD+3}], s{sAO} offen sc1", "vstore", ["v6", "v7"], [], data=set(), n=1, tag=None)
        pieces = [(g, S(f"s_mov_b32 s{sAO}, {i*81920}"), VLOAD(("v", 4), 5 if jj < 29 else vOK + 1, SWO, f"s{sAO}", 0, None, "", n=1))
                  for i, (jj, g) in enumerate(cfg["wopf"]) if jj == j]
        if cfg["wodyn"] and inloop:
            assert NS == 2
            x = VLOAD(("v", 4), 5, SWO, f"s{sPFO}", 0, None, "", n=1)
            x.wr = set()
            pieces = [(cfg["wodyn"], None, x)]
        ev = []
        if j == (0 if cfg["R"] else 25):
            ev = unpark() + (asel_setup() if cfg["R"] else [])
        if j == 28:
            ev = [V("v_mov_b32 v6, 0")]
        if j == 29:
            assert j + LA >= 32
            ev = ev + [V(f"v_mov_b32 v{vOK+1}, v5")]
        G = iteration(P, cfg, j, lab, groups, xv, pieces, ev, (7 if cfg["wodyn"] else 6) * (cfg["LA"] - NS - 2) if inloop and NS else cfg.get("vmforce", {}).get(j))
        if NS and j <= 6 * NT:
            P.flex_chain(dyn_prepare(cfg), G[cfg["dmagaps"][2][1][-1] + 1:cfg["bpos"] - 2])
        if inloop and (j - 1) % 6 == 1:
            G[-8].sca.append(S(f"s_cmp_eq_u32 s{sCNT}, s{sTRIP}"))
            G[-7].sca.append(S(f"s_cselect_b32 s{sAO}, 0, {OOB}"))
        if ST.it:
            G[-6].post += [RAW(f"s_memtime s[{sTM}:{sTM+1}]"), RAW(f"s_memrealtime s[{sTM+2}:{sTM+3}]")]
            G[-3].post += [RAW("s_mov_b32 m0, s53"), RAW("s_addk_i32 s53, 1"), RAW(f"v_writelane_b32 v{vST}, s{sTM}, m0"), RAW("s_mov_b32 m0, s53"),
                           RAW("s_addk_i32 s53, 1"), RAW(f"v_writelane_b32 v{vST}, s{sTM+2}, m0")]
            ST.names.append(f"i{j}")
        if inloop and (j - 1) % 6 == 5:
            P.flex_scalar(S(f"s_sub_u32 s{sCNT}, s{sCNT}, 1"), G[80:90])
            G[-2].sca.append(S(f"s_cmp_lg_u32 s{sCNT}, 0"))
            G[-1].post.append(I("s_cbranch_scc1 KF_loop", "branch"))
    ST.seq(P, "attnend")
    phase3(P, cfg, ST, wo)
    if ST.on:
        P.seq(WAIT(vm=0))
        ST.seq(P, "end")
        ST.flush(P)
        if cfg.get("diag"):
            P.seq(RAW("s_getreg_b32 s3, hwreg(HW_REG_XCC_ID, 0, 4)"), RAW(f"v_writelane_b32 v{vST}, s3, 63"))
        P.seq(srd(8, 32, 33, STAMP_OFF, 0x100000), S("s_lshl_b32 s3, s2, 2"), S(f"s_add_u32 s3, s3, s{sW}"), S("s_lshl_b32 s3, s3, 8"),
              V("v_lshlrev_b32 v2, 2, v0"), RAW(f"buffer_store_dword v{vST}, v2, s[8:11], s3 offen"))
    if cfg.get("w3"):
        P.prune(lambda x: x.meta.get("q") == 3, "KF_go:")
    P.insert_waits()
    P.place_flex()
    lin = P.linear()
    lin, notes = fix_hazards(lin)
    P.notes = notes
    probs = check_hazards(lin) + check_lds_protocol(lin, private=lambda t: t[0] == "X")
    trips = {}
    pre, post, cur = [], [], None
    for x in lin:
        if x.kind == "raw" and "mark" in x.meta:
            cur = x.meta["mark"]
            continue
        if cur is None:
            pre.append(x)
        elif cur == NT:
            post.append(x)
        else:
            trips.setdefault(cur, []).append(x)
    t0 = [text_of(x) for x in trips[0]]
    for k in range(1, NT):
        tk = [text_of(x) for x in trips[k]]
        assert tk == t0, [(a, b) for a, b in zip(t0, tk) if a != b][:5]
    out = [text_of(x) for x in pre] + ["KF_loop:"] + t0 + [text_of(x) for x in post]
    out += ["KF_done:", "s_endpgm"]
    out += P.slow
    for lab, par in labs:
        out += [f"KF_fx{lab}:", f"s_call_b64 s[{sRET}:{sRET+1}], KF_fix{par}", f"s_branch KF_bk{lab}"]
    for par in range(2):
        fb = fallback(par, cfg)
        if cfg.get("w3"):
            fb = fix_hazards([x for x in fb if x.meta.get("q") != 3])[0]
        probs += check_hazards(fb)
        out += [text_of(x) for x in fb]
    out += ["KF_end:"]
    return out, probs, P, ST


DEFAULT = dict(map="hg4", wflags="", xflags="", kvflags="nt", woflags="", oflags="sc1", bflags="sc1", pflags="sc1", rflags="sc1",
               outflags="", thresh=16384.0, LA=6, trips=4, npro=1, npro2=3, bgstart=100, pace=[(960, 5.0)], xearly=4, kvpace=14, tailgroups=3,
               dmagaps={0: [], 1: [[4, 7, 9]], 2: [[4, 7, 9], [34, 44, 54]], 3: [[4, 7, 9], [34, 44, 54], [64, 79, 84]]},
               vslack=8, stages=[[2 * k, 2 * k + 1] for k in range(9)] + [list(range(18, 24))], p3pace=4.2, wstart=0, wpace=9, codepf=5,
               chunks=[0, 1, 1, 2, 2, 2], ostart=44, opace=lambda n: 4 if n < 3 else 14, lags=[(45, 65, 45), (55, 40, 60), (70, 60, 70)],
               p1pf=[0, 6, 14, 22], wopf=[(25, 82), (26, 82), (27, 82)], pfa=0, tour3=0, otouch=[], otflags='', p3sched=None,
               oready=lambda n: [26, 38, 48, 49, 50, 52, 54, 56, 74, 92, 110, 128, 130, 132, 134, 136, 154, 172, 190, 208, 210, 212, 214, 216][n], tour=1, R=1, rpos=84, bpos=84, split3=0, nskip=3, ptail=2, lazy1=0, lazy2=0, lazy3=0, spread1=2, spread3=2, kstep=1, lstep=1.8, pfast=1, pfirst=1, pairmaj=1, w3buf=1, xoff=20, fpos=('X', 8), xfirst=[6, 7, 8, 9], kearly=[('W', 15), ('W', 17), ('W', 19)], rot=0, wodyn=0, wopf0=[], owb=None, vpre=1, wopf1=[], plagA=(45, 40), pcut=4, wostart=27, stamps=False)


RCFG = dict(thresh=16777216.0, expgaps=[11 + 9 * (k // 4) + 2 * (k % 4) for k in range(32)],
            dmagaps={0: [], 1: [[4, 7, 9]], 2: [[4, 7, 9], [37, 46, 54]], 3: [[4, 7, 9], [37, 46, 54], [64, 73, 92]], 4: [[4, 7, 9], [19, 28, 37], [46, 54, 64], [73, 90, 92]]})


def line_sizes(body):
    import subprocess, tempfile, re
    ins = [l for l in body if l and not l.endswith(":")]
    d = tempfile.mkdtemp()
    src = '.amdgcn_target "amdgcn-amd-amdhsa--gfx950"\n.text\nL0:\n' + "\n".join(re.sub(r"K[FX]_\w+", "L0", re.sub(r"K[FX]_\w+-[\w-]+", "0x12345", l)) for l in ins) + "\n"
    open(d + "/a.s", "w").write(src)
    subprocess.run(["clang", "-x", "assembler", "-target", "amdgcn-amd-amdhsa", "-mcpu=gfx950", "-c", d + "/a.s", "-o", d + "/a.o"], check=True)
    dis = subprocess.run(["llvm-objdump", "-d", "--mcpu=gfx950", d + "/a.o"], capture_output=True, text=True).stdout
    sizes = [4 * len(re.findall(r"\b[0-9A-F]{8}\b", l.split("//")[1].split(":", 1)[1].split("<")[0])) for l in dis.splitlines() if "//" in l]
    assert len(sizes) == len(ins), (len(sizes), len(ins))
    it = iter(sizes)
    return [0 if (not l or l.endswith(":")) else next(it) for l in body]


def merge_streams(o, o3, tour3):
    import re
    go = o.index("KF_go:")
    assert o[:go] == o3[:go]
    call = lambda t: f"s_call_b64 s[{sRET}:{sRET+1}], {t}"
    lp, le = o3.index("KF_loop:"), o3.index("s_cbranch_scc1 KF_loop")
    head = []
    nb = 0
    for l in o3[:lp]:
        if l == "s_barrier":
            nb += 1
            if tour3 and 2 <= nb <= 11:
                head += ["s_mov_b64 exec, 0", call(f"KF_EAR{nb-2}"), "s_mov_b64 exec, -1"]
        head.append(l)
    out = head + ["s_getpc_b64 s[52:53]", "KF_pc2:", "s_sub_u32 s52, s52, KF_pc2-KX_go", "s_subb_u32 s53, s53, 0", "v_lshlrev_b32 v92, 12, v0",
                     "v_min_u32 v92, KX_end-KX_go-4, v92", "v_mov_b32 v93, s53", "v_add_co_u32 v92, vcc, s52, v92", "s_nop 1",
                     "v_addc_co_u32 v93, vcc, 0, v93, vcc"]
    site = 0
    for l in o3[lp:le]:
        if l == "s_barrier":
            for t in range(3):
                out += [f"s_cmp_eq_u32 s{sCNT}, {3-t}", f"s_cbranch_scc0 KF_h{site}_{t}", "s_mov_b64 exec, 0", call(f"KF_HOP{6*t+site}"),
                        "s_mov_b64 exec, -1", f"KF_h{site}_{t}:"]
            site += 1
        out.append(l)
        if l == "s_barrier" and site == 5:
            out.append("global_load_dword v94, v[92:93], off")
    assert site == 6
    out += o3[le:]
    o3 = insert_stubs(out)
    o = insert_stubs(o)
    off_ = False
    for l in o3:
        off_ = l == "s_mov_b64 exec, 0" or (off_ and l != "s_mov_b64 exec, -1")
        assert not (off_ and "execz" in l)
    early, late = [], []
    for pre, t in (("KX", o), ("KF", o3)):
        e = t.index("s_cbranch_scc1 KF_loop")
        for k, l in enumerate(t):
            m = re.match(r"KF_(pg\d+):", l)
            if m:
                (early if k < e else late).append((int(m.group(1)[2:]), f"{pre}_{m.group(1)}"))
    early = [x for _, x in sorted(early)]
    late = [x for _, x in sorted(late)]
    assert len(late) <= 18
    if tour3:
        early = [x for x in early if x not in ("KF_pg1", "KF_pg2", "KF_pg3")]
        assert len(early) <= 10
        o3 = [re.sub(r"KF_EAR(\d+)", lambda m: early[int(m.group(1))] if int(m.group(1)) < len(early) else "KX_tramp", l) for l in o3]
        early = []
    o3 = [re.sub(r"KF_HOP(\d+)", lambda m: late[int(m.group(1))] if int(m.group(1)) < len(late) else "KX_tramp", l) for l in o3]
    o3 = [re.sub(r"execz KF_\w+", "execz KX_tramp", l) for l in o3]
    o = [re.sub(r"execz KF_\w+", "execz KF_tramp", l) for l in o]
    ren = lambda l: l.replace("KF_", "KG_").replace("KX_", "KF_")
    tour = ["s_mov_b64 exec, 0"]
    for w in range(4):
        if w < 3:
            tour += [f"s_cmp_eq_u32 s{sW}, {w}", f"s_cbranch_scc0 KF_tw{w}"]
        tour += [call(ren(x)) for x in early[w::4]]
        tour += ["s_mov_b64 exec, -1", "s_branch KF_go" if w < 3 else "s_branch KG_go"]
        if w < 3:
            tour += [f"KF_tw{w}:"]
    if tour3:
        tour = [f"s_cmp_eq_u32 s{sW}, 3", "s_cbranch_scc1 KG_go", "s_branch KF_go"]
    k = o.index("s_branch KF_go")
    o = o[:k] + tour + ["KF_tramp:", f"s_setpc_b64 s[{sRET}:{sRET+1}]"] + o[k + 1:]
    return o[:-1] + [".p2align 12"] + [ren(l) for l in o3[go:-1]] + ["KF_end:"]


def insert_stubs(lines):
    import re
    go = lines.index("KF_go:")
    end = lines.index("KF_done:")
    body = lines[go + 1:end]
    sz = line_sizes(body)
    out = []
    off = 0
    page = 1
    k = 0
    while k < len(body):
        if off >= page * 4096:
            best = k
            o, j = off, k
            while j < len(body) and o <= page * 4096 + 56:
                prev = body[j - 1]
                if prev.startswith("v_mfma") and body[j].startswith(("v_", "ds_")):
                    best = j
                    break
                o += sz[j]
                j += 1
            while k < best:
                out.append(body[k])
                off += sz[k]
                k += 1
            out += [f"KF_pg{page}:", f"s_cbranch_execz KF_pg{page+4}"]
            off += 4
            page += 1
        out.append(body[k])
        off += sz[k]
        k += 1
    out = [re.sub(r"execz KF_pg(\d+)", lambda m: m.group(0) if int(m.group(1)) < page else "execz KF_tret", l) for l in out]
    return lines[:go + 1] + out + lines[end:]


HDR = open("standalone__mha_block_cached__near_ridge.s.ref").read().split("; Override launch")[0]
NAME = "standalone__mha_block_cached__near_ridge_kernel"


def generate(over=None):
    cfg = dict(DEFAULT)
    if (over or {}).get("R", 1):
        cfg.update(RCFG)
    cfg.update(over or {})
    NS = cfg["nskip"]
    if not cfg.get("skipwin"):
        cfg["skipwin"] = [(1 + (24 // NS) * k, 24 // NS) for k in range(NS)]
    W_ = cfg["skipwin"]
    assert len(W_) == NS and all(a + n <= b for (a, n), (b, _) in zip(W_, W_[1:] + [(25, 0)]))
    cfg["skips"] = [lo for lo, _ in W_]
    pats = sorted({tuple(lo + i % per for lo, per in W_) for i in range(39)})
    o, p, P, ST = build(cfg)
    assert not p, p[:10]
    if NS:
        for off in (pats if not cfg.get("quick") else [pats[-1]]):
            c2 = dict(cfg, skips=list(off), vmforce={j: w.meta["vm"] for j, w in P.itwait.items()})
            o2, p2, _, _ = build(c2)
            assert not p2 and o2 == o, (off, p2[:5], [(a, b) for a, b in zip(o, o2) if a != b][:5])
    if cfg["split3"]:
        o3, p3, P3, _ = build(dict(cfg, w3=True))
        assert not p3, p3[:10]
        for off in (pats if NS else []):
            o2, p2, _, _ = build(dict(cfg, w3=True, skips=list(off), vmforce={j: w.meta["vm"] for j, w in P3.itwait.items()}))
            assert not p2 and o2 == o3
        o = merge_streams(o, o3, cfg["tour3"])
    elif cfg["tour"]:
        o = insert_stubs(o)
    if cfg.get("verbose"):
        print(P.slack, file=sys.stderr)
        print(len(P.notes), "nops inserted:", P.notes, file=sys.stderr)
    if P.warn or P.overfull():
        print("warn", len(P.warn), P.warn[:6], "overfull", P.overfull(), file=sys.stderr)
    dg = cfg.get("diag")
    if dg:
        s = HDR + f"; @launch kernel={NAME} grid=(256,1,1) block=(256,1,1) lds={LDS_BYTES}\n; @launch kernel=diag_kernel grid=(1,1,1) block=(64,1,1) lds=0\n"
    else:
        s = HDR + f"; @launch grid=(256,1,1) block=(256,1,1) lds={LDS_BYTES}\n"
    if ST.on:
        s += "; STAMPS " + " ".join(ST.names) + "\n"
    s += '.amdgcn_target "amdgcn-amd-amdhsa--gfx950"\n.text\n'
    s += f".globl {NAME}\n.p2align 8\n.type {NAME},@function\n{NAME}:\n" + "\n".join(l for l in o if l) + "\n"
    if dg:
        import gen
        def addr(x):
            wg, nm = x
            return STAMP_OFF + wg * 1024 + (252 if nm == "xcc" else 8 * ST.names.index(nm) + 4)
        s += ".globl diag_kernel\n.p2align 8\n.type diag_kernel,@function\ndiag_kernel:\n" + "\n".join(gen.diag_kernel(addr(dg[0]), addr(dg[1]), dg[2])) + "\n"
    s += f""".section .rodata,"a"
.p2align 6
.amdhsa_kernel {NAME}
  .amdhsa_next_free_vgpr 512
  .amdhsa_next_free_sgpr 102
  .amdhsa_accum_offset 256
  .amdhsa_group_segment_fixed_size 0
  .amdhsa_kernarg_size 64
  .amdhsa_user_sgpr_count 2
  .amdhsa_user_sgpr_kernarg_segment_ptr 1
  .amdhsa_system_sgpr_workgroup_id_x 1
.end_amdhsa_kernel
"""
    if dg:
        s += ".p2align 6\n" + gen.kd("diag_kernel", 8, 8) + "\n"
    return s


if __name__ == "__main__":
    over = eval(sys.argv[2]) if len(sys.argv) > 2 else None
    open(sys.argv[1], "w").write(generate(over))
```

```python
import math, struct, sys
from asmlib import *

SLOT = 12288
KREG = 0
VREG = 6 * SLOT
EREG = 12 * SLOT
LDS_BYTES = 163840
OOB = 0x40000000

O_OFF = 0
PART_OFF = 0x2000000
FLAG_OFF = 0x4000000
STAMP_OFF = 0x10000000

SX, SW, SK, SV, SO = 8, 12, 16, 20, 24
SF, SD = 56, 60
SWO, SP, SOUT = 64, 68, 72
sW, sB, sH, sWOFF, sXB0, sXB1 = 34, 35, 36, 37, 38, 39
sOW, sOX, sOKV, sCNT, sTH = 40, 41, 42, 43, 44
sG = 45
sC = 46
sRET = 48
sPAD, sHL = 50, 51
sHB, sOB = 76, 80
sJ = 84
sSPIN = 90
sTRIP, sAO = 54, 55
sGE = 47
sRX, sRW = 48, 49
sPFO, sPFN = 96, 97
sOWN = 8
sIT, sMASK, sSL, sMK, sMV, sSO, sSTEP, sWOFFV = 4, 5, 6, 7, 28, 29, 30, 31
sTM = 92
vAK, vAV, vAW, vAX = 8, 10, 14, 18
vOK, vOV, vOW, vOX = 22, 25, 28, 31
vST = 39
vPF = 8
vFR = 40
vS, vP, vNM, vTS, vL, vE = 64, 96, 128, 144, 148, 152
vA3 = 14
vOB = 18
vOWO = 28
vOP = 31
vFL = 35
PARK = [vA3, vA3 + 1, vA3 + 2, vA3 + 3, vOB, vOB + 3, vOWO, vOWO + 1, vOWO + 2, vOP, vOP + 3, vFL, vFL + 1, vFL + 2, vFL + 3, 5]
vFO, vFOP, vFP, vFPP = vFL, vFL + 1, vFL + 2, vFL + 3


def f32(x):
    return "0x%08x" % struct.unpack("<I", struct.pack("<f", x))[0]


def Q(qt, x):
    for y in (x if isinstance(x, list) else [x]):
        (y[-1] if isinstance(y, tuple) else y).meta["q"] = qt
    return x


def acc(dt, qt):
    return ("v", (160 if dt % 2 == 0 else 64) + ((dt >> 1) * 4 + qt) * 4)


def Qf(qt, s):
    return acc(2 * s, qt)


def Oa(dt, qt):
    return ("a", (dt * 4 + qt) * 4)


def Kf(a, s):
    return ("a", 192 + (a * 6 + s) * 4)


def Xf(beta, u, qt):
    return ("a", beta * 32 + (u * 4 + qt) * 4)


def St(a, qt):
    return ("v", vS + (a * 4 + qt) * 4)


def Pf(par, qt):
    return ("v", vP + par * 16 + qt * 4)


def NM(qt):
    return ("v", vNM + qt * 4)


def Lb(par):
    return ("v", vTS + 4 * par)


def rowsum_mfmas(par):
    return [Q(qt, MFMA(Lb(par), ("a", 240 + 4 * qt), Pf(par, qt), Lb(par ^ 1) if qt == 0 else Lb(par))) for qt in range(4)]


def FR(i):
    return ("v", vFR + (i % 6) * 4)


W3BUF = [False]


def wslot(n):
    buf = (n // 2) % 4
    if W3BUF[0]:
        buf = (1, 3, 0)[(n // 2) % 3]
    base = {2: KREG, 3: KREG + 2 * SLOT, 0: KREG + 4 * SLOT, 1: VREG + 4 * SLOT}[buf]
    return base + (n % 2) * SLOT


def kslot(n):
    return KREG + (n % 6) * SLOT


def vslot(n):
    return VREG + (n % 6) * SLOT


def woslot(t):
    t %= 12
    return (kslot if t % 2 == 0 else vslot)(26 + t // 2)


def xregion(beta):
    return [(VREG + 2 * beta * SLOT, VREG + 2 * beta * SLOT + 3 * 8192), (EREG + beta * 8192, EREG + beta * 8192 + 8192)]


def vtype_read(dst, slot, dt, t, tag):
    if slot >= VREG:
        a, off = vAV, slot - VREG
    else:
        a, off = vAW, slot
    return DSTR((dst[0], dst[1] + 2 * t), a + (dt & 3), off + 1536 * t + 128 * (dt >> 2), tag)


def k_read(n, a, s):
    return DSR128(Kf(a, s), vAK + (s & 1), kslot(n) + 1536 * a + 128 * (s >> 1), ("K", n))


class DmaGroup:
    def __init__(self, pre, dmas, earliest=0):
        self.pre = pre
        self.dmas = dmas
        self.earliest = earliest
        self.deadline = 10**9


def grp_W(n, cfg):
    sl = wslot(n)
    so = S(f"s_mov_b32 s{sOW}, {n*393216}")
    if n < 4 * cfg["rot"]:
        so = S(f"s_{'sub' if n & 2 else 'add'}_u32 s{sOW}, {n*393216}, s{sRW}")
    return [DmaGroup([S(f"s_add_u32 m0, s{sWOFF}, {sl}"), so],
                     [DMA(vOW + j, SW, f"s{sOW}", 1024 * j, ("W", n), cfg["wflags"], region=[(sl, sl + SLOT)]) for j in range(3)])]


def grp_X(c, cfg, after=()):
    beta = c & 1
    sb = sXB0 + beta
    so = S(f"s_xor_b32 s{sOX}, {128*c}, s{sRX}") if c < 2 * cfg["rot"] else S(f"s_mov_b32 s{sOX}, {128*c}")
    g0 = DmaGroup([S(f"s_mov_b32 m0, s{sb}"), so],
                  [DMA(vOX + j, SX, f"s{sOX}", 1024 * j, ("X", c), cfg["xflags"], after=after, region=xregion(beta)) for j in range(4)])
    g1 = DmaGroup([S(f"s_add_u32 m0, s{sb}, 4096")],
                  [Q(2 + j // 2, DMA(vOX + 4 + j, SX, f"s{sOX}", 1024 * j, ("X", c), cfg["xflags"], region=xregion(beta))) for j in range(4)])
    return [g0, g1]


def grp_K(n, cfg, loop=False):
    sl = kslot(n)
    so = S(f"s_add_u32 s{sOKV}, s{sOKV}, {SLOT}") if loop else S(f"s_mov_b32 s{sOKV}, {n*SLOT}")
    return [DmaGroup([S(f"s_add_u32 m0, s{sWOFF}, {sl}"), so],
                     [DMA(vOK + j, SK, f"s{sOKV}", 1024 * j, ("K", n), cfg["kvflags"], region=[(sl, sl + SLOT)]) for j in range(3)])]


def grp_V(n, cfg, loop=False):
    sl = vslot(n)
    pre = [S(f"s_add_u32 m0, s{sWOFF}, {sl}")]
    if not loop:
        pre.append(S(f"s_mov_b32 s{sOKV}, {(n+1)*SLOT}"))
    return [DmaGroup(pre,
                     [DMA(vOV + j, SV, f"s{sOKV}", 1024 * j, ("V", n), cfg["kvflags"], region=[(sl, sl + SLOT)]) for j in range(3)])]


def grp_dyn(kind, n, cfg):
    sl = EREG if n is None else (kslot if kind == "K" else vslot)(n)
    tag = ("D", kind) if n is None else (kind, n)
    pre = [S(f"s_add_u32 m0, s{sWOFF}, s{sMK}") if kind == "K" else S(f"s_add_u32 m0, s{sWOFFV}, s{sMV}")]
    vo, sr = (vOK, SK) if kind == "K" else (vOV, SV)
    return [DmaGroup(pre, [DMA(vo + j, sr, f"s{sSO}", 1024 * j, tag, cfg["kvflags"], region=[(sl, sl + SLOT)]) for j in range(3)])]


def dyn_prepare(cfg):
    wo = [S(f"s_cselect_b32 s{sPFO}, s{sPFN}, {OOB}"), S(f"s_cselect_b32 s{sPFN}, 122880, s{sPFN}")] if cfg["wodyn"] else []
    return [S(f"s_add_u32 s{sIT}, s{sIT}, 1"), S(f"s_bitcmp1_b32 s{sMASK}, s{sIT}")] + wo + [
            S(f"s_cselect_b32 s{sMV}, {EREG-VREG}, s{sSL}"), S(f"s_cselect_b32 s{sSTEP}, 0, {SLOT}"), S(f"s_cselect_b32 s{sSO}, {OOB}, 0"),
            S(f"s_add_u32 s{sOKV}, s{sOKV}, s{sSTEP}"), S(f"s_or_b32 s{sSO}, s{sSO}, s{sOKV}"),
            S(f"s_add_u32 s{sSL}, s{sSL}, s{sSTEP}"), S(f"s_cmp_eq_u32 s{sSL}, {6*SLOT}"), S(f"s_cselect_b32 s{sSL}, 0, s{sSL}"),
            S(f"s_cmp_eq_u32 s{sSTEP}, 0"), S(f"s_cselect_b32 s{sMK}, {EREG}, s{sSL}")]


def grp_WO(t, cfg):
    sl = woslot(t)
    return [DmaGroup([S(f"s_add_u32 m0, s{sWOFF}, {sl}"), S(f"s_add_u32 s{sOW}, s{sHB + KORD[t][0]}, {40960*KORD[t][1]}")],
                     [DMA(vOWO + j, SWO, f"s{sOW}", 1024 * j, ("WO", t), cfg["woflags"], region=[(sl, sl + SLOT)]) for j in range(3)])]


def group_seq(g):
    out = list(g.pre)
    if g.pre and g.pre[-1].text.split()[1].startswith("m0"):
        out.append(NOP(0))
    return out + list(g.dmas)


def seq_groups(P, groups):
    for g in groups:
        P.seq(group_seq(g))


def place_stream(P, G, groups, lo, hi, pace, ok, edf=False):
    pos = lo
    tgt = float(lo)
    groups = list(groups)
    while groups:
        if edf:
            av = [x for x in groups if x.earliest <= tgt + 2]
            g = min(av, key=lambda x: x.deadline) if av else min(groups, key=lambda x: x.earliest)
            groups.remove(g)
            groups.insert(0, g)
        g = groups[0]
        idx = []
        t = max(tgt, g.earliest + len(g.pre))
        k = pos + len(g.pre) + (1 if g.pre else 0)
        fail = False
        for d in g.dmas:
            k = max(k, int(t))
            while k < hi and not (ok(k) and not G[k].vec and not G[k].sca and not G[k].post):
                k += 1
            if k >= hi:
                fail = True
                break
            idx.append(k)
            t0 = t
            t = max(t + pace(k), k - 6)
            if edf:
                t += pace(k) * len([1 for q in range(int(t0) + 1, min(int(t) + 1, hi)) if G[q].isdma() and q != k and q not in idx])
            k += 1
        if fail:
            break
        assert idx[-1] <= g.deadline, (g.dmas[0].meta["tag"], idx, g.deadline)
        P.slack.append((g.dmas[0].meta["tag"], idx[0], idx[-1], g.deadline))
        for s_ in g.pre:
            P.flex_scalar(s_, list(reversed(G[pos:idx[0]])))
        for kk, d in zip(idx, g.dmas):
            G[kk].vec.append(d)
        pos = idx[-1] + 1
        tgt = t
        groups.pop(0)
    return groups


class Stamper:
    def __init__(self, cfg):
        self.on = cfg.get("stamps")
        self.it = cfg.get("itstamps")
        self.n = 0
        self.names = []
        self.pool = [4, 6, 28, 30, 96, 98, 100, 0, 38, 52]
        self.pending = []

    def seq(self, P, name):
        if self.on and not self.it:
            k = self.n
            P.seq(RAW(f"s_memtime s[{sTM}:{sTM+1}]"), RAW(f"s_memrealtime s[{sTM+2}:{sTM+3}]"), WAIT(lg=0),
                  RAW(f"v_writelane_b32 v{vST}, s{sTM}, {2*k}"), RAW(f"v_writelane_b32 v{vST}, s{sTM+2}, {2*k+1}"))
            self.n += 1
            self.names.append(name)

    def light(self, g0, name):
        if self.on:
            r = self.pool.pop(0)
            g0.post.append(RAW(f"s_memtime s[{r}:{r+1}]"))
            self.pending.append((r, self.n))
            self.n += 1
            self.names.append(name)

    def light2(self, g0, g1, name):
        if self.on:
            g0.post.append(RAW(f"s_memtime s[{sTM}:{sTM+1}]"))
            g1.post.append(RAW(f"v_writelane_b32 v{vST}, s{sTM}, {2*self.n}"))
            self.n += 1
            self.names.append(name)

    def flush(self, P):
        for r, k in self.pending:
            P.seq(RAW(f"v_writelane_b32 v{vST}, s{r}, {2*k}"), RAW(f"v_writelane_b32 v{vST}, s{sTM+2}, {2*k+1}"))
        self.pending = []

    def gap(self, g0, g1, name):
        if self.on:
            k = self.n
            g0.post += [RAW(f"s_memtime s[{sTM}:{sTM+1}]"), RAW(f"s_memrealtime s[{sTM+2}:{sTM+3}]")]
            g1.post += [RAW("s_waitcnt lgkmcnt(0)"), RAW(f"v_writelane_b32 v{vST}, s{sTM}, {2*k}"), RAW(f"v_writelane_b32 v{vST}, s{sTM+2}, {2*k+1}")]
            self.n += 1
            self.names.append(name)


def srd(base, lo, hi, off, size):
    return [S(f"s_add_u32 s{base}, s{lo}, {off}"), S(f"s_addc_u32 s{base+1}, s{hi}, 0"),
            S(f"s_mov_b32 s{base+2}, {size}"), S(f"s_mov_b32 s{base+3}, 0x20000")]


def prologue(P, cfg, ST):
    A = P.seq
    A(S("s_cmp_ge_u32 s2, 256"), I("s_cbranch_scc1 KF_done", "branch"))
    A(RAW("s_load_dwordx4 s[4:7], s[0:1], 0"), RAW("s_load_dwordx4 s[28:31], s[0:1], 16"), RAW("s_load_dwordx4 s[96:99], s[0:1], 32"),
      RAW("s_load_dwordx2 s[100:101], s[0:1], 48"), RAW("s_load_dwordx2 s[32:33], s[0:1], 56"))
    if ST.on:
        A(RAW(f"s_memtime s[{sTM}:{sTM+1}]"), RAW(f"s_memrealtime s[{sTM+2}:{sTM+3}]"))
    A(V("v_lshrrev_b32 v1, 6, v0"), V("v_and_b32 v0, 63, v0"))
    A(V(f"v_readfirstlane_b32 s{sW}, v1"))
    if cfg["codepf"]:
        n = cfg["codepf"] + (4 if cfg["split3"] else 0)
        A(RAW("s_getpc_b64 s[52:53]"), LABEL("KF_pc"), S("s_lshr_b32 s3, s2, 3"), S(f"s_lshl_b32 s3, s3, 2"), S(f"s_add_u32 s3, s3, s{sW}"),
          S(f"s_mul_i32 s3, s3, {n*128}"), V(f"v_min_u32 v2, {n-1}, v0"), V("v_lshl_add_u32 v2, v2, 7, s3"),
          RAW("v_min_u32 v2, KF_end-KF_pc-4, v2"), V("v_mov_b32 v3, s53"), V("v_add_co_u32 v2, vcc, s52, v2"), NOP(1),
          RAW("v_addc_co_u32 v3, vcc, 0, v3, vcc"), RAW("global_load_dword v42, v[2:3], off"))
    m = cfg["map"]
    if m == "hg4":
        A(S(f"s_and_b32 s{sG}, s2, 7"), S(f"s_lshr_b32 s{sB}, s2, 5"), S(f"s_bfe_u32 s{sHL}, s2, 0x20003"))
    elif m == "4x8":
        A(S(f"s_bfe_u32 s{sHL}, s2, 0x20003"), S(f"s_and_b32 s{sG}, s2, 6"), S("s_bfe_u32 s3, s2, 0x10005"), S(f"s_add_u32 s{sG}, s{sG}, s3"),
          S(f"s_and_b32 s{sB}, s2, 1"), S(f"s_lshl_b32 s{sB}, s{sB}, 2"), S("s_lshr_b32 s3, s2, 6"), S(f"s_add_u32 s{sB}, s{sB}, s3"))
    elif m == "batch":
        A(S(f"s_and_b32 s{sB}, s2, 7"), S(f"s_lshr_b32 s{sG}, s2, 5"), S(f"s_bfe_u32 s{sHL}, s2, 0x20003"))
    A(S(f"s_lshl_b32 s{sH}, s{sG}, 2"), S(f"s_add_u32 s{sH}, s{sH}, s{sHL}"))
    if cfg["rot"]:
        assert not cfg["split3"]
        A(S(f"s_xor_b32 s3, s{sB}, s{sHL}"), S("s_and_b32 s3, s3, 1"), S(f"s_lshl_b32 s{sRX}, s3, 7"), S(f"s_mul_i32 s{sRW}, s3, 786432"))
    A(V("v_lshrrev_b32 v2, 3, v0"), V("v_lshl_add_u32 v2, v1, 6, v2"), V("v_mul_u32_u24 v2, 1280, v2"),
      V("v_lshrrev_b32 v3, 4, v0"), V("v_and_b32 v4, 7, v0"), V("v_xor_b32 v3, v3, v4"),
      V(f"v_lshl_add_u32 v{vOX}, v3, 4, v2"), V("v_xor_b32 v3, 4, v3"), V("v_lshl_add_u32 v4, v3, 4, v2"))
    for j in range(1, 8):
        src = f"v{vOX}" if j % 2 == 0 else "v4"
        A(V(f"v_add_u32 v{vOX+j}, {10240*j - 1024*(j&3)}, {src}"))
    A(S(f"s_mul_i32 s{sWOFF}, s{sW}, 3072"), S(f"s_lshl_b32 s{sXB0}, s{sW}, 13"),
      S(f"s_add_u32 s{sXB1}, s{sXB0}, {VREG+2*SLOT}"), S(f"s_add_u32 s{sXB0}, s{sXB0}, {VREG}"),
      S(f"s_cmp_eq_u32 s{sW}, 3"), S(f"s_cselect_b32 s{sXB0}, {EREG}, s{sXB0}"), S(f"s_cselect_b32 s{sXB1}, {EREG+8192}, s{sXB1}"),
      S(f"s_cselect_b32 s{sPAD}, {f32(-1000.0)}, 0"))
    A(S(f"s_lshl_b32 s52, s{sHL}, 2"), S(f"s_add_u32 s52, s52, s{sW}"), S(f"s_lshl_b32 s91, s{sB}, 4"), S("s_add_u32 s91, s91, s52"))
    A(S("s_mul_i32 s3, s91, 12288"), S(f"s_mul_i32 s88, s{sHL}, 384"), S("s_sub_u32 s3, s3, s88"), S("s_mul_i32 s52, s52, 19200"),
      V("v_min_u32 v2, 11, v0"), V("v_lshl_add_u32 v44, v2, 7, s3"), V(f"v_add_u32 v{vPF}, {128*12288}, v44"),
      V("v_min_u32 v2, 14, v0"), V("v_mul_u32_u24 v2, 1280, v2"), V("v_add_u32 v45, s52, v2"))
    if ST.on and not ST.it:
        A(RAW("s_memtime s[56:57]"), RAW("s_memrealtime s[58:59]"))
    A(RAW("s_waitcnt lgkmcnt(0)"))
    if ST.on:
        A(RAW(f"v_mov_b32 v{vST}, 0"), RAW(f"v_writelane_b32 v{vST}, s{sTM}, 0"), RAW(f"v_writelane_b32 v{vST}, s{sTM+2}, 1"))
        ST.n = 1
        ST.names.append("start")
        if not ST.it:
            A(RAW(f"v_writelane_b32 v{vST}, s56, 2"), RAW(f"v_writelane_b32 v{vST}, s58, 3"))
            ST.n = 2
            ST.names.append("prewait")
            ST.seq(P, "karg")
    A(S(f"s_mul_i32 s3, s{sB}, 307200"), srd(SX, 4, 5, "s3", 307200))
    A(S(f"s_mul_i32 s3, s{sH}, 384"), srd(SW, 30, 31, "s3", 0), S(f"s_sub_u32 s{SW+2}, 7864320, s3"))
    if cfg["pfa"]:
        A(VLOAD(("a", 188), 44, SW, 0, 0, "pfa", "", n=1), VLOAD(("a", 189), 45, SX, 0, 128, "pfa", "", n=1))
    seq_groups(P, grp_X(0, cfg))
    A(V("v_and_b32 v5, 1, v1"), V("v_lshlrev_b32 v5, 2, v5"))
    for j in range(3):
        A(V(f"v_add_u32 v2, {64*j}, v0"), V("v_mul_u32_u24 v3, 2731, v2"), V("v_lshrrev_b32 v3, 16, v3"),
          V("v_mul_u32_u24 v4, 24, v3"), V("v_sub_u32 v2, v2, v4"),
          V("v_and_or_b32 v4, v3, 2, v5"), V(f"v_xor_b32 v{vOV+j}, v2, v4"),
          V(f"v_lshl_add_u32 v{vOK+j}, v1, 3, v3"),
          V(f"v_mul_u32_u24 v7, 12288, v{vOK+j}"), V(f"v_lshl_add_u32 v{vOW+j}, v{vOV+j}, 4, v7"))
        if j:
            A(V(f"v_subrev_u32 v{vOW+j}, {1024*j}, v{vOW+j}"))
    if not cfg["pfa"]:
        seq_groups(P, grp_W(0, cfg))
    stream = grp_W(1, cfg)
    for s in range(1, 10):
        gw = grp_W(2 * s, cfg) + grp_W(2 * s + 1, cfg)
        for g in gw:
            g.earliest = 96 * (s - 4) + 82 if s >= 4 else 0
            if cfg["w3buf"]:
                g.earliest = 96 * (s - 3) + 82 if s >= 3 else 0
            if cfg["lazy1"] and s >= 4:
                g.earliest += 8 if s - 4 >= cfg["lazy1"] else 96
            g.deadline = 96 * (min(s, 8) - 1) + 79
        gx = grp_X(s, cfg, after=[("X", s - 2)] if s >= 2 else ())
        for g in gx:
            g.earliest = xread_gap(s - 2, cfg) + (8 * xstep(s - 2, cfg) + 8 if cfg["spread1"] else 12) if s >= 3 else 0
            g.deadline = xread_gap(s, cfg) - 2
        stream += gw + gx
    A(
      S(f"s_lshl_b32 s3, s{sH}, 2"), S(f"s_add_u32 s3, s3, s{sW}"), S("s_mul_i32 s3, s3, 2560"),
      V("v_bfe_u32 v2, v0, 1, 1"), V("v_mul_u32_u24 v2, 1280, v2"), V("v_and_b32 v3, 1, v0"), V("v_lshl_add_u32 v2, v3, 7, v2"),
      V(f"v_add_u32 v{vPF+1}, s3, v2"))
    for i, pos in reversed(list(enumerate(cfg["p1pf"]))):
        if pos is None:
            continue
        g = DmaGroup([S(f"s_mov_b32 s{sAO}, {i*128*12288}")],
                     [VLOAD(("a", 190), vPF + 1, SX, 0, 256 * (i + 1), "pf", "", n=1), VLOAD(("a", 191), vPF, SW, f"s{sAO}", 0, "pf", "", n=1)])
        stream.insert(pos + 1, g)
    for q, t in enumerate(cfg["wopf0"]):
        x = VLOAD(("a", 189), 7, SWO, f"s{sAO}", 0, "wopf0", "", n=1)
        x.wr = set()
        k = max(k for k, g in enumerate(stream) if g.dmas[0].meta["tag"] == t)
        stream.insert(k + 1, DmaGroup([S(f"s_mov_b32 s{sAO}, {q*245760//len(cfg['wopf0'])}")], [x]))
    if cfg["wopf0"]:
        A(wo_srd(), wo_touch_offsets(7, 60 // len(cfg['wopf0']) - 1))
    A(V("v_and_b32 v1, 15, v0"), V("v_lshrrev_b32 v2, 4, v0"))
    A(V("v_lshrrev_b32 v3, 1, v1"), V("v_xor_b32 v3, v3, v2"), V("v_lshlrev_b32 v3, 4, v3"), V("v_lshl_add_u32 v3, v1, 7, v3"),
      V("v_xor_b32 v4, 64, v3"),
      V(f"v_add_u32 v{vAX}, s{sXB0}, v3"), V(f"v_add_u32 v{vAX+1}, s{sXB0}, v4"),
      V(f"v_add_u32 v{vAX+2}, s{sXB1}, v3"), V(f"v_add_u32 v{vAX+3}, s{sXB1}, v4"))
    A(V("v_lshrrev_b32 v3, 2, v1"), V("v_lshl_add_u32 v4, v2, 3, v3"), V("v_mul_u32_u24 v4, 384, v4"),
      V("v_and_b32 v5, 3, v1"), V("v_lshl_add_u32 v4, v5, 3, v4"),
      V("v_lshrrev_b32 v3, 3, v1"), V("v_and_b32 v5, 1, v2"), V("v_lshl_or_b32 v3, v5, 1, v3"))
    for e in range(4):
        A(V(f"v_xor_b32 v5, {e}, v3"), V(f"v_lshl_add_u32 v{vAW+e}, v5, 5, v4"), V(f"v_add_u32 v{vAV+e}, {VREG}, v{vAW+e}"))
    if cfg["pfa"]:
        seq_groups(P, grp_W(0, cfg))
    seq_groups(P, stream[:cfg["npro"]])
    del stream[:cfg["npro"]]
    stream.append(DmaGroup([], [VSTORE(("a", 184), 2, SF, 0, 0, "sc1", n=1, tag="finit"), VSTORE(("a", 184), 3, SF, 0, 0, "sc1", n=4, tag="finit")]))
    return stream


def wo_srd():
    return [S(f"s_mul_i32 s3, s{sG}, {768*1280}"), S(f"s_mul_i32 s52, s{sHL}, 320"), S("s_add_u32 s3, s3, s52")] + \
        srd(SWO, 96, 97, "s3", 0) + [S(f"s_sub_u32 s{SWO+2}, 7864320, s3")]


def wo_touch_offsets(dst, n=19):
    return [S("s_lshr_b32 s3, s91, 5"), S("s_mul_i32 s3, s3, 160"), S("s_add_u32 s3, s3, s91"),
            V(f"v_min_u32 v2, {n}, v0"), V("v_mul_u32_u24 v3, 6554, v2"), V("v_lshrrev_b32 v3, 16, v3"), V("v_mul_u32_u24 v4, 10, v3"),
            V("v_sub_u32 v2, v2, v4"), V("v_lshl_add_u32 v3, v3, 5, s3"), V("v_mul_u32_u24 v3, 1280, v3"), V("v_lshl_add_u32 v2, v2, 7, v3"),
            V("v_subrev_u32 v2, s52, v2"), V(f"v_max_i32 v{dst}, 0, v2")]


def background(cfg):
    B_ = []

    def A(*ins):
        for x in ins:
            if isinstance(x, (list, tuple)):
                A(*x)
            else:
                B_.append(x)
    park = {}

    def pk(reg, src):
        park[reg] = True
        A(V(f"v_accvgpr_write_b32 a{240+PARK.index(reg)}, {src}"))
    A(V(f"v_mov_b32 v1, s{sW}"))
    A(S(f"s_and_b32 s3, s{sW}, 1"), S("s_mul_i32 s3, s3, 5"), S(f"s_lshr_b32 s88, s{sW}, 1"), S("s_lshl_b32 s88, s88, 2"), S("s_xor_b32 s3, s3, s88"))
    for j in range(3):
        A(V(f"v_mul_u32_u24 v3, 384, v{vOK+j}"))
        if j:
            A(V(f"v_subrev_u32 v3, {1024*j}, v3"))
        A(V(f"v_xor_b32 v2, s3, v{vOV+j}"), V(f"v_lshl_add_u32 v{vOK+j}, v2, 4, v3"), V(f"v_lshl_add_u32 v{vOV+j}, v{vOV+j}, 4, v3"))
    A(S(f"s_lshl_b32 s{sCNT}, s{sB}, 5"), S(f"s_add_u32 s{sCNT}, s{sCNT}, s{sH}"), S(f"s_mul_i32 s3, s{sCNT}, 393216"),
      srd(SK, 6, 7, "s3", 393216), srd(SV, 28, 29, "s3", 393216 + SLOT),
      S(f"s_sub_u32 s{SV}, s{SV}, {SLOT}"), S(f"s_subb_u32 s{SV+1}, s{SV+1}, 0"))
    A(srd(SF, 32, 33, FLAG_OFF, 0x60000))
    A(S(f"s_sub_u32 s3, s{sCNT}, s{sHL}"), S("s_mul_i32 s3, s3, 92160"), srd(SO, 32, 33, "s3", 4 * 92160))
    if not cfg["wopf0"]:
        A(wo_srd())
    A(S(f"s_lshl_b32 s3, s{sB}, 2"), S(f"s_add_u32 s3, s3, s{sHL}"), S(f"s_mul_i32 s3, s3, {75*8192}"), S(f"s_add_u32 s3, s3, {PART_OFF}"),
      srd(SP, 32, 33, "s3", 75 * 8192))
    A(S(f"s_mul_i32 s3, s{sB}, 307200"), S("s_add_u32 s3, s3, s52"), srd(SOUT, 98, 99, "s3", 0), S(f"s_sub_u32 s{SOUT+2}, 2457600, s3"))
    A(S(f"s_lshl_b32 s3, s{sB}, 5"), srd(SD, 100, 101, "s3", 4), S(f"s_add_u32 s{sTRIP}, s{sHL}, 1"))
    for p in range(4):
        A(S(f"s_add_u32 s3, s{sHL}, {p}"), S("s_and_b32 s3, s3, 3"), S(f"s_mul_i32 s{sHB+p}, s3, 245760"), S(f"s_mul_i32 s{sOB+p}, s3, 92160"))
    c = math.log2(math.e) / math.sqrt(192.0)
    A(S(f"s_mov_b32 s{sC}, {f32(c)}"), S(f"s_mov_b32 s{sTH}, {f32(cfg['thresh'])}"))
    A(wo_touch_offsets(2, 29 if cfg["wodyn"] else (60 // len(cfg["wopf"]) - 1 if cfg["wopf"] else 19)))
    pk(5, "v2")
    A(V("v_and_b32 v5, 1, v1"), V("v_lshrrev_b32 v4, 1, v1"), V("v_lshl_or_b32 v5, v5, 1, v4"))
    for j in range(3):
        A(V(f"v_add_u32 v2, {64*j}, v0"), V("v_mul_u32_u24 v3, 3277, v2"), V("v_lshrrev_b32 v3, 16, v3"),
          V("v_mul_u32_u24 v4, 20, v3"), V("v_sub_u32 v2, v2, v4"),
          V("v_lshrrev_b32 v4, 1, v3"), V("v_and_b32 v4, 2, v4"), V("v_xor_b32 v2, v2, v4"),
          V("v_lshl_add_u32 v3, v5, 3, v3"), V("v_mul_u32_u24 v3, 1280, v3"), V("v_lshl_add_u32 v2, v2, 4, v3"))
        if j:
            A(V(f"v_subrev_u32 v2, {1024*j}, v2"))
        if j == 2:
            A(V("v_lshrrev_b32 v3, 5, v0"), V("v_lshl_or_b32 v2, v3, 30, v2"))
        pk(vOWO + j, "v2")
    A(S(f"s_cmp_eq_u32 s{sW}, 3"), S(f"s_cselect_b32 s88, {OOB}, 0"))
    A(V("v_mul_u32_u24 v2, 24576, v1"), V("v_lshl_add_u32 v2, v0, 4, v2"), V("v_add_u32 v3, s88, v2"), V(f"v_add_u32 v3, {3*6144}, v3"))
    pk(vOB, "v2")
    pk(vOB + 3, "v3")
    A(S(f"s_lshl_b32 s3, s{sG}, 10"), V("v_lshlrev_b32 v2, 15, v1"), V("v_lshl_add_u32 v2, v0, 4, v2"),
      V("v_add_u32 v3, s88, v2"), V(f"v_add_u32 v3, {3*8192}, v3"))
    pk(vOP, "v2")
    pk(vOP + 3, "v3")
    mark = len(B_)
    A(V("v_and_b32 v1, 15, v0"), V("v_lshrrev_b32 v2, 4, v0"))
    A(V("v_lshrrev_b32 v3, 1, v2"), V("v_mul_u32_u24 v3, 6144, v3"), V("v_and_b32 v4, 1, v2"), V("v_lshrrev_b32 v5, 2, v1"),
      V("v_lshl_add_u32 v5, v4, 2, v5"), V("v_mul_u32_u24 v5, 320, v5"), V("v_add_u32 v3, v3, v5"), V("v_and_b32 v5, 3, v1"),
      V("v_lshl_add_u32 v3, v5, 3, v3"), V("v_lshl_add_u32 v5, v4, 5, v3"), V("v_xor_b32 v4, 1, v4"), V("v_lshl_add_u32 v4, v4, 5, v3"),
      V(f"v_add_u32 v6, {VREG}, v5"), V(f"v_add_u32 v7, {VREG}, v4"))
    pk(vA3, "v5")
    pk(vA3 + 1, "v4")
    pk(vA3 + 2, "v6")
    pk(vA3 + 3, "v7")
    A(V("v_lshrrev_b32 v3, 2, v1"), V("v_and_b32 v4, 3, v1"), V("v_lshl_add_u32 v4, v3, 3, v4"), V("v_mul_u32_u24 v4, 384, v4"),
      V("v_and_b32 v3, 1, v3"), V("v_and_b32 v5, 2, v1"), V("v_or_b32 v3, v3, v5"), V("v_lshrrev_b32 v5, 3, v1"), V("v_lshl_or_b32 v3, v5, 2, v3"),
      V("v_lshrrev_b32 v5, 1, v2"), V("v_and_b32 v6, 1, v2"), V("v_lshl_or_b32 v5, v6, 1, v5"), V("v_xor_b32 v3, v3, v5"),
      V("v_lshl_add_u32 v6, v3, 4, v4"), V("v_xor_b32 v3, 4, v3"), V("v_lshl_add_u32 v7, v3, 4, v4"))
    A(V(f"v_mov_b32 v1, s{sW}"))
    A(S(f"s_lshl_b32 s84, s{sB}, 3"), S(f"s_add_u32 s84, s84, s{sG}"), S("s_lshl_b32 s84, s84, 2"), S(f"s_add_u32 s84, s84, s{sW}"),
      S("s_lshl_b32 s84, s84, 9"),
      S(f"s_lshl_b32 s85, s{sB}, 2"), S(f"s_add_u32 s85, s85, s{sHL}"), S("s_lshl_b32 s85, s85, 13"), S("s_add_u32 s85, s85, 0x20000"),
      S(f"s_lshl_b32 s86, s{sHL}, 7"), S("s_add_u32 s86, s86, s84"),
      S("s_add_u32 s3, s3, s85"))
    A(V("v_bfe_u32 v4, v0, 4, 2"), V("v_lshl_add_u32 v4, v4, 7, s84"), V("v_lshrrev_b32 v2, 3, v0"), V("v_max_u32 v5, 1, v2"),
      V("v_lshl_add_u32 v5, v5, 7, s3"),
      V("v_lshl_add_u32 v3, v2, 10, s85"), V(f"v_xor_b32 v2, s{sG}, v2"), V("v_lshl_add_u32 v3, v2, 7, v3"),
      V("v_and_b32 v2, 7, v0"), V("v_lshl_add_u32 v3, v2, 4, v3"), V("v_min_u32 v2, 1, v1"),
      V("v_lshl_or_b32 v3, v2, 30, v3"), V("v_and_b32 v2, 31, v0"), V("v_lshl_add_u32 v2, v2, 2, s86"))
    pk(vFO, "v2")
    pk(vFP, "v3")
    pk(vFOP, "v4")
    pk(vFPP, "v5")
    assert len(park) == len(PARK)
    A([V(f"v_accvgpr_write_b32 a{184+k}, 0") for k in range(4)])
    A(S(f"s_and_b32 s3, s{sW}, 1"), S("s_lshl_b32 s3, s3, 2"), S(f"s_xor_b32 s{sGE}, s3, s{sG}"),
      S(f"s_and_b32 s3, s{sGE}, 3"), S(f"s_lshl_b32 s91, s{sW}, 2"), S("s_add_u32 s3, s3, s91"), S(f"s_lshr_b32 s{sSPIN}, s{sGE}, 2"),
      S(f"s_mul_i32 s{sJ}, s{sSPIN}, 15"), S(f"s_add_u32 s{sJ}, s{sJ}, s3"), S(f"s_lshl_b32 s{sJ}, s{sJ}, 13"),
      S(f"s_mul_i32 s{sJ+3}, s3, 20480"), S(f"s_lshl_b32 s91, s{sSPIN}, 6"), S(f"s_add_u32 s{sJ+3}, s{sJ+3}, s91"),
      S("s_cmp_eq_u32 s3, 15"), S(f"s_cselect_b32 s91, {OOB}, 0"), S(f"s_or_b32 s{sJ}, s{sJ}, s91"), S(f"s_or_b32 s{sJ+3}, s{sJ+3}, s91"),
      S(f"s_add_u32 s{sJ+1}, s{sJ}, {30*8192}"), S(f"s_add_u32 s{sJ+4}, s{sJ+3}, 128"),
      S(f"s_add_u32 s{sJ+2}, s{sJ}, {60*8192}"), S(f"s_add_u32 s{sJ+5}, s{sJ+3}, 256"),
      S(f"s_lshl_b32 s91, s{sSPIN}, 30"), S(f"s_or_b32 s{sJ+2}, s{sJ+2}, s91"), S(f"s_or_b32 s{sJ+5}, s{sJ+5}, s91"),
      S(f"s_lshl_b32 s{sGE}, s{sGE}, 10"))
    NS = len(cfg["skips"])
    if NS:
        A(S("s_lshr_b32 s3, s2, 3"), S(f"s_add_u32 s3, s3, s{sG}"), S(f"s_mov_b32 s{sMASK}, 0"))
        for lo, per in cfg["skipwin"]:
            A(S(f"s_mul_i32 s91, s3, {65536//per+1}"), S("s_lshr_b32 s91, s91, 16"), S(f"s_mul_i32 s91, s91, {per}"), S("s_sub_u32 s91, s3, s91"),
              S(f"s_lshl_b32 s91, {1 << lo}, s91"), S(f"s_or_b32 s{sMASK}, s{sMASK}, s91"))
        A(
          S(f"s_mov_b32 s{sIT}, 0"), S(f"s_mov_b32 s{sPFN}, 0"), S(f"s_mov_b32 s{sSL}, {(cfg['LA'] % 6) * SLOT}"), S(f"s_add_u32 s{sWOFFV}, s{sWOFF}, {VREG}"))
    late = [V(f"v_mov_b32 v{vAK}, v6"), V(f"v_mov_b32 v{vAK+1}, v7"),
            V(f"v_or_b32 v6, s{sW}, v0"), V("v_lshlrev_b32 v6, 8, v6"), V("v_mov_b32 v7, 1")]
    return B_, late, mark


def fill_background(G, ins, lo, hi):
    k = 0
    gi = lo
    while k < len(ins):
        n = 1
        while k + n < len(ins) and ins[k + n].text.startswith(("s_addc", "s_subb", "s_cselect")):
            n += 1
        while G[gi].free() < min(n, 2):
            gi += 1
        assert gi < hi
        G[gi].vec += ins[k:k + n]
        k += n
    return gi


def xread_gap(c, cfg):
    if cfg["w3buf"] and c == 8:
        return 96 * 6 + 56
    if cfg["spread1"]:
        if c == 9:
            return 96 * 7 + 86
        return 96 * (c - 1) + (82 if c < cfg["xearly"] else (36 if c < 5 else cfg["xoff"]))
    if c == 9:
        return 96 * 7 + 86
    return 96 * (c - 1) + (84 if c < cfg["xearly"] else 42)


def xstep(c, cfg):
    return 1 if (c == 9 or c < cfg["xearly"]) else 2


def Xr(c, u, qt):
    if W3BUF[0] and c == 8:
        return ("a", 208 + (u * 4 + qt) * 4)
    return Xf(2 if c == 9 else c & 1, u, qt)


def x_read(c, u, qt):
    return Q(qt, DSR128(Xr(c, u, qt), vAX + 2 * (c & 1) + u, 2048 * qt, ("X", c)))


def AL(dt, u):
    return ("a", (192 if dt == 11 else 96 + (dt % 3) * 16) + 4 * u)


def K0f(a, s):
    return ("a", 144 + (a * 6 + s) * 4)


def w_reads(stage, dt):
    gdt = stage * 12 + dt
    out = []
    for u in range(4 if stage == 8 else 2):
        n = 2 * stage + u
        for t in range(2):
            out.append(vtype_read(AL(dt, u) if stage == 8 else FR(2 * (gdt % 3) + u), wslot(n), dt, t, ("W", n)))
    return out


BL1, BL2 = 768 + 13, 768 + 161


def kv_prefill(cfg):
    LA = cfg["LA"]
    out = []
    seq = [("K", 0)]
    for n in range(1, LA):
        seq += [("K", n), ("V", n - 1)]
    free = {("K", 0): 658, ("K", 1): 658, ("K", 2): 754, ("K", 3): 754, ("K", 4): BL2 + 1, ("K", 5): BL2 + 1,
            ("V", 0): BL1 + 1, ("V", 1): BL1 + 1, ("V", 2): BL1 + 1, ("V", 3): BL1 + 1, ("V", 4): BL2 + 1}
    if cfg["w3buf"]:
        free.update({("K", 0): 0, ("K", 1): 0, ("V", 0): 658, ("V", 1): 658})
        if LA >= 4:
            seq[3], seq[4] = seq[4], seq[3]
        if LA >= 6:
            seq[7], seq[8] = seq[8], seq[7]
    elif LA >= 3:
        seq[2], seq[3] = seq[3], seq[2]
    for t in seq:
        g = (grp_K if t[0] == "K" else grp_V)(t[1], cfg)[0]
        g.earliest = free[t] + (8 if cfg["lazy1"] and free[t] < BL1 else 0)
        if t in (("K", 0), ("K", 1)):
            g.deadline = BL2 - 2
        out.append(g)
    return out


def put_at(G, gaps, r):
    gaps = list(gaps)
    assert len(gaps) >= len(r)
    for g, x in zip(gaps, r):
        assert G[g].free() >= 1, g
        G[g].vec.append(x)


def put_reads(G, g, r, step=1):
    for k in range(0, len(r), 2):
        assert G[g].free() >= 2, g
        G[g].vec += r[k:k + 2]
        g += step


def phase1(P, cfg, ST, stream):
    A = P.seq
    ST.seq(P, "issued")
    if cfg["tour"] and not cfg["split3"]:
        A(RAW("s_mov_b64 exec, 0"))
        for w in range(1, 4):
            A(RAW(f"s_cmp_eq_u32 s{sW}, {w}"), RAW(f"s_cbranch_scc1 KF_pg{w}"))
        A(RAW("s_branch KF_pg4"), LABEL("KF_tret"), RAW("s_mov_b64 exec, -1"))
    A(RAW("s_branch KF_go"), RAW(".p2align 12"), LABEL("KF_go"))
    ST.seq(P, "toured")
    seq_groups(P, stream[:cfg["npro2"]])
    stream = stream[cfg["npro2"]:]
    A(WAITV(("X", 0), ("W", 0), ("W", 1)), BARRIER())
    ST.seq(P, "landed")
    for u in range(2):
        for qt in range(4):
            A(x_read(0, u, qt))
    A(w_reads(0, 0), w_reads(0, 1))
    mfs = []
    for st in range(8):
        for dt in range(12):
            gdt = st * 12 + dt
            for qt in range(4):
                for u in range(2):
                    C = 0 if (st == 0 and u == 0) else acc(dt, qt)
                    m = Q(qt, MFMA(acc(dt, qt), FR(2 * (gdt % 3) + u), Xr(st, u, qt), C))
                    if qt == 0 and u == 0:
                        m.rd |= set(regs("v", FR(2 * (gdt % 3) + 1)[1], 4))
                        if dt == 0:
                            m.rd |= set(regs("a", Xr(st, 0, 0)[1], 32))
                    mfs.append(m)
    done = {}
    order = [(dt, qt) for dt in range(10) for qt in range(4)] + [(dt, qt) for qt in range(4) for dt in (10, 11)]
    for dt, qt in order:
        for u in range(4):
            m = Q(qt, MFMA(acc(dt, qt), AL(dt, u), Xr(8 + u // 2, u & 1, qt), acc(dt, qt)))
            if qt == 0 and u == 0:
                m.rd |= set(regs("a", AL(dt, 0)[1], 16))
                if dt == 0 and not cfg["spread1"]:
                    m.rd |= set(regs("a", Xr(9, 0, 0)[1], 32))
            if dt == 0 and u == 0:
                m.rd |= set(regs(*Xr(9, 1, qt), 4))
            mfs.append(m)
        done[(dt, qt)] = len(mfs) - 1
    assert len(mfs) == 960
    for qt in range(4):
        for a in range(2):
            for s in range(6):
                m = Q(qt, MFMA(St(a, qt), K0f(a, s), Qf(qt, s), 0 if s == 0 else St(a, qt)))
                if qt == 0 and s == 0:
                    m.rd |= set(regs("a", K0f(a, 0)[1], 24))
                mfs.append(m)
    G = P.gaps(mfs)
    SP_ = cfg["spread1"]
    for st in range(8):
        b = 96 * st
        for dt in range(2, 12):
            if SP_:
                put_at(G, [b + 8 * (dt - 2) + k * (SP_ if dt < 11 or cfg["lazy1"] else 1) for k in range(4)], w_reads(st, dt))
            else:
                put_reads(G, b + 8 * (dt - 2), w_reads(st, dt))
        if SP_ and st < 7:
            put_at(G, range(b + 82, b + 86), w_reads(st + 1, 0))
        else:
            put_reads(G, b + 82, w_reads(st + 1, 0))
        if st < 7:
            if SP_:
                put_at(G, range(b + 88, b + 96, SP_), w_reads(st + 1, 1))
            else:
                put_reads(G, b + 88, w_reads(st + 1, 1))
        need = [("W", 2 * st + 2), ("W", 2 * st + 3)] if st < 7 else [("W", n) for n in range(16, 20)]
        if cfg.get("p1stamps"):
            ST.gap(G[b + 79], G[b + 81], f"st{st}")
        if cfg.get("p1light"):
            ST.light2(G[b + 55], G[b + 79], f"st{st}")
        G[b + 80].sca.append(WAITV(*need))
        if cfg["lazy1"]:
            G[b + 81].sca.append(BARRIER(frees=[("W", 2 * st - 2), ("W", 2 * st - 1)]))
            if st >= cfg["lazy1"]:
                G[b + 89].sca.append(BARRIER(frees=[("W", 2 * st), ("W", 2 * st + 1)]))
        else:
            G[b + 81].sca.append(BARRIER(frees=[("W", 2 * st), ("W", 2 * st + 1)] + ([("X", 8)] if cfg["w3buf"] and st == 6 else [])))
    for c in range(1, 10):
        g = xread_gap(c, cfg)
        G[g - 1].sca.append(WAITV(("X", c)))
        if SP_:
            put_at(G, range(g, g + 32, 2 if xstep(c, cfg) == 2 else 1), [x_read(c, u, qt) for qt in range(4) for u in range(2)])
        else:
            put_reads(G, g, [x_read(c, u, qt) for u in range(2) for qt in range(4)])
    for dt in range(1, 11):
        if SP_ and cfg["lstep"]:
            continue
        if SP_ and dt < 10:
            put_at(G, range(768 + 16 * (dt - 1), 960), w_reads(8, dt))
        else:
            put_reads(G, 768 + 16 * (dt - 1), w_reads(8, dt))
    if SP_ and cfg["lstep"]:
        put_at(G, list(range(768, 776)) + list(range(776, 920, 2)), sum((w_reads(8, dt) for dt in range(1, 11)), []))
        put_at(G, range(799, 927, 16), w_reads(8, 11))
    else:
        put_reads(G, 768 + 16 * 9 + 4, w_reads(8, 11))
    if cfg.get("p1light"):
        for q in (1, 7):
            ST.light2(G[768 + 16 * q - 9], G[768 + 16 * q], f"L{q}")
    G[BL1].sca.append(BARRIER(frees=[("X", 8), ("X", 9)]))
    G[BL2 - 1].sca.append(WAITV(("K", 0), ("K", 1), "finit"))
    G[BL2].sca.append(BARRIER(frees=[("W", n) for n in range(16, 20)]))
    r = [DSR128(K0f(a, s), vAK + (s & 1), kslot(0) + 1536 * a + 128 * (s >> 1), ("K", 0)) for a in range(2) for s in range(6)]
    if SP_:
        put_at(G, range(BL2 + 1, 960, 2), r)
        put_at(G, range(964, 1000, 3), [k_read(1, 0, s) for s in range(6)])
    else:
        put_reads(G, BL2 + 1, r, 3)
        put_reads(G, 962, [k_read(1, 0, s) for s in range(6)], 3)
    ok = lambda k: k % 8 != 7
    pc = cfg["pace"]

    def pace(k):
        for lim, p in pc:
            if k < lim:
                return p
        return pc[-1][1]
    kv = kv_prefill(cfg)
    if cfg["w3buf"]:
        tagpos = lambda t: max(k for k, g in enumerate(stream) if g.dmas[0].meta["tag"] == t)
        for c in cfg["xfirst"]:
            k = tagpos(("X", c))
            xs = [stream.pop(k - 1), stream.pop(k - 1)]
            k = tagpos(("W", 2 * c))
            stream[k:k] = xs
        if cfg["fpos"]:
            g = stream.pop()
            stream.insert(tagpos(cfg["fpos"]) + 1, g)
        for t in cfg["kearly"]:
            k = tagpos(t) + 1
            while k < len(stream) and stream[k].dmas[0].meta["tag"] in ("pf", "wopf0"):
                k += 1
            stream.insert(k, kv.pop(0))
    left = place_stream(P, G, stream, 0, 960, pace, ok)
    assert not left
    last = max(k for k, g in enumerate(G) if g.isdma())
    left = place_stream(P, G, kv, last + 1, len(G), lambda k: cfg["kvpace"], ok)
    bg, late, mark = background(cfg)
    for i, g in enumerate(cfg["wopf1"]):
        g = free_gap(G, g, ok)
        x = VLOAD(("a", 189), 5, SWO, "s3", 0, "wopf1", "", n=1)
        x.wr = set()
        G[g].vec.append(x)
        P.flex_scalar(S(f"s_mov_b32 s3, {i*81920}"), list(reversed(G[g - 5:g])))
    if cfg["wopf1"]:
        bg.append(V(f"v_accvgpr_read_b32 v5, a{240+PARK.index(5)}"))
    first_use = min(k for k, g in enumerate(G) for x in g.vec if x.meta.get("tag") in ("finit", ("K", 0), "wopf1"))
    pos_of = lambda t: [q for q, g in enumerate(G) for x in g.vec if x.meta.get("tag") == t]
    k = fill_background(G, bg[:mark], cfg["bgstart"], min(pos_of(("K", 0))) + 200)
    kvready = max(q for q, g in enumerate(G) for x in g.vec if x.text.startswith("s_subb_u32"))
    assert kvready + 4 < min(pos_of(("K", 0))), kvready
    k = fill_background(G, bg[mark:], max([k] + [q + 1 for q in pos_of("wopf0")]), min(pos_of("finit") + pos_of("wopf1")) - 8)
    lastpf = max([k] + [q for q, g in enumerate(G) for x in g.vec if x.meta.get("tag") == "pf"])
    fill_background(G, late, lastpf + 1, 760)
    ops = []
    swaps = []
    LAG = 5

    def muls(dt, qt, dl):
        r = acc(dt, qt)[1]
        return Q(qt, [(done[(dt, qt)] + LAG, dl, V(f"v_mul_f32 v{r+k}, s{sC}, v{r+k}")) for k in range(4)])
    for s in range(6):
        if s < 5:
            for qt in range(4):
                ops += muls(2 * s, qt, 958)
        for qt in range(4):
            dl = 960 + 12 * qt + s - 2
            if s == 5:
                ops += muls(10, qt, dl)
            ops += muls(2 * s + 1, qt, dl)
            ops += swaps
            a_, b_ = acc(2 * s, qt)[1], acc(2 * s + 1, qt)[1]
            e = done[(2 * s + 1, qt)] + LAG
            ops += [(e, dl, V(f"v_cvt_pk_bf16_f32 v{a_}, v{a_}, v{a_+1}")), (e, dl, V(f"v_cvt_pk_bf16_f32 v{a_+1}, v{a_+2}, v{a_+3}")),
                    (e, dl, V(f"v_cvt_pk_bf16_f32 v{a_+2}, v{b_}, v{b_+1}")), (e, dl, V(f"v_cvt_pk_bf16_f32 v{a_+3}, v{b_+2}, v{b_+3}"))]
            swaps = [(e, dl, V(f"v_permlane16_swap_b32 v{a_}, v{a_+2}")), (e, dl, V(f"v_permlane16_swap_b32 v{a_+1}, v{a_+3}"))]
            Q(qt, ops[-4:] + swaps)
            if s == 5:
                ops += swaps
                swaps = []
    INF = 10**9
    rm = rowmax(1)
    for pr in range(2):
        q0, q1 = 2 * pr, 2 * pr + 1
        ops += [(960 + 12 * q0 + 11 + LAG, INF, x) for x in rm[4 * q0:4 * q0 + 4]]
        e = 960 + 12 * q1 + 11 + LAG
        blk = rm[4 * q1:4 * q1 + 4] + xred([1 + q0, 1 + q1], [vE, vE + 1], "v_max_f32")
        if pr == 1 and not cfg["split3"]:
            blk.append(V(f"v_subrev_f32 v4, s{sPAD}, v4"))
        for qt in (q0, q1):
            blk += Q(qt, [V(f"v_sub_f32 v{vNM+4*qt+r}, 0, v{1+qt}") for r in range(4)])
            blk.append(V(f"v_mov_b32 v{vL+qt}, 0") if qt < 3 else V(f"v_sub_f32 v{vL+qt}, 0, s{sPAD}"))
        blk += softmax_seq(0, 1, [q0, q1], not cfg["R"])
        ops += [(e, INF, x) for x in blk if x.kind != "nop"]
    rest = [x for _, _, x in fill_ops(G, ops, 768)]
    if cfg.get("dbgp1"):
        lo_, hi_, st_ = cfg["dbgp1"]
        for k in range(lo_, hi_, st_):
            G[k].post.append(RAW("s_nop 7"))
    ST.seq(P, "qk0end")
    dm = sum((group_seq(g) for g in left), [])
    step = max(1, len(rest) // (len(dm) + 1))
    for k, x in enumerate(rest):
        if dm and k % step == step - 1:
            A(dm.pop(0))
        A(x)
    A(dm)
    A(WAITV(("V", 0)) if cfg["bpos"] else WAITV(("V", 0), ("K", 2)), BARRIER(frees=[("K", 0)]))


def qk_mfmas(first):
    out = []
    for a in range(2):
        for qt in range(4):
            for s in range(6):
                C = (0 if first else NM(qt)) if s == 0 else St(a, qt)
                m = Q(qt, MFMA(St(a, qt), Kf(a, s), Qf(qt, s), C))
                if qt == 0 and s in (0, 3):
                    m.rd |= set(regs("a", Kf(a, s)[1], 12))
                out.append(m)
    return out


def pv_mfmas(j):
    out = []
    for dt in range(12):
        for qt in range(4):
            out.append(Q(qt, MFMA(Oa(dt, qt), FR(dt), Pf(j & 1, qt), 0 if j == 0 else Oa(dt, qt))))
    return out


def xred(x, t, op):
    out = []
    for sw in ("v_permlane32_swap_b32", "v_permlane16_swap_b32"):
        for a, b in zip(x, t):
            out.append(V(f"v_mov_b32 v{b}, v{a}"))
        out.append(NOP(0))
        for a, b in zip(x, t):
            out.append(V(f"{sw} v{b}, v{a}"))
        for a, b in zip(x, t):
            out.append(V(f"{op} v{a}, v{a}, v{b}"))
    for y in out:
        if op == "v_max_f32" and "v4" in (y.rd | y.wr):
            Q(3, y)
    return out


def rowmax(dst):
    out = []
    for qt in range(4):
        s0, s1 = St(0, qt)[1], St(1, qt)[1]
        d = dst + qt
        out += [V(f"v_max3_f32 v{d}, v{s0}, v{s0+1}, v{s0+2}"), V(f"v_max3_f32 v{d}, v{d}, v{s0+3}, v{s1}"),
                V(f"v_max3_f32 v{d}, v{d}, v{s1+1}, v{s1+2}"), V(f"v_max_f32 v{d}, v{d}, v{s1+3}")]
        Q(qt, out[-4:])
    return out


def softmax_seq(par, delta, qts=range(4), adds=True):
    out = []
    for qt in qts:
        n0 = len(out)
        for a in range(2):
            s = St(a, qt)[1]
            for r in range(4):
                out.append(V(f"v_sub_f32 v{vE+4*a+r}, v{s+r}, v{delta+qt}"))
        for k in range(8):
            out.append(V(f"v_exp_f32 v{vE+k}, v{vE+k}"))
        p = Pf(par, qt)[1]
        if adds:
            out.append(V(f"v_add_f32 v{vTS+qt}, v{vE}, v{vE+1}"))
            for k in range(2, 8):
                out.append(V(f"v_add_f32 v{vTS+qt}, v{vTS+qt}, v{vE+k}"))
        for k in range(4):
            out.append(V(f"v_cvt_pk_bf16_f32 v{p+k}, v{vE+2*k}, v{vE+2*k+1}"))
        Q(qt, out[n0:])
    return out


def unpark():
    un = [V(f"v_accvgpr_read_b32 v{r}, a{240+k}") for k, r in enumerate(PARK)]
    un += [V(f"v_add_u32 v{vOB+1}, 6144, v{vOB}"), V(f"v_add_u32 v{vOB+2}, 12288, v{vOB}"),
           V(f"v_add_u32 v{vOP+1}, 8192, v{vOP}"), V(f"v_add_u32 v{vOP+2}, 16384, v{vOP}")]
    return un


def asel_setup():
    out = [V("v_and_b32 v2, 3, v0"), V("v_mov_b32 v3, 0x3f803f80")]
    for qt in range(4):
        out += [V(f"v_cmp_eq_u32 vcc, {qt}, v2"), V("v_cndmask_b32 v4, 0, v3, vcc")]
        out += [V(f"v_accvgpr_write_b32 a{240+4*qt+k}, v4") for k in range(4)]
        Q(qt, out[-6:])
    return out


def fallback(par, cfg):
    out = [LABEL(f"KF_fix{par}"), RAW("s_waitcnt vmcnt(0)"), NOP(7)]
    out += rowmax(1)
    out += xred([1, 2, 3, 4], [vE, vE + 1, vE + 2, vE + 3], "v_max_f32")
    for qt in range(4):
        out.append(Q(qt, V(f"v_max_f32 v{1+qt}, 0, v{1+qt}")))
    out += softmax_seq(par, 1, range(4), not cfg["R"])
    for qt in range(4):
        for r in range(4):
            out.append(Q(qt, V(f"v_sub_f32 v{vNM+4*qt+r}, v{vNM+4*qt+r}, v{1+qt}")))
    for qt in range(4):
        out.append(Q(qt, V(f"v_exp_f32 v{1+qt}, -v{1+qt}")))
    out.append(NOP(0))
    for qt in range(4):
        lo = Lb(par ^ 1)[1] if cfg["R"] else vL
        out.append(Q(qt, V(f"v_mul_f32 v{lo+qt}, v{lo+qt}, v{1+qt}")))
    if cfg["R"]:
        out += [NOP(1)] + rowsum_mfmas(par)
    for dt in range(12):
        for qt in range(4):
            a = Oa(dt, qt)[1]
            e = vE + 4 * (qt & 1)
            for r in range(4):
                out.append(V(f"v_accvgpr_read_b32 v{e+r}, a{a+r}"))
            for r in range(4):
                out.append(V(f"v_mul_f32 v{e+r}, v{e+r}, v{1+qt}"))
            for r in range(4):
                out.append(V(f"v_accvgpr_write_b32 a{a+r}, v{e+r}"))
            Q(qt, out[-12:])
    out += [NOP(1), I(f"s_setpc_b64 s[{sRET}:{sRET+1}]", "branch")]
    return out


def iteration(P, cfg, j, lab, groups, extra_vm=None, opre=(), extra_valu=(), forcevm=None, chain=False):
    par = (j + 1) & 1
    R = cfg["R"]
    mf = qk_mfmas(False) + pv_mfmas(j)
    RP = cfg["rpos"]
    rs = ((rowsum_mfmas(0) if j == 0 else []) + rowsum_mfmas(par)) if R else []
    G = P.gaps(mf[:RP] + rs + mf[RP:])
    pos = lambda n: n if n < RP else n + len(rs)
    E = len(G) - 1
    exp_gaps = cfg["expgaps"] if R else [11 + 5 * k + o for k in range(16) for o in (0, 2)]
    slots = cfg["dmagaps"][len(groups)]
    if chain and len(groups) > 2:
        assert len(groups) == 3
        slots = slots[:2] + [[91, 93, 95]]
    lo = 0
    for g, idx in zip(groups, slots):
        if chain and idx[0] > 84:
            lo = 85
        for s_ in g.pre:
            P.flex_scalar(s_, G[lo:idx[0]])
        for k, d in zip(idx, g.dmas):
            assert k not in exp_gaps
            G[k].vec.append(d)
        lo = idx[-1] + 1
    if extra_vm is not None:
        G[E - 1].vec.append(extra_vm)
    for k, sc, x in opre:
        assert not G[k].vec and k not in exp_gaps
        G[k].vec.append(x)
        if sc:
            P.flex_scalar(sc, list(reversed(G[k - 6:k])))
    valu = []
    if not R:
        for qt in range(4):
            valu.append((0, V(f"v_add_f32 v{vL+qt}, v{vL+qt}, v{vTS+qt}")))
    n = 0
    for T in range(8):
        a, qt = divmod(T, 4)
        s = St(a, qt)[1]
        p = Pf(par, qt)[1] + 2 * a
        for r in range(4):
            g = exp_gaps[n]
            e = vE + n % 8
            assert not G[g].vec and g >= 6 * T + 9
            G[g].vec.append(Q(qt, V(f"v_exp_f32 v{e}, v{s+r}")))
            if R or (a == 0 and r == 0):
                pass
            elif a == 0 and r == 1:
                valu.append((g + 1, V(f"v_add_f32 v{vTS+qt}, v{e-1}, v{e}")))
            else:
                valu.append((g + 1, V(f"v_add_f32 v{vTS+qt}, v{vTS+qt}, v{e}")))
            if r & 1:
                valu.append((g + 1, Q(qt, V(f"v_cvt_pk_bf16_f32 v{p+(r>>1)}, v{e-1}, v{e}"))))
            n += 1
        if T == 6 and not R:
            valu.append((g + 1, V(f"v_max3_f32 v1, v{vTS}, v{vTS+1}, v{vTS+2}")))
    if R:
        l = Lb(par)[1]
        G[E - 3].vec += [V(f"v_max3_f32 v1, v{l}, v{l+1}, v{l+2}"), V(f"v_max_f32 v1, v1, v{l+3}")]
        G[E - 2].vec.append(V(f"v_cmp_nge_f32 vcc, s{sTH}, v1"))
    else:
        valu.append((g + 1, V(f"v_max_f32 v1, v1, v{vTS+3}")))
        valu.append((g + 1, V(f"v_cmp_lt_f32 vcc, s{sTH}, v1")))
    lds = []
    for s in range(6):
        lds.append((cfg["k1gaps"][s], 16 + s, k_read(j + 1, 1, s)))
    t0, tv = cfg["v0gaps"]
    for dt in range(6):
        for t in range(2):
            lds.append((t0 + int(tv * (2 * dt + t)), 48 + 4 * dt - 8, vtype_read(FR(dt), vslot(j), dt, t, ("V", j))))
    BP = cfg["bpos"]
    if BP and j == 0:
        BP += 4
    if j + 2 < 32:
        for s in range(6):
            lds.append(((27, 33, 38, 43, 47, 50)[s], 70, k_read(j + 2, 0, s)) if not BP else (BP + 1 + int(s * cfg["kstep"]), BP + 12, k_read(j + 2, 0, s)))
    for dt in range(6, 12):
        for t in range(2):
            lds.append((pos(48 + 4 * (dt - 6) + 3) + t * cfg["v1step"], pos(48 + 4 * dt) - 8, vtype_read(FR(dt), vslot(j), dt, t, ("V", j))))
    if j == 30 and BP and cfg["vpre"]:
        for dt in range(4):
            for t in range(2):
                lds.append((max(BP + 1 + 2 * (2 * dt + t) - (dt > 1), pos(48 + 4 * (dt + 6) + 3)), E - 1, vtype_read(FR(dt), vslot(31), dt, t, ("V", 31))))
        k = 82
        G[k].vec.append(poll_cmp(32))
        G[k + 4].sca += [I("s_cbranch_vccnz KF_slc", "branch", rd=["vcc"]), LABEL("KF_rtc")]
        P.slow += slow_path("c", "c", 32)
    for gi, g in enumerate(G):
        while g.free() > 0:
            cand = []
            if valu and valu[0][0] <= gi:
                cand.append((min(valu[0][0] + cfg["vslack"], (RP - 2) if R else 93), 0, None))
            av = [x for x in lds if x[0] <= gi]
            if av:
                b = min(av, key=lambda x: x[1])
                nl = len([y for y in g.vec if y.kind == "lds"])
                cand.append((b[1] - (100 if nl == 0 and len([v for v in valu if v[0] <= gi]) < 3 else 0), 1, b))
            if not cand:
                break
            c = min(cand, key=lambda x: x[:2])
            if c[1] == 0:
                assert valu[0][0] + 16 >= gi and (not R or gi < RP)
                g.vec.append(valu.pop(0)[1])
            else:
                assert c[2][1] >= gi, (gi, c[2])
                lds.remove(c[2])
                g.vec.append(c[2][2])
    assert not valu and not lds, (valu, lds)
    if extra_valu:
        assert not fill_ops(G[:RP], [(0, RP - 2, x) for x in extra_valu])
    if cfg.get("dbgnop"):
        for k in range(cfg["dbgnop"]):
            G[exp_gaps[(k * 32) // cfg["dbgnop"]]].post.append(NOP(3))
    kn = j + 2 if BP else j + 3
    need = [("V", j + 1)] + ([("K", kn)] if kn < 32 else [])
    w = WAITV(*need)
    if forcevm is not None:
        w.meta["vm"] = forcevm
    P.itwait[j] = w
    G[BP - 1 if BP else E - 3].sca.append(w)
    G[BP if BP else E - 2].sca.append(BARRIER(frees=[("V", j - 1 if cfg["lazy2"] and j < 25 else j), ("K", j + 1)]))
    G[E].sca.append(I(f"s_cbranch_vccnz KF_fx{lab}", "branch", rd=["vcc"]))
    assert not G[E].vec
    G[E].post.append(LABEL(f"KF_bk{lab}"))
    return G


KORD = [(0, s) for s in range(6)] + [(p, s) for s in range(6) for p in (1, 2, 3)]


def acc3(nt, qt):
    if nt < 4:
        return ("a", 192 + (nt * 4 + qt) * 4)
    return ("v", 64 + ((nt - 4) * 4 + qt) * 4)


def Bf(ks, qt):
    if ks < 6 or ks >= 18:
        return ("v", 160 + ((ks % 6) * 4 + qt) * 4)
    return ("a", ((ks - 6) * 4 + qt) * 4)


def wo_read(dst, ks, nt, tt):
    sl = woslot(ks)
    a, off = (vA3 + 2, sl - VREG) if sl >= VREG else (vA3, sl)
    return DSTR((dst[0], dst[1] + 2 * tt), a + (nt & 1), off + 3072 * tt + 64 * (nt >> 1), ("WO", ks))


def grp_B(ks, cfg):
    p, s = KORD[ks]
    so, pre = (f"s{sOB+p}", []) if s < 4 else (f"s{sOKV}", [S(f"s_add_u32 s{sOKV}, s{sOB+p}, 4096")])
    return [DmaGroup(pre, [Q(qt, VLOAD(Bf(ks, qt), vOB + qt, SO, so, 1024 * (s & 3), ("B", ks), cfg["bflags"])) for qt in range(4)])]


def poll_load(kind):
    off, srd_ = {"c": (6, SD), "o": (vFOP, SF), "p": (vFPP, SF)}[kind]
    return VLOAD(("v", 5), off, srd_, 0, 0 if kind == "c" else 4, None, "sc1", n=1)


def poll_cmp(need):
    return V(f"v_cmp_gt_u32 vcc, {need}, v5")


def slow_path(name, kind, need):
    return [f"KF_sl{name}:", f"s_mov_b32 s{sSPIN}, 0", f"KF_sp{name}:", poll_load(kind).text, "s_waitcnt vmcnt(0)", poll_cmp(need).text,
            f"s_add_u32 s{sSPIN}, s{sSPIN}, 1", f"s_cmp_gt_u32 s{sSPIN}, 0x40000", f"s_cbranch_scc1 KF_rt{name}",
            f"s_cbranch_vccnz KF_sp{name}", f"s_branch KF_rt{name}"]


def check_seq(P, name, kind, need):
    P.slow += slow_path(name, kind, need)
    return [poll_cmp(need), NOP(0), I(f"s_cbranch_vccnz KF_sl{name}", "branch", rd=["vcc"]), LABEL(f"KF_rt{name}")]


def free_gap(G, k, ok=lambda k: True):
    while G[k].vec or G[k].sca or G[k].post or not ok(k):
        k += 1
    return k


def check_gaps(P, G, name, kind, need, g_load, g_chk, ok):
    k = free_gap(G, g_load, ok)
    G[k].vec.append(poll_load(kind))
    k = free_gap(G, max(g_chk, k + 1), ok)
    G[k].vec.append(poll_cmp(need))
    k = free_gap(G, k + 1, ok)
    G[k].sca.append(I(f"s_cbranch_vccnz KF_sl{name}", "branch", rd=["vcc"]))
    G[k].sca.append(LABEL(f"KF_rt{name}"))
    P.slow += slow_path(name, kind, need)
    return k + 1


def flag_gaps(G, tags, val, off, g, ok, wb=None):
    if wb:
        k = free_gap(G, g - wb, ok)
        G[k].sca.append(WAITV(*tags))
        k = free_gap(G, k + 1, ok)
        G[k].vec.append(I("buffer_wbl2 sc1", "vstore", [], [], data=set(), n=1, tag=("wb", val)))
        tags = [("wb", val)]
    k = free_gap(G, g, ok)
    G[k].sca.append(WAITV(*tags))
    G[k].vec.append(V(f"v_mov_b32 v7, {val}"))
    k = free_gap(G, k + 1, ok)
    G[k].vec.append(VSTORE(("v", 7), off, SF, 0, 0, "sc1", n=1))
    return k


def otouch(s, cfg):
    x = VLOAD(("v", 4), 1, SO, f"s{sOB}" if s < 4 else f"s{sOX}", 1024 * (s & 3), None, cfg["otflags"], n=1)
    if s < 5:
        x.wr = set()
    return x


RCP = [2, 3, 8, 9]
F0 = 48


def pack_muls(G):
    for g in G:
        if g.cost() < 8:
            continue
        out = []
        k = 0
        v = g.vec
        while k < len(v):
            x = v[k]
            y = v[k + 1] if k + 1 < len(v) else None
            if k >= 3 and y is not None and "omul" in x.meta and "omul" in y.meta and x.meta["omul"][0] % 2 == 0 \
                    and y.meta["omul"] == (x.meta["omul"][0] + 1, x.meta["omul"][1]):
                r, f = x.meta["omul"]
                sel = "op_sel_hi:[1,0]" if f % 2 == 0 else "op_sel:[0,1] op_sel_hi:[1,1]"
                z = V(f"v_pk_mul_f32 v[{r}:{r+1}], v[{r}:{r+1}], v[{f&~1}:{(f&~1)+1}] {sel}")
                out.append(Q(x.meta["q"], z))
                k += 2
            else:
                out.append(x)
                k += 1
        g.vec = out


def unified_schedule(P, G, cfg, ost, wo_left, base, bar, stage_of, ok):
    c_st, c_miss, c_hit, lead = cfg["p3sched"]
    chunk_of = cfg["chunks"]
    ready = cfg["oready"]
    for g in wo_left:
        t = g.dmas[0].meta["tag"][1]
        g.earliest = bar[stage_of[t - 12] + (1 if cfg["lazy3"] else 0)] + 1 if t >= 12 else (34 if t == 11 else 0)
        g.deadline = bar[stage_of[t] - 1] - 2
        g.cost = c_hit
    bs = [grp_B(ks, cfg)[0] for ks in range(6, 24)]
    for g in bs:
        ks = g.dmas[0].meta["tag"][1]
        g.deadline = base[stage_of[ks]] - 2 + 0.01 * ks
        g.earliest = None
        g.cost = c_miss if KORD[ks][0] == 1 else c_hit
    need = {}
    for g in bs:
        need.setdefault(chunk_of[KORD[g.dmas[0].meta["tag"][1]][1]], g.deadline)
    sts = []
    for n, x in enumerate(ost):
        g = DmaGroup([], [x], ready(n))
        c = chunk_of[n // 4]
        left = len([m for m in range(n + 1, 24) if chunk_of[m // 4] == c])
        g.deadline = need[c] - lead - sum(cfg["lags"][c]) - left * c_st
        g.cost = c_st
        sts.append(g)
    opos, ee = [], []
    groups = list(wo_left) + bs
    t = float(cfg["wstart"])
    pos = 0
    while groups or sts:
        cand = [g for g in groups if g.earliest is not None] + sts[:1]
        av = [g for g in cand if g.earliest <= t + 2]
        g = min(av, key=lambda x: x.deadline) if av else min(cand, key=lambda x: x.earliest)
        t = max(t, g.earliest + len(g.pre))
        k = pos + len(g.pre) + (1 if g.pre else 0)
        idx = []
        for d in g.dmas:
            k = free_gap(G, max(k, int(t)), ok)
            G[k].vec.append(d)
            idx.append(k)
            t = max(t + g.cost, k - 6)
            k += 1
        for s_ in g.pre:
            P.flex_scalar(s_, list(reversed(G[pos:idx[0]])))
        pos = idx[-1] + 1
        if sts and g is sts[0]:
            sts.pop(0)
            opos.append(idx[0])
            n = len(opos) - 1
            c = chunk_of[n // 4]
            if n == 23 or chunk_of[(n + 1) // 4] != c:
                k = flag_gaps(G, [("O", c)], c + 1, vFO, idx[0] + cfg["lags"][c][0], ok)
                k = max(k + cfg["lags"][c][1], (ee[-1] if ee else 0))
                ee.append(check_gaps(P, G, f"o{c}", "o", c + 1, k, k + cfg["lags"][c][2], ok))
                for h in bs:
                    ks = h.dmas[0].meta["tag"][1]
                    if chunk_of[KORD[ks][1]] == c:
                        h.earliest = ee[-1]
                        if ks >= 18:
                            assert n >= 4 * (ks - 18) + 3
                            h.earliest = max(h.earliest, base[stage_of[ks - 18] + 1])
        else:
            groups.remove(g)
            assert idx[-1] <= g.deadline, (g.dmas[0].meta["tag"], idx, g.deadline)
            P.slack.append((g.dmas[0].meta["tag"], idx[0], idx[-1], int(g.deadline)))
    P.slack.append(("stores", opos, "checks", ee))
    return opos


def phase3(P, cfg, ST, wo_left):
    A = P.seq
    stages = cfg["stages"]
    j = 31
    VP = cfg["vpre"] and cfg["bpos"]
    if not VP:
        for dt in range(4):
            for t in range(2):
                A(vtype_read(FR(dt), vslot(j), dt, t, ("V", j)))
        A(check_seq(P, "c", "c", 32))
        A(S(f"s_add_u32 s{sOX}, s{sOB}, 4096"))
    if cfg["otouch"]:
        A(V("v_lshrrev_b32 v1, 4, v0"), V("v_mul_u32_u24 v1, 6144, v1"), V("v_bfe_u32 v4, v0, 1, 3"), V("v_lshl_add_u32 v1, v4, 7, v1"),
          V(f"v_lshl_add_u32 v1, s{sWOFF}, 3, v1"))
    pre = []
    if not cfg["R"]:
        A([V(f"v_add_f32 v{vL+qt}, v{vL+qt}, v{vTS+qt}") for qt in range(4)])
        pre = xred([vL + q for q in range(4)], [vE + q for q in range(4)], "v_add_f32")
    pre += [Q(qt, V(f"v_rcp_f32 v{RCP[qt]}, v{vL+qt}")) for qt in range(4)]
    pre = [x for x in pre if x.kind != "nop"]
    npre = 0 if VP else 12
    A(pre[:npre])

    def abuf(si, nt):
        L = len(stages[si])
        if L == 2:
            g = 10 * si + nt
            return [FR(2 * (g % 3) + u) for u in range(2)]
        return [("a", (nt % 4) * 24 + u * 4) for u in range(L)]

    def areads(si, nt):
        return [wo_read(d, ks, nt, tt) for d, ks in zip(abuf(si, nt), stages[si]) for tt in range(2)]

    secs = [pv_mfmas(j)]
    fin = {}
    for si, kss in enumerate(stages):
        mfs = []
        order = [(nt, qt) for nt in range(10) for qt in range(4)]
        if len(kss) > 2 and cfg["pairmaj"]:
            order = order[:8] + [(2 * p + h, qt) for p in range(1, 5) for qt in range(4) for h in range(2)]
        for nt, qt in order:
            ab = abuf(si, nt)
            if True:
                fin[(nt, qt)] = len(mfs) + len(kss) - 1
                for u, ks in enumerate(kss):
                    C = 0 if ks == 0 else acc3(nt, qt)
                    m = Q(qt, MFMA(acc3(nt, qt), ab[u], Bf(ks, qt), C))
                    if qt == 0 and u % 2 == 0:
                        m.rd |= set(regs(ab[u + 1][0], ab[u + 1][1], 4))
                    if nt == 0 and u == 0 and qt == 0 and kss[0] >= 6:
                        for k2 in kss:
                            m.rd |= set(regs(*Bf(k2, 0), 16))
                    mfs.append(m)
        secs.append(mfs)
    G = P.gaps(sum(secs, []))
    base = [F0 + sum(len(x) for x in secs[1:i + 1]) for i in range(len(stages) + 1)]
    ok = lambda k: (k % 4 != 3) if k < F0 else (k % 8 != 7)
    for k, g in enumerate(G):
        g.nomem = not ok(k)
    for dt in range(4, 12):
        g = 0 + 2 * (dt - 4) if dt < 6 else 4 * (dt - 6) + 3
        G[g].vec += [vtype_read(FR(dt), vslot(j), dt, t, ("V", j)) for t in range(2)]
    G[32].sca.append(WAITV(("WO", 0), ("WO", 1)))
    G[33].sca.append(BARRIER(frees=[("V", 31)]))
    put_reads(G, 34, areads(0, 0))
    put_reads(G, 40, areads(0, 1))
    bar = {-1: 33}
    SP_ = cfg["spread3"]
    for si, kss in enumerate(stages):
        L = len(kss)
        per = 4 * L
        b = base[si]
        nxtL = len(stages[si + 1]) if si + 1 < len(stages) else 0
        ahead = 2 if L == 2 else 1
        for nt in range(ahead, 10):
            if L > 2 and cfg["pairmaj"]:
                if nt == 1:
                    put_at(G, [b + (k * 5) // 4 for k in range(6 * L)], areads(si, 1) + areads(si, 2) + areads(si, 3))
                elif nt >= 4 and nt % 2 == 0:
                    put_at(G, [b + per * (nt - 2) + (k * 15) // 8 for k in range(4 * L)], areads(si, nt) + areads(si, nt + 1))
            elif SP_ and L > 2 and nt > 1 and cfg["lstep"]:
                put_at(G, range(b + per * (nt - 1) - per // 2, len(G), 2), areads(si, nt))
            elif SP_:
                put_at(G, range(b + per * (nt - ahead), len(G), SP_ if (L == 2 and (nt < 9 or cfg["lazy3"])) else 1), areads(si, nt))
            else:
                put_reads(G, b + per * (nt - ahead), areads(si, nt), 1 if L == 2 else 2)
        if nxtL:
            gb = b + per * 8
            if cfg.get("p3stamps"):
                ST.gap(G[gb - 1], G[gb + 1], f"s{si}")
            if cfg.get("p3light"):
                ST.light(G[gb - 9], f"s{si}")
            G[gb].sca.append(WAITV(*[("WO", ks) for ks in stages[si + 1]]))
            G[gb + 1].sca.append(BARRIER(frees=[("WO", ks) for ks in (kss if not cfg["lazy3"] else (stages[si - 1] if si else []))]))
            bar[si] = gb + 1
            if SP_ and nxtL == 2:
                put_at(G, range(gb + 2, gb + 6), areads(si + 1, 0))
            else:
                put_reads(G, gb + 2, areads(si + 1, 0))
            if nxtL == 2:
                if SP_:
                    put_at(G, range(b + per * 9, b + per * 10, SP_), areads(si + 1, 1))
                else:
                    put_reads(G, b + per * 9, areads(si + 1, 1))
    stage_of = {ks: si for si, kss in enumerate(stages) for ks in kss}
    for s, g in enumerate(cfg["otouch"]):
        if g >= 0:
            G[free_gap(G, g, ok)].vec.append(otouch(s, cfg))
    chunk_of = cfg["chunks"]
    ost = [Q(qt, VSTORE(Bf(s, qt), vOB + qt, SO, f"s{sOB}" if s < 4 else f"s{sOX}", 1024 * (s & 3), cfg["oflags"], tag=("O", chunk_of[s])))
           for s in range(6) for qt in range(4)]
    if cfg["p3sched"]:
        opos = unified_schedule(P, G, cfg, ost, wo_left, base, bar, stage_of, ok)
    else:
        opos = []
        t = cfg["ostart"]
        for n, x in enumerate(ost):
            k = free_gap(G, max(int(t), (opos[-1] + 1) if opos else 0), ok)
            G[k].vec.append(x)
            opos.append(k)
            t += cfg["opace"](n)
        ee = []
        for c in range(max(chunk_of) + 1):
            lc = max(k for k, x in zip(opos, ost) if x.meta["tag"] == ("O", c))
            k = flag_gaps(G, [("O", c)], c + 1, vFO, lc + cfg["lags"][c][0], ok, cfg["owb"])
            if cfg.get("ostamps"):
                ST.gap(G[k - 3], G[k - 3], f"preF{c}")
                ST.gap(G[k], G[k], f"F{c}")
            k = max(k + cfg["lags"][c][1], (ee[-1] if ee else 0))
            ee.append(check_gaps(P, G, f"o{c}", "o", c + 1, k, k + cfg["lags"][c][2], ok))
            if cfg.get("ostamps"):
                ST.gap(G[ee[-1] - 5], G[ee[-1] - 5], f"preC{c}")
                ST.gap(G[ee[-1] - 2], G[ee[-1] - 2], f"cmp{c}")
                ST.gap(G[ee[-1] - 1], G[ee[-1] - 1], f"C{c}")
        P.slack.append(("stores", opos, "checks", ee, "base", base))
        e0 = ee[0]
        for g in wo_left:
            t = g.dmas[0].meta["tag"][1]
            g.earliest = bar[stage_of[t - 12] + (1 if cfg["lazy3"] else 0)] + 1 if t >= 12 else (34 if t == 11 else 0)
            g.deadline = bar[stage_of[t] - 1] - 2
        wo_left = place_stream(P, G, wo_left, cfg["wstart"], e0 - 4, lambda k: cfg["wpace"], ok)
        bs = [grp_B(ks, cfg)[0] for ks in range(6, 24)]
        for g in bs:
            ks = g.dmas[0].meta["tag"][1]
            g.deadline = base[stage_of[ks]] - 2 + 0.01 * ks
            g.earliest = ee[chunk_of[KORD[ks][1]]]
            if ks >= 18:
                g.earliest = max(g.earliest, base[stage_of[ks - 18] + 1], opos[4 * (ks - 18) + 3] + 3)
        items = sorted(wo_left + bs, key=lambda g: g.deadline)
        left = place_stream(P, G, items, e0, len(G), lambda k: cfg["p3pace"], ok, True)
        assert not left
    bpos = {x.meta["tag"][1]: k for k, g in reversed(list(enumerate(G))) for x in g.vec if x.kind == "vload" and x.meta["tag"]}
    ops = [(0, 14, x) for x in pre[npre:]]
    if VP:
        P.flex_scalar(S(f"s_add_u32 s{sOX}, s{sOB}, 4096"), G[36:48])
    n = 0
    for s in range(6):
        for qt in range(4):
            o = Bf(s, qt)[1]
            t = vOK + 2 * (n % 3)
            dl = min(base[s // 2] + 2 * qt + (s & 1) - 2, opos[n] - 1, bpos[6 + 2 * s] - 1, bpos[7 + 2 * s] - 1)
            n += 1
            for u, dst in enumerate(([o, o + 1, o + 2, o + 3], [o + 2, o + 3, t, t + 1])):
                a = Oa(2 * s + u, qt)[1]
                e = 4 * (2 * s + u) + qt + 5
                ops += [(e, dl, V(f"v_accvgpr_read_b32 v{dst[r]}, a{a+r}")) for r in range(4)]
                ops += [(e, dl, V(f"v_mul_f32 v{dst[r]}, v{RCP[qt]}, v{dst[r]}", omul=(dst[r], RCP[qt]))) for r in range(4)]
                ops += [(e, dl, V(f"v_cvt_pk_bf16_f32 v{o+2*u+r}, v{dst[2*r]}, v{dst[2*r+1]}")) for r in range(2)]
                Q(qt, ops[-10:])
    assert not fill_ops(G, ops)
    pack_muls(G)
    si = len(stages) - 1
    per = 4 * len(stages[si])
    b = base[si]
    tmpbase = 160 if per == 8 else vFR
    vOPx = lambda t: (vAV if t & 4 else vOP) + (t & 3)
    own = lambda t, dst, src: [V(f"v_cndmask_b32 v{dst+r}, v{dst+r}, v{src+r}, s[{sOWN+2*(t&7)}:{sOWN+2*(t&7)+1}]") for r in range(4)]
    bg = []
    for t in range(7, -1, -1):
        bg += [S(f"s_xor_b32 s3, s{sGE}, {t << 10}"), S(f"s_cselect_b64 s[{sOWN+2*t}:{sOWN+2*t+1}], 0, -1"), S(f"s_cselect_b32 s3, s3, {OOB}"),
               V(f"v_add_u32 v{vOPx(t)}, s3, v{vOP+(t&3)}")]
    fill_background(G, bg, base[6], b)
    KEEP = [vFR + 16, 192, 224]
    late_own = []
    work = []
    tmp = 0
    for np_ in range(5):
        e = b + fin[(2 * np_, 0)]
        work.append((e, S(f"s_mov_b32 s{sOW}, {np_*15*8192}")))
        for qt in range(4):
            e = b + fin[(2 * np_ + 1, qt)] + (5 if np_ < 4 else 8)
            e1 = max(b + fin[(2 * np_, qt)] + (5 if np_ < 4 else 8), e - per // 2)
            n0 = len(work)
            x, y = acc3(2 * np_, qt), acc3(2 * np_ + 1, qt)
            if x[0] == "a":
                t = tmpbase + (tmp % 2) * 8
                tmp += 1
                for u, z in enumerate((x, y)):
                    for r in range(4):
                        work.append((e1 if u == 0 else e, V(f"v_accvgpr_read_b32 v{t+4*u+r}, a{z[1]+r}")))
                src = [t + r for r in range(8)]
                o = t
            else:
                src = [x[1] + r for r in range(4)] + [y[1] + r for r in range(4)]
                o = x[1]
            for r in range(4):
                work.append((e1 if r < 2 and x[0] == "v" else e, V(f"v_cvt_pk_bf16_f32 v{o+r}, v{src[2*r]}, v{src[2*r+1]}")))
            work.append((e, VSTORE(("v", o), vOPx(4 * np_ + qt), SP, f"s{sOW}", 0, cfg["pflags"], tag=("P", np_))))
            if x[0] == "a":
                work += [(e, z) for z in own(4 * np_ + qt, KEEP[0], o)]
            else:
                late_own += Q(qt, own(4 * np_ + qt, KEEP[np_ // 2], o))
            Q(qt, work[n0:])
    gi = b
    stpos = {}
    while work and gi < len(G):
        g = G[gi]
        while work and work[0][0] <= gi:
            x = work[0][1]
            if x.kind == "salu":
                P.flex_scalar(x, [g, G[min(gi + 1, len(G) - 1)]])
                work.pop(0)
            elif x.kind == "vstore":
                if not g.vec and not g.sca and ok(gi):
                    g.vec.append(x)
                    stpos[x.meta["tag"][1]] = gi
                    work.pop(0)
                break
            elif g.free() > 0:
                g.vec.append(x)
                work.pop(0)
            else:
                break
        gi += 1
    rest = [x for _, x in work]
    pending = {n for x in rest if x.kind == "vstore" for n in [x.meta["tag"][1]]}
    addr = [V("v_and_b32 v2, 15, v0"), V("v_mul_u32_u24 v2, 1280, v2"), V("v_lshrrev_b32 v3, 5, v0"), V("v_bfe_u32 v4, v0, 4, 1"),
            V("v_lshl_or_b32 v3, v4, 1, v3"), V("v_lshl_add_u32 v2, v3, 4, v2"), V("v_lshlrev_b32 v1, 4, v0"), V("v_add_u32 v3, 4096, v1")]
    assert not fill_ops(G, [(b, len(G) - 1, x) for x in addr], b)
    if cfg["ptail"] == 2:
        k = free_gap(G, stpos[1] + cfg["plagA"][0], ok)
        G[k].sca.append(WAITV(("P", 1)))
        G[k].vec.append(V("v_mov_b32 v7, 1"))
        k += 1
        while G[k].sca or G[k].isdma() or not ok(k):
            k += 1
        G[k].sca.append(BARRIER())
        k = free_gap(G, k + 1, ok)
        G[k].vec.append(VSTORE(("v", 6), vFP, SF, 0, 0, "sc1", n=4))
        k = free_gap(G, k + cfg["plagA"][1], ok)
        G[k].vec.append(poll_load("p"))
        P.slack.append(("pollA", k, stpos))
    ST.seq(P, "mfend")
    A(rest)

    def loads(r):
        return [VLOAD(("a", r * 32 + g * 4) if False else ("v", 160 + r * 32 + g * 4), 1 if g < 4 else 3, SP, f"s{sJ+r}", 1024 * (g & 3), None, cfg["rflags"])
                for g in range(1, 8)]

    def reduce(r):
        out = []
        o = 64 + r * 16
        for g in range(8):
            src = 160 + r * 32 + g * 4 if g else KEEP[r]
            t = o if g == 0 else 112 + (g & 1) * 8
            for q in range(4):
                out += [V(f"v_lshlrev_b32 v{t+2*q}, 16, v{src+q}"), V(f"v_and_b32 v{t+2*q+1}, 0xffff0000, v{src+q}")]
            if g:
                for q in range(4):
                    out.append(V(f"v_pk_add_f32 v[{o+2*q}:{o+2*q+1}], v[{o+2*q}:{o+2*q+1}], v[{t+2*q}:{t+2*q+1}]"))
        for q in range(4):
            out.append(V(f"v_cvt_pk_bf16_f32 v{o+8+q}, v{o+2*q}, v{o+2*q+1}"))
        out += [NOP(0), V(f"v_permlane16_swap_b32 v{o+8}, v{o+10}"), V(f"v_permlane16_swap_b32 v{o+9}, v{o+11}"),
                VSTORE(("v", o + 8), 2, SOUT, f"s{sJ+3+r}", 0, cfg["outflags"])]
        return out

    def flag(val, tags):
        return [V(f"v_mov_b32 v7, {val}"), WAITV(*tags), BARRIER(), VSTORE(("v", 6), vFP, SF, 0, 0, "sc1", n=4)]

    fl = flag(2, [("P", 4)])
    txt = lambda L: [text_of(x) for x in L]
    A(fl[0])
    if cfg["pfirst"]:
        n0 = cfg["pfirst"] - 1
        A(late_own)
        late_own = []
        A(fl[1], fl[2], fl[3], check_seq(P, "pA", "p", 1), loads(0))
    else:
        A(poll_cmp(1), NOP(0), I("s_cbranch_vccnz KF_lateA", "branch", rd=["vcc"]))
        A(loads(0), fl[1], fl[2], RAW(fl[3].text), LABEL("KF_joinA"))
        sp = slow_path("pA", "p", 1)
        P.slow += ["KF_lateA:", "s_waitcnt vmcnt(0)", "s_barrier", fl[3].text] + sp[:-1] + ["KF_rtpA:"] + txt(loads(0)) + ["s_branch KF_joinA"]
    ST.seq(P, "pdrain")
    if cfg["pfast"]:
        A(poll_cmp(2), NOP(0), I("s_cbranch_vccz KF_rtp2", "branch", rd=["vcc"]))
        A(RAW(f"s_waitcnt vmcnt({8-cfg['pcut']})"), RAW(poll_load("p").text), RAW("s_waitcnt vmcnt(0)"), check_seq(P, "p2", "p", 2))
        ST.seq(P, "ppoll")
        A(loads(1), loads(2), late_own, reduce(0), reduce(1), reduce(2))
    else:
        r0 = reduce(0)
        cut = 8 + 12 * (cfg["pcut"] - 1)
        A(late_own, r0[:cut], poll_load("p"), r0[cut:-1], check_seq(P, "p2", "p", 2))
        ST.seq(P, "ppoll")
        A(loads(1), loads(2), r0[-1], reduce(1), reduce(2))


def build(cfg):
    W3BUF[0] = bool(cfg["w3buf"])
    P = Prog()
    P.slack = []
    P.slow = []
    P.itwait = {}
    ST = Stamper(cfg)
    LA = cfg["LA"]
    stream = prologue(P, cfg, ST)
    phase1(P, cfg, ST, stream)
    ST.seq(P, "attn0")
    if ST.it:
        P.seq(RAW("s_mov_b32 s53, 2"))
    labs = []
    wo = [grp_WO(t, cfg)[0] for t in range(24)]
    NT = cfg["trips"]
    NS = len(cfg["skips"])
    for j in range(0, 31):
        inloop = 1 <= j <= 6 * NT
        if j == 1:
            P.seq(I(f"s_mov_b32 s{sCNT}, {NT}", "raw"))
        if inloop and (j - 1) % 6 == 0:
            P.el.append(I("", "raw", mark=(j - 1) // 6))
        if j == 6 * NT + 1:
            P.el.append(I("", "raw", mark=NT))
        groups = []
        if NS and 1 <= j <= cfg["dynmax"]:
            if j in cfg["skips"]:
                LA -= 1
                groups += grp_dyn("K", None, cfg) + grp_dyn("V", None, cfg)
            else:
                groups += grp_dyn("K", j + LA, cfg) + grp_dyn("V", j + LA - 1, cfg)
        else:
            if j + LA < 32:
                groups += grp_K(j + LA, cfg, inloop or j == 0)
            if j + LA - 1 < 32:
                groups += grp_V(j + LA - 1, cfg, j + LA < 32)
        chain = NS and (j <= 6 * NT or j < cfg["dynmax"])
        while len(groups) < cfg["tailgroups"] and j >= cfg["wostart"] and wo and 26 + (wo[0].dmas[0].meta["tag"][1] + 1) // 2 <= j:
            groups.append(wo.pop(0))
        lab = str((j - 1) % 6) if inloop else f"p{j}"
        if not inloop or j <= 6:
            labs.append((lab, (j + 1) & 1))
        xv = None
        if j == 29:
            xv = poll_load("c")
        if inloop and (j - 1) % 6 == 1:
            xv = I(f"buffer_atomic_add v7, v6, s[{SD}:{SD+3}], s{sAO} offen sc1", "vstore", ["v6", "v7"], [], data=set(), n=1, tag=None)
        pieces = [(g, S(f"s_mov_b32 s{sAO}, {i*245760//len(cfg['wopf'])}"), VLOAD(("v", 4), 5 if jj < 29 else vOK + 1, SWO, f"s{sAO}", 0, None, "", n=1))
                  for i, (jj, g) in enumerate(cfg["wopf"]) if jj == j]
        for _, _, x in pieces:
            x.wr = set()
        if cfg["wodyn"] and inloop:
            assert NS == 2
            x = VLOAD(("v", 4), 5, SWO, f"s{sPFO}", 0, None, "", n=1)
            x.wr = set()
            pieces = [(cfg["wodyn"], None, x)]
        ev = []
        if j == (0 if cfg["R"] else 25):
            ev = unpark() + (asel_setup() if cfg["R"] else [])
        if j == 28:
            ev = [V("v_mov_b32 v6, 0")]
        if j == 29:
            assert j + LA >= 32
            ev = ev + [V(f"v_mov_b32 v{vOK+1}, v5")]
        G = iteration(P, cfg, j, lab, groups, xv, pieces, ev, (7 if cfg["wodyn"] else 6) * (cfg["LA"] - NS - 2) if inloop and NS else cfg.get("vmforce", {}).get(j), chain)
        if chain:
            P.flex_chain(dyn_prepare(cfg), G[cfg["dmagaps"][2][1][-1] + 1:cfg["bpos"] - 2])
        if inloop and (j - 1) % 6 == 1:
            G[-8].sca.append(S(f"s_cmp_eq_u32 s{sCNT}, s{sTRIP}"))
            G[-7].sca.append(S(f"s_cselect_b32 s{sAO}, 0, {OOB}"))
        if ST.it:
            G[-6].post += [RAW(f"s_memtime s[{sTM}:{sTM+1}]"), RAW(f"s_memrealtime s[{sTM+2}:{sTM+3}]")]
            G[-3].post += [RAW("s_mov_b32 m0, s53"), RAW("s_addk_i32 s53, 1"), RAW(f"v_writelane_b32 v{vST}, s{sTM}, m0"), RAW("s_mov_b32 m0, s53"),
                           RAW("s_addk_i32 s53, 1"), RAW(f"v_writelane_b32 v{vST}, s{sTM+2}, m0")]
            ST.names.append(f"i{j}")
        if inloop and (j - 1) % 6 == 5:
            P.flex_scalar(S(f"s_sub_u32 s{sCNT}, s{sCNT}, 1"), G[80:90])
            G[-2].sca.append(S(f"s_cmp_lg_u32 s{sCNT}, 0"))
            G[-1].post.append(I("s_cbranch_scc1 KF_loop", "branch"))
    ST.seq(P, "attnend")
    phase3(P, cfg, ST, wo)
    if ST.on:
        P.seq(WAIT(vm=0))
        ST.seq(P, "end")
        ST.flush(P)
        if cfg.get("diag"):
            P.seq(RAW("s_getreg_b32 s3, hwreg(HW_REG_XCC_ID, 0, 4)"), RAW(f"v_writelane_b32 v{vST}, s3, 63"))
        P.seq(srd(8, 32, 33, STAMP_OFF, 0x100000), S("s_lshl_b32 s3, s2, 2"), S(f"s_add_u32 s3, s3, s{sW}"), S("s_lshl_b32 s3, s3, 8"),
              V("v_lshlrev_b32 v2, 2, v0"), RAW(f"buffer_store_dword v{vST}, v2, s[8:11], s3 offen"))
    if cfg.get("w3"):
        P.prune(lambda x: x.meta.get("q") == 3, "KF_go:")
    P.insert_waits()
    P.place_flex()
    lin = P.linear()
    lin, notes = fix_hazards(lin)
    P.notes = notes
    probs = check_hazards(lin) + check_lds_protocol(lin, private=lambda t: t[0] == "X")
    trips = {}
    pre, post, cur = [], [], None
    for x in lin:
        if x.kind == "raw" and "mark" in x.meta:
            cur = x.meta["mark"]
            continue
        if cur is None:
            pre.append(x)
        elif cur == NT:
            post.append(x)
        else:
            trips.setdefault(cur, []).append(x)
    t0 = [text_of(x) for x in trips[0]]
    for k in range(1, NT):
        tk = [text_of(x) for x in trips[k]]
        assert tk == t0, [(a, b) for a, b in zip(t0, tk) if a != b][:5]
    out = [text_of(x) for x in pre] + ["KF_loop:"] + t0 + [text_of(x) for x in post]
    out += ["KF_done:", "s_endpgm"]
    out += P.slow
    for lab, par in labs:
        out += [f"KF_fx{lab}:", f"s_call_b64 s[{sRET}:{sRET+1}], KF_fix{par}", f"s_branch KF_bk{lab}"]
    for par in range(2):
        fb = fallback(par, cfg)
        if cfg.get("w3"):
            fb = fix_hazards([x for x in fb if x.meta.get("q") != 3])[0]
        probs += check_hazards(fb)
        out += [text_of(x) for x in fb]
    out += ["KF_end:"]
    return out, probs, P, ST


DEFAULT = dict(map="hg4", wflags="", xflags="", kvflags="nt", woflags="", oflags="sc1", bflags="sc1", pflags="sc1", rflags="sc1",
               outflags="", thresh=16384.0, LA=6, trips=4, npro=1, npro2=2, bgstart=250, pace=[(960, 5.0)], xearly=4, kvpace=14, tailgroups=3,
               dmagaps={0: [], 1: [[4, 7, 9]], 2: [[4, 7, 9], [34, 44, 54]], 3: [[4, 7, 9], [34, 44, 54], [64, 79, 84]]},
               vslack=8, stages=[[2 * k, 2 * k + 1] for k in range(9)] + [list(range(18, 24))], p3pace=4.2, wstart=0, wpace=9, codepf=5,
               chunks=[0, 1, 1, 2, 2, 2], ostart=44, opace=lambda n: 4 if n < 3 else 14, lags=[(45, 65, 45), (55, 40, 60), (70, 60, 70)],
               p1pf=[None, None, 14, 22], wopf=[(26, 82)], dynmax=28, skipwin=[(1, 9), (10, 9), (19, 10)], pfa=0, tour3=0, otouch=[], otflags='', p3sched=None,
               oready=lambda n: [26, 38, 48, 49, 50, 52, 54, 56, 74, 92, 110, 128, 130, 132, 134, 136, 154, 172, 190, 208, 210, 212, 214, 216][n], tour=1, R=1, rpos=84, bpos=84, split3=0, nskip=3, ptail=2, lazy1=0, lazy2=0, lazy3=0, spread1=2, spread3=2, kstep=1, lstep=1.8, pfast=1, pfirst=1, pairmaj=1, k1gaps=[0, 1, 2, 3, 4, 5], v0gaps=(6, 3), v1step=0, w3buf=1, xoff=20, fpos=('X', 8), xfirst=[6, 7, 8, 9], kearly=[('W', 15), ('W', 17), ('W', 19)], rot=0, wodyn=0, wopf0=[], owb=None, vpre=1, wopf1=[], plagA=(45, 40), pcut=4, wostart=27, stamps=False)


RCFG = dict(thresh=16777216.0, expgaps=[11 + 9 * (k // 4) + 2 * (k % 4) for k in range(32)],
            dmagaps={0: [], 1: [[4, 7, 9]], 2: [[4, 7, 9], [37, 46, 54]], 3: [[4, 7, 9], [37, 46, 54], [64, 73, 92]], 4: [[4, 7, 9], [19, 28, 37], [46, 54, 64], [73, 90, 92]]})


def line_sizes(body):
    import subprocess, tempfile, re
    ins = [l for l in body if l and not l.endswith(":")]
    d = tempfile.mkdtemp()
    src = '.amdgcn_target "amdgcn-amd-amdhsa--gfx950"\n.text\nL0:\n' + "\n".join(re.sub(r"K[FX]_\w+", "L0", re.sub(r"K[FX]_\w+-[\w-]+", "0x12345", l)) for l in ins) + "\n"
    open(d + "/a.s", "w").write(src)
    subprocess.run(["clang", "-x", "assembler", "-target", "amdgcn-amd-amdhsa", "-mcpu=gfx950", "-c", d + "/a.s", "-o", d + "/a.o"], check=True)
    dis = subprocess.run(["llvm-objdump", "-d", "--mcpu=gfx950", d + "/a.o"], capture_output=True, text=True).stdout
    sizes = [4 * len(re.findall(r"\b[0-9A-F]{8}\b", l.split("//")[1].split(":", 1)[1].split("<")[0])) for l in dis.splitlines() if "//" in l]
    assert len(sizes) == len(ins), (len(sizes), len(ins))
    it = iter(sizes)
    return [0 if (not l or l.endswith(":")) else next(it) for l in body]


def merge_streams(o, o3, tour3):
    import re
    go = o.index("KF_go:")
    assert o[:go] == o3[:go]
    call = lambda t: f"s_call_b64 s[{sRET}:{sRET+1}], {t}"
    lp, le = o3.index("KF_loop:"), o3.index("s_cbranch_scc1 KF_loop")
    head = []
    nb = 0
    for l in o3[:lp]:
        if l == "s_barrier":
            nb += 1
            if tour3 and 2 <= nb <= 11:
                head += ["s_mov_b64 exec, 0", call(f"KF_EAR{nb-2}"), "s_mov_b64 exec, -1"]
        head.append(l)
    out = head + ["s_getpc_b64 s[52:53]", "KF_pc2:", "s_sub_u32 s52, s52, KF_pc2-KX_go", "s_subb_u32 s53, s53, 0", "v_lshlrev_b32 v92, 12, v0",
                     "v_min_u32 v92, KX_end-KX_go-4, v92", "v_mov_b32 v93, s53", "v_add_co_u32 v92, vcc, s52, v92", "s_nop 1",
                     "v_addc_co_u32 v93, vcc, 0, v93, vcc"]
    site = 0
    for l in o3[lp:le]:
        if l == "s_barrier":
            for t in range(3):
                out += [f"s_cmp_eq_u32 s{sCNT}, {3-t}", f"s_cbranch_scc0 KF_h{site}_{t}", "s_mov_b64 exec, 0", call(f"KF_HOP{6*t+site}"),
                        "s_mov_b64 exec, -1", f"KF_h{site}_{t}:"]
            site += 1
        out.append(l)
        if l == "s_barrier" and site == 5:
            out.append("global_load_dword v94, v[92:93], off")
    assert site == 6
    out += o3[le:]
    o3 = insert_stubs(out)
    o = insert_stubs(o)
    off_ = False
    for l in o3:
        off_ = l == "s_mov_b64 exec, 0" or (off_ and l != "s_mov_b64 exec, -1")
        assert not (off_ and "execz" in l)
    early, late = [], []
    for pre, t in (("KX", o), ("KF", o3)):
        e = t.index("s_cbranch_scc1 KF_loop")
        for k, l in enumerate(t):
            m = re.match(r"KF_(pg\d+):", l)
            if m:
                (early if k < e else late).append((int(m.group(1)[2:]), f"{pre}_{m.group(1)}"))
    early = [x for _, x in sorted(early)]
    late = [x for _, x in sorted(late)]
    assert len(late) <= 18
    if tour3:
        early = [x for x in early if x not in ("KF_pg1", "KF_pg2", "KF_pg3")]
        assert len(early) <= 10
        o3 = [re.sub(r"KF_EAR(\d+)", lambda m: early[int(m.group(1))] if int(m.group(1)) < len(early) else "KX_tramp", l) for l in o3]
        early = []
    o3 = [re.sub(r"KF_HOP(\d+)", lambda m: late[int(m.group(1))] if int(m.group(1)) < len(late) else "KX_tramp", l) for l in o3]
    o3 = [re.sub(r"execz KF_\w+", "execz KX_tramp", l) for l in o3]
    o = [re.sub(r"execz KF_\w+", "execz KF_tramp", l) for l in o]
    ren = lambda l: l.replace("KF_", "KG_").replace("KX_", "KF_")
    tour = ["s_mov_b64 exec, 0"]
    for w in range(4):
        if w < 3:
            tour += [f"s_cmp_eq_u32 s{sW}, {w}", f"s_cbranch_scc0 KF_tw{w}"]
        tour += [call(ren(x)) for x in early[w::4]]
        tour += ["s_mov_b64 exec, -1", "s_branch KF_go" if w < 3 else "s_branch KG_go"]
        if w < 3:
            tour += [f"KF_tw{w}:"]
    if tour3:
        tour = [f"s_cmp_eq_u32 s{sW}, 3", "s_cbranch_scc1 KG_go", "s_branch KF_go"]
    k = o.index("s_branch KF_go")
    o = o[:k] + tour + ["KF_tramp:", f"s_setpc_b64 s[{sRET}:{sRET+1}]"] + o[k + 1:]
    return o[:-1] + [".p2align 12"] + [ren(l) for l in o3[go:-1]] + ["KF_end:"]


def insert_stubs(lines):
    import re
    go = lines.index("KF_go:")
    end = lines.index("KF_done:")
    body = lines[go + 1:end]
    sz = line_sizes(body)
    out = []
    off = 0
    page = 1
    k = 0
    while k < len(body):
        if off >= page * 4096:
            best = k
            o, j = off, k
            while j < len(body) and o <= page * 4096 + 56:
                prev = body[j - 1]
                if prev.startswith("v_mfma") and body[j].startswith(("v_", "ds_")):
                    best = j
                    break
                o += sz[j]
                j += 1
            while k < best:
                out.append(body[k])
                off += sz[k]
                k += 1
            out += [f"KF_pg{page}:", f"s_cbranch_execz KF_pg{page+4}"]
            off += 4
            page += 1
        out.append(body[k])
        off += sz[k]
        k += 1
    out = [re.sub(r"execz KF_pg(\d+)", lambda m: m.group(0) if int(m.group(1)) < page else "execz KF_tret", l) for l in out]
    return lines[:go + 1] + out + lines[end:]


HDR = open("standalone__mha_block_cached__near_ridge.s.ref").read().split("; Override launch")[0]
NAME = "standalone__mha_block_cached__near_ridge_kernel"


def generate(over=None):
    cfg = dict(DEFAULT)
    if (over or {}).get("R", 1):
        cfg.update(RCFG)
    cfg.update(over or {})
    NS = cfg["nskip"]
    if not cfg.get("skipwin"):
        cfg["skipwin"] = [(1 + (24 // NS) * k, 24 // NS) for k in range(NS)]
    W_ = cfg["skipwin"]
    assert len(W_) == NS and all(a + n <= b for (a, n), (b, _) in zip(W_, W_[1:] + [(cfg["dynmax"] + 1, 0)]))
    cfg["skips"] = [lo for lo, _ in W_]
    pats = sorted({tuple(lo + i % per for lo, per in W_) for i in range(39)})
    o, p, P, ST = build(cfg)
    assert not p, p[:10]
    if NS:
        for off in (pats if not cfg.get("quick") else [pats[-1]]):
            c2 = dict(cfg, skips=list(off), vmforce={j: w.meta["vm"] for j, w in P.itwait.items()})
            o2, p2, _, _ = build(c2)
            assert not p2 and o2 == o, (off, p2[:5], [(a, b) for a, b in zip(o, o2) if a != b][:5])
    if cfg["split3"]:
        o3, p3, P3, _ = build(dict(cfg, w3=True))
        assert not p3, p3[:10]
        for off in (pats if NS else []):
            o2, p2, _, _ = build(dict(cfg, w3=True, skips=list(off), vmforce={j: w.meta["vm"] for j, w in P3.itwait.items()}))
            assert not p2 and o2 == o3
        o = merge_streams(o, o3, cfg["tour3"])
    elif cfg["tour"]:
        o = insert_stubs(o)
    if cfg.get("verbose"):
        print(P.slack, file=sys.stderr)
        print(len(P.notes), "nops inserted:", P.notes, file=sys.stderr)
    if P.warn or P.overfull():
        print("warn", len(P.warn), P.warn[:6], "overfull", P.overfull(), file=sys.stderr)
    dg = cfg.get("diag")
    if dg:
        s = HDR + f"; @launch kernel={NAME} grid=(256,1,1) block=(256,1,1) lds={LDS_BYTES}\n; @launch kernel=diag_kernel grid=(1,1,1) block=(64,1,1) lds=0\n"
    else:
        s = HDR + f"; @launch grid=(256,1,1) block=(256,1,1) lds={LDS_BYTES}\n"
    if ST.on:
        s += "; STAMPS " + " ".join(ST.names) + "\n"
    s += '.amdgcn_target "amdgcn-amd-amdhsa--gfx950"\n.text\n'
    s += f".globl {NAME}\n.p2align 8\n.type {NAME},@function\n{NAME}:\n" + "\n".join(l for l in o if l) + "\n"
    if dg:
        import gen
        def addr(x):
            wg, nm = x
            return STAMP_OFF + wg * 1024 + (252 if nm == "xcc" else 8 * ST.names.index(nm) + 4)
        s += ".globl diag_kernel\n.p2align 8\n.type diag_kernel,@function\ndiag_kernel:\n" + "\n".join(gen.diag_kernel(addr(dg[0]), addr(dg[1]), dg[2])) + "\n"
    s += f""".section .rodata,"a"
.p2align 6
.amdhsa_kernel {NAME}
  .amdhsa_next_free_vgpr 512
  .amdhsa_next_free_sgpr 102
  .amdhsa_accum_offset 256
  .amdhsa_group_segment_fixed_size 0
  .amdhsa_kernarg_size 64
  .amdhsa_user_sgpr_count 2
  .amdhsa_user_sgpr_kernarg_segment_ptr 1
  .amdhsa_system_sgpr_workgroup_id_x 1
.end_amdhsa_kernel
"""
    if dg:
        s += ".p2align 6\n" + gen.kd("diag_kernel", 8, 8) + "\n"
    return s


if __name__ == "__main__":
    over = eval(sys.argv[2]) if len(sys.argv) > 2 else None
    open(sys.argv[1], "w").write(generate(over))
```
